```python
import torch

def _softmax(x, axis=-1):
    return torch.softmax(x, dim=axis)
def _gelu(x):
    return torch.nn.functional.gelu(x, approximate="tanh")
def _silu(x):
    return torch.nn.functional.silu(x)
def _sigmoid(x):
    return torch.sigmoid(x)
def _layernorm(x, axis=-1, eps=1e-5):
    m = x.mean(dim=axis, keepdim=True)
    v = x.var(dim=axis, keepdim=True, unbiased=False)
    return (x - m) / torch.sqrt(v + eps)
def _scatter_add(tgt, idx, src, axis=0):
    return tgt.clone().index_add_(axis, idx, src)
def _segment_sum(src, seg, n):
    out = torch.zeros((n,) + src.shape[1:], dtype=src.dtype)
    return out.index_add_(0, seg, src)
def _pad(x, pw):
    flat = tuple(v for pair in reversed(pw) for v in pair)
    return torch.nn.functional.pad(x, flat)

kernel_name = 'standalone__mpnn_edge_mlp__graph'

def setup_inputs():

    _w = (lambda a: (lambda t: t.to(torch.bfloat16) if t.is_floating_point() else t)(torch.as_tensor(a)))
    N, deg, D, De = 25000, 32, 64, max(0, 1)
    E = N * deg
    return {
        "x": _w((lambda *s: torch.randn(*s, dtype=torch.bfloat16) * 0.05)(N, D)),
        "e_attr": _w((lambda *s: torch.randn(*s, dtype=torch.bfloat16) * 0.4)(E, De)),
        "src": _w((lambda lo, hi, *s: torch.randint(lo, hi, s))(0, N, E).to(torch.int64)),
        "dst": _w((lambda lo, hi, *s: torch.randint(lo, hi, s))(0, N, E).to(torch.int64)),
        "w_msg": _w((lambda *s: torch.randn(*s, dtype=torch.bfloat16) * 0.4)(2 * D + De, D)),
        "w_upd": _w((lambda *s: torch.randn(*s, dtype=torch.bfloat16) * 0.05)(2 * D, D)),
    }

def reference(x, e_attr, src, dst, w_msg, w_upd):
    N, D = x.shape
    m_in = torch.concatenate([x[src], x[dst], e_attr], axis=-1)
    msg = _silu(m_in @ w_msg)
    agg = _segment_sum(msg, dst, N)
    return _silu(torch.concatenate([x, agg], axis=-1) @ w_upd)
```

```python
import struct, sys, os


def env(name, d):
    return int(os.environ.get(name, str(d)), 0)


DEBUG = env('DEBUG', 0)
DEBUG_WG = env('DEBUG_WG', 5)
NW1 = env('NW1', 0)
NW2 = env('NW2', 0)
K1_LD = os.environ.get('K1_LD', '')
K1_ST = os.environ.get('K1_ST', '')
K2_LD = os.environ.get('K2_LD', '')
PRIO = env('PRIO', 0)

N = 25000
E = 800000
NCH = 250
CH = 3200
NB = 256
NLOC = 98
CU = 1240
DMAX = 62

WS_REC = 0
WS_TAB = 0x500000
WS_WF = 0x580000
WF_W1 = 0
WF_W2 = 8192
WF_WX = 16384
WF_LUT = 24576
WF_W3 = WF_LUT + 2048
WF_WA = 28672
WF_LUT2 = 36864
WS_SIZE = 0x600000
LS = (16, 17, 18, 32)
assert NCH * CU * 16 <= WS_TAB

LOG2E = 1.4426950408889634
LN2 = 0.6931471805599453


def f32(x):
    return struct.unpack("<I", struct.pack("<f", x))[0]


class Asm:
    def __init__(self):
        self.l = []

    def __call__(self, s):
        for x in s.split("\n"):
            x = x.strip()
            if x:
                self.l.append("    " + x)

    def label(self, s):
        self.l.append(s + ":")

    def raw(self, s):
        self.l.append(s)

    def text(self):
        return "\n".join(self.l) + "\n"


def vr(a, n):
    return "v[%d:%d]" % (a, a + n - 1)


def sr(a, n):
    return "s[%d:%d]" % (a, a + n - 1)


DPP_STEPS = ["row_shr:1 row_mask:0xf", "row_shr:2 row_mask:0xf", "row_shr:4 row_mask:0xf", "row_shr:8 row_mask:0xf",
             "row_bcast:15 row_mask:0xa", "row_bcast:31 row_mask:0xc"]


def dpp_scan(a, regs, op="v_add_u32", fill=()):
    fill = list(fill)
    for st in DPP_STEPS:
        n = 3 - len(regs)
        while n > 0 and fill:
            a(fill.pop(0))
            n -= 1
        if n > 0:
            a("s_nop %d" % (n - 1))
        for v in regs:
            a("%s_dpp v%d, v%d, v%d %s bank_mask:0xf" % (op, v, v, v, st))
    for x in fill:
        a(x)


K1_THREADS = 832
K1_CNT = 0
K1_START = 1024
K1_TOT = 2048
K1_STAGE = 2064
K1_LDS = K1_STAGE + CU * 16


def k1_warm(a, vt, vd):
    if NW1:
        a("s_lshr_b32 s3, s2, 3")
        a("s_mul_i32 s3, s3, 782")
        a("v_min_u32 v%d, %d, v0" % (vt, NW1 - 1))
        a("v_add_u32 v%d, s3, v%d" % (vt, vt))
        a("v_min_u32 v%d, %d, v%d" % (vt, N - 1, vt))
        a("v_lshlrev_b32 v%d, 7, v%d" % (vt, vt))
        a("global_load_dword v%d, v%d, s[14:15]" % (vd, vt))


def gen_sort(a):
    w = 1 if NW1 else 0
    a.raw(".globl sort_kernel\n.p2align 8\n.type sort_kernel,@function")
    a.label("sort_kernel")
    a("s_cmp_ge_u32 s2, %d" % NCH)
    a("s_cbranch_scc1 L1_prep")
    a("s_load_dwordx4 s[4:7], s[0:1], 8")
    a("s_load_dwordx2 s[8:9], s[0:1], 24")
    a("s_load_dwordx2 s[10:11], s[0:1], 64")
    a("s_load_dwordx2 s[14:15], s[0:1], 0")
    a("s_mul_i32 s3, s2, %d" % (CH * 4))
    a("v_lshlrev_b32 v6, 4, v0")
    a("v_add_u32 v3, s3, v6")
    a("v_lshrrev_b32 v4, 1, v3")
    a("v_cmp_gt_u32 s[16:17], %d, v0" % (CH // 4) if False else "v_cmp_gt_u32 vcc, %d, v0" % (CH // 4))
    a("v_mov_b32 v40, 0")
    a("v_mov_b32 v41, 0")
    a("v_mov_b32 v42, 0")
    a("v_mov_b32 v43, 0")
    a("s_mov_b64 s[16:17], vcc")
    a("s_mov_b64 exec, vcc")
    a("s_waitcnt lgkmcnt(0)")
    a("global_load_dwordx4 v[8:11], v3, s[8:9] %s" % K1_LD)
    a("global_load_dwordx4 v[12:15], v3, s[6:7] %s" % K1_LD)
    a("global_load_dwordx2 v[16:17], v4, s[4:5] %s" % K1_LD)
    a("s_mov_b64 exec, -1")
    k1_warm(a, 62, 63)
    nz = K1_LDS // 16
    a("ds_write_b128 v6, v[40:43]")
    a("v_cmp_gt_u32 vcc, %d, v0" % (nz - K1_THREADS))
    a("s_and_saveexec_b64 s[18:19], vcc")
    a("ds_write_b128 v6, v[40:43] offset:%d" % (K1_THREADS * 16))
    a("s_mov_b64 exec, s[16:17]")
    a("v_mov_b32 v5, 1")
    a("s_mov_b32 s12, 0xffff0000")
    a("s_mov_b32 s13, 21846")
    a("s_waitcnt lgkmcnt(0)")
    a("s_barrier")
    a("s_waitcnt vmcnt(%d)" % (2 + w))
    for i in range(4):
        a("v_lshlrev_b32_sdwa v%d, 2, v%d dst_sel:DWORD dst_unused:UNUSED_PAD src0_sel:DWORD src1_sel:BYTE_0" % (20 + i, 8 + i))
        a("ds_add_rtn_u32 v%d, v%d, v5 offset:%d" % (24 + i, 20 + i, K1_CNT))
    for i in range(4):
        a("v_lshrrev_b32 v%d, 8, v%d" % (8 + i, 8 + i))
        a("v_add_u32 v%d, 1, v%d" % (8 + i, 8 + i))
    a("s_waitcnt vmcnt(%d)" % w)
    a("v_lshl_or_b32 v12, v16, 16, v12")
    a("v_and_or_b32 v13, v16, s12, v13")
    a("v_lshl_or_b32 v14, v17, 16, v14")
    a("v_and_or_b32 v15, v17, s12, v15")
    a("s_waitcnt lgkmcnt(0)")
    a("s_barrier")
    a("v_cmp_gt_u32 vcc, 64, v0")
    a("s_cbranch_vccz L1_noscan")
    a("ds_read_b128 v[40:43], v6 offset:%d" % K1_CNT)
    a("s_and_b32 s3, s2, 7")
    a("s_lshl_b32 s3, s3, 5")
    a("s_lshr_b32 s18, s2, 3")
    a("s_add_u32 s3, s3, s18")
    a("s_lshl_b32 s3, s3, 2")
    a("s_add_u32 s3, s3, %d" % WS_TAB)
    a("v_lshl_add_u32 v7, v0, 12, s3")
    a("s_mul_i32 s18, s2, %d" % (CU * 16))
    a("s_waitcnt lgkmcnt(0)")
    for i in range(4):
        a("v_add_u32 v%d, 2, v%d" % (40 + i, 40 + i))
        a("v_mul_u32_u24 v%d, s13, v%d" % (40 + i, 40 + i))
        a("v_lshrrev_b32 v%d, 16, v%d" % (40 + i, 40 + i))
    a("v_add_u32 v45, v40, v41")
    a("v_add_u32 v46, v45, v42")
    a("v_add_u32 v47, v46, v43")
    a("v_mov_b32 v48, v47")
    dpp_scan(a, [48], fill=["v_min_u32 v%d, 255, v%d" % (56 + i, 40 + i) for i in range(4)] +
             ["v_lshlrev_b32 v%d, 23, v%d" % (56 + i, 56 + i) for i in range(4)])
    a("v_sub_u32 v52, v48, v47")
    a("v_add_lshl_u32 v53, v52, v40, 4")
    a("v_add_lshl_u32 v54, v52, v45, 4")
    a("v_add_lshl_u32 v55, v52, v46, 4")
    a("v_lshlrev_b32 v52, 4, v52")
    a("ds_write_b128 v6, v[52:55] offset:%d" % K1_START)
    a("v_mov_b32 v49, %d" % (K1_TOT - 63 * 4))
    a("v_lshl_add_u32 v49, v0, 2, v49")
    a("v_cmp_eq_u32 vcc, 63, v0")
    for i in range(4):
        a("v_add3_u32 v%d, v%d, v%d, s18" % (56 + i, 56 + i, 52 + i))
    for i in range(4):
        a("global_store_dword v7, v%d, s[10:11] offset:%d" % (56 + i, 1024 * i))
    a("s_mov_b64 exec, vcc")
    a("ds_write_b32 v49, v48")
    a("s_mov_b64 exec, -1")
    a("s_waitcnt lgkmcnt(0)")
    a.label("L1_noscan")
    for i in range(4):
        a("v_mul_u32_u24 v%d, s13, v%d" % (28 + i, 24 + i))
        a("v_lshrrev_b32 v%d, 16, v%d" % (28 + i, 28 + i))
        a("v_mad_u32_u24 v%d, v%d, 13, v%d" % (32 + i, 28 + i, 24 + i))
        a("v_add_lshl_u32 v%d, v%d, v%d, 2" % (28 + i, 28 + i, 24 + i))
    a("s_barrier")
    for i in range(4):
        a("ds_read_b32 v%d, v%d offset:%d" % (24 + i, 20 + i, K1_START))
    for i in range(4):
        a("s_waitcnt lgkmcnt(%d)" % (3 - i + 2 * i))
        a("v_add_u32 v%d, v%d, v%d" % (28 + i, 28 + i, 24 + i))
        a("v_add_u32 v%d, v%d, v%d" % (32 + i, 32 + i, 24 + i))
        a("ds_write_b32 v%d, v%d offset:%d" % (28 + i, 12 + i, K1_STAGE))
        a("ds_write_b8 v%d, v%d offset:%d" % (32 + i, 8 + i, K1_STAGE + 12))
    a("s_mov_b64 exec, -1")
    a("v_mov_b32 v9, %d" % K1_TOT)
    a("ds_read_b32 v9, v9")
    a("s_mul_i32 s3, s2, %d" % (CU * 16))
    a("v_add_u32 v7, s3, v6")
    a("v_add_u32 v10, %d, v0" % K1_THREADS)
    a("v_add_u32 v8, %d, v7" % (K1_THREADS * 16))
    a("s_waitcnt lgkmcnt(0)")
    a("s_barrier")
    a("ds_read_b128 v[40:43], v6 offset:%d" % K1_STAGE)
    a("v_cmp_lt_u32 vcc, v10, v9")
    a("s_and_saveexec_b64 s[18:19], vcc")
    a("ds_read_b128 v[44:47], v6 offset:%d" % (K1_STAGE + K1_THREADS * 16))
    a("s_mov_b64 exec, -1")
    a("s_waitcnt lgkmcnt(0)")
    a("global_store_dwordx4 v7, v[40:43], s[10:11] %s" % K1_ST)
    a("s_mov_b64 exec, vcc")
    a("s_cbranch_execz L1_end")
    a("global_store_dwordx4 v8, v[44:47], s[10:11] %s" % K1_ST)
    a("s_endpgm")

    a.label("L1_prep")
    a("s_cmp_ge_u32 s2, %d" % NB)
    a("s_cbranch_scc1 L1_end")
    a("s_load_dwordx4 s[4:7], s[0:1], 32")
    a("s_load_dwordx2 s[10:11], s[0:1], 64")
    a("s_load_dwordx2 s[14:15], s[0:1], 0")
    a("v_lshrrev_b32 v1, 6, v0")
    a("s_sub_u32 s13, s2, %d" % NCH)
    a("v_readfirstlane_b32 s12, v1")
    a("v_and_b32 v1, 63, v0")
    a("v_and_b32 v2, 31, v1")
    a("v_lshrrev_b32 v3, 5, v1")
    a("s_waitcnt lgkmcnt(0)")
    k1_warm(a, 62, 63)
    a("s_cmp_lt_u32 s12, 8")
    a("s_cbranch_scc1 L1_job")
    a("s_cmp_ge_u32 s12, 12")
    a("s_cbranch_scc1 L1_end")
    a("s_and_b32 s3, s2, 7")
    a("s_lshl_b32 s3, s3, 5")
    a("s_add_u32 s3, s3, 31")
    a("s_lshl_b32 s3, s3, 2")
    a("s_add_u32 s3, s3, %d" % (WS_TAB - 512 * 1024))
    a("v_lshl_add_u32 v4, v0, 10, s3")
    a("v_mov_b32 v5, 0")
    a("global_store_dword v4, v5, s[10:11]")
    a("s_endpgm")
    a.label("L1_job")
    a("s_cmp_ge_u32 s13, 4")
    a("s_cbranch_scc1 L1_w3")
    a("s_mov_b32 s16, 8")
    a("s_mov_b32 s17, 4")
    a("s_mov_b32 s18, 1.0")
    a("s_lshr_b32 s14, s12, 2")
    a("s_lshl_b32 s14, s14, 5")
    a("s_and_b32 s15, s12, 3")
    a("s_lshl_b32 s15, s15, 4")
    a("s_and_b32 s22, s13, 1")
    a("s_lshl_b32 s22, s22, 6")
    a("s_add_u32 s15, s15, s22")
    a("s_cmp_eq_u32 s13, 0")
    a("s_cselect_b32 s18, 0x%08x, s18" % f32(-LOG2E))
    a("s_cmp_ge_u32 s13, 2")
    a("s_cselect_b32 s20, s6, s4")
    a("s_cselect_b32 s21, s7, s5")
    a("s_lshl_b32 s19, s13, 13")
    a("s_cmp_eq_u32 s13, 3")
    a("s_cselect_b32 s16, 4, s16")
    a("s_cselect_b32 s17, 8, s17")
    a("s_cselect_b32 s19, %d, s19" % WF_WA)
    a("s_lshl_b32 s22, s12, 10")
    a("s_add_u32 s19, s19, s22")
    a("s_add_u32 s19, s19, %d" % WS_WF)
    a("v_mul_lo_u32 v4, v3, s16")
    a("v_add_u32 v4, s15, v4")
    a("v_lshlrev_b32 v4, 6, v4")
    a("v_add_u32 v4, v4, v2")
    a("v_add_u32 v4, s14, v4")
    a("v_lshlrev_b32 v4, 1, v4")
    a("s_lshl_b32 s17, s17, 7")
    a("v_add_u32 v5, s17, v4")
    for i in range(4):
        a("global_load_ushort v%d, v4, s[20:21] offset:%d" % (8 + i, 128 * i))
    for i in range(4):
        a("global_load_ushort v%d, v5, s[20:21] offset:%d" % (12 + i, 128 * i))
    a("v_lshlrev_b32 v6, 4, v1")
    a("v_add_u32 v6, s19, v6")
    a("s_waitcnt vmcnt(0)")
    for i in range(8):
        a("v_lshlrev_b32 v%d, 16, v%d" % (8 + i, 8 + i))
        a("v_mul_f32 v%d, s18, v%d" % (8 + i, 8 + i))
    for i in range(4):
        a("v_cvt_pk_bf16_f32 v%d, v%d, v%d" % (16 + i, 8 + 2 * i, 9 + 2 * i))
    a("global_store_dwordx4 v6, v[16:19], s[10:11]")
    a("s_endpgm")
    a.label("L1_w3")
    a("s_cmp_ge_u32 s13, 5")
    a("s_cbranch_scc1 L1_end")
    a("s_cmp_ge_u32 s12, 2")
    a("s_cbranch_scc1 L1_lut")
    a("s_lshl_b32 s14, s12, 5")
    a("v_add_u32 v4, s14, v2")
    a("v_lshlrev_b32 v4, 1, v4")
    a("v_add_u32 v4, %d, v4" % (128 * 128))
    a("global_load_ushort v8, v4, s[4:5]")
    a("s_lshl_b32 s19, s12, 8")
    a("s_add_u32 s19, s19, %d" % (WS_WF + WF_W3))
    a("v_lshlrev_b32 v6, 2, v1")
    a("v_add_u32 v6, s19, v6")
    a("v_cmp_eq_u32 vcc, 0, v3")
    a("s_waitcnt vmcnt(0)")
    a("v_lshlrev_b32 v8, 16, v8")
    a("v_mul_f32 v8, 0x%08x, v8" % f32(-LOG2E))
    a("v_mov_b32 v11, 0")
    a("v_cvt_pk_bf16_f32 v9, v11, v8")
    a("v_sub_f32 v10, v8, v9")
    a("v_cvt_pk_bf16_f32 v10, v11, v10")
    a("v_cndmask_b32 v9, v10, v9, vcc")
    a("global_store_dword v6, v9, s[10:11]")
    a("s_endpgm")
    a.label("L1_lut")
    a("s_cmp_ge_u32 s12, %d" % (2 + len(LS)))
    a("s_cbranch_scc1 L1_end")
    a("s_mov_b32 s14, %d" % LS[0])
    a("s_mov_b32 s19, %d" % (WS_WF + WF_LUT))
    for i in range(1, len(LS)):
        a("s_cmp_eq_u32 s12, %d" % (2 + i))
        a("s_cselect_b32 s14, %d, s14" % LS[i])
        a("s_cselect_b32 s19, %d, s19" % (WS_WF + WF_LUT2 + 2048 * (i - 1)))
    a("s_lshl_b32 s15, s14, 1")
    a("s_add_u32 s16, s15, s14")
    a("v_subrev_u32 v4, 1, v1")
    a("v_max_i32 v4, 0, v4")
    a("v_cmp_lt_u32 vcc, s15, v4")
    a("v_cmp_lt_u32_e64 s[20:21], s16, v4")
    a("v_mov_b32 v5, 2")
    a("v_mov_b32 v6, 32768")
    a("v_mov_b32 v7, 21846")
    a("v_cndmask_b32 v5, v5, 3, vcc" if False else "v_cndmask_b32_e64 v5, v5, 3, vcc")
    a("v_cndmask_b32 v6, v6, v7, vcc")
    a("v_mov_b32 v7, 16384")
    a("v_cndmask_b32_e64 v5, v5, 4, s[20:21]")
    a("v_cndmask_b32_e64 v6, v6, v7, s[20:21]")
    a("v_add3_u32 v7, v4, v5, -1")
    a("v_mul_u32_u24 v7, v7, v6")
    a("v_lshrrev_b32 v7, 16, v7")
    a("v_mov_b32 v9, 0")
    for i in range(4):
        a("v_min_u32 v10, v9, v4")
        a("v_sub_u32 v11, v4, v10")
        a("v_min_u32 v11, v11, v7")
        a("v_lshlrev_b32 v10, 2, v10")
        a("v_lshl_or_b32 v%d, v11, 16, v10" % (16 + i))
        a("v_add_u32 v9, v9, v7")
    a("v_lshl_or_b32 v16, v5, 22, v16")
    a("v_sub_u32 v9, s14, v7")
    a("v_min_u32 v9, 5, v9")
    a("v_mul_u32_u24 v22, 10, v9")
    a("v_cmp_le_u32 vcc, 3, v9")
    a("v_add_u32 v10, 2, v22")
    a("v_mov_b32 v12, v5")
    a("v_mov_b32 v13, 0")
    a("v_cndmask_b32 v22, v22, v10, vcc")
    a("v_cmp_ne_u32 vcc, 0, v1")
    a("v_lshlrev_b64 v[20:21], v22, v[12:13]")
    a("v_mov_b32 v23, 0")
    a("v_cndmask_b32 v20, v13, v20, vcc")
    a("v_cndmask_b32 v21, v13, v21, vcc")
    a("v_lshlrev_b32 v6, 5, v1")
    a("v_add_u32 v6, s19, v6")
    a("global_store_dwordx4 v6, v[16:19], s[10:11]")
    a("global_store_dwordx4 v6, v[20:23], s[10:11] offset:16")
    a.label("L1_end")
    a("s_endpgm")


RSTR = 272
SSTR = 260
L_CNT = 0
L_FLAG = 544
L_ZERO = 608
L_ZEND = 880
L_DUM = 880
L_NL = L_DUM + 256
L_LUT = 2048
L_SLOT = L_LUT + 4096
L_SEND = L_SLOT + (99 * SSTR + 160 + 15) // 16 * 16
L_XT = (L_SEND + 255) // 256 * 256
XSTR = 32 * RSTR
L_Q = L_XT + 8 * XSTR
L_R = L_Q + NLOC * RSTR
K2_LDS = L_R + NLOC * RSTR
assert L_NL + 512 <= L_LUT
assert L_SEND < 65536 - 256
assert K2_LDS <= 163840, K2_LDS
assert 8 * XSTR >= NCH * 48 * 4
PAD = 0x7F00
F_SLOW = L_FLAG + 40
F_PEND = L_FLAG + 44

V_LANE = 1
V_BAD = 4
V_IA = 8
V_RA = 12
V_LEN = 13
V_S = 14
V_IDX = 16
V_R = 24
V_YW = 26
V_RC = 27
V_QA = 28
V_NW = 29
V_L16 = 30
V_W = 31
V_T0 = 32
V_DONE = 39
V_AE = 40
V_A1 = 48
V_C = (80, 96)
V_T = (112, 128)
V_N = (144, 160)
V_D = (176, 192)
V_U = 208
V_B = (224, 240)

S_X = 4
S_WS = 8
S_OUT = 12
S_B = 16
S_W = 17
S_BT = 18
S_XT = 19
S_ML = 20
S_J = 21
S_ONE = 22
S_M = (24, 26)
S_M0 = 28
S_MODE = 30
S_SAFE = 31
S_HI = 32
S_NEED = 34
S_LI = 35
S_EXTRA = 36
S_XT1 = 37
S_POS = 38
S_T = 40
S_SL = 56


def mfma_chain(X, j, dst):
    B = V_B[j & 1]
    out = ["v_mfma_f32_32x32x8_bf16 %s, %s, %s, %s" % (
        vr(dst, 16), vr(V_AE + 4 * X + 2 * (j & 1), 2), vr(V_R, 2), vr(V_C[X], 16))]
    for k in range(4):
        out.append("v_mfma_f32_32x32x16_bf16 %s, %s, %s, %s" % (
            vr(dst, 16), vr(V_A1 + 16 * X + 4 * k, 4), vr(B + 4 * k, 4), vr(dst, 16)))
    return out


def exps(src):
    return ["v_exp_f32 v%d, v%d" % (V_U + i, src + i) for i in range(16)]


def pk_first(X):
    return ["v_pk_add_f32 %s, %s, %s" % (vr(V_D[X] + 2 * i, 2), vr(V_U + 2 * i, 2), sr(S_ONE, 2)) for i in range(8)]


def pk_update(X):
    n, d, u, t = V_N[X], V_D[X], V_U, V_T[X]
    A = ["v_pk_fma_f32 %s, %s, %s, %s" % (vr(n + 2 * i, 2), vr(n + 2 * i, 2), vr(u + 2 * i, 2), vr(n + 2 * i, 2)) for i in range(8)]
    B = ["v_pk_fma_f32 %s, %s, %s, %s" % (vr(n + 2 * i, 2), vr(t + 2 * i, 2), vr(d + 2 * i, 2), vr(n + 2 * i, 2)) for i in range(8)]
    C = ["v_pk_fma_f32 %s, %s, %s, %s" % (vr(d + 2 * i, 2), vr(d + 2 * i, 2), vr(u + 2 * i, 2), vr(d + 2 * i, 2)) for i in range(8)]
    return A + B + C


def phase(a, mf, ex, side, start=0):
    side = list(side)
    mf = list(mf)
    for i, e in enumerate(ex):
        if i % 3 == 0 and mf:
            a(mf.pop(0))
        a(e)
        if i >= start and side:
            x = side.pop(0)
            for y in (x if isinstance(x, (list, tuple)) else [x]):
                a(y)
    assert not mf
    for x in side:
        for y in (x if isinstance(x, (list, tuple)) else [x]):
            a(y)


def b_reads(tile):
    return ["ds_read_b128 %s, v%d offset:%d" % (vr(V_B[tile & 1] + 4 * k, 4), V_BAD + k, 4096 * (tile & 1)) for k in range(4)]


def idx_reads(off):
    return ["ds_read_u16 v%d, v%d offset:%d" % (V_IDX + 2 * i, V_IA + i, off) for i in range(4)]


def dma(slot):
    out = []
    for i in range(4):
        base = S_XT1 if slot else S_XT
        out.append("s_mov_b32 m0, s%d" % base if i == 0 else "s_add_u32 m0, s%d, %d" % (base, 1024 * i))
        out.append("buffer_load_dwordx4 %s, %s, 0 idxen offen lds" % (vr(V_IDX + 2 * i, 2), sr(S_X, 4)))
    return out


def dma_plain(a, slot):
    d = dma(slot)
    for i in range(4):
        a(d[2 * i])
        a("s_nop 0")
        a(d[2 * i + 1])


def row_reads(dst, addr):
    return ["ds_read_b128 %s, v%d offset:%d" % (vr(dst[X] + 4 * q, 4), addr, 128 * X + 32 * q) for X in range(2) for q in range(4)]


def gl_frags(dst, off):
    out = ["s_mov_b32 s%d, %d" % (S_T, WS_WF + off), "s_mov_b32 s%d, %d" % (S_T + 1, WS_WF + off + 4096)]
    for f in range(8):
        out.append("buffer_load_dwordx4 %s, v%d, %s, s%d offen offset:%d" % (
            vr(dst + 4 * f, 4), V_L16, sr(S_WS, 4), S_T + (f >> 2), 1024 * (f & 3)))
    return out


def stamp(a, k):
    if DEBUG:
        a("s_memtime s[88:89]")
        a("s_waitcnt lgkmcnt(0)")
        a("v_writelane_b32 v38, s88, %d" % k)


def stamp_out(a):
    if DEBUG:
        a("s_cmp_lg_u32 s2, %d" % DEBUG_WG)
        a("s_cbranch_scc1 L2_nostamp")
        a("s_bitcmp1_b32 s%d, 1" % S_W)
        a("s_cbranch_scc1 L2_nostamp")
        a("s_load_dwordx2 s[84:85], s[0:1], 56")
        a("v_lshlrev_b32 v2, 2, v%d" % V_LANE)
        a("s_and_b32 s3, s%d, 1" % S_W)
        a("s_lshr_b32 s86, s%d, 2" % S_W)
        a("s_lshl_b32 s86, s86, 1")
        a("s_add_u32 s3, s3, s86")
        a("s_lshl_b32 s3, s3, 6")
        a("v_add_u32 v2, s3, v2")
        a("s_waitcnt lgkmcnt(0)")
        a("s_mov_b64 exec, 0xffff")
        a("global_store_dword v2, v38, s[84:85]")
        a("s_mov_b64 exec, -1")
        a.label("L2_nostamp")


def lds_init(a, t):
    a("v_mov_b32 v%d, 0x%x" % (t, PAD))
    a("v_mov_b32 v%d, 0x%x" % (t + 1, PAD))
    a("v_mov_b32 v%d, 0x%x" % (t + 2, PAD))
    a("v_mov_b32 v%d, 0x%x" % (t + 3, PAD))
    a("v_lshlrev_b32 v%d, 4, v0" % (t + 4))
    n = (L_SEND - L_SLOT) // 16
    for i in range(n // 512):
        a("ds_write_b128 v%d, %s offset:%d" % (t + 4, vr(t, 4), L_SLOT + 8192 * i))
    a("v_cmp_gt_u32 vcc, %d, v0" % (n % 512))
    a("v_lshlrev_b32 v%d, 2, v0" % (t + 5))
    a("s_mov_b32 s%d, %d" % (S_T, SSTR))
    a("v_mov_b32 v%d, %d" % (t + 6, L_SLOT - SSTR))
    a("s_mov_b64 exec, vcc")
    a("ds_write_b128 v%d, %s offset:%d" % (t + 4, vr(t, 4), L_SLOT + 8192 * (n // 512)))
    a("s_mov_b64 exec, -1")
    a("v_mad_u32_u24 v%d, v0, s%d, v%d" % (t + 6, S_T, t + 6))
    a("s_cmp_lt_u32 s%d, %d" % (S_B, N - 97 * 256))
    a("s_addc_u32 s%d, %d, 0" % (S_T, NLOC - 1))
    a("v_cmp_lt_u32 vcc, s%d, v0" % S_T)
    a("v_subrev_u32 v%d, 4, v%d" % (t + 7, t + 6))
    a("v_cmp_gt_u32_e64 %s, %d, v0" % (sr(S_T + 2, 2), 0) if False else "v_mov_b32 v%d, %d" % (t + 4, L_FLAG // 4))
    a("v_cndmask_b32 v%d, v%d, v%d, vcc" % (t + 6, t + 6, t + 7))
    a("v_cmp_gt_u32 vcc, v%d, v0" % (t + 4))
    a("v_mov_b32 v%d, %d" % (t + 4, L_ZEND // 4))
    a("v_mov_b32 v%d, 0" % (t + 7))
    a("v_cndmask_b32 v%d, v%d, v%d, vcc" % (t + 6, t + 7, t + 6))
    a("v_cmp_gt_u32 vcc, v%d, v0" % (t + 4))
    a("s_mov_b64 exec, vcc")
    a("ds_write_b32 v%d, v%d" % (t + 5, t + 6))
    a("s_mov_b64 exec, -1")


def gen_edge(a):
    nw2 = (NW2 + 511) // 512
    a.raw(".globl edge_kernel\n.p2align 8\n.type edge_kernel,@function")
    a.label("edge_kernel")
    a("s_cmp_ge_u32 s2, %d" % NB)
    a("s_cbranch_scc1 L2_end")
    a("s_load_dwordx2 s[40:41], s[0:1], 64")
    a("s_load_dwordx2 s[42:43], s[0:1], 0")
    a("s_load_dwordx2 s[44:45], s[0:1], 48")
    if DEBUG:
        a("v_mov_b32 v38, 0")
        a("s_memtime s[88:89]")
    a("v_lshrrev_b32 v2, 6, v0")
    a("s_and_b32 s%d, s2, 7" % S_B)
    a("v_readfirstlane_b32 s%d, v2" % S_W)
    a("s_lshl_b32 s%d, s%d, 5" % (S_B, S_B))
    a("s_lshr_b32 s3, s2, 3")
    a("s_add_u32 s%d, s%d, s3" % (S_B, S_B))
    a("v_lshrrev_b32 v2, 3, v0")
    a("v_lshlrev_b32 v2, 4, v2")
    a("s_lshl_b32 s46, s%d, 10" % S_B)
    a("s_add_u32 s46, s46, %d" % WS_TAB)
    a("s_mov_b32 s%d, %d" % (S_WS + 2, WS_SIZE))
    a("s_mov_b32 s%d, 0x00020000" % (S_WS + 3))
    a("s_mov_b32 s%d, %d" % (S_X + 2, N))
    a("s_mov_b32 s%d, 0x00020000" % (S_X + 3))
    a("s_mov_b32 s%d, %d" % (S_OUT + 2, N * 128))
    a("s_mov_b32 s%d, 0x00020000" % (S_OUT + 3))
    a("s_mov_b32 s%d, 0" % S_MODE)
    a("s_sub_u32 s3, 11, s%d" % S_W)
    a("s_cmp_lt_u32 s%d, 4" % S_W)
    a("s_cselect_b32 s%d, s%d, s3" % (S_BT, S_W))
    a("s_mul_i32 s%d, s%d, %d" % (S_XT, S_BT, XSTR))
    a("s_add_u32 s%d, s%d, %d" % (S_XT, S_XT, L_XT))
    a("s_add_u32 s%d, s%d, 4096" % (S_XT1, S_XT))
    a("v_and_b32 v%d, 63, v0" % V_LANE)
    a("v_lshlrev_b32 v%d, 4, v%d" % (V_L16, V_LANE))
    TABV = V_D[0]
    a("s_waitcnt lgkmcnt(0)")
    a("s_mov_b32 s%d, s40" % S_WS)
    a("s_mov_b32 s%d, s41" % (S_WS + 1))
    a("buffer_load_dwordx4 %s, v2, %s, s46 offen" % (vr(TABV, 4), sr(S_WS, 4)))
    if DEBUG:
        a("v_writelane_b32 v38, s88, 4")
    a("s_mov_b32 s%d, s42" % S_X)
    a("s_and_b32 s%d, s43, 0xffff" % (S_X + 1))
    a("s_or_b32 s%d, s%d, 0x%x" % (S_X + 1, S_X + 1, 128 << 16))
    a("s_mov_b32 s%d, s44" % S_OUT)
    a("s_mov_b32 s%d, s45" % (S_OUT + 1))
    a("v_and_b32 v2, 7, v%d" % V_LANE)
    a("v_lshrrev_b32 v3, 4, v%d" % V_LANE)
    a("v_xor_b32 v3, v2, v3")
    a("v_lshlrev_b32 v%d, 4, v3" % (V_IDX + 1))
    a("v_xor_b32 v%d, 64, v%d" % (V_IDX + 3, V_IDX + 1))
    a("v_mov_b32 v%d, v%d" % (V_IDX + 5, V_IDX + 1))
    a("v_mov_b32 v%d, v%d" % (V_IDX + 7, V_IDX + 3))
    a.label("L2_restart")
    a("s_and_b32 s48, s%d, 3" % S_W)
    a("s_lshr_b32 s49, s%d, 2" % S_W)
    a("s_lshl_b32 s3, s48, 13")
    a("s_add_u32 s3, s3, s%d" % S_B)
    a("v_lshrrev_b32 v3, 3, v%d" % V_LANE)
    a("v_lshl_add_u32 v%d, v3, 8, s3" % V_IDX)
    for i in range(1, 4):
        a("v_add_u32 v%d, %d, v%d" % (V_IDX + 2 * i, 2048 * i, V_IDX))
    dma_plain(a, 0)
    a("s_cmp_eq_u32 s%d, 6" % S_BT)
    a("s_cselect_b32 m0, %d, s%d" % (L_LUT, S_XT1))
    a("s_lshl_b32 s3, s%d, 12" % S_BT)
    a("s_add_u32 s3, s3, %d" % WS_WF)
    for i in range(4):
        a("buffer_load_dwordx4 v%d, %s, s3 offen offset:%d lds" % (V_L16, sr(S_WS, 4), 1024 * i))
    COL, HH = V_T0, V_T0 + 1
    a("v_and_b32 v%d, 31, v%d" % (COL, V_LANE))
    a("v_lshrrev_b32 v%d, 5, v%d" % (HH, V_LANE))
    a("v_bfe_u32 v2, v%d, 1, 3" % COL)
    a("v_xor_b32 v2, v2, v%d" % HH)
    a("v_lshlrev_b32 v2, 4, v2")
    a("v_lshl_add_u32 v3, v%d, 7, s%d" % (COL, S_XT))
    for k in range(4):
        a("v_xor_b32 v%d, %d, v2" % (V_BAD + k, 32 * k))
        a("v_add_u32 v%d, v3, v%d" % (V_BAD + k, V_BAD + k))
    RC = V_N[0]
    RT = V_T[0]
    AD = V_T[0] + 24
    a("s_cmp_lg_u32 s%d, 0" % S_MODE)
    a("s_cbranch_scc1 L2_norec")
    a("v_and_b32 v2, 7, v0")
    a("v_mov_b32 v3, 0x%x" % ((16 - (1 << 23)) & 0xffffffff))
    a("v_mul_lo_u32 v2, v2, v3")
    a("v_subrev_u32 v2, 0x%x, v2" % (1 << 23))
    a("s_mov_b32 s50, 0x807fffff")
    a("s_waitcnt vmcnt(8)")
    stamp(a, 5)
    a("v_max3_u32 v3, v%d, v%d, v%d" % (TABV, TABV + 1, TABV + 2))
    a("v_max_u32 v3, v3, v%d" % (TABV + 3))
    for p in range(4):
        a("v_add_u32 v%d, v%d, v2" % (TABV + p, TABV + p))
    a("v_cmp_le_u32 vcc, 0x%x, v3" % (9 << 23))
    a("s_mov_b32 s%d, 0" % S_EXTRA)
    a("s_cbranch_vccz L2_noextra")
    a("s_mov_b32 s%d, 1" % S_EXTRA)
    a("v_cmp_le_u32 vcc, 0x%x, v3" % (17 << 23))
    a("s_cbranch_vccz L2_noflag")
    a("s_mov_b32 s%d, 3" % S_EXTRA)
    a.label("L2_noflag")
    for p in range(4):
        a("v_add_u32 v3, 0x%x, v%d" % ((128 - (8 << 23)) & 0xffffffff, TABV + p))
        a("v_or_b32 v3, v3, v%d" % (TABV + p) if False else "v_and_b32 v3, s50, v3")
        a("buffer_load_dwordx4 %s, v3, %s, 0 offen %s" % (vr(RC + 16 + 4 * p, 4), sr(S_WS, 4), K2_LD))
    a.label("L2_noextra")
    for p in range(4):
        a("v_and_b32 v%d, s50, v%d" % (TABV + p, TABV + p))
        a("buffer_load_dwordx4 %s, v%d, %s, 0 offen %s" % (vr(RC + 4 * p, 4), TABV + p, sr(S_WS, 4), K2_LD))
    if nw2:
        a("s_lshr_b32 s3, s2, 3")
        a("s_mul_i32 s3, s3, 782")
        a("s_add_u32 s3, s3, %d" % NW1)
        for i in range(nw2):
            a("v_add_u32 v2, %d, v0" % (512 * i))
            a("v_min_u32 v2, %d, v2" % (NW2 - 1))
            a("v_add_u32 v2, s3, v2")
            a("buffer_load_dword v%d, v2, %s, 0 idxen" % (V_D[1] + i, sr(S_X, 4)))
    a("s_branch L2_rec")
    a.label("L2_norec")
    a("s_waitcnt vmcnt(0)")
    a.label("L2_rec")
    lds_init(a, V_U)
    a("s_mov_b32 s%d, 1.0" % S_ONE)
    a("s_mov_b32 s%d, 1.0" % (S_ONE + 1))
    a("v_lshl_add_u32 v%d, v%d, 2, s%d" % (RT, V_LANE, S_ONE) if False else "v_lshlrev_b32 v%d, 2, v%d" % (RT, V_LANE))
    a("v_add_u32 v%d, %d, v%d" % (RT, L_DUM, RT))
    for i in range(1, 12):
        a("v_mov_b32 v%d, v%d" % (RT + i, RT))
    a("s_lshl_b32 s3, s48, 5")
    a("v_add_u32 v2, s3, v%d" % COL)
    a("s_lshl_b32 s3, s49, 7")
    a("s_add_u32 s3, s3, %d" % L_Q)
    a("v_lshl_add_u32 v3, v%d, 4, s3" % HH)
    a("s_mov_b32 s3, %d" % RSTR)
    a("v_mad_u32_u24 v%d, v2, s3, v3" % (V_T0 + 2))
    a("v_cmp_gt_u32_e64 s[52:53], s3, v2" if False else "v_cmp_gt_u32 vcc, %d, v2" % NLOC)
    a("s_mul_i32 s3, s49, %d" % XSTR)
    a("s_add_u32 s3, s3, %d" % (L_XT + 4096))
    a("v_add_u32 v3, s3, v%d" % V_L16)
    a("s_mov_b64 s[52:53], vcc")
    a("v_add_u32 v2, %d, v%d" % (L_XT + 4096, V_L16))
    a("s_waitcnt vmcnt(%d)" % (4 + nw2))
    for x in b_reads(0):
        a(x)
    a("s_lshl_b32 s3, s%d, 7" % S_BT)
    a("s_add_u32 s3, s3, s%d" % S_XT)
    a("v_lshl_add_u32 v%d, v%d, 2, s3" % (V_T0 + 3, COL))
    a("s_waitcnt lgkmcnt(0)")
    a("s_barrier")
    stamp(a, 6)
    W2F, WXF = V_C[0], V_C[1]
    for k in range(4):
        a("ds_read_b128 %s, v3 offset:%d" % (vr(W2F + 4 * k, 4), 2 * XSTR + 1024 * k))
    for k in range(4):
        a("ds_read_b128 %s, v3 offset:%d" % (vr(WXF + 4 * k, 4), 4 * XSTR + 1024 * k))
    for f in range(8):
        a("ds_read_b128 %s, v2 offset:%d" % (vr(V_A1 + 4 * f, 4), XSTR * (f >> 2) + 1024 * (f & 3)))
    a("v_lshlrev_b32 v2, 2, v%d" % V_LANE)
    a("ds_read_b32 v%d, v2 offset:%d" % (V_AE, L_LUT + 2048))
    a("ds_read_b32 v%d, v2 offset:%d" % (V_AE + 4, L_LUT + 2048 + 256))
    a("s_mov_b32 s54, 0x%08x" % f32(-LOG2E))
    a("s_mov_b32 s55, 0x%08x" % f32(-LOG2E))
    QD, RD = V_U, V_B[1]
    a("s_waitcnt lgkmcnt(10)")
    for k in range(4):
        a("v_mfma_f32_32x32x16_bf16 %s, %s, %s, %s" % (vr(QD, 16), vr(W2F + 4 * k, 4), vr(V_B[0] + 4 * k, 4), "0" if k == 0 else vr(QD, 16)))
    for k in range(4):
        a("v_mfma_f32_32x32x16_bf16 %s, %s, %s, %s" % (vr(RD, 16), vr(WXF + 4 * k, 4), vr(V_B[0] + 4 * k, 4), "0" if k == 0 else vr(RD, 16)))
    a("v_mov_b32 v%d, 0" % (V_AE + 1))
    a("v_mov_b32 v%d, 0" % (V_AE + 2))
    a("v_mov_b32 v%d, 0" % (V_AE + 5))
    a("v_mov_b32 v%d, 0" % (V_AE + 6))
    a("s_nop 3")
    a("s_mov_b64 exec, s[52:53]")
    for i in range(8):
        a("v_pk_mul_f32 %s, %s, s[54:55]" % (vr(QD + 2 * i, 2), vr(QD + 2 * i, 2)))
    for q in range(4):
        a("ds_write_b128 v%d, %s offset:%d" % (V_T0 + 2, vr(QD + 4 * q, 4), 32 * q))
    for i in range(8):
        a("v_pk_mul_f32 %s, %s, s[54:55]" % (vr(RD + 2 * i, 2), vr(RD + 2 * i, 2)))
    for q in range(4):
        a("ds_write_b128 v%d, %s offset:%d" % (V_T0 + 2, vr(RD + 4 * q, 4), L_R - L_Q + 32 * q))
    a("s_mov_b64 exec, -1")
    a("s_waitcnt lgkmcnt(0)")
    a("v_mov_b32 v%d, v%d" % (V_AE + 3, V_AE))
    a("v_mov_b32 v%d, v%d" % (V_AE + 7, V_AE + 4))
    a("s_cmp_lg_u32 s%d, 0" % S_MODE)
    a("s_cbranch_scc1 L2_slow_round")
    stamp(a, 7)
    a("v_mov_b32 v2, 4")

    def p1(rc, rt):
        for i in range(3):
            a("v_lshlrev_b32_sdwa v%d, 2, v%d dst_sel:DWORD dst_unused:UNUSED_PAD src0_sel:DWORD src1_sel:BYTE_%d" % (AD + i, rc + 3, i))
        for i in range(3):
            a("v_cmpx_ne_u32 vcc, 0, v%d" % (AD + i))
            a("ds_add_rtn_u32 v%d, v%d, v2 offset:%d" % (rt + i, AD + i, L_CNT))
        a("s_mov_b64 exec, -1")

    def p2(rc, rt):
        for i in range(3):
            a("ds_write_b32 v%d, v%d" % (rt + i, rc + i))

    a("s_cmp_eq_u32 s%d, 0" % S_EXTRA)
    a("s_cbranch_scc1 L2_pl")
    for i in range(12):
        a("v_mov_b32 v%d, v%d" % (RT + 12 + i, RT))
    for p in range(4):
        p1(RC + 16 + 4 * p, RT + 12 + 3 * p)
    a("v_mov_b32 v3, s%d" % S_EXTRA)
    a("v_mov_b32 v%d, %d" % (AD, F_SLOW))
    a("ds_or_b32 v%d, v3" % AD)
    a("s_waitcnt lgkmcnt(0)")
    for p in range(4):
        p2(RC + 16 + 4 * p, RT + 12 + 3 * p)
    a.label("L2_pl")
    a("s_waitcnt vmcnt(%d)" % (3 + nw2))
    p1(RC, RT)
    a("s_waitcnt vmcnt(%d)" % (2 + nw2))
    p1(RC + 4, RT + 3)
    a("s_waitcnt vmcnt(%d) lgkmcnt(0)" % (1 + nw2))
    p1(RC + 8, RT + 6)
    p2(RC, RT)
    p2(RC + 4, RT + 3)
    a("s_waitcnt vmcnt(%d)" % nw2)
    p1(RC + 12, RT + 9)
    a("s_waitcnt lgkmcnt(0)")
    p2(RC + 8, RT + 6)
    p2(RC + 12, RT + 9)

    a.label("L2_build")
    L4, RB0, NC0, NC1 = V_U, V_U + 1, V_U + 2, V_U + 3
    C0, C1, FL = V_U + 4, V_U + 5, V_U + 6
    P0 = V_U + 8
    O0 = V_U + 10
    E0, E1 = V_N[0], V_N[0] + 8
    a("v_lshlrev_b32 v%d, 2, v%d" % (L4, V_LANE))
    a("s_mov_b32 s3, %d" % SSTR)
    a("v_mov_b32 v%d, %d" % (RB0, L_SLOT - 4))
    a("v_mad_u32_u24 v%d, v%d, s3, v%d" % (RB0, V_LANE, RB0))
    a("v_lshlrev_b32 v%d, 25, v%d" % (NC0, V_LANE))
    a("v_add3_u32 v%d, v%d, v%d, 4" % (NC0, NC0, RB0))
    a("v_add_u32 v%d, 0x%x, v%d" % (NC1, (64 << 25) + 64 * SSTR, NC0))
    a("s_cmp_lt_u32 s%d, %d" % (S_B, N - 97 * 256))
    a("s_cselect_b32 s%d, 3, 1" % (S_HI + 1))
    a("s_mov_b32 s%d, -1" % S_HI)
    a("s_mov_b32 s%d, 0" % S_LI)
    a("s_mov_b32 s%d, 0" % S_SAFE)
    a("v_mov_b32 v2, %d" % (L_SLOT + 98 * SSTR))
    a("ds_write_b32 v%d, v2" % (V_T0 + 3))
    a("s_lshl_b32 s3, s%d, 6" % S_W)
    a("v_and_b32 v3, 60, v%d" % L4)
    a("v_add_u32 v%d, s3, v3" % (V_T0 + 2))
    a("v_mov_b32 v2, 0x%x" % (127 << 25))
    a("ds_write_b32 v%d, v2 offset:%d" % (V_T0 + 2, L_NL))
    a("v_mov_b32 v%d, 0" % FL)
    a("s_waitcnt lgkmcnt(0)")
    a("s_barrier")
    stamp(a, 8)
    a("ds_read_b32 v%d, v%d offset:%d" % (C0, L4, L_CNT + 4))
    a("ds_read_b32 v%d, v%d offset:%d" % (C1, L4, L_CNT + 4 + 256))
    a("ds_read_b32 v%d, v%d offset:%d" % (FL, FL, F_SLOW))
    a("v_add_u32 v3, %d, v%d" % (64 * SSTR, RB0))
    a("s_waitcnt lgkmcnt(1)")
    a("v_sub_u32 v%d, v%d, v%d" % (C0, C0, RB0))
    a("v_sub_u32 v%d, v%d, v3" % (C1, C1))
    a("v_lshlrev_b32 v%d, 3, v%d" % (C0, C0))
    a("v_lshlrev_b32 v%d, 3, v%d" % (C1, C1))
    a("ds_read_b128 %s, v%d offset:%d" % (vr(E0 + 4, 4), C0, L_LUT + 16))
    a("ds_read_b128 %s, v%d offset:%d" % (vr(E1 + 4, 4), C1, L_LUT + 16))
    a("ds_read_b128 %s, v%d offset:%d" % (vr(E0, 4), C0, L_LUT))
    a("ds_read_b128 %s, v%d offset:%d" % (vr(E1, 4), C1, L_LUT))
    a("v_max_u32 v2, v%d, v%d" % (C0, C1))
    a("v_cmp_lt_u32 vcc, %d, v2" % (32 * (DMAX + 1)))
    a("s_waitcnt lgkmcnt(4)")
    a("v_cmp_lt_u32_e64 s[40:41], 1, v%d" % FL)
    a("s_mov_b32 s42, 0x100401")
    a("s_or_b64 vcc, vcc, s[40:41]")
    a("s_cbranch_vccnz L2_slow")
    a("s_waitcnt lgkmcnt(2)")
    a.label("L2_scan")
    a("v_add_u32 v%d, v%d, v%d" % (O0, E0 + 4, E1 + 4))
    a("v_add_u32 v%d, v%d, v%d" % (O0 + 1, E0 + 5, E1 + 5))
    a("v_mov_b32 v%d, v%d" % (P0, O0))
    a("v_mov_b32 v%d, v%d" % (P0 + 1, O0 + 1))
    a("s_waitcnt lgkmcnt(0)")
    dpp_scan(a, [P0, P0 + 1], fill=["v_add_u32 v%d, v%d, v%d" % (E0 + i, E0 + i, NC0) for i in range(4)] +
             ["v_add_u32 v%d, v%d, v%d" % (E1 + i, E1 + i, NC1) for i in range(4)])
    a("v_readlane_b32 s44, v%d, 63" % P0)
    a("v_readlane_b32 s45, v%d, 63" % (P0 + 1))
    a("v_sub_u32 v%d, v%d, v%d" % (P0, P0, O0))
    a("v_sub_u32 v%d, v%d, v%d" % (P0 + 1, P0 + 1, O0 + 1))
    a("s_mul_i32 s44, s44, s42")
    a("s_mul_i32 s45, s45, s42")
    a("s_bfe_u32 s46, s44, 0x%x" % ((10 << 16) | 20))
    a("s_bfe_u32 s47, s45, 0x%x" % ((10 << 16) | 20))
    a("s_lshl_b32 s44, s44, 10")
    a("s_lshl_b32 s45, s45, 10")
    a("s_add_u32 s47, s47, s46")
    a("s_mul_i32 s46, s46, s42")
    a("s_add_u32 s45, s45, s46")
    a("s_cmp_gt_u32 s47, 256")
    a("s_cbranch_scc1 L2_retry")
    a("s_and_b32 s44, s44, 0x3fffffff")
    a("v_add_u32 v%d, s44, v%d" % (P0, P0))
    a("v_add_u32 v%d, s45, v%d" % (P0 + 1, P0 + 1))
    a("v_lshrrev_b64 %s, v%d, %s" % (vr(O0, 2), E0 + 6, vr(P0, 2)))
    a("v_add_u32 v%d, v%d, v%d" % (P0, P0, E0 + 4))
    a("v_add_u32 v%d, v%d, v%d" % (P0 + 1, P0 + 1, E0 + 5))
    a("v_and_b32 v2, 0x1ff, v%d" % O0)
    a("v_lshrrev_b64 %s, v%d, %s" % (vr(O0, 2), E1 + 6, vr(P0, 2)))
    a("v_lshl_add_u32 v2, v2, 2, s%d" % S_XT)
    a("ds_write2_b32 v2, v%d, v%d offset0:2 offset1:3" % (E0 + 2, E0 + 3))
    a("v_and_b32 v3, 0x1ff, v%d" % O0)
    a("v_lshl_add_u32 v3, v3, 2, s%d" % S_XT)
    a("s_mov_b64 exec, %s" % sr(S_HI, 2))
    a("ds_write2_b32 v3, v%d, v%d offset0:2 offset1:3" % (E1 + 2, E1 + 3))
    a("ds_write2_b32 v3, v%d, v%d offset0:0 offset1:1" % (E1, E1 + 1))
    a("s_mov_b64 exec, -1")
    a("ds_write2_b32 v2, v%d, v%d offset0:0 offset1:1" % (E0, E0 + 1))
    a("s_lshl_b32 s3, s%d, 7" % S_BT)
    a("s_add_u32 s3, s3, s%d" % S_XT)
    a("v_lshrrev_b32 v2, 3, v%d" % V_LANE)
    a("v_lshl_add_u32 v2, v2, 2, s3")
    a("ds_read_b32 v%d, v%d" % (V_W, V_T0 + 3))
    for i in range(4):
        a("ds_read_u16 v%d, v2 offset:%d" % (V_IA + i, 32 * i))
    a("s_mov_b32 s%d, %d" % (S_X + 2, N))
    a("s_waitcnt lgkmcnt(0)")
    for x in idx_reads(0):
        a(x)
    IX2 = V_U + 8
    for i in range(4):
        a("ds_read_u16 v%d, v%d offset:4" % (IX2 + 2 * i, V_IA + i))
    for i in range(4):
        a("v_mov_b32 v%d, v%d" % (IX2 + 2 * i + 1, V_IDX + 2 * i + 1))
    a("v_and_b32 v%d, 0xffff, v%d" % (V_RA, V_W))
    a("v_bfe_u32 v%d, v%d, 16, 6" % (V_LEN, V_W))
    a("v_lshrrev_b32 v2, 25, v%d" % V_W)
    a("s_mov_b32 s3, %d" % RSTR)
    a("v_lshlrev_b32 v3, 4, v%d" % HH)
    a("s_waitcnt lgkmcnt(4)")
    dma_plain(a, 0)
    a("v_mad_u32_u24 v%d, v2, s3, v3" % V_QA)
    a("v_add_u32 v%d, %d, v%d" % (V_QA, L_Q, V_QA))
    a("s_waitcnt lgkmcnt(0)")
    for i in range(4):
        a("s_add_u32 m0, s%d, %d" % (S_XT1, 1024 * i))
        a("s_nop 0")
        a("buffer_load_dwordx4 %s, %s, 0 idxen offen lds" % (vr(IX2 + 2 * i, 2), sr(S_X, 4)))
    stamp(a, 9)
    a("ds_read2_b32 %s, v%d offset0:0 offset1:1" % (vr(V_R, 2), V_RA))
    for x in row_reads(V_C, V_QA):
        a(x)
    for x in idx_reads(8):
        a(x)
    KF = V_T0 + 4
    a("v_bfe_u32 v%d, v%d, 22, 3" % (KF, V_W))
    a("v_mov_b32 v%d, v%d" % (V_T0 + 5, V_LEN))
    a("v_cmp_ne_u32 vcc, 0, v%d" % KF)
    a("v_add_u32 v2, %d, v%d" % (L_R - L_Q, V_QA))
    a("v_add_u32 v%d, %d, v3" % (V_RC, L_ZERO))
    a("v_cndmask_b32 v%d, v%d, v2, vcc" % (V_RC, V_RC))
    a("v_mbcnt_lo_u32_b32 v2, vcc_lo, 0")
    a("s_lshl_b32 s40, s%d, 6" % S_W)
    a("v_lshl_add_u32 v2, v2, 2, s40")
    a("s_mov_b32 s41, 0xffc00000")
    a("v_and_or_b32 v%d, v%d, s41, v%d" % (V_NW, V_W, COL))
    a("s_mov_b32 exec_lo, vcc_lo")
    a("s_mov_b32 exec_hi, 0")
    a("ds_write_b32 v2, v%d offset:%d" % (V_NW, L_NL))
    a("s_mov_b64 exec, -1")
    a("v_and_b32 v2, 60, v%d" % V_LANE)
    a("v_add_u32 v2, s40, v2")
    a("ds_read_b32 v%d, v2 offset:%d" % (V_NW, L_NL))
    a("v_add_u32 v2, v%d, v%d" % (KF, COL))
    a("v_cmp_lt_u32 vcc, 32, v2")
    a("v_mad_u32_u24 v%d, v%d, s3, v3" % (V_YW, COL))
    a("v_add_u32 v%d, s%d, v%d" % (V_YW, S_XT, V_YW))
    a("s_cmp_lg_u64 vcc, 0")
    a("s_cselect_b32 s%d, 1, 0" % S_NEED)
    a("s_cmp_lg_u32 s%d, 7" % S_BT)
    a("s_cselect_b32 s%d, s%d, 0" % (S_NEED, S_NEED))
    dpp_scan(a, [V_T0 + 5], op="v_max_u32", fill=[
        "v_cmp_lt_u32_e64 %s, 0, v%d" % (sr(S_M0, 2), V_LEN),
        "v_cmp_lt_u32_e64 %s, 1, v%d" % (sr(S_M[1], 2), V_LEN),
        "v_mov_b32 v%d, 0" % V_S, "v_mov_b32 v%d, 0" % (V_S + 1)])
    a("s_nop 0")
    a("v_readlane_b32 s%d, v%d, 63" % (S_ML, V_T0 + 5))
    a("s_mov_b32 s%d, 1" % S_J)
    a("s_max_u32 s%d, s%d, 2" % (S_ML, S_ML))
    if PRIO:
        a("s_cmp_lt_u32 s%d, 4" % S_BT)
        a("s_cbranch_scc0 L2_noprio")
        a("s_setprio %d" % PRIO)
        a.label("L2_noprio")
    a("s_waitcnt vmcnt(4)")
    for x in b_reads(0):
        a(x)
    a("s_cmp_gt_u32 s%d, 2" % S_ML)
    a("s_cselect_b32 s%d, %d, 0" % (S_X + 2, N))
    a("s_waitcnt lgkmcnt(0)")
    mf = mfma_chain(0, 0, V_N[0])
    d = dma(0)
    a(mf[0])
    for i in range(4):
        a(d[2 * i])
        a(mf[1 + i])
        a(d[2 * i + 1])
    stamp(a, 10)
    a("s_nop 7")
    a("s_nop 1")
    phase(a, mfma_chain(1, 0, V_N[1]), exps(V_N[0]), ["s_waitcnt vmcnt(4)"] + b_reads(1) + idx_reads(12), start=4)
    a("s_nop 0")
    for x in pk_first(0):
        a(x)
    a("s_waitcnt lgkmcnt(0)")
    phase(a, mfma_chain(0, 1, V_T[0]), exps(V_N[1]),
          ["s_cmp_gt_u32 s%d, 3" % S_ML, "s_cselect_b32 s%d, %d, 0" % (S_X + 2, N)] + dma(1), start=1)
    a("s_nop 0")
    for x in pk_first(1):
        a(x)
    a.raw(".p2align 6")
    a.label("L2_loop")
    for par in (1, 0):
        side = []
        if par == 1:
            side.append("ds_read2_b32 %s, v%d offset0:2 offset1:3" % (vr(V_R, 2), V_RA))
        side += ["s_add_u32 s%d, s%d, 1" % (S_J, S_J), "s_add_u32 s%d, s%d, 2" % (S_T, S_J)]
        side += ["s_nop 0"] * (4 - len(side))
        side += ["s_waitcnt vmcnt(4)"] + b_reads(par + 1) + idx_reads(16 if par else 20)
        side += ["s_cmp_ge_u32 s%d, s%d" % (S_J, S_ML)]
        side = [x if x != "s_nop 0" else [] for x in side]
        phase(a, mfma_chain(1, par, V_T[1]), exps(V_T[0]), side)
        a("s_mov_b64 exec, %s" % sr(S_M[par], 2))
        for x in pk_update(0):
            a(x)
        a("s_cbranch_scc1 L2_last")
        a("s_mov_b64 exec, -1")
        a("s_waitcnt lgkmcnt(0)")
        side = ["s_cmp_lt_u32 s%d, s%d" % (S_T, S_ML), "s_cselect_b32 s%d, %d, 0" % (S_X + 2, N)] + dma(par ^ 1)
        side += ["v_cmp_lt_u32_e64 %s, s%d, v%d" % (sr(S_M[par ^ 1], 2), S_J, V_LEN)]
        if par == 0:
            side += [["v_add_u32 v%d, 8, v%d" % (V_IA + i, V_IA + i) for i in range(4)] + ["v_add_u32 v%d, 8, v%d" % (V_RA, V_RA)]]
        phase(a, mfma_chain(0, par ^ 1, V_T[0]), exps(V_T[1]), side, start=1)
        a("s_mov_b64 exec, %s" % sr(S_M[par], 2))
        for x in pk_update(1):
            a(x)
        a("s_mov_b64 exec, -1")
    a("s_branch L2_loop")

    a.label("L2_last")
    a("s_mov_b64 %s, exec" % sr(S_T + 2, 2))
    a("s_mov_b64 exec, -1")
    a("s_waitcnt lgkmcnt(0)")
    stamp(a, 11)
    phase(a, [], exps(V_T[1]), gl_frags(V_A1, WF_WA) + row_reads(V_C, V_RC))
    a("s_mov_b64 exec, %s" % sr(S_T + 2, 2))
    for x in pk_update(1):
        a(x)
    a.label("L2_final")
    PB = V_B[0]
    a("s_not_b64 exec, %s" % sr(S_M0, 2))
    a("s_cbranch_execz L2_nz")
    for i in range(16):
        a("v_mov_b32 v%d, 0" % (PB + i))
    a.label("L2_nz")
    a("s_mov_b64 exec, %s" % sr(S_M0, 2))

    def fin(X):
        n, d, t = V_N[X], V_D[X], V_T[X]
        r = ["v_rcp_f32 v%d, v%d" % (t + i, d + i) for i in range(16)]
        s = ["v_pk_fma_f32 %s, %s, %s, %s" % (vr(V_S, 2), vr(d + 4 * i, 2), vr(d + 4 * i + 2, 2), vr(V_S, 2)) for i in range(4)]
        m = ["v_pk_mul_f32 %s, %s, %s" % (vr(t + 2 * i, 2), vr(t + 2 * i, 2), vr(n + 2 * i, 2)) for i in range(8)]
        c = ["v_cvt_pk_bf16_f32 v%d, v%d, v%d" % (PB + 8 * X + i, t + 2 * i, t + 2 * i + 1) for i in range(8)]
        return r, [s[0], m[0], m[1], s[1], m[2], m[3], s[2], m[4], m[5], s[3], m[6], m[7]] + c

    def ymf(o, q):
        return "v_mfma_f32_32x32x16_bf16 %s, %s, %s, %s" % (vr(V_C[o], 16), vr(V_A1 + 16 * o + 4 * q, 4), vr(PB + 4 * q, 4), vr(V_C[o], 16))

    r, p = fin(0)
    for x in r + p:
        a(x)
    r, p = fin(1)
    a("s_waitcnt vmcnt(0) lgkmcnt(0)")
    a(r[0])
    phase(a, [ymf(0, 0), ymf(1, 0), ymf(0, 1), ymf(1, 1)], r[1:], [])
    for x in p:
        a(x)
    a("s_nop 1")
    for x in (ymf(0, 2), ymf(1, 2), ymf(0, 3), ymf(1, 3)):
        a(x)
    a("v_mov_b32 v2, 0x%08x" % f32(2.0 ** 120))
    a("v_max_f32 v3, v%d, v%d" % (V_S, V_S + 1) if False else "v_add_f32 v3, v%d, v%d" % (V_S, V_S + 1))
    a("s_movk_i32 s40, 0x207")
    a("v_cmp_nlt_f32 vcc, v3, v2")
    a("s_mov_b64 exec, -1")
    YR, OA, KK = V_T0 + 2, V_T0 + 4, V_T0 + 5
    a("s_mov_b32 s3, %d" % RSTR)
    a("v_and_b32 v2, 3, v%d" % V_LANE)
    a("v_and_b32 v3, 0xff, v%d" % V_NW)
    a("v_lshl_add_u32 v%d, v2, 5, s%d" % (YR, S_XT))
    a("v_mad_u32_u24 v%d, v3, s3, v%d" % (YR, YR))
    a("v_lshrrev_b32 v3, 25, v%d" % V_NW)
    a("v_lshl_add_u32 v%d, v3, 8, s%d" % (OA, S_B))
    a("v_lshlrev_b32 v%d, 7, v%d" % (OA, OA))
    a("v_lshl_add_u32 v%d, v2, 4, v%d" % (OA, OA))
    a("v_bfe_u32 v%d, v%d, 22, 3" % (KK, V_NW))
    a("v_cmp_class_f32_e64 s[42:43], v%d, s40" % V_C[1])
    a("s_lshl_b32 s41, s%d, 2" % S_BT)
    a("s_and_b64 s[42:43], s[42:43], %s" % sr(S_M0, 2))
    a("s_or_b64 vcc, vcc, s[42:43]")
    a("s_cselect_b32 s42, 1, 0")
    a("s_andn2_b32 s42, s42, s%d" % S_SAFE)
    a("s_cbranch_scc1 L2_safe")
    for X in range(2):
        for q in range(4):
            a("ds_write_b128 v%d, %s offset:%d" % (V_YW, vr(V_C[X] + 4 * q, 4), 128 * X + 32 * q))
    a("v_mov_b32 v2, s41")
    a("v_mov_b32 v3, 1")
    a("v_cmp_lt_u32_e64 s[44:45], 2, v%d" % KK)
    a("v_cmp_lt_u32_e64 s[46:47], 3, v%d" % KK)
    a("s_waitcnt lgkmcnt(0)")
    a("ds_write_b32 v2, v3 offset:%d" % L_FLAG)
    a("s_cmp_eq_u32 s%d, 0" % S_NEED)
    a("s_cbranch_scc1 L2_nowait")
    a.label("L2_poll")
    a("ds_read_b32 v3, v2 offset:%d" % (L_FLAG + 4))
    a("s_waitcnt lgkmcnt(0)")
    a("v_cmp_eq_u32 vcc, 0, v3")
    a("s_cbranch_vccnz L2_poll")
    a.label("L2_nowait")
    stamp(a, 12)
    Y = [V_N[0], V_N[1], V_D[0], V_D[1]]

    def yreads(i):
        for c in range(4):
            a("ds_read_b128 %s, v%d offset:%d" % (vr(Y[i] + 4 * c, 4), YR, RSTR * i + 128 * (c >> 1) + 16 * (c & 1)))

    def yadd(i):
        for c in range(8):
            a("v_pk_add_f32 %s, %s, %s" % (vr(Y[0] + 2 * c, 2), vr(Y[0] + 2 * c, 2), vr(Y[i] + 2 * c, 2)))

    yreads(0)
    yreads(1)
    yreads(2)
    a("s_mov_b32 s40, 0x%08x" % f32(-LN2))
    a("s_mov_b32 s41, 0x%08x" % f32(-LN2))
    a("s_cmp_eq_u64 s[46:47], 0")
    a("s_cbranch_scc1 L2_no4")
    yreads(3)
    a("s_waitcnt lgkmcnt(0)")
    a("s_mov_b64 exec, s[46:47]")
    yadd(3)
    a("s_mov_b64 exec, -1")
    a.label("L2_no4")
    a("s_waitcnt lgkmcnt(4)")
    yadd(1)
    a("s_waitcnt lgkmcnt(0)")
    a("s_mov_b64 exec, s[44:45]")
    yadd(2)
    a("s_mov_b64 exec, -1")
    a("s_cmp_eq_u32 s%d, 1" % S_MODE)
    a("s_cbranch_scc1 L2_writeback")
    U = V_U
    for i in range(16):
        a("v_exp_f32 v%d, v%d" % (U + i, Y[0] + i))
    for i in range(8):
        a("v_pk_add_f32 %s, %s, %s" % (vr(U + 2 * i, 2), vr(U + 2 * i, 2), sr(S_ONE, 2)))
    for i in range(16):
        a("v_rcp_f32 v%d, v%d" % (U + i, U + i))
    for i in range(8):
        a("v_pk_mul_f32 %s, %s, s[40:41]" % (vr(Y[0] + 2 * i, 2), vr(Y[0] + 2 * i, 2)))
    for i in range(8):
        a("v_pk_mul_f32 %s, %s, %s" % (vr(U + 2 * i, 2), vr(U + 2 * i, 2), vr(Y[0] + 2 * i, 2)))
    P = V_B[1]
    for i in range(4):
        a("v_cvt_pk_bf16_f32 v%d, v%d, v%d" % (P + i, U + 2 * i, U + 2 * i + 1))
    a("buffer_store_dwordx4 %s, v%d, %s, 0 offen" % (vr(P, 4), OA, sr(S_OUT, 4)))
    for i in range(4, 8):
        a("v_cvt_pk_bf16_f32 v%d, v%d, v%d" % (P + i, U + 2 * i, U + 2 * i + 1))
    a("buffer_store_dwordx4 %s, v%d, %s, 0 offen offset:64" % (vr(P + 4, 4), OA, sr(S_OUT, 4)))
    stamp(a, 13)
    stamp_out(a)
    a.label("L2_end")
    a("s_endpgm")

    a.label("L2_retry")
    a("s_lshl_b32 s3, s%d, 11" % S_LI)
    a("s_add_u32 s3, s3, %d" % (WS_WF + WF_LUT2))
    a("s_add_u32 s%d, s%d, 1" % (S_LI, S_LI))
    a("buffer_load_dwordx4 %s, v%d, %s, s3 offen" % (vr(E0, 4), C0, sr(S_WS, 4)))
    a("buffer_load_dwordx4 %s, v%d, %s, s3 offen offset:16" % (vr(E0 + 4, 4), C0, sr(S_WS, 4)))
    a("buffer_load_dwordx4 %s, v%d, %s, s3 offen" % (vr(E1, 4), C1, sr(S_WS, 4)))
    a("buffer_load_dwordx4 %s, v%d, %s, s3 offen offset:16" % (vr(E1 + 4, 4), C1, sr(S_WS, 4)))
    a("s_waitcnt vmcnt(0)")
    a("s_branch L2_scan")

    a.label("L2_safe")
    a("s_mov_b32 s%d, 1" % S_SAFE)
    a("s_mov_b32 s%d, %d" % (S_X + 2, N))
    a("s_nop 7")
    for x in gl_frags(V_A1, WF_W1) + row_reads(V_C, V_QA):
        a(x)
    a("v_and_b32 v2, 0xffff, v%d" % V_W)
    a("v_sub_u32 v2, v%d, v2" % V_RA)
    for i in range(4):
        a("v_sub_u32 v%d, v%d, v2" % (V_IA + i, V_IA + i))
    a("v_sub_u32 v%d, v%d, v2" % (V_RA, V_RA))
    for i in range(32):
        a("v_mov_b32 v%d, 0" % (V_N[0] + i))
        a("v_mov_b32 v%d, 1.0" % (V_D[0] + i))
    a("v_mov_b32 v%d, 0x%x" % (V_R + 1, PAD))
    a("s_mov_b32 s%d, 0" % S_J)
    a.label("L2_safe_loop")
    for x in idx_reads(0):
        a(x)
    a("ds_read_b32 v%d, v%d" % (V_R, V_RA))
    a("s_waitcnt lgkmcnt(0)")
    dma_plain(a, 0)
    a("v_cmp_lt_u32_e64 %s, s%d, v%d" % (sr(S_M[0], 2), S_J, V_LEN))
    for i in range(4):
        a("v_add_u32 v%d, 4, v%d" % (V_IA + i, V_IA + i))
    a("v_add_u32 v%d, 4, v%d" % (V_RA, V_RA))
    a("s_waitcnt vmcnt(0)")
    for x in b_reads(0):
        a(x)
    a("s_waitcnt lgkmcnt(0)")
    for x in mfma_chain(0, 0, V_T[0]) + mfma_chain(1, 0, V_T[1]):
        a(x)
    a("s_nop 7")
    a("s_nop 3")
    a("s_mov_b64 exec, %s" % sr(S_M[0], 2))
    for X in range(2):
        for x in exps(V_T[X]):
            a(x)
        for i in range(8):
            a("v_pk_add_f32 %s, %s, %s" % (vr(U + 2 * i, 2), vr(U + 2 * i, 2), sr(S_ONE, 2)))
        for i in range(16):
            a("v_rcp_f32 v%d, v%d" % (U + i, U + i))
        for i in range(8):
            a("v_pk_fma_f32 %s, %s, %s, %s" % (vr(V_N[X] + 2 * i, 2), vr(V_T[X] + 2 * i, 2), vr(U + 2 * i, 2), vr(V_N[X] + 2 * i, 2)))
    a("s_mov_b64 exec, -1")
    a("s_add_u32 s%d, s%d, 1" % (S_J, S_J))
    a("s_cmp_lt_u32 s%d, s%d" % (S_J, S_ML))
    a("s_cbranch_scc1 L2_safe_loop")
    for x in gl_frags(V_A1, WF_WA) + row_reads(V_C, V_RC):
        a(x)
    a("s_branch L2_final")

    a.label("L2_slow")
    a("s_load_dwordx4 %s, s[0:1], 8" % sr(S_SL, 4))
    a("s_load_dwordx2 %s, s[0:1], 24" % sr(S_SL + 4, 2))
    a("s_mov_b32 s%d, 1" % S_MODE)
    a("s_mov_b32 s%d, 0" % S_POS)
    a("v_mov_b32 v%d, 0" % V_DONE)
    a("s_waitcnt vmcnt(0) lgkmcnt(0)")
    a("s_barrier")
    a("s_branch L2_restart")
    a.label("L2_writeback")
    a("v_cmp_ne_u32 vcc, 0, v%d" % KK)
    a("v_lshrrev_b32 v3, 25, v%d" % V_NW)
    a("v_and_b32 v2, 3, v%d" % V_LANE)
    a("v_lshlrev_b32 v2, 5, v2")
    a("v_mad_u32_u24 v2, v3, s3, v2")
    a("v_add_u32 v2, %d, v2" % L_R)
    a("s_mov_b64 exec, vcc")
    for c in range(4):
        a("ds_write_b128 v2, %s offset:%d" % (vr(Y[0] + 4 * c, 4), 128 * (c >> 1) + 16 * (c & 1)))
    a("s_mov_b64 exec, -1")
    a("s_waitcnt lgkmcnt(0)")
    a.label("L2_slow_round")
    a("s_barrier")
    lds_init(a, V_U)
    for x in gl_frags(V_A1, WF_W1):
        a(x)
    a("s_lshl_b32 s3, s%d, 7" % S_BT)
    a("s_add_u32 s3, s3, s%d" % S_XT)
    a("v_lshl_add_u32 v%d, v%d, 2, s3" % (V_T0 + 3, COL))
    a("s_waitcnt vmcnt(0) lgkmcnt(0)")
    a("s_barrier")
    a.label("L2_slow_step")
    a("s_cmp_lt_u32 s%d, %d" % (S_POS, E))
    a("s_cbranch_scc1 L2_slow_go")
    a("s_mov_b32 s%d, 2" % S_MODE)
    a("s_branch L2_build")
    a.label("L2_slow_go")
    t = V_U
    a("v_add_u32 v2, s%d, v0" % S_POS)
    a("v_cmp_gt_u32 vcc, %d, v2" % E)
    a("v_min_u32 v2, %d, v2" % (E - 1))
    a("v_lshlrev_b32 v3, 1, v2")
    a("v_lshlrev_b32 v2, 2, v2")
    a("global_load_dword v%d, v2, %s" % (t, sr(S_SL + 4, 2)))
    a("global_load_dword v%d, v2, %s" % (t + 1, sr(S_SL + 2, 2)))
    a("global_load_ushort v%d, v3, %s" % (t + 2, sr(S_SL, 2)))
    a("v_cmp_eq_u32_e64 s[40:41], 0, v%d" % V_DONE)
    a("s_and_b64 s[40:41], s[40:41], vcc")
    a("s_mov_b32 s3, %d" % SSTR)
    a("v_mov_b32 v%d, %d" % (t + 4, L_SLOT + 4 * DMAX))
    a("v_mov_b32 v2, 4")
    a("s_waitcnt vmcnt(0)")
    a("v_and_b32 v3, 255, v%d" % t)
    a("v_cmp_eq_u32 vcc, s%d, v3" % S_B)
    a("v_lshrrev_b32 v3, 8, v%d" % t)
    a("v_mad_u32_u24 v%d, v3, s3, v%d" % (t + 4, t + 4))
    a("v_lshlrev_b32 v3, 2, v3")
    a("v_lshl_or_b32 v%d, v%d, 16, v%d" % (t + 1, t + 2, t + 1))
    a("s_and_b64 exec, vcc, s[40:41]")
    a("ds_add_rtn_u32 v%d, v3, v2 offset:%d" % (t + 3, L_CNT + 4))
    a("s_waitcnt lgkmcnt(0)")
    a("v_cmp_lt_u32 vcc, v%d, v%d" % (t + 3, t + 4))
    a("s_andn2_b64 s[40:41], exec, vcc")
    a("s_mov_b64 exec, vcc")
    a("ds_write_b32 v%d, v%d" % (t + 3, t + 1))
    a("v_mov_b32 v%d, 1" % V_DONE)
    a("s_mov_b64 exec, s[40:41]")
    a("v_mov_b32 v%d, %d" % (t + 5, F_PEND))
    a("ds_write_b32 v%d, v2" % (t + 5))
    a("s_mov_b64 exec, -1")
    a("s_waitcnt lgkmcnt(0)")
    a("s_barrier")
    a("s_mov_b64 exec, s[40:41]")
    a("ds_min_u32 v3, v%d offset:%d" % (t + 4, L_CNT + 4))
    a("s_mov_b64 exec, -1")
    a("v_mov_b32 v%d, %d" % (t + 5, F_PEND))
    a("ds_read_b32 v%d, v%d" % (t + 5, t + 5))
    a("s_waitcnt lgkmcnt(0)")
    a("v_cmp_ne_u32 vcc, 0, v%d" % (t + 5))
    a("s_cbranch_vccnz L2_build")
    a("s_barrier")
    a("s_add_u32 s%d, s%d, 512" % (S_POS, S_POS))
    a("v_mov_b32 v%d, 0" % V_DONE)
    a("s_branch L2_slow_step")


def kd(name, vgpr, sgpr):
    return """.amdhsa_kernel %s
  .amdhsa_next_free_vgpr %d
  .amdhsa_next_free_sgpr %d
  .amdhsa_accum_offset %d
  .amdhsa_group_segment_fixed_size 0
  .amdhsa_kernarg_size 72
  .amdhsa_user_sgpr_count 2
  .amdhsa_user_sgpr_kernarg_segment_ptr 1
  .amdhsa_system_sgpr_workgroup_id_x 1
  .amdhsa_float_denorm_mode_32 3
.end_amdhsa_kernel
""" % (name, vgpr, sgpr, (vgpr + 3) // 4 * 4)


HEADER = """; Kernarg layout for this problem (72 bytes, ptrs only, base s[0:1]):
"""


def main():
    a = Asm()
    a.raw(HEADER.rstrip())
    a.raw("; @launch kernel=sort_kernel grid=(%d,1,1) block=(%d,1,1) lds=%d" % (NB, K1_THREADS, K1_LDS))
    a.raw("; @launch kernel=edge_kernel grid=(%d,1,1) block=(512,1,1) lds=%d" % (NB, K2_LDS))
    a.raw('.amdgcn_target "amdgcn-amd-amdhsa--gfx950"')
    a.raw(".text")
    gen_sort(a)
    gen_edge(a)
    a.raw('.section .rodata,"a"')
    a.raw(".p2align 6")
    a.raw(kd("sort_kernel", 64, 32))
    a.raw(".p2align 6")
    a.raw(kd("edge_kernel", 256, 96))
    out = sys.argv[1] if len(sys.argv) > 1 else "standalone__mpnn_edge_mlp__graph.s"
    open(out, "w").write(a.text())
    print("wrote", out, "K2 LDS", K2_LDS)


if __name__ == "__main__":
    main()
```

```python
import struct, sys, os


def env(name, d):
    return int(os.environ.get(name, str(d)), 0)


DEBUG = env('DEBUG', 0)
DEBUG_WG = env('DEBUG_WG', 5)
NW1 = env('NW1', 0)
NW2 = env('NW2', 0)
K1_LD = os.environ.get('K1_LD', '')
K1_ST = os.environ.get('K1_ST', '')
K2_LD = os.environ.get('K2_LD', '')
PRIO = env('PRIO', 0)
X_NODMA = env('X_NODMA', 0)
X_NOVALU = env('X_NOVALU', 0)
X_NOPK = env('X_NOPK', 0)
X_IDENT = env('X_IDENT', 0)
X_MASK = env('X_MASK', 0)
X_NOMF = env('X_NOMF', 0)
X_NOBR = env('X_NOBR', 0)
TL = env('TL', 0)

N = 25000
E = 800000
NCH = 250
CH = 3200
NB = 256
NLOC = 98
CU = 1240
DMAX = 62

WS_REC = 0
WS_TAB = 0x500000
WS_WF = 0x580000
WF_W1 = 0
WF_W2 = 8192
WF_WX = 16384
WF_LUT = 24576
WF_W3 = WF_LUT + 2048
WF_WA = 28672
WF_LUT2 = 36864
WS_SIZE = 0x600000
LS = (16, 17, 18, 32)
assert NCH * CU * 16 <= WS_TAB

LOG2E = 1.4426950408889634
LN2 = 0.6931471805599453


def f32(x):
    return struct.unpack("<I", struct.pack("<f", x))[0]


class Asm:
    def __init__(self):
        self.l = []

    def __call__(self, s):
        for x in s.split("\n"):
            x = x.strip()
            if x:
                self.l.append("    " + x)

    def label(self, s):
        self.l.append(s + ":")

    def raw(self, s):
        self.l.append(s)

    def text(self):
        return "\n".join(self.l) + "\n"


def vr(a, n):
    return "v[%d:%d]" % (a, a + n - 1)


def sr(a, n):
    return "s[%d:%d]" % (a, a + n - 1)


DPP_STEPS = ["row_shr:1 row_mask:0xf", "row_shr:2 row_mask:0xf", "row_shr:4 row_mask:0xf", "row_shr:8 row_mask:0xf",
             "row_bcast:15 row_mask:0xa", "row_bcast:31 row_mask:0xc"]


def dpp_scan(a, regs, op="v_add_u32", fill=()):
    fill = list(fill)
    for st in DPP_STEPS:
        n = 3 - len(regs)
        while n > 0 and fill:
            a(fill.pop(0))
            n -= 1
        if n > 0:
            a("s_nop %d" % (n - 1))
        for v in regs:
            a("%s_dpp v%d, v%d, v%d %s bank_mask:0xf" % (op, v, v, v, st))
    for x in fill:
        a(x)


K1_THREADS = 832
K1_CNT = 0
K1_START = 1024
K1_TOT = 2048
K1_STAGE = 2064
K1_LDS = K1_STAGE + CU * 16


def tl_begin(a, s):
    if TL:
        a("s_memrealtime %s" % sr(s, 2))
        a("s_memtime %s" % sr(s + 2, 2))


def tl_end(a, s, ws, base, v):
    if TL:
        a("s_mov_b64 exec, -1")
        a("s_waitcnt vmcnt(0) lgkmcnt(0)")
        a("s_memrealtime %s" % sr(s + 4, 2))
        a("s_memtime %s" % sr(s + 6, 2))
        a("v_lshrrev_b32 v%d, 6, v0" % v)
        a("v_lshlrev_b32 v%d, 4, v%d" % (v, v))
        a("s_lshl_b32 s3, s2, 8")
        a("s_add_u32 s3, s3, %d" % base)
        a("v_add_u32 v%d, s3, v%d" % (v, v))
        a("s_waitcnt lgkmcnt(0)")
        a("v_mov_b32 v%d, s%d" % (v + 2, s))
        a("v_mov_b32 v%d, s%d" % (v + 3, s + 2))
        a("v_mov_b32 v%d, s%d" % (v + 4, s + 4))
        a("v_mov_b32 v%d, s%d" % (v + 5, s + 6))
        a("s_mov_b64 exec, 1")
        a("global_store_dwordx4 v%d, %s, %s" % (v, vr(v + 2, 4), sr(ws, 2)))


def k1_warm(a, vt, vd):
    if NW1:
        a("s_lshr_b32 s3, s2, 3")
        a("s_mul_i32 s3, s3, 782")
        a("v_min_u32 v%d, %d, v0" % (vt, NW1 - 1))
        a("v_add_u32 v%d, s3, v%d" % (vt, vt))
        a("v_min_u32 v%d, %d, v%d" % (vt, N - 1, vt))
        a("v_lshlrev_b32 v%d, 7, v%d" % (vt, vt))
        a("global_load_dword v%d, v%d, s[14:15]" % (vd, vt))


def gen_sort(a):
    w = 1 if NW1 else 0
    a.raw(".globl sort_kernel\n.p2align 8\n.type sort_kernel,@function")
    a.label("sort_kernel")
    a("s_cmp_ge_u32 s2, %d" % NCH)
    a("s_cbranch_scc1 L1_prep")
    tl_begin(a, 24)
    a("s_load_dwordx4 s[4:7], s[0:1], 8")
    a("s_load_dwordx2 s[8:9], s[0:1], 24")
    a("s_load_dwordx2 s[10:11], s[0:1], 64")
    a("s_load_dwordx2 s[14:15], s[0:1], 0")
    a("s_mul_i32 s3, s2, %d" % (CH * 4))
    a("v_lshlrev_b32 v6, 4, v0")
    a("v_add_u32 v3, s3, v6")
    a("v_lshrrev_b32 v4, 1, v3")
    a("v_cmp_gt_u32 s[16:17], %d, v0" % (CH // 4) if False else "v_cmp_gt_u32 vcc, %d, v0" % (CH // 4))
    a("v_mov_b32 v40, 0")
    a("v_mov_b32 v41, 0")
    a("v_mov_b32 v42, 0")
    a("v_mov_b32 v43, 0")
    a("s_mov_b64 s[16:17], vcc")
    a("s_mov_b64 exec, vcc")
    a("s_waitcnt lgkmcnt(0)")
    a("global_load_dwordx4 v[8:11], v3, s[8:9] %s" % K1_LD)
    a("global_load_dwordx4 v[12:15], v3, s[6:7] %s" % K1_LD)
    a("global_load_dwordx2 v[16:17], v4, s[4:5] %s" % K1_LD)
    a("s_mov_b64 exec, -1")
    k1_warm(a, 62, 63)
    nz = K1_LDS // 16
    a("ds_write_b128 v6, v[40:43]")
    a("v_cmp_gt_u32 vcc, %d, v0" % (nz - K1_THREADS))
    a("s_and_saveexec_b64 s[18:19], vcc")
    a("ds_write_b128 v6, v[40:43] offset:%d" % (K1_THREADS * 16))
    a("s_mov_b64 exec, s[16:17]")
    a("v_mov_b32 v5, 1")
    a("s_mov_b32 s12, 0xffff0000")
    a("s_mov_b32 s13, 21846")
    a("s_waitcnt lgkmcnt(0)")
    a("s_barrier")
    a("s_waitcnt vmcnt(%d)" % (2 + w))
    for i in range(4):
        a("v_lshlrev_b32_sdwa v%d, 2, v%d dst_sel:DWORD dst_unused:UNUSED_PAD src0_sel:DWORD src1_sel:BYTE_0" % (20 + i, 8 + i))
        a("ds_add_rtn_u32 v%d, v%d, v5 offset:%d" % (24 + i, 20 + i, K1_CNT))
    for i in range(4):
        a("v_lshrrev_b32 v%d, 8, v%d" % (8 + i, 8 + i))
        a("v_add_u32 v%d, 1, v%d" % (8 + i, 8 + i))
    a("s_waitcnt vmcnt(%d)" % w)
    a("v_lshl_or_b32 v12, v16, 16, v12")
    a("v_and_or_b32 v13, v16, s12, v13")
    a("v_lshl_or_b32 v14, v17, 16, v14")
    a("v_and_or_b32 v15, v17, s12, v15")
    a("s_waitcnt lgkmcnt(0)")
    a("s_barrier")
    a("v_cmp_gt_u32 vcc, 64, v0")
    a("s_cbranch_vccz L1_noscan")
    a("ds_read_b128 v[40:43], v6 offset:%d" % K1_CNT)
    a("s_and_b32 s3, s2, 7")
    a("s_lshl_b32 s3, s3, 5")
    a("s_lshr_b32 s18, s2, 3")
    a("s_add_u32 s3, s3, s18")
    a("s_lshl_b32 s3, s3, 2")
    a("s_add_u32 s3, s3, %d" % WS_TAB)
    a("v_lshl_add_u32 v7, v0, 12, s3")
    a("s_mul_i32 s18, s2, %d" % (CU * 16))
    a("s_waitcnt lgkmcnt(0)")
    for i in range(4):
        a("v_add_u32 v%d, 2, v%d" % (40 + i, 40 + i))
        a("v_mul_u32_u24 v%d, s13, v%d" % (40 + i, 40 + i))
        a("v_lshrrev_b32 v%d, 16, v%d" % (40 + i, 40 + i))
    a("v_add_u32 v45, v40, v41")
    a("v_add_u32 v46, v45, v42")
    a("v_add_u32 v47, v46, v43")
    a("v_mov_b32 v48, v47")
    dpp_scan(a, [48], fill=["v_min_u32 v%d, 255, v%d" % (56 + i, 40 + i) for i in range(4)] +
             ["v_lshlrev_b32 v%d, 23, v%d" % (56 + i, 56 + i) for i in range(4)])
    a("v_sub_u32 v52, v48, v47")
    a("v_add_lshl_u32 v53, v52, v40, 4")
    a("v_add_lshl_u32 v54, v52, v45, 4")
    a("v_add_lshl_u32 v55, v52, v46, 4")
    a("v_lshlrev_b32 v52, 4, v52")
    a("ds_write_b128 v6, v[52:55] offset:%d" % K1_START)
    a("v_mov_b32 v49, %d" % (K1_TOT - 63 * 4))
    a("v_lshl_add_u32 v49, v0, 2, v49")
    a("v_cmp_eq_u32 vcc, 63, v0")
    for i in range(4):
        a("v_add3_u32 v%d, v%d, v%d, s18" % (56 + i, 56 + i, 52 + i))
    for i in range(4):
        a("global_store_dword v7, v%d, s[10:11] offset:%d" % (56 + i, 1024 * i))
    a("s_mov_b64 exec, vcc")
    a("ds_write_b32 v49, v48")
    a("s_mov_b64 exec, -1")
    a("s_waitcnt lgkmcnt(0)")
    a.label("L1_noscan")
    for i in range(4):
        a("v_mul_u32_u24 v%d, s13, v%d" % (28 + i, 24 + i))
        a("v_lshrrev_b32 v%d, 16, v%d" % (28 + i, 28 + i))
        a("v_mad_u32_u24 v%d, v%d, 13, v%d" % (32 + i, 28 + i, 24 + i))
        a("v_add_lshl_u32 v%d, v%d, v%d, 2" % (28 + i, 28 + i, 24 + i))
    a("s_barrier")
    for i in range(4):
        a("ds_read_b32 v%d, v%d offset:%d" % (24 + i, 20 + i, K1_START))
    for i in range(4):
        a("s_waitcnt lgkmcnt(%d)" % (3 - i + 2 * i))
        a("v_add_u32 v%d, v%d, v%d" % (28 + i, 28 + i, 24 + i))
        a("v_add_u32 v%d, v%d, v%d" % (32 + i, 32 + i, 24 + i))
        a("ds_write_b32 v%d, v%d offset:%d" % (28 + i, 12 + i, K1_STAGE))
        a("ds_write_b8 v%d, v%d offset:%d" % (32 + i, 8 + i, K1_STAGE + 12))
    a("s_mov_b64 exec, -1")
    a("v_mov_b32 v9, %d" % K1_TOT)
    a("ds_read_b32 v9, v9")
    a("s_mul_i32 s3, s2, %d" % (CU * 16))
    a("v_add_u32 v7, s3, v6")
    a("v_add_u32 v10, %d, v0" % K1_THREADS)
    a("v_add_u32 v8, %d, v7" % (K1_THREADS * 16))
    a("s_waitcnt lgkmcnt(0)")
    a("s_barrier")
    a("ds_read_b128 v[40:43], v6 offset:%d" % K1_STAGE)
    a("v_cmp_lt_u32 vcc, v10, v9")
    a("s_and_saveexec_b64 s[18:19], vcc")
    a("ds_read_b128 v[44:47], v6 offset:%d" % (K1_STAGE + K1_THREADS * 16))
    a("s_mov_b64 exec, -1")
    a("s_waitcnt lgkmcnt(0)")
    a("global_store_dwordx4 v7, v[40:43], s[10:11] %s" % K1_ST)
    a("s_mov_b64 exec, vcc")
    a("s_cbranch_execz L1_end2")
    a("global_store_dwordx4 v8, v[44:47], s[10:11] %s" % K1_ST)
    a.label("L1_end2")
    tl_end(a, 24, 10, 0x800000, 50)
    a("s_endpgm")

    a.label("L1_prep")
    a("s_cmp_ge_u32 s2, %d" % NB)
    a("s_cbranch_scc1 L1_end")
    a("s_load_dwordx4 s[4:7], s[0:1], 32")
    a("s_load_dwordx2 s[10:11], s[0:1], 64")
    a("s_load_dwordx2 s[14:15], s[0:1], 0")
    a("v_lshrrev_b32 v1, 6, v0")
    a("s_sub_u32 s13, s2, %d" % NCH)
    a("v_readfirstlane_b32 s12, v1")
    a("v_and_b32 v1, 63, v0")
    a("v_and_b32 v2, 31, v1")
    a("v_lshrrev_b32 v3, 5, v1")
    a("s_waitcnt lgkmcnt(0)")
    k1_warm(a, 62, 63)
    a("s_cmp_lt_u32 s12, 8")
    a("s_cbranch_scc1 L1_job")
    a("s_cmp_ge_u32 s12, 12")
    a("s_cbranch_scc1 L1_end")
    a("s_and_b32 s3, s2, 7")
    a("s_lshl_b32 s3, s3, 5")
    a("s_add_u32 s3, s3, 31")
    a("s_lshl_b32 s3, s3, 2")
    a("s_add_u32 s3, s3, %d" % (WS_TAB - 512 * 1024))
    a("v_lshl_add_u32 v4, v0, 10, s3")
    a("v_mov_b32 v5, 0")
    a("global_store_dword v4, v5, s[10:11]")
    a("s_endpgm")
    a.label("L1_job")
    a("s_cmp_ge_u32 s13, 4")
    a("s_cbranch_scc1 L1_w3")
    a("s_mov_b32 s16, 8")
    a("s_mov_b32 s17, 4")
    a("s_mov_b32 s18, 1.0")
    a("s_lshr_b32 s14, s12, 2")
    a("s_lshl_b32 s14, s14, 5")
    a("s_and_b32 s15, s12, 3")
    a("s_lshl_b32 s15, s15, 4")
    a("s_and_b32 s22, s13, 1")
    a("s_lshl_b32 s22, s22, 6")
    a("s_add_u32 s15, s15, s22")
    a("s_cmp_eq_u32 s13, 0")
    a("s_cselect_b32 s18, 0x%08x, s18" % f32(-LOG2E))
    a("s_cmp_ge_u32 s13, 2")
    a("s_cselect_b32 s20, s6, s4")
    a("s_cselect_b32 s21, s7, s5")
    a("s_lshl_b32 s19, s13, 13")
    a("s_cmp_eq_u32 s13, 3")
    a("s_cselect_b32 s16, 4, s16")
    a("s_cselect_b32 s17, 8, s17")
    a("s_cselect_b32 s19, %d, s19" % WF_WA)
    a("s_lshl_b32 s22, s12, 10")
    a("s_add_u32 s19, s19, s22")
    a("s_add_u32 s19, s19, %d" % WS_WF)
    a("v_mul_lo_u32 v4, v3, s16")
    a("v_add_u32 v4, s15, v4")
    a("v_lshlrev_b32 v4, 6, v4")
    a("v_add_u32 v4, v4, v2")
    a("v_add_u32 v4, s14, v4")
    a("v_lshlrev_b32 v4, 1, v4")
    a("s_lshl_b32 s17, s17, 7")
    a("v_add_u32 v5, s17, v4")
    for i in range(4):
        a("global_load_ushort v%d, v4, s[20:21] offset:%d" % (8 + i, 128 * i))
    for i in range(4):
        a("global_load_ushort v%d, v5, s[20:21] offset:%d" % (12 + i, 128 * i))
    a("v_lshlrev_b32 v6, 4, v1")
    a("v_add_u32 v6, s19, v6")
    a("s_waitcnt vmcnt(0)")
    for i in range(8):
        a("v_lshlrev_b32 v%d, 16, v%d" % (8 + i, 8 + i))
        a("v_mul_f32 v%d, s18, v%d" % (8 + i, 8 + i))
    for i in range(4):
        a("v_cvt_pk_bf16_f32 v%d, v%d, v%d" % (16 + i, 8 + 2 * i, 9 + 2 * i))
    a("global_store_dwordx4 v6, v[16:19], s[10:11]")
    a("s_endpgm")
    a.label("L1_w3")
    a("s_cmp_ge_u32 s13, 5")
    a("s_cbranch_scc1 L1_end")
    a("s_cmp_ge_u32 s12, 2")
    a("s_cbranch_scc1 L1_lut")
    a("s_lshl_b32 s14, s12, 5")
    a("v_add_u32 v4, s14, v2")
    a("v_lshlrev_b32 v4, 1, v4")
    a("v_add_u32 v4, %d, v4" % (128 * 128))
    a("global_load_ushort v8, v4, s[4:5]")
    a("s_lshl_b32 s19, s12, 8")
    a("s_add_u32 s19, s19, %d" % (WS_WF + WF_W3))
    a("v_lshlrev_b32 v6, 2, v1")
    a("v_add_u32 v6, s19, v6")
    a("v_cmp_eq_u32 vcc, 0, v3")
    a("s_waitcnt vmcnt(0)")
    a("v_lshlrev_b32 v8, 16, v8")
    a("v_mul_f32 v8, 0x%08x, v8" % f32(-LOG2E))
    a("v_mov_b32 v11, 0")
    a("v_cvt_pk_bf16_f32 v9, v11, v8")
    a("v_sub_f32 v10, v8, v9")
    a("v_cvt_pk_bf16_f32 v10, v11, v10")
    a("v_cndmask_b32 v9, v10, v9, vcc")
    a("global_store_dword v6, v9, s[10:11]")
    a("s_endpgm")
    a.label("L1_lut")
    a("s_cmp_ge_u32 s12, %d" % (2 + len(LS)))
    a("s_cbranch_scc1 L1_end")
    a("s_mov_b32 s14, %d" % LS[0])
    a("s_mov_b32 s19, %d" % (WS_WF + WF_LUT))
    for i in range(1, len(LS)):
        a("s_cmp_eq_u32 s12, %d" % (2 + i))
        a("s_cselect_b32 s14, %d, s14" % LS[i])
        a("s_cselect_b32 s19, %d, s19" % (WS_WF + WF_LUT2 + 2048 * (i - 1)))
    a("s_lshl_b32 s15, s14, 1")
    a("s_add_u32 s16, s15, s14")
    a("v_subrev_u32 v4, 1, v1")
    a("v_max_i32 v4, 0, v4")
    a("v_cmp_lt_u32 vcc, s15, v4")
    a("v_cmp_lt_u32_e64 s[20:21], s16, v4")
    a("v_mov_b32 v5, 2")
    a("v_mov_b32 v6, 32768")
    a("v_mov_b32 v7, 21846")
    a("v_cndmask_b32 v5, v5, 3, vcc" if False else "v_cndmask_b32_e64 v5, v5, 3, vcc")
    a("v_cndmask_b32 v6, v6, v7, vcc")
    a("v_mov_b32 v7, 16384")
    a("v_cndmask_b32_e64 v5, v5, 4, s[20:21]")
    a("v_cndmask_b32_e64 v6, v6, v7, s[20:21]")
    a("v_add3_u32 v7, v4, v5, -1")
    a("v_mul_u32_u24 v7, v7, v6")
    a("v_lshrrev_b32 v7, 16, v7")
    a("v_mov_b32 v9, 0")
    for i in range(4):
        a("v_min_u32 v10, v9, v4")
        a("v_sub_u32 v11, v4, v10")
        a("v_min_u32 v11, v11, v7")
        a("v_lshlrev_b32 v10, 2, v10")
        a("v_lshl_or_b32 v%d, v11, 16, v10" % (16 + i))
        a("v_add_u32 v9, v9, v7")
    a("v_lshl_or_b32 v16, v5, 22, v16")
    a("v_sub_u32 v9, s14, v7")
    a("v_min_u32 v9, 5, v9")
    a("v_mul_u32_u24 v22, 10, v9")
    a("v_cmp_le_u32 vcc, 3, v9")
    a("v_add_u32 v10, 2, v22")
    a("v_mov_b32 v12, v5")
    a("v_mov_b32 v13, 0")
    a("v_cndmask_b32 v22, v22, v10, vcc")
    a("v_cmp_ne_u32 vcc, 0, v1")
    a("v_lshlrev_b64 v[20:21], v22, v[12:13]")
    a("v_mov_b32 v23, 0")
    a("v_cndmask_b32 v20, v13, v20, vcc")
    a("v_cndmask_b32 v21, v13, v21, vcc")
    a("v_lshlrev_b32 v6, 5, v1")
    a("v_add_u32 v6, s19, v6")
    a("global_store_dwordx4 v6, v[16:19], s[10:11]")
    a("global_store_dwordx4 v6, v[20:23], s[10:11] offset:16")
    a.label("L1_end")
    a("s_endpgm")


RSTR = 272
SSTR = 260
L_CNT = 0
L_FLAG = 544
L_ZERO = 608
L_ZEND = 880
L_DUM = 880
L_NL = L_DUM + 256
L_LUT = 2048
L_SLOT = L_LUT + 4096
L_SEND = L_SLOT + (99 * SSTR + 160 + 15) // 16 * 16
L_XT = (L_SEND + 255) // 256 * 256
XSTR = 32 * RSTR
L_Q = L_XT + 8 * XSTR
L_R = L_Q + NLOC * RSTR
K2_LDS = L_R + NLOC * RSTR
assert L_NL + 512 <= L_LUT
assert L_SEND < 65536 - 256
assert K2_LDS <= 163840, K2_LDS
assert 8 * XSTR >= NCH * 48 * 4
PAD = 0x7F00
F_SLOW = L_FLAG + 40
F_PEND = L_FLAG + 44

V_LANE = 1
V_BAD = 4
V_IA = 8
V_RA = 12
V_LEN = 13
V_S = 14
V_IDX = 16
V_R = 24
V_YW = 26
V_RC = 27
V_QA = 28
V_NW = 29
V_L16 = 30
V_W = 31
V_T0 = 32
V_DONE = 39
V_AE = 40
V_A1 = 48
V_C = (80, 96)
V_T = (112, 128)
V_N = (144, 160)
V_D = (176, 192)
V_U = 208
V_B = (224, 240)

S_X = 4
S_WS = 8
S_OUT = 12
S_B = 16
S_W = 17
S_BT = 18
S_XT = 19
S_ML = 20
S_J = 21
S_ONE = 22
S_M = (24, 26)
S_M0 = 28
S_MODE = 30
S_SAFE = 31
S_HI = 32
S_NEED = 34
S_LI = 35
S_EXTRA = 36
S_XT1 = 37
S_POS = 38
S_T = 40
S_SL = 56


def mfma_chain(X, j, dst):
    B = V_B[j & 1]
    out = ["v_mfma_f32_32x32x8_bf16 %s, %s, %s, %s" % (
        vr(dst, 16), vr(V_AE + 4 * X + 2 * (j & 1), 2), vr(V_R, 2), vr(V_C[X], 16))]
    if X_IDENT == 3:
        return ["v_mfma_f32_16x16x32_bf16 %s, %s, %s, %s" % (
            vr(dst + 4 * k, 4), vr(V_A1 + 4 * (k & 1), 4), vr(B + 8 * X + 2 * (k if k < 3 else 2), 4), vr(V_C[X] + 4 * k, 4)) for k in range(4)]
    if X_IDENT:
        for k in range(2):
            out.append("v_mfma_f32_32x32x16_bf16 %s, %s, %s, %s" % (
                vr(dst, 16), vr(V_A1 + 4 * k, 4), vr(B + 8 * X + 4 * k, 4), vr(dst, 16)))
        return out
    for k in range(4):
        out.append("v_mfma_f32_32x32x16_bf16 %s, %s, %s, %s" % (
            vr(dst, 16), vr(V_A1 + 16 * X + 4 * k, 4), vr(B + 4 * k, 4), vr(dst, 16)))
    return out


def exps(src):
    if X_NOVALU:
        return ["s_nop 0"] * 16
    return ["v_exp_f32 v%d, v%d" % (V_U + i, src + i) for i in range(16)]


def pk_first(X):
    return ["v_pk_add_f32 %s, %s, %s" % (vr(V_D[X] + 2 * i, 2), vr(V_U + 2 * i, 2), sr(S_ONE, 2)) for i in range(8)]


def pk_update(X):
    n, d, u, t = V_N[X], V_D[X], V_U, V_T[X]
    A = ["v_pk_fma_f32 %s, %s, %s, %s" % (vr(n + 2 * i, 2), vr(n + 2 * i, 2), vr(u + 2 * i, 2), vr(n + 2 * i, 2)) for i in range(8)]
    B = ["v_pk_fma_f32 %s, %s, %s, %s" % (vr(n + 2 * i, 2), vr(t + 2 * i, 2), vr(d + 2 * i, 2), vr(n + 2 * i, 2)) for i in range(8)]
    C = ["v_pk_fma_f32 %s, %s, %s, %s" % (vr(d + 2 * i, 2), vr(d + 2 * i, 2), vr(u + 2 * i, 2), vr(d + 2 * i, 2)) for i in range(8)]
    if X_NOVALU or X_NOPK:
        return ["s_nop 7"]
    return A + B + C


def phase(a, mf, ex, side, start=0):
    side = list(side)
    mf = list(mf)
    for i, e in enumerate(ex):
        if i % 3 == 0 and mf:
            a(mf.pop(0))
        a(e)
        if i >= start and side:
            x = side.pop(0)
            for y in (x if isinstance(x, (list, tuple)) else [x]):
                a(y)
    assert not mf
    for x in side:
        for y in (x if isinstance(x, (list, tuple)) else [x]):
            a(y)


def b_reads(tile):
    return ["ds_read_b128 %s, v%d offset:%d" % (vr(V_B[tile & 1] + 4 * k, 4), V_BAD + k, 4096 * (tile & 1)) for k in range(4)]


def idx_reads(off):
    return ["ds_read_u16 v%d, v%d offset:%d" % (V_IDX + 2 * i, V_IA + i, off) for i in range(4)]


def dma(slot):
    out = []
    for i in range(4):
        base = S_XT1 if slot else S_XT
        out.append("s_mov_b32 m0, s%d" % base if i == 0 else "s_add_u32 m0, s%d, %d" % (base, 1024 * i))
        out.append("buffer_load_dwordx4 %s, %s, 0 idxen offen lds" % (vr(V_IDX + 2 * i, 2), sr(S_X, 4)))
    return out


def dma_plain(a, slot):
    d = dma(slot)
    for i in range(4):
        a(d[2 * i])
        a("s_nop 0")
        a(d[2 * i + 1])


def row_reads(dst, addr):
    return ["ds_read_b128 %s, v%d offset:%d" % (vr(dst[X] + 4 * q, 4), addr, 128 * X + 32 * q) for X in range(2) for q in range(4)]


def gl_frags(dst, off):
    out = ["s_mov_b32 s%d, %d" % (S_T, WS_WF + off), "s_mov_b32 s%d, %d" % (S_T + 1, WS_WF + off + 4096)]
    for f in range(8):
        out.append("buffer_load_dwordx4 %s, v%d, %s, s%d offen offset:%d" % (
            vr(dst + 4 * f, 4), V_L16, sr(S_WS, 4), S_T + (f >> 2), 1024 * (f & 3)))
    return out


RT_SLOT = {5: 0, 8: 1, 10: 2, 11: 3, 13: 15}


def stamp(a, k):
    if DEBUG:
        if DEBUG == 2 and k not in RT_SLOT:
            return
        a("s_memtime s[88:89]")
        if k in RT_SLOT:
            a("s_memrealtime s[90:91]")
        a("s_waitcnt lgkmcnt(0)")
        a("v_writelane_b32 v38, s88, %d" % k)
        if k in RT_SLOT:
            a("v_writelane_b32 v38, s90, %d" % RT_SLOT[k])


def stamp_out(a):
    if DEBUG:
        a("s_cmp_lg_u32 s2, %d" % DEBUG_WG)
        a("s_cbranch_scc1 L2_nostamp")
        a("s_bitcmp1_b32 s%d, 1" % S_W)
        a("s_cbranch_scc1 L2_nostamp")
        a("s_load_dwordx2 s[84:85], s[0:1], 56")
        a("v_lshlrev_b32 v2, 2, v%d" % V_LANE)
        a("s_and_b32 s3, s%d, 1" % S_W)
        a("s_lshr_b32 s86, s%d, 2" % S_W)
        a("s_lshl_b32 s86, s86, 1")
        a("s_add_u32 s3, s3, s86")
        a("s_lshl_b32 s3, s3, 6")
        a("v_add_u32 v2, s3, v2")
        a("s_waitcnt lgkmcnt(0)")
        a("s_mov_b64 exec, 0xffff")
        a("global_store_dword v2, v38, s[84:85]")
        a("s_mov_b64 exec, -1")
        a.label("L2_nostamp")


def lds_init(a, t):
    a("v_mov_b32 v%d, 0x%x" % (t, PAD))
    a("v_mov_b32 v%d, 0x%x" % (t + 1, PAD))
    a("v_mov_b32 v%d, 0x%x" % (t + 2, PAD))
    a("v_mov_b32 v%d, 0x%x" % (t + 3, PAD))
    a("v_lshlrev_b32 v%d, 4, v0" % (t + 4))
    n = (L_SEND - L_SLOT) // 16
    for i in range(n // 512):
        a("ds_write_b128 v%d, %s offset:%d" % (t + 4, vr(t, 4), L_SLOT + 8192 * i))
    a("v_cmp_gt_u32 vcc, %d, v0" % (n % 512))
    a("v_lshlrev_b32 v%d, 2, v0" % (t + 5))
    a("s_mov_b32 s%d, %d" % (S_T, SSTR))
    a("v_mov_b32 v%d, %d" % (t + 6, L_SLOT - SSTR))
    a("s_mov_b64 exec, vcc")
    a("ds_write_b128 v%d, %s offset:%d" % (t + 4, vr(t, 4), L_SLOT + 8192 * (n // 512)))
    a("s_mov_b64 exec, -1")
    a("v_mad_u32_u24 v%d, v0, s%d, v%d" % (t + 6, S_T, t + 6))
    a("s_cmp_lt_u32 s%d, %d" % (S_B, N - 97 * 256))
    a("s_addc_u32 s%d, %d, 0" % (S_T, NLOC - 1))
    a("v_cmp_lt_u32 vcc, s%d, v0" % S_T)
    a("v_subrev_u32 v%d, 4, v%d" % (t + 7, t + 6))
    a("v_cmp_gt_u32_e64 %s, %d, v0" % (sr(S_T + 2, 2), 0) if False else "v_mov_b32 v%d, %d" % (t + 4, L_FLAG // 4))
    a("v_cndmask_b32 v%d, v%d, v%d, vcc" % (t + 6, t + 6, t + 7))
    a("v_cmp_gt_u32 vcc, v%d, v0" % (t + 4))
    a("v_mov_b32 v%d, %d" % (t + 4, L_ZEND // 4))
    a("v_mov_b32 v%d, 0" % (t + 7))
    a("v_cndmask_b32 v%d, v%d, v%d, vcc" % (t + 6, t + 7, t + 6))
    a("v_cmp_gt_u32 vcc, v%d, v0" % (t + 4))
    a("s_mov_b64 exec, vcc")
    a("ds_write_b32 v%d, v%d" % (t + 5, t + 6))
    a("s_mov_b64 exec, -1")


PAT = os.environ.get('PAT', "MeeeeMeeeMeeeMeeeMeee")


def me(a, mf, ex, extra=(), pat=PAT):
    mf = list(mf)
    ex = list(ex)
    for c in pat:
        if c == "M":
            if mf:
                a(mf.pop(0))
        else:
            a(ex.pop(0))
    assert not mf and not ex
    for x in extra:
        a(x)


def dma_grp(a, slot, fill=()):
    fill = list(fill)
    d = dma(slot)
    for i in range(4):
        a(d[2 * i])
        a(fill.pop(0) if fill else "s_nop 0")
        a(d[2 * i + 1])
    for x in fill:
        a(x)


def gen_edge(a):
    nw2 = (NW2 + 511) // 512
    a.raw(".globl edge_kernel\n.p2align 8\n.type edge_kernel,@function")
    a.label("edge_kernel")
    a("s_cmp_ge_u32 s2, %d" % NB)
    a("s_cbranch_scc1 L2_end")
    tl_begin(a, 72)
    a("s_load_dwordx2 s[64:65], s[0:1], 64")
    a("s_load_dwordx2 s[66:67], s[0:1], 0")
    a("s_load_dwordx2 s[68:69], s[0:1], 48")
    if DEBUG:
        a("v_mov_b32 v38, 0")
        a("s_memtime s[88:89]")
    a("v_lshrrev_b32 v2, 6, v0")
    a("s_and_b32 s%d, s2, 7" % S_B)
    a("v_readfirstlane_b32 s%d, v2" % S_W)
    a("s_lshl_b32 s%d, s%d, 5" % (S_B, S_B))
    a("s_lshr_b32 s3, s2, 3")
    a("s_add_u32 s%d, s%d, s3" % (S_B, S_B))
    a("v_lshrrev_b32 v2, 3, v0")
    a("v_lshlrev_b32 v2, 4, v2")
    a("s_lshl_b32 s46, s%d, 10" % S_B)
    a("s_add_u32 s46, s46, %d" % WS_TAB)
    a("s_mov_b32 s%d, %d" % (S_WS + 2, WS_SIZE))
    a("s_mov_b32 s%d, 0x00020000" % (S_WS + 3))
    a("s_mov_b32 s%d, %d" % (S_X + 2, N))
    a("s_mov_b32 s%d, 0x00020000" % (S_X + 3))
    a("s_mov_b32 s%d, %d" % (S_OUT + 2, N * 128))
    a("s_mov_b32 s%d, 0x00020000" % (S_OUT + 3))
    a("s_mov_b32 s%d, 0" % S_MODE)
    a("s_sub_u32 s3, 11, s%d" % S_W)
    a("s_cmp_lt_u32 s%d, 4" % S_W)
    a("s_cselect_b32 s%d, s%d, s3" % (S_BT, S_W))
    a("s_mul_i32 s%d, s%d, %d" % (S_XT, S_BT, XSTR))
    a("s_add_u32 s%d, s%d, %d" % (S_XT, S_XT, L_XT))
    a("s_add_u32 s%d, s%d, 4096" % (S_XT1, S_XT))
    a("v_and_b32 v%d, 63, v0" % V_LANE)
    a("v_lshlrev_b32 v%d, 4, v%d" % (V_L16, V_LANE))
    TABV = V_D[0]
    a("s_waitcnt lgkmcnt(0)")
    a("s_mov_b32 s%d, s64" % S_WS)
    a("s_mov_b32 s%d, s65" % (S_WS + 1))
    a("buffer_load_dwordx4 %s, v2, %s, s46 offen" % (vr(TABV, 4), sr(S_WS, 4)))
    if DEBUG:
        a("v_writelane_b32 v38, s88, 4")
    a("s_mov_b32 s%d, s66" % S_X)
    a("s_and_b32 s%d, s67, 0xffff" % (S_X + 1))
    a("s_or_b32 s%d, s%d, 0x%x" % (S_X + 1, S_X + 1, 128 << 16))
    a("s_mov_b32 s%d, s68" % S_OUT)
    a("s_mov_b32 s%d, s69" % (S_OUT + 1))
    lds_init(a, V_U)
    a.label("L2_restart")
    a("s_cmp_eq_u32 s%d, 6" % S_BT)
    a("s_cselect_b32 m0, %d, s%d" % (L_LUT, S_XT1))
    a("s_lshl_b32 s3, s%d, 12" % S_BT)
    a("s_add_u32 s3, s3, %d" % WS_WF)
    for i in range(4):
        a("buffer_load_dwordx4 v%d, %s, s3 offen offset:%d lds" % (V_L16, sr(S_WS, 4), 1024 * i))
    a("v_and_b32 v2, 7, v%d" % V_LANE)
    a("v_lshrrev_b32 v3, 4, v%d" % V_LANE)
    a("v_xor_b32 v3, v2, v3")
    a("v_lshlrev_b32 v%d, 4, v3" % (V_IDX + 1))
    a("v_xor_b32 v%d, 64, v%d" % (V_IDX + 3, V_IDX + 1))
    a("v_mov_b32 v%d, v%d" % (V_IDX + 5, V_IDX + 1))
    a("v_mov_b32 v%d, v%d" % (V_IDX + 7, V_IDX + 3))
    a("s_and_b32 s48, s%d, 3" % S_W)
    a("s_lshr_b32 s49, s%d, 2" % S_W)
    a("s_lshl_b32 s3, s48, 13")
    a("s_add_u32 s3, s3, s%d" % S_B)
    a("v_lshrrev_b32 v3, 3, v%d" % V_LANE)
    a("v_lshl_add_u32 v%d, v3, 8, s3" % V_IDX)
    for i in range(1, 4):
        a("v_add_u32 v%d, %d, v%d" % (V_IDX + 2 * i, 2048 * i, V_IDX))
    COL, HH = V_T0, V_T0 + 1
    a("v_and_b32 v%d, 31, v%d" % (COL, V_LANE))
    a("v_lshrrev_b32 v%d, 5, v%d" % (HH, V_LANE))
    a("v_bfe_u32 v2, v%d, 1, 3" % COL)
    a("v_xor_b32 v2, v2, v%d" % HH)
    a("v_lshlrev_b32 v2, 4, v2")
    a("v_lshl_add_u32 v3, v%d, 7, s%d" % (COL, S_XT))
    for k in range(4):
        a("v_xor_b32 v%d, %d, v2" % (V_BAD + k, 32 * k))
        a("v_add_u32 v%d, v3, v%d" % (V_BAD + k, V_BAD + k))
    RC = V_N[0]
    RT = V_T[0]
    AD = V_T[0] + 12
    QW = V_D[0] + 8
    FA = V_D[0] + 9
    a("s_mov_b32 s%d, 1.0" % S_ONE)
    a("s_mov_b32 s%d, 1.0" % (S_ONE + 1))
    a("s_lshl_b32 s3, s48, 5")
    a("v_add_u32 v2, s3, v%d" % COL)
    a("s_lshl_b32 s3, s49, 7")
    a("s_add_u32 s3, s3, %d" % L_Q)
    a("v_lshl_add_u32 v3, v%d, 4, s3" % HH)
    a("s_mov_b32 s3, %d" % RSTR)
    a("v_mad_u32_u24 v%d, v2, s3, v3" % QW)
    a("v_cmp_gt_u32 vcc, %d, v2" % NLOC)
    a("s_mul_i32 s3, s49, %d" % XSTR)
    a("s_add_u32 s3, s3, %d" % (L_XT + 4096))
    a("v_add_u32 v%d, s3, v%d" % (FA, V_L16))
    a("s_mov_b64 s[52:53], vcc")
    a("v_add_u32 v%d, %d, v%d" % (FA + 1, L_XT + 4096, V_L16))
    a("s_lshl_b32 s3, s%d, 7" % S_BT)
    a("s_add_u32 s3, s3, s%d" % S_XT)
    a("v_lshl_add_u32 v%d, v%d, 2, s3" % (V_T0 + 3, COL))
    a("s_cmp_lg_u32 s%d, 0" % S_MODE)
    a("s_cbranch_scc1 L2_norec")
    a("v_and_b32 v2, 7, v0")
    a("v_mov_b32 v3, 0x%x" % ((16 - (1 << 23)) & 0xffffffff))
    a("v_mul_lo_u32 v2, v2, v3")
    a("v_subrev_u32 v2, 0x%x, v2" % (1 << 23))
    a("s_mov_b32 s50, 0x807fffff")
    a("s_waitcnt vmcnt(4)")
    stamp(a, 5)
    a("v_max3_u32 v3, v%d, v%d, v%d" % (TABV, TABV + 1, TABV + 2))
    a("v_max_u32 v3, v3, v%d" % (TABV + 3))
    for p in range(4):
        a("v_add_u32 v%d, v%d, v2" % (TABV + p, TABV + p))
    a("v_cmp_le_u32 vcc, 0x%x, v3" % (9 << 23))
    a("s_mov_b32 s%d, 0" % S_EXTRA)
    a("s_cbranch_vccz L2_noextra")
    a("s_mov_b32 s%d, 1" % S_EXTRA)
    a("v_cmp_le_u32 vcc, 0x%x, v3" % (17 << 23))
    a("s_cbranch_vccz L2_noflag")
    a("s_mov_b32 s%d, 3" % S_EXTRA)
    a.label("L2_noflag")
    for p in range(4):
        a("v_add_u32 v3, 0x%x, v%d" % ((128 - (8 << 23)) & 0xffffffff, TABV + p))
        a("v_and_b32 v3, s50, v3")
        a("buffer_load_dwordx4 %s, v3, %s, 0 offen %s" % (vr(RC + 16 + 4 * p, 4), sr(S_WS, 4), K2_LD))
    a.label("L2_noextra")
    for p in range(4):
        a("v_and_b32 v%d, s50, v%d" % (TABV + p, TABV + p))
        a("buffer_load_dwordx4 %s, v%d, %s, 0 offen %s" % (vr(RC + 4 * p, 4), TABV + p, sr(S_WS, 4), K2_LD))
    dma_plain(a, 0)
    if nw2:
        a("s_lshr_b32 s3, s2, 3")
        a("s_mul_i32 s3, s3, 782")
        a("s_add_u32 s3, s3, %d" % NW1)
        for i in range(nw2):
            a("v_add_u32 v2, %d, v0" % (512 * i))
            a("v_min_u32 v2, %d, v2" % (NW2 - 1))
            a("v_add_u32 v2, s3, v2")
            a("buffer_load_dword v%d, v2, %s, 0 idxen" % (V_D[1] + i, sr(S_X, 4)))
    a("v_mov_b32 v2, 4")
    a("s_waitcnt lgkmcnt(0)")
    a("s_barrier")

    def p1(rc, k):
        for i in range(3):
            a("v_lshlrev_b32_sdwa v%d, 2, v%d dst_sel:DWORD dst_unused:UNUSED_PAD src0_sel:DWORD src1_sel:BYTE_%d" % (AD + k + i, rc + 3, i))
        for i in range(3):
            a("v_cmpx_ne_u32 vcc, 0, v%d" % (AD + k + i))
            a("ds_add_rtn_u32 v%d, v%d, v2 offset:%d" % (RT + k + i, AD + k + i, L_CNT))
        a("s_mov_b64 exec, -1")

    def p2(rc, k):
        for i in range(3):
            a("v_cmpx_ne_u32 vcc, 0, v%d" % (AD + k + i))
            a("ds_write_b32 v%d, v%d" % (RT + k + i, rc + i))
        a("s_mov_b64 exec, -1")

    a("s_cmp_eq_u32 s%d, 0" % S_EXTRA)
    a("s_cbranch_scc1 L2_pl")
    a("s_waitcnt vmcnt(%d)" % (8 + nw2))
    for p in range(4):
        p1(RC + 16 + 4 * p, 3 * p)
    a("v_mov_b32 v3, s%d" % S_EXTRA)
    a("v_mov_b32 v%d, %d" % (V_U, F_SLOW))
    a("ds_or_b32 v%d, v3" % V_U)
    a("s_waitcnt lgkmcnt(0)")
    for p in range(4):
        p2(RC + 16 + 4 * p, 3 * p)
    a.label("L2_pl")
    a("s_waitcnt vmcnt(%d)" % (7 + nw2))
    stamp(a, 6)
    p1(RC, 0)
    a("s_waitcnt vmcnt(%d)" % (6 + nw2))
    p1(RC + 4, 3)
    a("s_waitcnt vmcnt(%d) lgkmcnt(0)" % (5 + nw2))
    p1(RC + 8, 6)
    p2(RC, 0)
    p2(RC + 4, 3)
    a("s_waitcnt vmcnt(%d)" % (4 + nw2))
    p1(RC + 12, 9)
    a("s_waitcnt lgkmcnt(0)")
    p2(RC + 8, 6)
    p2(RC + 12, 9)
    stamp(a, 7)
    a("s_waitcnt vmcnt(%d)" % nw2)
    for x in b_reads(0):
        a(x)

    W2F, WXF = V_C[0], V_C[1]
    QD, RD = V_T[1], V_B[1]

    def frag_reads():
        for k in range(4):
            a("ds_read_b128 %s, v%d offset:%d" % (vr(W2F + 4 * k, 4), FA, 2 * XSTR + 1024 * k))
        for k in range(4):
            a("ds_read_b128 %s, v%d offset:%d" % (vr(WXF + 4 * k, 4), FA, 4 * XSTR + 1024 * k))

    def qr():
        for k in range(4):
            a("v_mfma_f32_32x32x16_bf16 %s, %s, %s, %s" % (vr(QD, 16), vr(W2F + 4 * k, 4), vr(V_B[0] + 4 * k, 4), "0" if k == 0 else vr(QD, 16)))
        for f in range(8):
            a("ds_read_b128 %s, v%d offset:%d" % (vr(V_A1 + 4 * f, 4), FA + 1, XSTR * (f >> 2) + 1024 * (f & 3)))
        for k in range(4):
            a("v_mfma_f32_32x32x16_bf16 %s, %s, %s, %s" % (vr(RD, 16), vr(WXF + 4 * k, 4), vr(V_B[0] + 4 * k, 4), "0" if k == 0 else vr(RD, 16)))
        a("v_lshlrev_b32 v2, 2, v%d" % V_LANE)
        a("ds_read_b32 v%d, v2 offset:%d" % (V_AE, L_LUT + 2048))
        a("ds_read_b32 v%d, v2 offset:%d" % (V_AE + 4, L_LUT + 2048 + 256))
        a("ds_read_b32 v%d, v2 offset:%d" % (V_AE + 3, L_LUT + 2048))
        a("ds_read_b32 v%d, v2 offset:%d" % (V_AE + 7, L_LUT + 2048 + 256))
        a("s_mov_b32 s54, 0x%08x" % f32(-LOG2E))
        a("s_mov_b32 s55, 0x%08x" % f32(-LOG2E))
        a("v_mov_b32 v%d, 0" % (V_AE + 1))
        a("v_mov_b32 v%d, 0" % (V_AE + 2))
        a("v_mov_b32 v%d, 0" % (V_AE + 5))
        a("v_mov_b32 v%d, 0" % (V_AE + 6))
        a("s_mov_b64 exec, s[52:53]")
        for i in range(8):
            a("v_pk_mul_f32 %s, %s, s[54:55]" % (vr(QD + 2 * i, 2), vr(QD + 2 * i, 2)))
        for q in range(4):
            a("ds_write_b128 v%d, %s offset:%d" % (QW, vr(QD + 4 * q, 4), 32 * q))
        for i in range(8):
            a("v_pk_mul_f32 %s, %s, s[54:55]" % (vr(RD + 2 * i, 2), vr(RD + 2 * i, 2)))
        for q in range(4):
            a("ds_write_b128 v%d, %s offset:%d" % (QW, vr(RD + 4 * q, 4), L_R - L_Q + 32 * q))
        a("s_mov_b64 exec, -1")

    a.label("L2_build")
    L4, RB0, NC0, NC1 = V_U, V_U + 1, V_U + 2, V_U + 3
    C0, C1, FL = V_U + 4, V_U + 5, V_U + 6
    P0 = V_U + 8
    O0 = V_U + 10
    E0, E1 = V_N[0], V_N[0] + 8
    a("v_lshlrev_b32 v%d, 2, v%d" % (L4, V_LANE))
    a("s_mov_b32 s3, %d" % SSTR)
    a("v_mov_b32 v%d, %d" % (RB0, L_SLOT - 4))
    a("v_mad_u32_u24 v%d, v%d, s3, v%d" % (RB0, V_LANE, RB0))
    a("v_lshlrev_b32 v%d, 25, v%d" % (NC0, V_LANE))
    a("v_add3_u32 v%d, v%d, v%d, 4" % (NC0, NC0, RB0))
    a("v_add_u32 v%d, 0x%x, v%d" % (NC1, (64 << 25) + 64 * SSTR, NC0))
    a("s_cmp_lt_u32 s%d, %d" % (S_B, N - 97 * 256))
    a("s_cselect_b32 s%d, 3, 1" % (S_HI + 1))
    a("s_mov_b32 s%d, -1" % S_HI)
    a("s_mov_b32 s%d, 0" % S_LI)
    a("s_mov_b32 s%d, 0" % S_SAFE)
    a("v_mov_b32 v2, %d" % (L_SLOT + 98 * SSTR))
    a("ds_write_b32 v%d, v2" % (V_T0 + 3))
    a("s_lshl_b32 s3, s%d, 6" % S_W)
    a("v_and_b32 v3, 60, v%d" % L4)
    a("v_add_u32 v%d, s3, v3" % (V_T0 + 2))
    a("v_mov_b32 v2, 0x%x" % (127 << 25))
    a("ds_write_b32 v%d, v2 offset:%d" % (V_T0 + 2, L_NL))
    a("v_mov_b32 v%d, 0" % FL)
    a("v_add_u32 v3, %d, v%d" % (64 * SSTR, RB0))
    a("s_mov_b32 s42, 0x100401")
    a("s_waitcnt lgkmcnt(0)")
    a("s_barrier")
    stamp(a, 8)
    a("ds_read_b32 v%d, v%d offset:%d" % (C0, L4, L_CNT + 4))
    a("ds_read_b32 v%d, v%d offset:%d" % (C1, L4, L_CNT + 4 + 256))
    a("ds_read_b32 v%d, v%d offset:%d" % (FL, FL, F_SLOW))
    a("s_waitcnt lgkmcnt(1)")
    a("v_sub_u32 v%d, v%d, v%d" % (C0, C0, RB0))
    a("v_sub_u32 v%d, v%d, v3" % (C1, C1))
    a("v_lshlrev_b32 v%d, 3, v%d" % (C0, C0))
    a("v_lshlrev_b32 v%d, 3, v%d" % (C1, C1))
    a("ds_read_b128 %s, v%d offset:%d" % (vr(E0 + 4, 4), C0, L_LUT + 16))
    a("ds_read_b128 %s, v%d offset:%d" % (vr(E1 + 4, 4), C1, L_LUT + 16))
    a("ds_read_b128 %s, v%d offset:%d" % (vr(E0, 4), C0, L_LUT))
    a("ds_read_b128 %s, v%d offset:%d" % (vr(E1, 4), C1, L_LUT))
    a("v_max_u32 v2, v%d, v%d" % (C0, C1))
    a("v_cmp_lt_u32 vcc, %d, v2" % (32 * (DMAX + 1)))
    a("s_waitcnt lgkmcnt(4)")
    a("v_cmp_lt_u32_e64 s[40:41], 1, v%d" % FL)
    a("s_or_b64 vcc, vcc, s[40:41]")
    a("s_cbranch_vccnz L2_slow")
    a("s_waitcnt lgkmcnt(2)")
    a.label("L2_scan")
    a("v_add_u32 v%d, v%d, v%d" % (O0, E0 + 4, E1 + 4))
    a("v_add_u32 v%d, v%d, v%d" % (O0 + 1, E0 + 5, E1 + 5))
    a("v_mov_b32 v%d, v%d" % (P0, O0))
    a("v_mov_b32 v%d, v%d" % (P0 + 1, O0 + 1))
    a("s_waitcnt lgkmcnt(0)")
    dpp_scan(a, [P0, P0 + 1], fill=["v_add_u32 v%d, v%d, v%d" % (E0 + i, E0 + i, NC0) for i in range(4)] +
             ["v_add_u32 v%d, v%d, v%d" % (E1 + i, E1 + i, NC1) for i in range(4)])
    a("v_readlane_b32 s44, v%d, 63" % P0)
    a("v_readlane_b32 s45, v%d, 63" % (P0 + 1))
    a("v_sub_u32 v%d, v%d, v%d" % (P0, P0, O0))
    a("v_sub_u32 v%d, v%d, v%d" % (P0 + 1, P0 + 1, O0 + 1))
    a("s_mul_i32 s44, s44, s42")
    a("s_mul_i32 s45, s45, s42")
    a("s_bfe_u32 s46, s44, 0x%x" % ((10 << 16) | 20))
    a("s_bfe_u32 s47, s45, 0x%x" % ((10 << 16) | 20))
    a("s_lshl_b32 s44, s44, 10")
    a("s_lshl_b32 s45, s45, 10")
    a("s_add_u32 s47, s47, s46")
    a("s_mul_i32 s46, s46, s42")
    a("v_add_u32 v%d, s44, v%d" % (P0, P0))
    a("s_add_u32 s45, s45, s46")
    a("s_cmp_gt_u32 s47, 256")
    a("s_cbranch_scc1 L2_retry")
    a("v_add_u32 v%d, s45, v%d" % (P0 + 1, P0 + 1))
    a("v_lshrrev_b64 %s, v%d, %s" % (vr(O0, 2), E0 + 6, vr(P0, 2)))
    a("v_add_u32 v%d, v%d, v%d" % (P0, P0, E0 + 4))
    a("v_add_u32 v%d, v%d, v%d" % (P0 + 1, P0 + 1, E0 + 5))
    a("v_and_b32 v2, 0x1ff, v%d" % O0)
    a("v_lshrrev_b64 %s, v%d, %s" % (vr(O0, 2), E1 + 6, vr(P0, 2)))
    a("v_lshl_add_u32 v2, v2, 2, s%d" % S_XT)
    a("ds_write2_b32 v2, v%d, v%d offset0:2 offset1:3" % (E0 + 2, E0 + 3))
    a("v_and_b32 v3, 0x1ff, v%d" % O0)
    a("v_lshl_add_u32 v3, v3, 2, s%d" % S_XT)
    a("s_mov_b64 exec, %s" % sr(S_HI, 2))
    a("ds_write2_b32 v3, v%d, v%d offset0:2 offset1:3" % (E1 + 2, E1 + 3))
    a("ds_write2_b32 v3, v%d, v%d offset0:0 offset1:1" % (E1, E1 + 1))
    a("s_mov_b64 exec, -1")
    a("ds_write2_b32 v2, v%d, v%d offset0:0 offset1:1" % (E0, E0 + 1))
    a("s_lshl_b32 s3, s%d, 7" % S_BT)
    a("s_add_u32 s3, s3, s%d" % S_XT)
    a("v_lshrrev_b32 v2, 3, v%d" % V_LANE)
    a("v_lshl_add_u32 v2, v2, 2, s3")
    a("ds_read_b32 v%d, v%d" % (V_W, V_T0 + 3))
    for i in range(4):
        a("ds_read_u16 v%d, v2 offset:%d" % (V_IA + i, 32 * i))
    a("s_mov_b32 s%d, %d" % (S_X + 2, N))
    a("s_waitcnt lgkmcnt(0)")
    for x in idx_reads(0):
        a(x)
    a("s_cmp_lg_u32 s%d, 0" % S_MODE)
    a("s_cbranch_scc1 L2_nofr")
    frag_reads()
    a.label("L2_nofr")
    a("v_and_b32 v%d, 0xffff, v%d" % (V_RA, V_W))
    a("v_bfe_u32 v%d, v%d, 16, 6" % (V_LEN, V_W))
    a("v_lshrrev_b32 v2, 25, v%d" % V_W)
    a("s_mov_b32 s3, %d" % RSTR)
    a("v_lshlrev_b32 v3, 4, v%d" % HH)
    a("s_cbranch_scc0 L2_nofr2")
    a("s_waitcnt lgkmcnt(0)")
    a.label("L2_nofr2")
    a("s_waitcnt lgkmcnt(8)")
    dma_plain(a, 0)
    stamp(a, 9)
    a("v_mad_u32_u24 v%d, v2, s3, v3" % V_QA)
    a("v_add_u32 v%d, %d, v%d" % (V_QA, L_Q, V_QA))
    a("s_cmp_lg_u32 s%d, 0" % S_MODE)
    a("s_cbranch_scc1 L2_noqr")
    a("s_waitcnt lgkmcnt(0)")
    qr()
    a.label("L2_noqr")
    for x in idx_reads(4):
        a(x)
    a("ds_read2_b32 %s, v%d offset0:0 offset1:1" % (vr(V_R, 2), V_RA))
    KF = V_T0 + 4
    a("v_bfe_u32 v%d, v%d, 22, 3" % (KF, V_W))
    a("v_mov_b32 v%d, v%d" % (V_T0 + 5, V_LEN))
    a("v_cmp_ne_u32 vcc, 0, v%d" % KF)
    a("v_add_u32 v2, %d, v%d" % (L_R - L_Q, V_QA))
    a("v_add_u32 v%d, %d, v3" % (V_RC, L_ZERO))
    a("v_cndmask_b32 v%d, v%d, v2, vcc" % (V_RC, V_RC))
    a("v_mbcnt_lo_u32_b32 v2, vcc_lo, 0")
    a("s_lshl_b32 s40, s%d, 6" % S_W)
    a("v_lshl_add_u32 v2, v2, 2, s40")
    a("s_mov_b32 s41, 0xffc00000")
    a("v_and_or_b32 v%d, v%d, s41, v%d" % (V_NW, V_W, COL))
    a("s_mov_b32 exec_lo, vcc_lo")
    a("s_mov_b32 exec_hi, 0")
    a("ds_write_b32 v2, v%d offset:%d" % (V_NW, L_NL))
    a("s_mov_b64 exec, -1")
    a("s_waitcnt lgkmcnt(0)")
    a("s_barrier")
    dma_plain(a, 1)
    for x in row_reads(V_C, V_QA):
        a(x)
    for x in idx_reads(8):
        a(x)
    a("v_and_b32 v2, 60, v%d" % V_LANE)
    a("v_add_u32 v2, s40, v2")
    a("ds_read_b32 v%d, v2 offset:%d" % (V_NW, L_NL))
    a("v_add_u32 v2, v%d, v%d" % (KF, COL))
    a("v_cmp_lt_u32 vcc, 32, v2")
    a("v_mad_u32_u24 v%d, v%d, s3, v3" % (V_YW, COL))
    a("v_add_u32 v%d, s%d, v%d" % (V_YW, S_XT, V_YW))
    a("s_cmp_lg_u64 vcc, 0")
    a("s_cselect_b32 s%d, 1, 0" % S_NEED)
    a("s_cmp_lg_u32 s%d, 7" % S_BT)
    a("s_cselect_b32 s%d, s%d, 0" % (S_NEED, S_NEED))
    a("s_waitcnt vmcnt(4)")
    for x in b_reads(0):
        a(x)
    dpp_scan(a, [V_T0 + 5], op="v_max_u32", fill=[
        "v_cmp_lt_u32_e64 %s, 0, v%d" % (sr(S_M0, 2), V_LEN),
        "v_cmp_lt_u32_e64 %s, 1, v%d" % (sr(S_M[1], 2), V_LEN),
        "v_mov_b32 v%d, 0" % V_S, "v_mov_b32 v%d, 0" % (V_S + 1)])
    a("s_nop 0")
    a("v_readlane_b32 s%d, v%d, 63" % (S_ML, V_T0 + 5))
    a("s_mov_b32 s%d, 1" % S_J)
    a("s_max_u32 s%d, s%d, 2" % (S_ML, S_ML))
    a("s_cmp_gt_u32 s%d, 2" % S_ML)
    a("s_cselect_b32 s%d, %d, 0" % (S_X + 2, N))
    a("s_waitcnt lgkmcnt(0)")
    if X_IDENT in (1, 3):
        a("v_lshlrev_b32 v2, 3, v%d" % HH)
        a("v_sub_u32 v2, v%d, v2" % COL)
        for j in range(2):
            for i in range(4):
                a("v_mov_b32 v3, 0x3f80")
                a("v_cmp_eq_u32 vcc, %d, v2" % (16 * j + 2 * i))
                a("v_cndmask_b32 v%d, 0, v3, vcc" % (V_A1 + 4 * j + i))
                a("v_mov_b32 v3, 0x3f800000")
                a("v_cmp_eq_u32 vcc, %d, v2" % (16 * j + 2 * i + 1))
                a("v_cndmask_b32 v%d, v%d, v3, vcc" % (V_A1 + 4 * j + i, V_A1 + 4 * j + i))
        a("s_nop 4")
    mf = mfma_chain(0, 0, V_N[0]) + ["s_nop 0", "s_nop 0"]
    d = dma(0)
    a(mf[0])
    for i in range(4):
        a(d[2 * i])
        a(mf[1 + i])
        a(d[2 * i + 1])
    stamp(a, 10)
    a("s_nop 7")
    a("s_nop 1")
    me(a, mfma_chain(1, 0, V_N[1]), exps(V_N[0]))
    a("s_waitcnt vmcnt(4)")
    for x in b_reads(1) + idx_reads(12) + pk_first(0):
        a(x)
    a("s_cmp_gt_u32 s%d, 3" % S_ML)
    a("s_cselect_b32 s%d, %d, 0" % (S_X + 2, N))
    a("s_waitcnt lgkmcnt(0)")
    me(a, mfma_chain(0, 1, V_T[0]), exps(V_N[1]))
    dma_grp(a, 1)
    for x in pk_first(1):
        a(x)
    a.raw(".p2align 6")
    a.label("L2_loop")
    for par in (1, 0):
        if X_MASK:
            a("s_mov_b64 exec, %s" % sr(S_M[par], 2))
            a("s_nop 0")
        me(a, [] if X_NOMF else mfma_chain(1, par, V_T[1]), exps(V_T[0]))
        a("s_add_u32 s%d, s%d, 1" % (S_J, S_J))
        if X_MASK:
            a("s_mov_b64 exec, -1")
            a("s_nop 0")
        a("s_waitcnt vmcnt(4)")
        for x in ([] if X_NOBR else b_reads(par + 1)) + idx_reads(16 if par else 20):
            a(x)
        if par == 1:
            a("ds_read2_b32 %s, v%d offset0:2 offset1:3" % (vr(V_R, 2), V_RA))
        if X_IDENT == 3:
            for i in range(3 - par):
                a("ds_read2_b32 %s, v%d offset0:2 offset1:3" % (vr(V_A1 + 16 + 2 * i, 2), V_RA))
        a("s_cmp_ge_u32 s%d, s%d" % (S_J, S_ML))
        a("s_mov_b64 exec, %s" % sr(S_M[par], 2))
        for x in pk_update(0):
            a(x)
        a("s_cbranch_scc1 L2_last")
        a("s_nop 0" if X_MASK else "s_mov_b64 exec, -1")
        a("s_waitcnt lgkmcnt(0)")
        extra = (["s_mov_b64 exec, -1", "s_nop 0"] if X_MASK else []) + ["v_cmp_lt_u32_e64 %s, s%d, v%d" % (sr(S_M[par ^ 1], 2), S_J, V_LEN)]
        if par == 0:
            extra += ["v_add_u32 v%d, 8, v%d" % (V_IA + i, V_IA + i) for i in range(4)] + ["v_add_u32 v%d, 8, v%d" % (V_RA, V_RA)]
        me(a, [] if X_NOMF else mfma_chain(0, par ^ 1, V_T[0]), exps(V_T[1]), extra)
        a("s_add_u32 s%d, s%d, 2" % (S_T, S_J))
        a("s_cmp_lt_u32 s%d, s%d" % (S_T, S_ML))
        a("s_cselect_b32 s%d, %d, 0" % (S_X + 2, 0 if X_NODMA == 1 else N))
        if X_NODMA != 2:
            dma_grp(a, par ^ 1)
        a("s_mov_b64 exec, %s" % sr(S_M[par], 2))
        for x in pk_update(1):
            a(x)
        a("s_mov_b64 exec, -1")
    a("s_branch L2_loop")

    a.label("L2_norec")
    dma_plain(a, 0)
    a("s_waitcnt vmcnt(0)")
    for x in b_reads(0):
        a(x)
    a("s_waitcnt lgkmcnt(0)")
    a("s_barrier")
    frag_reads()
    a("s_waitcnt lgkmcnt(0)")
    qr()
    a("s_waitcnt lgkmcnt(0)")
    a("s_branch L2_slow_round")

    a.label("L2_last")
    a("s_mov_b64 %s, exec" % sr(S_T + 2, 2))
    a("s_mov_b64 exec, -1")
    a("s_waitcnt lgkmcnt(0)")
    stamp(a, 11)
    for x in gl_frags(V_A1, WF_WA) + row_reads(V_C, V_RC) + exps(V_T[1]):
        a(x)
    a("s_mov_b64 exec, %s" % sr(S_T + 2, 2))
    for x in pk_update(1):
        a(x)
    a.label("L2_final")
    PB = V_B[0]
    a("s_not_b64 exec, %s" % sr(S_M0, 2))
    a("s_cbranch_execz L2_nz")
    for i in range(16):
        a("v_mov_b32 v%d, 0" % (PB + i))
    a.label("L2_nz")
    a("s_mov_b64 exec, %s" % sr(S_M0, 2))

    def fin(X):
        n, d, t = V_N[X], V_D[X], V_T[X]
        r = ["v_rcp_f32 v%d, v%d" % (t + i, d + i) for i in range(16)]
        s = ["v_pk_fma_f32 %s, %s, %s, %s" % (vr(V_S, 2), vr(d + 4 * i, 2), vr(d + 4 * i + 2, 2), vr(V_S, 2)) for i in range(4)]
        m = ["v_pk_mul_f32 %s, %s, %s" % (vr(t + 2 * i, 2), vr(t + 2 * i, 2), vr(n + 2 * i, 2)) for i in range(8)]
        c = ["v_cvt_pk_bf16_f32 v%d, v%d, v%d" % (PB + 8 * X + i, t + 2 * i, t + 2 * i + 1) for i in range(8)]
        return r, [s[0], m[0], m[1], s[1], m[2], m[3], s[2], m[4], m[5], s[3], m[6], m[7]] + c

    def ymf(o, q):
        return "v_mfma_f32_32x32x16_bf16 %s, %s, %s, %s" % (vr(V_C[o], 16), vr(V_A1 + 16 * o + 4 * q, 4), vr(PB + 4 * q, 4), vr(V_C[o], 16))

    r, p = fin(0)
    for x in r + p:
        a(x)
    r, p = fin(1)
    a("s_waitcnt vmcnt(0) lgkmcnt(0)")
    a(r[0])
    phase(a, [ymf(0, 0), ymf(1, 0), ymf(0, 1), ymf(1, 1)], r[1:], [])
    for x in p:
        a(x)
    a("s_nop 1")
    for x in (ymf(0, 2), ymf(1, 2), ymf(0, 3), ymf(1, 3)):
        a(x)
    a("v_mov_b32 v2, 0x%08x" % f32(2.0 ** 120))
    a("v_max_f32 v3, v%d, v%d" % (V_S, V_S + 1) if False else "v_add_f32 v3, v%d, v%d" % (V_S, V_S + 1))
    a("s_movk_i32 s40, 0x207")
    a("v_cmp_nlt_f32 vcc, v3, v2")
    a("s_mov_b64 exec, -1")
    YR, OA, KK = V_T0 + 2, V_T0 + 4, V_T0 + 5
    a("s_mov_b32 s3, %d" % RSTR)
    a("v_and_b32 v2, 3, v%d" % V_LANE)
    a("v_and_b32 v3, 0xff, v%d" % V_NW)
    a("v_lshl_add_u32 v%d, v2, 5, s%d" % (YR, S_XT))
    a("v_mad_u32_u24 v%d, v3, s3, v%d" % (YR, YR))
    a("v_lshrrev_b32 v3, 25, v%d" % V_NW)
    a("v_lshl_add_u32 v%d, v3, 8, s%d" % (OA, S_B))
    a("v_lshlrev_b32 v%d, 7, v%d" % (OA, OA))
    a("v_lshl_add_u32 v%d, v2, 4, v%d" % (OA, OA))
    a("v_bfe_u32 v%d, v%d, 22, 3" % (KK, V_NW))
    a("v_cmp_class_f32_e64 s[42:43], v%d, s40" % V_C[1])
    a("s_lshl_b32 s41, s%d, 2" % S_BT)
    a("s_and_b64 s[42:43], s[42:43], %s" % sr(S_M0, 2))
    a("s_or_b64 vcc, vcc, s[42:43]")
    a("s_cselect_b32 s42, 1, 0")
    a("s_andn2_b32 s42, s42, s%d" % S_SAFE)
    a("s_cbranch_scc1 L2_safe")
    for X in range(2):
        for q in range(4):
            a("ds_write_b128 v%d, %s offset:%d" % (V_YW, vr(V_C[X] + 4 * q, 4), 128 * X + 32 * q))
    a("v_mov_b32 v2, s41")
    a("v_mov_b32 v3, 1")
    a("v_cmp_lt_u32_e64 s[44:45], 2, v%d" % KK)
    a("v_cmp_lt_u32_e64 s[46:47], 3, v%d" % KK)
    a("s_waitcnt lgkmcnt(0)")
    a("ds_write_b32 v2, v3 offset:%d" % L_FLAG)
    a("s_cmp_eq_u32 s%d, 0" % S_NEED)
    a("s_cbranch_scc1 L2_nowait")
    a.label("L2_poll")
    a("ds_read_b32 v3, v2 offset:%d" % (L_FLAG + 4))
    a("s_waitcnt lgkmcnt(0)")
    a("v_cmp_eq_u32 vcc, 0, v3")
    a("s_cbranch_vccnz L2_poll")
    a.label("L2_nowait")
    stamp(a, 12)
    Y = [V_N[0], V_N[1], V_D[0], V_D[1]]

    def yreads(i):
        for c in range(4):
            a("ds_read_b128 %s, v%d offset:%d" % (vr(Y[i] + 4 * c, 4), YR, RSTR * i + 128 * (c >> 1) + 16 * (c & 1)))

    def yadd(i):
        for c in range(8):
            a("v_pk_add_f32 %s, %s, %s" % (vr(Y[0] + 2 * c, 2), vr(Y[0] + 2 * c, 2), vr(Y[i] + 2 * c, 2)))

    yreads(0)
    yreads(1)
    yreads(2)
    a("s_mov_b32 s40, 0x%08x" % f32(-LN2))
    a("s_mov_b32 s41, 0x%08x" % f32(-LN2))
    a("s_cmp_eq_u64 s[46:47], 0")
    a("s_cbranch_scc1 L2_no4")
    yreads(3)
    a("s_waitcnt lgkmcnt(0)")
    a("s_mov_b64 exec, s[46:47]")
    yadd(3)
    a("s_mov_b64 exec, -1")
    a.label("L2_no4")
    a("s_waitcnt lgkmcnt(4)")
    yadd(1)
    a("s_waitcnt lgkmcnt(0)")
    a("s_mov_b64 exec, s[44:45]")
    yadd(2)
    a("s_mov_b64 exec, -1")
    a("s_cmp_eq_u32 s%d, 1" % S_MODE)
    a("s_cbranch_scc1 L2_writeback")
    U = V_U
    for i in range(16):
        a("v_exp_f32 v%d, v%d" % (U + i, Y[0] + i))
    for i in range(8):
        a("v_pk_add_f32 %s, %s, %s" % (vr(U + 2 * i, 2), vr(U + 2 * i, 2), sr(S_ONE, 2)))
    for i in range(16):
        a("v_rcp_f32 v%d, v%d" % (U + i, U + i))
    for i in range(8):
        a("v_pk_mul_f32 %s, %s, s[40:41]" % (vr(Y[0] + 2 * i, 2), vr(Y[0] + 2 * i, 2)))
    for i in range(8):
        a("v_pk_mul_f32 %s, %s, %s" % (vr(U + 2 * i, 2), vr(U + 2 * i, 2), vr(Y[0] + 2 * i, 2)))
    P = V_B[1]
    for i in range(4):
        a("v_cvt_pk_bf16_f32 v%d, v%d, v%d" % (P + i, U + 2 * i, U + 2 * i + 1))
    a("buffer_store_dwordx4 %s, v%d, %s, 0 offen" % (vr(P, 4), OA, sr(S_OUT, 4)))
    for i in range(4, 8):
        a("v_cvt_pk_bf16_f32 v%d, v%d, v%d" % (P + i, U + 2 * i, U + 2 * i + 1))
    a("buffer_store_dwordx4 %s, v%d, %s, 0 offen offset:64" % (vr(P + 4, 4), OA, sr(S_OUT, 4)))
    stamp(a, 13)
    stamp_out(a)
    tl_end(a, 72, 64, 0x900000, 2)
    a.label("L2_end")
    a("s_endpgm")

    a.label("L2_retry")
    a("s_lshl_b32 s3, s%d, 11" % S_LI)
    a("s_add_u32 s3, s3, %d" % (WS_WF + WF_LUT2))
    a("s_add_u32 s%d, s%d, 1" % (S_LI, S_LI))
    a("buffer_load_dwordx4 %s, v%d, %s, s3 offen" % (vr(E0, 4), C0, sr(S_WS, 4)))
    a("buffer_load_dwordx4 %s, v%d, %s, s3 offen offset:16" % (vr(E0 + 4, 4), C0, sr(S_WS, 4)))
    a("buffer_load_dwordx4 %s, v%d, %s, s3 offen" % (vr(E1, 4), C1, sr(S_WS, 4)))
    a("buffer_load_dwordx4 %s, v%d, %s, s3 offen offset:16" % (vr(E1 + 4, 4), C1, sr(S_WS, 4)))
    a("s_waitcnt vmcnt(0)")
    a("s_branch L2_scan")

    a.label("L2_safe")
    a("s_mov_b32 s%d, 1" % S_SAFE)
    a("s_mov_b32 s%d, %d" % (S_X + 2, N))
    a("s_nop 7")
    for x in gl_frags(V_A1, WF_W1) + row_reads(V_C, V_QA):
        a(x)
    a("v_and_b32 v2, 0xffff, v%d" % V_W)
    a("v_sub_u32 v2, v%d, v2" % V_RA)
    for i in range(4):
        a("v_sub_u32 v%d, v%d, v2" % (V_IA + i, V_IA + i))
    a("v_sub_u32 v%d, v%d, v2" % (V_RA, V_RA))
    for i in range(32):
        a("v_mov_b32 v%d, 0" % (V_N[0] + i))
        a("v_mov_b32 v%d, 1.0" % (V_D[0] + i))
    a("v_mov_b32 v%d, 0x%x" % (V_R + 1, PAD))
    a("s_mov_b32 s%d, 0" % S_J)
    a.label("L2_safe_loop")
    for x in idx_reads(0):
        a(x)
    a("ds_read_b32 v%d, v%d" % (V_R, V_RA))
    a("s_waitcnt lgkmcnt(0)")
    dma_plain(a, 0)
    a("v_cmp_lt_u32_e64 %s, s%d, v%d" % (sr(S_M[0], 2), S_J, V_LEN))
    for i in range(4):
        a("v_add_u32 v%d, 4, v%d" % (V_IA + i, V_IA + i))
    a("v_add_u32 v%d, 4, v%d" % (V_RA, V_RA))
    a("s_waitcnt vmcnt(0)")
    for x in b_reads(0):
        a(x)
    a("s_waitcnt lgkmcnt(0)")
    for x in mfma_chain(0, 0, V_T[0]) + mfma_chain(1, 0, V_T[1]):
        a(x)
    a("s_nop 7")
    a("s_nop 3")
    a("s_mov_b64 exec, %s" % sr(S_M[0], 2))
    for X in range(2):
        for x in exps(V_T[X]):
            a(x)
        for i in range(8):
            a("v_pk_add_f32 %s, %s, %s" % (vr(U + 2 * i, 2), vr(U + 2 * i, 2), sr(S_ONE, 2)))
        for i in range(16):
            a("v_rcp_f32 v%d, v%d" % (U + i, U + i))
        for i in range(8):
            a("v_pk_fma_f32 %s, %s, %s, %s" % (vr(V_N[X] + 2 * i, 2), vr(V_T[X] + 2 * i, 2), vr(U + 2 * i, 2), vr(V_N[X] + 2 * i, 2)))
    a("s_mov_b64 exec, -1")
    a("s_add_u32 s%d, s%d, 1" % (S_J, S_J))
    a("s_cmp_lt_u32 s%d, s%d" % (S_J, S_ML))
    a("s_cbranch_scc1 L2_safe_loop")
    for x in gl_frags(V_A1, WF_WA) + row_reads(V_C, V_RC):
        a(x)
    a("s_branch L2_final")

    a.label("L2_slow")
    a("s_load_dwordx4 %s, s[0:1], 8" % sr(S_SL, 4))
    a("s_load_dwordx2 %s, s[0:1], 24" % sr(S_SL + 4, 2))
    a("s_mov_b32 s%d, 1" % S_MODE)
    a("s_mov_b32 s%d, 0" % S_POS)
    a("v_mov_b32 v%d, 0" % V_DONE)
    a("s_waitcnt vmcnt(0) lgkmcnt(0)")
    a("s_barrier")
    a("s_branch L2_restart")
    a.label("L2_writeback")
    a("v_cmp_ne_u32 vcc, 0, v%d" % KK)
    a("v_lshrrev_b32 v3, 25, v%d" % V_NW)
    a("v_and_b32 v2, 3, v%d" % V_LANE)
    a("v_lshlrev_b32 v2, 5, v2")
    a("v_mad_u32_u24 v2, v3, s3, v2")
    a("v_add_u32 v2, %d, v2" % L_R)
    a("s_mov_b64 exec, vcc")
    for c in range(4):
        a("ds_write_b128 v2, %s offset:%d" % (vr(Y[0] + 4 * c, 4), 128 * (c >> 1) + 16 * (c & 1)))
    a("s_mov_b64 exec, -1")
    a("s_waitcnt lgkmcnt(0)")
    a.label("L2_slow_round")
    a("s_barrier")
    lds_init(a, V_U)
    for x in gl_frags(V_A1, WF_W1):
        a(x)
    a("s_lshl_b32 s3, s%d, 7" % S_BT)
    a("s_add_u32 s3, s3, s%d" % S_XT)
    a("v_lshl_add_u32 v%d, v%d, 2, s3" % (V_T0 + 3, COL))
    a("s_waitcnt vmcnt(0) lgkmcnt(0)")
    a("s_barrier")
    a.label("L2_slow_step")
    a("s_cmp_lt_u32 s%d, %d" % (S_POS, E))
    a("s_cbranch_scc1 L2_slow_go")
    a("s_mov_b32 s%d, 2" % S_MODE)
    a("s_branch L2_build")
    a.label("L2_slow_go")
    t = V_U
    a("v_add_u32 v2, s%d, v0" % S_POS)
    a("v_cmp_gt_u32 vcc, %d, v2" % E)
    a("v_min_u32 v2, %d, v2" % (E - 1))
    a("v_lshlrev_b32 v3, 1, v2")
    a("v_lshlrev_b32 v2, 2, v2")
    a("global_load_dword v%d, v2, %s" % (t, sr(S_SL + 4, 2)))
    a("global_load_dword v%d, v2, %s" % (t + 1, sr(S_SL + 2, 2)))
    a("global_load_ushort v%d, v3, %s" % (t + 2, sr(S_SL, 2)))
    a("v_cmp_eq_u32_e64 s[40:41], 0, v%d" % V_DONE)
    a("s_and_b64 s[40:41], s[40:41], vcc")
    a("s_mov_b32 s3, %d" % SSTR)
    a("v_mov_b32 v%d, %d" % (t + 4, L_SLOT + 4 * DMAX))
    a("v_mov_b32 v2, 4")
    a("s_waitcnt vmcnt(0)")
    a("v_and_b32 v3, 255, v%d" % t)
    a("v_cmp_eq_u32 vcc, s%d, v3" % S_B)
    a("v_lshrrev_b32 v3, 8, v%d" % t)
    a("v_mad_u32_u24 v%d, v3, s3, v%d" % (t + 4, t + 4))
    a("v_lshlrev_b32 v3, 2, v3")
    a("v_lshl_or_b32 v%d, v%d, 16, v%d" % (t + 1, t + 2, t + 1))
    a("s_and_b64 exec, vcc, s[40:41]")
    a("ds_add_rtn_u32 v%d, v3, v2 offset:%d" % (t + 3, L_CNT + 4))
    a("s_waitcnt lgkmcnt(0)")
    a("v_cmp_lt_u32 vcc, v%d, v%d" % (t + 3, t + 4))
    a("s_andn2_b64 s[40:41], exec, vcc")
    a("s_mov_b64 exec, vcc")
    a("ds_write_b32 v%d, v%d" % (t + 3, t + 1))
    a("v_mov_b32 v%d, 1" % V_DONE)
    a("s_mov_b64 exec, s[40:41]")
    a("v_mov_b32 v%d, %d" % (t + 5, F_PEND))
    a("ds_write_b32 v%d, v2" % (t + 5))
    a("s_mov_b64 exec, -1")
    a("s_waitcnt lgkmcnt(0)")
    a("s_barrier")
    a("s_mov_b64 exec, s[40:41]")
    a("ds_min_u32 v3, v%d offset:%d" % (t + 4, L_CNT + 4))
    a("s_mov_b64 exec, -1")
    a("v_mov_b32 v%d, %d" % (t + 5, F_PEND))
    a("ds_read_b32 v%d, v%d" % (t + 5, t + 5))
    a("s_waitcnt lgkmcnt(0)")
    a("v_cmp_ne_u32 vcc, 0, v%d" % (t + 5))
    a("s_cbranch_vccnz L2_build")
    a("s_barrier")
    a("s_add_u32 s%d, s%d, 512" % (S_POS, S_POS))
    a("v_mov_b32 v%d, 0" % V_DONE)
    a("s_branch L2_slow_step")


def kd(name, vgpr, sgpr):
    return """.amdhsa_kernel %s
  .amdhsa_next_free_vgpr %d
  .amdhsa_next_free_sgpr %d
  .amdhsa_accum_offset %d
  .amdhsa_group_segment_fixed_size 0
  .amdhsa_kernarg_size 72
  .amdhsa_user_sgpr_count 2
  .amdhsa_user_sgpr_kernarg_segment_ptr 1
  .amdhsa_system_sgpr_workgroup_id_x 1
  .amdhsa_float_denorm_mode_32 3
.end_amdhsa_kernel
""" % (name, vgpr, sgpr, (vgpr + 3) // 4 * 4)


HEADER = """; Kernarg layout for this problem (72 bytes, ptrs only, base s[0:1]):
"""


def main():
    a = Asm()
    a.raw(HEADER.rstrip())
    a.raw("; @launch kernel=sort_kernel grid=(%d,1,1) block=(%d,1,1) lds=%d" % (NB, K1_THREADS, K1_LDS))
    a.raw("; @launch kernel=edge_kernel grid=(%d,1,1) block=(512,1,1) lds=%d" % (NB, K2_LDS))
    a.raw('.amdgcn_target "amdgcn-amd-amdhsa--gfx950"')
    a.raw(".text")
    gen_sort(a)
    gen_edge(a)
    a.raw('.section .rodata,"a"')
    a.raw(".p2align 6")
    a.raw(kd("sort_kernel", 64, 40))
    a.raw(".p2align 6")
    a.raw(kd("edge_kernel", 256, 96))
    out = sys.argv[1] if len(sys.argv) > 1 else "standalone__mpnn_edge_mlp__graph.s"
    open(out, "w").write(a.text())
    print("wrote", out, "K2 LDS", K2_LDS)


if __name__ == "__main__":
    main()
```

```python
import struct, sys, os


def env(name, d):
    return int(os.environ.get(name, str(d)), 0)


DEBUG = env('DEBUG', 0)
X_TIMEOUT = env('X_TIMEOUT', 0)
POLLS = X_TIMEOUT if X_TIMEOUT else 20000
NPF = 0
SLEEP = env('SLEEP', 1)
X_NOPST = env('X_NOPST', 0)
X_TEST = env('X_TEST', 0)
PLATE = env('PLATE', 0)
WQ = env('WQ', 2)
NCLR = 32
LD_IN = os.environ.get('LD_IN', '')
SC = os.environ.get('SC', 'sc1')
SCP = os.environ.get('SCP', 'sc1')
SCG = os.environ.get('SCG', 'sc1')

N = 25000
E = 800000
NB = 256
NLOC = 98
NP = NB * NLOC
CU = 1216
DMAX = 62

WS_REC = 0
WS_TAB = 0x500000
WS_P = 0x580000
WS_SIZE = 0x580000
WS_DBG = 0xA00000
LS = (16, 17, 18, 32)
assert NB * CU * 16 <= WS_TAB

LOG2E = 1.4426950408889634
LN2 = 0.6931471805599453


def f32(x):
    return struct.unpack("<I", struct.pack("<f", x))[0]


class Asm:
    def __init__(self):
        self.l = []

    def __call__(self, s):
        for x in s.split("\n"):
            x = x.strip()
            if x:
                self.l.append("    " + x)

    def label(self, s):
        self.l.append(s + ":")

    def raw(self, s):
        self.l.append(s)

    def text(self):
        return "\n".join(self.l) + "\n"


def vr(a, n):
    return "v[%d:%d]" % (a, a + n - 1)


def sr(a, n):
    return "s[%d:%d]" % (a, a + n - 1)


DPP_STEPS = ["row_shr:1 row_mask:0xf", "row_shr:2 row_mask:0xf", "row_shr:4 row_mask:0xf", "row_shr:8 row_mask:0xf",
             "row_bcast:15 row_mask:0xa", "row_bcast:31 row_mask:0xc"]


def dpp_scan(a, regs, op="v_add_u32", fill=()):
    fill = list(fill)
    for st in DPP_STEPS:
        n = 3 - len(regs)
        while n > 0 and fill:
            a(fill.pop(0))
            n -= 1
        if n > 0:
            a("s_nop %d" % (n - 1))
        for v in regs:
            a("%s_dpp v%d, v%d, v%d %s bank_mask:0xf" % (op, v, v, v, st))
    for x in fill:
        a(x)


RSTR = 272
SSTR = 260
L_CNT = 0
L_FLAG = 544
L_ZERO = 608
L_ZEND = 880
L_W3 = 896
L_NL = 1136
L_LUT = 2048
L_SLOT = L_LUT + 4096
L_SEND = L_SLOT + (99 * SSTR + 160 + 15) // 16 * 16
L_XT = (L_SEND + 255) // 256 * 256
XSTR = 32 * RSTR
L_WA = L_XT + 8 * XSTR
L_Q = L_WA + 8192
L_R = (L_Q + NLOC * RSTR + 127) // 128 * 128
LDS_SIZE = L_R + NLOC * RSTR
L1_CNT = L_XT
L1_START = L1_CNT + 1024
L1_STAGE = L1_START + 1024
L1_X = L1_STAGE + CU * 16
L1_W1 = L1_X + 16384
L1_WX = L_WA - 8192
L1_W2 = L1_WX - 8192
L1_P = L_R
assert L1_W1 + 8192 <= L1_W2 and L1_P % 128 == 0 and L1_P + 16384 <= LDS_SIZE
assert L_SLOT + 97 * SSTR + NB * 48 * 4 <= L1_W2
assert L1_X < 65536 and L1_X % 128 == 0
assert L_NL + 512 <= L_LUT
assert L_SEND < 65536 - 256
assert LDS_SIZE <= 163840, LDS_SIZE
assert 8 * XSTR >= NB * 48 * 4
PAD = 0x7F00
F_SLOW = L_FLAG + 40
F_PEND = L_FLAG + 44

V_LANE = 1
V_BAD = 4
V_IA = 8
V_RA = 12
V_LEN = 13
V_S = 14
V_IDX = 16
V_R = 24
V_YW = 26
V_RC = 27
V_QA = 28
V_NW = 29
V_L16 = 30
V_W = 31
V_T0 = 32
V_DONE = 39
V_AE = 40
V_ID = 48
V_WA = 56
V_TRA = 72
V_ST = 74
V_TAB = 76
V_C = (80, 96)
V_T = (112, 128)
V_N = (144, 160)
V_D = (176, 192)
V_U = 208
V_B = (224, 240)

S_X = 4
S_WS = 8
S_OUT = 12
S_B = 16
S_W = 17
S_BT = 18
S_XT = 19
S_ML = 20
S_J = 21
S_ONE = 22
S_M = (24, 26)
S_M0 = 28
S_MODE = 30
S_SAFE = 31
S_HI = 32
S_NEED = 34
S_LI = 35
S_EXTRA = 36
S_XT1 = 37
S_POS = 38
S_TO = 39
S_T = 40
S_EM = 56
S_LG = 58
S_QM = 60
P_X, P_E, P_SRC, P_DST, P_WM, P_WU, P_OUT, P_DBG, P_WS = 64, 66, 68, 70, 72, 74, 76, 78, 80


def mfma_chain(X, j, dst):
    B = V_B[j & 1]
    out = ["v_mfma_f32_32x32x8_bf16 %s, %s, %s, %s" % (
        vr(dst, 16), vr(V_AE + 4 * X + 2 * (j & 1), 2), vr(V_R, 2), vr(V_C[X], 16))]
    for k in range(2):
        out.append("v_mfma_f32_32x32x16_bf16 %s, %s, %s, %s" % (
            vr(dst, 16), vr(V_ID + 4 * k, 4), vr(B + 8 * X + 4 * k, 4), vr(dst, 16)))
    return out


def exps(src):
    return ["v_exp_f32 v%d, v%d" % (V_U + i, src + i) for i in range(16)]


def pk_first(X):
    return ["v_pk_add_f32 %s, %s, %s" % (vr(V_D[X] + 2 * i, 2), vr(V_U + 2 * i, 2), sr(S_ONE, 2)) for i in range(8)]


def pk_update(X):
    n, d, u, t = V_N[X], V_D[X], V_U, V_T[X]
    A = ["v_pk_fma_f32 %s, %s, %s, %s" % (vr(n + 2 * i, 2), vr(n + 2 * i, 2), vr(u + 2 * i, 2), vr(n + 2 * i, 2)) for i in range(8)]
    B = ["v_pk_fma_f32 %s, %s, %s, %s" % (vr(n + 2 * i, 2), vr(t + 2 * i, 2), vr(d + 2 * i, 2), vr(n + 2 * i, 2)) for i in range(8)]
    C = ["v_pk_fma_f32 %s, %s, %s, %s" % (vr(d + 2 * i, 2), vr(d + 2 * i, 2), vr(u + 2 * i, 2), vr(d + 2 * i, 2)) for i in range(8)]
    return A + B + C


def phase(a, mf, ex):
    mf = list(mf)
    for i, e in enumerate(ex):
        if i % 3 == 0 and mf:
            a(mf.pop(0))
        a(e)
    assert not mf


def b_reads(tile):
    return ["ds_read_b128 %s, v%d offset:%d" % (vr(V_B[tile & 1] + 4 * k, 4), V_BAD + k, 4096 * (tile & 1)) for k in range(4)]


def idx_reads(off):
    return ["ds_read_u16 v%d, v%d offset:%d" % (V_IDX + 2 * i, V_IA + i, off) for i in range(4)]


def dma_m0(slot):
    return "s_mov_b32 m0, s%d" % (S_XT1 if slot else S_XT)


def dma_loads():
    return ["buffer_load_dwordx4 %s, %s, 0 idxen offen offset:%d %s lds" % (vr(V_IDX + 2 * i, 2), sr(S_X, 4), 1024 * i, SCG) for i in range(4)]


def dma_plain(a, slot):
    a(dma_m0(slot))
    a("s_nop 0")
    for x in dma_loads():
        a(x)


def row_off(X, q):
    return 128 * X + 64 * (q >> 1) + 16 * (q & 1)


def row_reads(dst, addr):
    return ["ds_read_b128 %s, v%d offset:%d" % (vr(dst[X] + 4 * q, 4), addr, row_off(X, q)) for X in range(2) for q in range(4)]


def wa_reg(o, q):
    return (V_WA if o == 0 else V_B[1]) + 4 * q


def wa_reads():
    return ["ds_read_b64_tr_b16 %s, v%d offset:%d" % (vr(wa_reg(o, q) + 2 * i, 2), V_TRA + o, 2048 * q + 512 * i)
            for q in range(4) for o in range(2) for i in range(2)]


NSTAMP = [0]
STAMP_NAMES = []


def stamp(a, name):
    if DEBUG:
        k = len(STAMP_NAMES)
        STAMP_NAMES.append(name)
        a("s_memtime s[88:89]")
        a("s_memrealtime s[90:91]")
        a("s_waitcnt lgkmcnt(0)")
        a("v_writelane_b32 v%d, s88, %d" % (V_ST, k))
        a("v_writelane_b32 v%d, s90, %d" % (V_ST, 32 + k))


def stamp_out(a):
    if DEBUG:
        a("s_mov_b64 exec, -1")
        a("s_waitcnt vmcnt(0)")
        stamp(a, "end")
        a("v_lshlrev_b32 v2, 2, v0")
        a("s_lshl_b32 s3, s2, 11")
        a("s_add_u32 s3, s3, %d" % WS_DBG)
        a("v_add_u32 v2, s3, v2")
        a("global_store_dword v2, v%d, %s" % (V_ST, sr(P_WS, 2)))


def lds_init(a, t):
    a("v_mov_b32 v%d, 0x%x" % (t, PAD))
    a("v_mov_b32 v%d, 0x%x" % (t + 1, PAD))
    a("v_mov_b32 v%d, 0x%x" % (t + 2, PAD))
    a("v_mov_b32 v%d, 0x%x" % (t + 3, PAD))
    a("v_lshlrev_b32 v%d, 4, v0" % (t + 4))
    n = (L_SEND - L_SLOT) // 16
    for i in range(n // 512):
        a("ds_write_b128 v%d, %s offset:%d" % (t + 4, vr(t, 4), L_SLOT + 8192 * i))
    a("v_cmp_gt_u32 vcc, %d, v0" % (n % 512))
    a("v_lshlrev_b32 v%d, 2, v0" % (t + 5))
    a("s_mov_b32 s%d, %d" % (S_T, SSTR))
    a("v_mov_b32 v%d, %d" % (t + 6, L_SLOT - SSTR))
    a("s_mov_b64 exec, vcc")
    a("ds_write_b128 v%d, %s offset:%d" % (t + 4, vr(t, 4), L_SLOT + 8192 * (n // 512)))
    a("s_mov_b64 exec, -1")
    a("v_mad_u32_u24 v%d, v0, s%d, v%d" % (t + 6, S_T, t + 6))
    a("s_cmp_lt_u32 s%d, %d" % (S_B, N - 97 * 256))
    a("s_addc_u32 s%d, %d, 0" % (S_T, NLOC - 1))
    a("v_cmp_lt_u32 vcc, s%d, v0" % S_T)
    a("v_subrev_u32 v%d, 4, v%d" % (t + 7, t + 6))
    a("v_mov_b32 v%d, %d" % (t + 4, L_FLAG // 4))
    a("v_cndmask_b32 v%d, v%d, v%d, vcc" % (t + 6, t + 6, t + 7))
    a("v_cmp_gt_u32 vcc, v%d, v0" % (t + 4))
    a("v_mov_b32 v%d, %d" % (t + 4, L_ZEND // 4))
    a("v_mov_b32 v%d, 0" % (t + 7))
    a("v_cndmask_b32 v%d, v%d, v%d, vcc" % (t + 6, t + 7, t + 6))
    a("v_cmp_gt_u32 vcc, v%d, v0" % (t + 4))
    a("s_mov_b64 exec, vcc")
    a("ds_write_b32 v%d, v%d" % (t + 5, t + 6))
    a("s_mov_b64 exec, -1")


def lut_build(a, sL, t, off):
    s1, s2, sm = S_T + 8, S_T + 9, S_T + 10
    d, k, m, ln, acc, x, y = t, t + 1, t + 2, t + 3, t + 4, t + 5, t + 6
    k64 = t + 8
    o = t + 12
    a("s_lshl_b32 s%d, s%d, 1" % (s1, sL))
    a("s_add_u32 s%d, s%d, s%d" % (s2, s1, sL))
    a("v_subrev_u32 v%d, 1, v%d" % (d, V_LANE))
    a("v_max_i32 v%d, 0, v%d" % (d, d))
    a("v_cmp_lt_u32 vcc, s%d, v%d" % (s1, d))
    a("v_cmp_lt_u32_e64 %s, s%d, v%d" % (sr(sm, 2), s2, d))
    a("v_mov_b32 v%d, 2" % k)
    a("v_mov_b32 v%d, 32768" % m)
    a("v_mov_b32 v%d, 21846" % ln)
    a("v_cndmask_b32_e64 v%d, v%d, 3, vcc" % (k, k))
    a("v_cndmask_b32 v%d, v%d, v%d, vcc" % (m, m, ln))
    a("v_mov_b32 v%d, 16384" % ln)
    a("v_cndmask_b32_e64 v%d, v%d, 4, %s" % (k, k, sr(sm, 2)))
    a("v_cndmask_b32_e64 v%d, v%d, v%d, %s" % (m, m, ln, sr(sm, 2)))
    a("v_add3_u32 v%d, v%d, v%d, -1" % (ln, d, k))
    a("v_mul_u32_u24 v%d, v%d, v%d" % (ln, ln, m))
    a("v_lshrrev_b32 v%d, 16, v%d" % (ln, ln))
    a("v_mov_b32 v%d, 0" % acc)
    for i in range(4):
        a("v_min_u32 v%d, v%d, v%d" % (x, acc, d))
        a("v_sub_u32 v%d, v%d, v%d" % (y, d, x))
        a("v_min_u32 v%d, v%d, v%d" % (y, y, ln))
        a("v_lshlrev_b32 v%d, 2, v%d" % (x, x))
        a("v_lshl_or_b32 v%d, v%d, 16, v%d" % (o + i, y, x))
        a("v_add_u32 v%d, v%d, v%d" % (acc, acc, ln))
    a("v_lshl_or_b32 v%d, v%d, 22, v%d" % (o, k, o))
    a("v_sub_u32 v%d, s%d, v%d" % (acc, sL, ln))
    a("v_min_u32 v%d, 5, v%d" % (acc, acc))
    a("v_mul_u32_u24 v%d, 10, v%d" % (o + 6, acc))
    a("v_cmp_le_u32 vcc, 3, v%d" % acc)
    a("v_add_u32 v%d, 2, v%d" % (x, o + 6))
    a("v_mov_b32 v%d, v%d" % (k64, k))
    a("v_mov_b32 v%d, 0" % (k64 + 1))
    a("v_cndmask_b32 v%d, v%d, v%d, vcc" % (o + 6, o + 6, x))
    a("v_cmp_ne_u32 vcc, 0, v%d" % V_LANE)
    a("v_lshlrev_b64 %s, v%d, %s" % (vr(o + 4, 2), o + 6, vr(k64, 2)))
    a("v_mov_b32 v%d, 0" % (o + 7))
    a("v_cndmask_b32 v%d, v%d, v%d, vcc" % (o + 4, k64 + 1, o + 4))
    a("v_cndmask_b32 v%d, v%d, v%d, vcc" % (o + 5, k64 + 1, o + 5))
    a("v_lshlrev_b32 v%d, 5, v%d" % (x, V_LANE))
    a("ds_write_b128 v%d, %s offset:%d" % (x, vr(o, 4), off))
    a("ds_write_b128 v%d, %s offset:%d" % (x, vr(o + 4, 4), off + 16))


PAT = os.environ.get('PAT', "MeeeeMeeeMeeeeeeeee")


def me(a, mf, ex, extra=(), pat=PAT):
    mf = list(mf)
    ex = list(ex)
    for c in pat:
        if c == "M":
            if mf:
                a(mf.pop(0))
        else:
            a(ex.pop(0))
    assert not mf and not ex
    for x in extra:
        a(x)


def mf16(d, A, B, first):
    return "v_mfma_f32_16x16x32_bf16 %s, %s, %s, %s" % (vr(d, 4), vr(A, 4), vr(B, 4), "0" if first else vr(d, 4))


def tr_frags(dst, addr, off):
    return ["ds_read_b64_tr_b16 %s, v%d offset:%d" % (vr(dst + 8 * blk + 4 * s + 2 * i, 2), addr, off + 4096 * s + 512 * i + 8 * blk)
            for blk in range(2) for s in range(2) for i in range(2)]


def tile_mfmas(d, A, B):
    out = []
    for s in range(2):
        for tau in range(2):
            for blk in range(2):
                out.append(mf16(d + 8 * tau + 4 * blk, A + 8 * blk + 4 * s, B + 8 * tau + 4 * s, s == 0))
    return out


KNAME = "standalone__mpnn_edge_mlp__graph_kernel"


def gen(a):
    COL, HH = V_T0, V_T0 + 1
    a.raw(".globl %s\n.p2align 8\n.type %s,@function" % (KNAME, KNAME))
    a.label(KNAME)
    a("s_cmp_ge_u32 s2, %d" % NB)
    a("s_cbranch_scc1 L_end")
    a("s_load_dwordx16 s[64:79], s[0:1], 0")
    a("s_load_dwordx2 s[80:81], s[0:1], 64")
    if DEBUG:
        a("v_mov_b32 v%d, 0" % V_ST)
        stamp(a, "start")
    DST, SRC, EV = V_N[0], V_N[0] + 8, V_N[1]
    AD, RK, O1, O2 = V_N[1] + 8, V_D[0], V_D[0] + 8, V_D[1]
    W3 = V_D[1] + 8
    DO, EO = V_D[1] + 10, V_N[1] + 4
    XA, WAD = V_D[1] + 12, V_D[1] + 14
    T16 = V_D[1] + 15
    WUD = V_N[1] + 6
    ZR = V_T[1]
    a("v_lshrrev_b32 v2, 6, v0")
    a("s_mul_i32 s40, s2, 3125")
    a("v_readfirstlane_b32 s%d, v2" % S_W)
    a("s_lshr_b32 s41, s40, 3")
    a("s_add_u32 s40, s40, 3125")
    a("s_lshr_b32 s40, s40, 3")
    a("s_sub_u32 s40, s40, s41")
    a("v_lshlrev_b32 v%d, 4, v0" % T16)
    a("s_lshl_b32 s41, s41, 5")
    a("v_add_u32 v%d, s41, v%d" % (DO, T16))
    a("s_lshl_b32 s3, s40, 4")
    a("v_add_u32 v%d, s3, v%d" % (DO + 1, DO))
    a("v_cmp_gt_u32_e64 %s, s40, v0" % sr(S_EM, 2))
    a("s_and_b32 s%d, s2, 7" % S_B)
    a("s_lshl_b32 s%d, s%d, 5" % (S_B, S_B))
    a("s_lshr_b32 s3, s2, 3")
    a("s_add_u32 s%d, s%d, s3" % (S_B, S_B))
    a("v_and_b32 v%d, 63, v0" % V_LANE)
    a("v_lshlrev_b32 v%d, 4, v%d" % (V_L16, V_LANE))
    a("v_and_b32 v2, 7, v%d" % V_LANE)
    a("v_lshrrev_b32 v3, 4, v%d" % V_LANE)
    a("v_xor_b32 v3, v2, v3")
    a("v_lshlrev_b32 v%d, 4, v3" % (V_IDX + 7))
    if X_TEST & 1:
        a("s_lshl_b32 s3, s%d, 4" % S_W)
        a("s_mul_i32 s42, s%d, 98" % S_B)
        a("s_add_u32 s3, s3, s42")
        a("v_lshrrev_b32 v3, 3, v%d" % V_LANE)
        a("v_add_u32 v2, s3, v3")
        a("v_add_u32 v3, 8, v2")
    else:
        a("s_lshl_b32 s3, s%d, 12" % S_W)
        a("s_add_u32 s3, s3, s%d" % S_B)
        a("v_lshrrev_b32 v3, 3, v%d" % V_LANE)
        a("v_lshl_add_u32 v2, v3, 8, s3")
        a("v_add_u32 v3, 2048, v2")
    a("v_min_u32 v2, %d, v2" % (N - 1))
    a("v_min_u32 v3, %d, v3" % (N - 1))
    a("v_lshl_add_u32 v%d, v2, 7, v%d" % (XA, V_IDX + 7))
    a("v_xor_b32 v%d, 64, v%d" % (V_IDX + 5, V_IDX + 7))
    a("v_lshl_add_u32 v%d, v3, 7, v%d" % (XA + 1, V_IDX + 5))
    a("v_and_b32 v2, 16, v%d" % V_LANE)
    a("v_lshlrev_b32 v2, 2, v2")
    a("v_xor_b32 v%d, v2, v%d" % (WAD, T16))
    a("v_subrev_u32 v%d, 1024, v%d" % (XA + 1, XA + 1))
    a("s_lshl_b32 s42, s%d, 10" % S_W)
    a("s_lshl_b32 s43, s%d, 11" % S_W)
    a("s_add_u32 m0, s43, %d" % L1_X)
    a("s_add_u32 s44, s42, %d" % L1_W1)
    for i in range(4):
        a("v_mov_b32 v%d, 0" % (ZR + i))
    a("s_cmp_lt_u32 s%d, 6" % S_W)
    a("s_waitcnt lgkmcnt(0)")
    a("s_cbranch_scc1 L_w7a")
    a("s_cmp_eq_u32 s%d, 6" % S_W)
    a("s_cbranch_scc1 L_w6a")
    a("s_cmp_ge_u32 s2, %d" % NCLR)
    a("s_cbranch_scc1 L_w7b")
    a("s_lshl_b32 s3, s2, %d" % (10 + 8 - NCLR.bit_length() + 1))
    a("s_add_u32 s3, s3, %d" % (WS_TAB + 4096))
    a("v_add_u32 v2, s3, v%d" % V_L16)
    for i in range(256 // NCLR):
        a("global_store_dwordx4 v2, %s, %s offset:%d %s" % (vr(ZR, 4), sr(P_WS, 2), 1024 * i - 4096, SC))
    a("s_branch L_w7b")
    a.label("L_w6a")
    a("global_load_lds_dwordx4 v%d, %s" % (XA, sr(P_X, 2)))
    a("s_mov_b32 m0, s44")
    a("s_nop 0")
    a("global_load_lds_dwordx4 v%d, %s offset:1024" % (WAD, sr(P_WM, 2)))
    a("s_branch L_w6b")
    a.label("L_w7a")
    a("global_load_lds_dwordx4 v%d, %s" % (XA, sr(P_X, 2)))
    a("global_load_lds_dwordx4 v%d, %s offset:1024" % (XA + 1, sr(P_X, 2)))
    a("s_mov_b32 m0, s44")
    a("s_nop 0")
    a.label("L_w6b")
    a("global_load_lds_dwordx4 v%d, %s" % (WAD, sr(P_WM, 2)))
    a("s_mov_b64 exec, %s" % sr(S_EM, 2))
    a("global_load_dwordx4 %s, v%d, %s %s" % (vr(DST, 4), DO, sr(P_DST, 2), LD_IN))
    a("global_load_dwordx4 %s, v%d, %s %s" % (vr(DST + 4, 4), DO + 1, sr(P_DST, 2), LD_IN))
    a("s_mov_b64 exec, -1")
    a.label("L_w7b")
    a("v_lshrrev_b32 v%d, 1, v%d" % (EO, DO))
    stamp(a, "issued")
    nz = (L1_X - L1_CNT) // 16
    for i in range(nz // 512):
        a("ds_write_b128 v%d, %s offset:%d" % (T16, vr(ZR, 4), L1_CNT + 8192 * i))
    a("v_cmp_gt_u32 vcc, %d, v0" % (nz % 512))
    a("v_lshrrev_b32 v%d, 1, v%d" % (EO + 1, DO + 1))
    a("v_and_b32 v%d, 31, v%d" % (COL, V_LANE))
    a("v_lshrrev_b32 v%d, 5, v%d" % (HH, V_LANE))
    a("v_and_b32 v2, 19, v%d" % COL)
    a("s_mov_b64 exec, vcc")
    a("ds_write_b128 v%d, %s offset:%d" % (T16, vr(ZR, 4), L1_CNT + 8192 * (nz // 512)))
    a("s_mov_b64 exec, -1")
    a("v_bfe_u32 v3, v%d, 2, 1" % COL)
    a("v_lshl_or_b32 v2, v3, 3, v2")
    a("v_bfe_u32 v3, v%d, 3, 1" % COL)
    a("v_lshl_or_b32 v%d, v3, 2, v2" % (V_T0 + 2))
    a("v_lshlrev_b32 v%d, 1, v%d" % (V_T0 + 5, V_T0 + 2))
    a("s_mov_b32 s%d, s%d" % (S_WS, P_WS))
    a("s_mov_b32 s%d, s%d" % (S_WS + 1, P_WS + 1))
    a("s_mov_b32 s%d, %d" % (S_WS + 2, WS_SIZE))
    a("s_mov_b32 s%d, 0x00020000" % (S_WS + 3))
    a("s_add_u32 s%d, s%d, %d" % (S_X, P_WS, WS_P - 3072))
    a("s_addc_u32 s%d, s%d, 0" % (S_X + 1, P_WS + 1))
    a("s_and_b32 s%d, s%d, 0xffff" % (S_X + 1, S_X + 1))
    a("s_or_b32 s%d, s%d, 0x%x" % (S_X + 1, S_X + 1, 128 << 16))
    a("s_mov_b32 s%d, %d" % (S_X + 2, NP))
    a("s_mov_b32 s%d, 0x00020000" % (S_X + 3))
    a("s_mov_b32 s%d, s%d" % (S_OUT, P_OUT))
    a("s_mov_b32 s%d, s%d" % (S_OUT + 1, P_OUT + 1))
    a("s_mov_b32 s%d, %d" % (S_OUT + 2, N * 128))
    a("s_mov_b32 s%d, 0x00020000" % (S_OUT + 3))
    a("s_mov_b32 s%d, 0x%08x" % (S_LG, f32(-LOG2E)))
    a("s_mov_b32 s%d, 0x%08x" % (S_LG + 1, f32(-LOG2E)))
    XB, TA, QW = V_RA, V_LEN, V_YW
    PW, PR, PA = V_QA, V_NW, V_S
    TA2, PW2, XP = V_WA, V_WA + 1, V_WA + 2
    a("s_and_b32 s48, s%d, 3" % S_W)
    a("s_lshr_b32 s49, s%d, 2" % S_W)
    a("v_and_b32 v2, 15, v%d" % V_LANE)
    a("v_lshrrev_b32 v3, 4, v%d" % V_LANE)
    a("v_lshrrev_b32 v%d, 1, v2" % XB)
    a("v_xor_b32 v%d, v%d, v3" % (XB, XB))
    a("v_lshlrev_b32 v%d, 4, v%d" % (XB, XB))
    a("v_lshl_add_u32 v%d, v2, 7, v%d" % (XB, XB))
    a("s_add_u32 s3, s43, %d" % L1_X)
    a("v_add_u32 v%d, s3, v%d" % (XP, XB))
    a("v_xor_b32 v%d, 64, v%d" % (XP + 1, XP))
    a("s_lshl_b32 s3, s48, 12")
    a("s_add_u32 s3, s3, %d" % L1_X)
    a("v_add_u32 v%d, s3, v%d" % (XB, XB))
    a("v_xor_b32 v%d, 64, v%d" % (V_RC, XB))
    a("s_lshl_b32 s46, s49, 2")
    a("v_or_b32 v%d, s46, v3" % PW)
    a("v_xor_b32 v%d, v%d, v2" % (PW, PW))
    a("v_and_b32 v%d, 7, v%d" % (PW, PW))
    a("v_lshlrev_b32 v%d, 4, v%d" % (PW, PW))
    a("v_lshl_add_u32 v%d, v2, 7, v%d" % (PW, PW))
    a("s_add_u32 s45, s43, %d" % L1_P)
    a("v_add_u32 v%d, s45, v%d" % (PW, PW))
    a("v_xor_b32 v%d, 64, v%d" % (PW2, PW))
    a("s_lshl_b32 s3, s48, 5")
    a("v_add_u32 v2, s3, v2")
    a("v_cmp_gt_u32 vcc, %d, v2" % NLOC)
    a("s_lshl_b32 s3, s49, 7")
    a("s_add_u32 s3, s3, %d" % L_Q)
    a("v_lshl_add_u32 v%d, v3, 5, s3" % QW)
    a("s_mov_b64 %s, vcc" % sr(S_QM, 2))
    a("v_cmp_gt_u32 vcc, %d, v2" % (NLOC - 16))
    a("s_mov_b32 s3, %d" % RSTR)
    a("v_mad_u32_u24 v%d, v2, s3, v%d" % (QW, QW))
    a("s_mov_b64 %s, vcc" % sr(S_QM + 2, 2))
    a("v_bfe_u32 v2, v%d, 2, 2" % V_LANE)
    a("v_lshl_add_u32 v3, v3, 3, v2")
    a("v_lshrrev_b32 v2, 1, v2")
    a("v_xor_b32 v%d, s49, v2" % TA)
    a("v_lshlrev_b32 v%d, 6, v%d" % (TA, TA))
    a("v_lshl_add_u32 v%d, v3, 7, v%d" % (TA, TA))
    a("v_and_b32 v3, 3, v%d" % V_LANE)
    a("v_lshl_add_u32 v%d, v3, 4, v%d" % (TA, TA))
    a("v_add_u32 v%d, %d, v%d" % (TA, L1_W1, TA))
    a("v_xor_b32 v%d, 64, v%d" % (TA2, TA))
    a("v_lshrrev_b32 v2, 3, v%d" % V_LANE)
    a("s_lshl_b32 s3, s%d, 4" % S_W)
    a("v_add_u32 v3, s3, v2")
    a("s_mul_i32 s3, s%d, %d" % (S_B, NLOC))
    a("v_cmp_gt_u32 vcc, %d, v3" % NLOC)
    a("v_add_u32 v%d, s3, v3" % PA)
    a("s_cmp_lt_u32 s%d, 6" % S_W)
    a("s_cselect_b32 s3, 8, 0x10000")
    a("v_add_u32 v%d, s3, v%d" % (V_R, PA))
    a("v_cndmask_b32 v%d, -1, v%d, vcc" % (PA, PA))
    a("v_and_b32 v3, 0x70, v%d" % T16)
    a("v_add_u32 v%d, 3072, v3" % (PA + 1))
    a("v_mov_b32 v%d, v%d" % (V_R + 1, PA + 1))
    a("v_lshlrev_b32 v2, 4, v2")
    a("v_xor_b32 v%d, v2, v%d" % (PR, V_L16))
    a("v_add_u32 v%d, s45, v%d" % (PR, PR))
    lds_init(a, V_U)
    a("s_mov_b32 s%d, 0" % S_MODE)
    a("s_sub_u32 s3, 11, s%d" % S_W)
    a("s_cmp_lt_u32 s%d, 4" % S_W)
    a("s_cselect_b32 s%d, s%d, s3" % (S_BT, S_W))
    a("s_mul_i32 s%d, s%d, %d" % (S_XT, S_BT, XSTR))
    a("s_add_u32 s%d, s%d, %d" % (S_XT, S_XT, L_XT))
    a("s_add_u32 s%d, s%d, 4096" % (S_XT1, S_XT))
    a("s_mov_b32 s%d, 1.0" % S_ONE)
    a("s_mov_b32 s%d, 1.0" % (S_ONE + 1))
    a("s_mov_b32 s%d, %d" % (S_TO, POLLS))
    a("v_add_u32 v%d, 3072, v%d" % (V_IDX + 1, V_IDX + 7))
    a("v_add_u32 v%d, 2048, v%d" % (V_IDX + 3, V_IDX + 5))
    a("v_add_u32 v%d, 1024, v%d" % (V_IDX + 5, V_IDX + 7))
    a("v_xor_b32 v%d, 64, v%d" % (V_IDX + 7, V_IDX + 7))
    a("v_bfe_u32 v2, v%d, 1, 3" % COL)
    a("v_xor_b32 v2, v2, v%d" % HH)
    a("v_lshlrev_b32 v2, 4, v2")
    a("v_lshl_add_u32 v3, v%d, 7, s%d" % (COL, S_XT))
    for k in range(4):
        a("v_xor_b32 v%d, %d, v2" % (V_BAD + k, 32 * k))
        a("v_add_u32 v%d, v3, v%d" % (V_BAD + k, V_BAD + k))
    a("v_bfe_u32 v2, v%d, 3, 1" % (V_T0 + 2))
    a("v_xor_b32 v2, v2, v%d" % HH)
    a("v_bfe_u32 v3, v%d, 1, 2" % (V_T0 + 2))
    a("v_lshl_or_b32 v2, v2, 4, v3")
    a("v_lshrrev_b32 v3, 4, v%d" % COL)
    a("v_lshl_or_b32 v2, v3, 2, v2")
    a("v_and_b32 v3, 1, v%d" % COL)
    a("v_lshlrev_b32 v3, 4, v3")
    a("v_mov_b32 v%d, 0x3f80" % (V_T0 + 4))
    a("v_lshlrev_b32 v3, v3, v%d" % (V_T0 + 4))
    for i in range(4):
        a("v_cmp_eq_u32 vcc, %d, v2" % (2 * i))
        a("v_cmp_eq_u32_e64 s[48:49], %d, v2" % (2 * i + 1))
        a("s_nop 0")
        a("v_cndmask_b32 v%d, 0, v3, vcc" % (V_ID + 2 * i))
        a("v_cndmask_b32_e64 v%d, 0, v3, s[48:49]" % (V_ID + 2 * i + 1))
    a("v_bfe_u32 v2, v%d, 2, 2" % V_LANE)
    a("v_lshl_add_u32 v3, v%d, 3, v2" % HH)
    a("v_lshlrev_b32 v3, 7, v3")
    a("v_lshrrev_b32 v2, 1, v2")
    a("v_lshl_or_b32 v3, v2, 6, v3")
    a("v_bfe_u32 v2, v%d, 4, 1" % V_LANE)
    a("v_lshl_or_b32 v3, v2, 5, v3")
    a("v_and_b32 v2, 1, v%d" % V_LANE)
    a("v_lshl_or_b32 v3, v2, 4, v3")
    a("v_bfe_u32 v2, v%d, 1, 1" % V_LANE)
    a("v_lshl_or_b32 v3, v2, 3, v3")
    a("v_xor_b32 v2, 64, v3")
    a("v_add_u32 v%d, %d, v3" % (V_TRA, L_WA))
    a("v_add_u32 v%d, %d, v2" % (V_TRA + 1, L_WA))
    a("s_lshl_b32 s3, s%d, 7" % S_BT)
    a("s_add_u32 s3, s3, s%d" % S_XT)
    a("v_lshl_add_u32 v%d, v%d, 2, s3" % (V_T0 + 3, COL))
    def p_stores():
        if X_TEST & 2:
            return
        if X_TEST & 4:
            a("v_lshl_add_u32 v2, v%d, 7, v%d" % (PA, PA + 1))
            a("v_add_u32 v2, %d, v2" % (WS_P - 3072))
            a("v_cmp_gt_u32 vcc, %d, v%d" % (NP, PA))
            a("s_mov_b64 exec, vcc")
            a("global_store_dwordx4 v2, %s, %s %s" % (vr(V_B[0] + 8, 4), sr(P_WS, 2), SCP))
            a("v_cmpx_gt_u32 vcc, %d, v%d" % (NP, V_R))
            a("global_store_dwordx4 v2, %s, %s offset:1024 %s" % (vr(V_B[0] + 12, 4), sr(P_WS, 2), SCP))
            a("s_mov_b64 exec, -1")
            return
        a("buffer_store_dwordx4 %s, %s, %s, 0 idxen offen %s" % (vr(V_B[0] + 8, 4), vr(PA, 2), sr(S_X, 4), SCP))
        a("buffer_store_dwordx4 %s, %s, %s, 0 idxen offen %s" % (vr(V_B[0] + 12, 4), vr(V_R, 2), sr(S_X, 4), SCP))

    def w_groups(k0, k1):
        for k in range(k0, k1):
            a("s_mov_b32 m0, %d" % (L1_W2 + 4096 * k))
            v = WUD if k < 2 else WAD
            if k not in (0, 2):
                a("v_add_u32 v%d, 4096, v%d" % (v, v))
            else:
                a("s_nop 0")
            for i in range(4):
                a("global_load_lds_dwordx4 v%d, %s offset:%d" % (v, sr(P_WM if k < 2 else P_WU, 2), 1024 * i))

    TAD, UC, TP = V_IA, V_IA + 1, V_IA + 2
    a("v_lshrrev_b32 v2, 3, v0")
    a("v_lshlrev_b32 v%d, 12, v2" % TAD)
    a("v_and_b32 v2, 7, v0")
    a("v_mov_b32 v3, 0x%x" % ((16 - (1 << 23)) & 0xffffffff))
    a("v_mul_lo_u32 v2, v2, v3")
    a("v_subrev_u32 v%d, 0x%x, v2" % (UC, (1 << 23) + (1 << 31)))
    a("s_lshl_b32 s3, s2, 10")
    a("s_add_u32 s3, s3, %d" % WS_TAB)
    a("v_add_u32 v%d, s3, v%d" % (TP, V_L16))
    a("s_lshl_b32 s47, s%d, 2" % S_B)
    a("s_add_u32 s47, s47, %d" % WS_TAB)
    a("s_mov_b32 s%d, 0" % S_EXTRA)
    a("s_mul_i32 s52, s2, %d" % (CU * 16))
    a("s_or_b32 s53, s52, 0x80000000")
    a("s_mov_b32 s51, 21846")
    a("s_mov_b32 s50, %d" % NLOC)
    a("s_cmp_eq_u32 s%d, 7" % S_W)
    stamp(a, "setup")
    a("s_cbranch_scc1 L_w7f")
    a("s_mov_b64 exec, %s" % sr(S_EM, 2))
    a("global_load_dwordx4 %s, v%d, %s %s" % (vr(SRC, 4), DO, sr(P_SRC, 2), LD_IN))
    a("global_load_dwordx4 %s, v%d, %s %s" % (vr(SRC + 4, 4), DO + 1, sr(P_SRC, 2), LD_IN))
    a("global_load_dwordx2 %s, v%d, %s %s" % (vr(EV, 2), EO, sr(P_E, 2), LD_IN))
    a("global_load_dwordx2 %s, v%d, %s %s" % (vr(EV + 2, 2), EO + 1, sr(P_E, 2), LD_IN))
    a("s_mov_b64 exec, -1")
    stamp(a, "iss2")
    a("s_waitcnt vmcnt(6) lgkmcnt(0)")
    a("s_barrier")
    stamp(a, "barW")
    PXF, PD, PB_ = V_B[0], V_B[1], V_B[0] + 8
    a("ds_read_b128 %s, v%d" % (vr(PXF, 4), XP))
    a("ds_read_b128 %s, v%d" % (vr(PXF + 4, 4), XP + 1))
    for x in tr_frags(V_C[0], TA, 0) + tr_frags(V_C[1], TA2, 0)[:4]:
        a(x)
    a("v_mov_b32 v2, 1")
    a("s_waitcnt lgkmcnt(4)")
    for x in tr_frags(V_C[1], TA2, 0)[4:]:
        a(x)
    for H in range(2):
        if H:
            a("s_waitcnt lgkmcnt(0)")
        for k in range(2):
            for blk in range(2):
                a(mf16(PD + 8 * H + 4 * blk, V_C[H] + 8 * blk + 4 * k, PXF + 4 * k, k == 0))
    a("s_mov_b64 exec, %s" % sr(S_EM, 2))
    for i in range(8):
        if i % 4 == 0:
            a("s_waitcnt vmcnt(%d)" % (5 - i // 4))
            if i == 0:
                stamp(a, "dst")
        a("v_lshlrev_b32_sdwa v%d, 2, v%d dst_sel:DWORD dst_unused:UNUSED_PAD src0_sel:DWORD src1_sel:BYTE_0" % (AD + i, DST + i))
        a("ds_add_rtn_u32 v%d, v%d, v2 offset:%d" % (RK + i, AD + i, L1_CNT))
    a("s_mov_b64 exec, -1")
    for H in range(2):
        for i in range(4):
            a("v_pk_mul_f32 %s, %s, %s" % (vr(PD + 8 * H + 2 * i, 2), vr(PD + 8 * H + 2 * i, 2), sr(S_LG, 2)))
        for i in range(4):
            a("v_cvt_pk_bf16_f32 v%d, v%d, v%d" % (PD + 8 * H + i, PD + 8 * H + 2 * i, PD + 8 * H + 2 * i + 1))
        a("ds_write_b128 v%d, %s" % (PW2 if H else PW, vr(PD + 8 * H, 4)))
    for i in range(2):
        a("ds_read_b128 %s, v%d offset:%d" % (vr(PB_ + 4 * i, 4), PR, 1024 * i))
    for i in range(8):
        a("v_lshrrev_b32 v%d, 8, v%d" % (DST + i, DST + i))
        a("v_add_u32 v%d, 1, v%d" % (DST + i, DST + i))
    a("s_waitcnt lgkmcnt(4)")
    for i in range(4):
        a("v_mul_u32_u24 v%d, s51, v%d" % (O1 + i, RK + i))
        a("v_lshrrev_b32 v%d, 16, v%d" % (O1 + i, O1 + i))
        a("v_mad_u32_u24 v%d, v%d, 13, v%d" % (O2 + i, O1 + i, RK + i))
        a("v_add_lshl_u32 v%d, v%d, v%d, 2" % (O1 + i, O1 + i, RK + i))
    if not PLATE:
        a("s_waitcnt lgkmcnt(0)")
        p_stores()
    a("s_branch L_w7g")
    a.label("L_w7f")
    a("s_mov_b32 s3, %d" % LS[0])
    lut_build(a, 3, V_T[0], L_LUT)
    a("s_mov_b32 s3, %d" % LS[1])
    lut_build(a, 3, V_T[0], L_LUT + 2048)
    a("s_mov_b32 s51, 21846")
    a("s_mov_b32 s50, %d" % NLOC)
    a("s_lshl_b32 s3, s2, %d" % (8 - NCLR.bit_length() + 1))
    a("v_mov_b32 v2, s3")
    a("v_mov_b32 v%d, 1" % V_C[0])
    a("v_mov_b32 v%d, 1" % (V_C[0] + 1))
    a("v_add_u32 v%d, 1024, v%d" % (WUD, WAD))
    a("v_subrev_u32 v%d, 7168, v%d" % (WAD, WAD))
    a("v_add_u32 v%d, 16384, v%d" % (W3, V_L16))
    a("s_mov_b32 m0, %d" % L_W3)
    a("s_cmp_ge_u32 s2, %d" % NCLR)
    a("s_waitcnt lgkmcnt(0)")
    a("s_barrier")
    a("s_cbranch_scc1 L_noflag")
    a("s_waitcnt vmcnt(0)")
    a("s_mov_b64 exec, 1")
    a("global_store_dwordx2 v2, %s, %s %s" % (vr(V_C[0], 2), sr(P_DBG, 2), SC))
    a.label("L_noflag")
    a("s_mov_b64 exec, 0xff")
    a("global_load_lds_dwordx4 v%d, %s" % (W3, sr(P_WM, 2)))
    a("s_mov_b64 exec, -1")
    w_groups(0, WQ)
    a.label("L_w7g")
    a("s_barrier")
    stamp(a, "barA")
    CN = V_U
    SC_ = V_U + 4
    STV = V_U + 8
    W2F, WXF = V_C[1], V_C[0]
    QD, RD = V_B[1], V_T[1]
    XF = V_B[0]
    FLG, FA, SF = V_T[0], V_T[0] + 1, V_T[0] + 2
    a("ds_read_b128 %s, v%d offset:%d" % (vr(CN, 4), V_L16, L1_CNT))
    a("v_lshlrev_b32 v%d, 2, v%d" % (FA, V_LANE))
    a("s_cmp_eq_u32 s%d, 7" % S_W)
    a("s_cbranch_scc0 L_w7k")
    w_groups(WQ, 4)
    a("global_load_dword v%d, v%d, %s %s" % (FLG, FA, sr(P_DBG, 2), SC))
    w_groups(4, 6)
    if PLATE:
        a("s_branch L_w7l")
    a.label("L_w7k")
    if PLATE:
        a("s_waitcnt lgkmcnt(1)")
        p_stores()
        a.label("L_w7l")
    for i in range(4, 8):
        a("v_mul_u32_u24 v%d, s51, v%d" % (O1 + i, RK + i))
        a("v_lshrrev_b32 v%d, 16, v%d" % (O1 + i, O1 + i))
    a("s_waitcnt lgkmcnt(0)")
    for i in range(4):
        a("v_add_u32 v%d, 2, v%d" % (CN + i, CN + i))
        a("v_mul_u32_u24 v%d, s51, v%d" % (CN + i, CN + i))
        a("v_lshrrev_b32 v%d, 16, v%d" % (CN + i, CN + i))
    a("v_add_u32 v%d, v%d, v%d" % (SC_, CN, CN + 1))
    a("v_add_u32 v%d, v%d, v%d" % (SC_ + 1, SC_, CN + 2))
    a("v_add_u32 v%d, v%d, v%d" % (SC_ + 2, SC_ + 1, CN + 3))
    a("v_mov_b32 v%d, v%d" % (SC_ + 3, SC_ + 2))
    dpp_scan(a, [SC_ + 3], fill=["v_mad_u32_u24 v%d, v%d, 13, v%d" % (O2 + i, O1 + i, RK + i) for i in range(4, 8)] +
             ["v_add_lshl_u32 v%d, v%d, v%d, 2" % (O1 + i, O1 + i, RK + i) for i in range(4, 8)] +
             ["v_min_u32 v%d, 255, v%d" % (V_TAB + i, CN + i) for i in range(4)])
    a("v_sub_u32 v%d, v%d, v%d" % (STV, SC_ + 3, SC_ + 2))
    a("v_add_lshl_u32 v%d, v%d, v%d, 4" % (STV + 1, STV, CN))
    a("v_add_lshl_u32 v%d, v%d, v%d, 4" % (STV + 2, STV, SC_))
    a("v_add_lshl_u32 v%d, v%d, v%d, 4" % (STV + 3, STV, SC_ + 1))
    a("v_lshlrev_b32 v%d, 4, v%d" % (STV, STV))
    a("v_readlane_b32 s54, v%d, 63" % (SC_ + 3))
    a("s_cbranch_scc1 L_w7h")
    a("ds_write_b128 v%d, %s offset:%d" % (V_L16, vr(STV, 4), L1_START))
    a("s_mov_b64 exec, %s" % sr(S_EM, 2))
    for i in range(8):
        a("ds_read_b32 v%d, v%d offset:%d" % (RK + i, AD + i, L1_START))
    for i in range(8):
        a("s_waitcnt lgkmcnt(7)")
        a("v_add_u32 v%d, v%d, v%d" % (O2 + i, O2 + i, RK + i))
        a("ds_write_b8 v%d, v%d offset:%d" % (O2 + i, DST + i, L1_STAGE + 12))
    a("s_waitcnt vmcnt(%d)" % (0 if X_TEST & 2 else 2))
    stamp(a, "src")
    for i in range(0, 8, 2):
        for k in (i, i + 1):
            a("v_mul_u32_u24_sdwa v%d, v%d, s50 dst_sel:DWORD dst_unused:UNUSED_PAD src0_sel:BYTE_0 src1_sel:DWORD" % (AD + k, SRC + k))
        a("v_lshlrev_b32 v%d, 16, v%d" % (DST + i, EV + i // 2))
        a("v_add_u32 v%d, v%d, v%d" % (O1 + i, O1 + i, RK + i))
        a("v_add_u32 v%d, v%d, v%d" % (O1 + i + 1, O1 + i + 1, RK + i + 1))
        a("v_add_u32_sdwa v%d, v%d, v%d dst_sel:WORD_0 dst_unused:UNUSED_PRESERVE src0_sel:DWORD src1_sel:BYTE_1" % (DST + i, AD + i, SRC + i))
        a("v_add_u32_sdwa v%d, v%d, v%d dst_sel:WORD_0 dst_unused:UNUSED_PRESERVE src0_sel:DWORD src1_sel:BYTE_1" % (EV + i // 2, AD + i + 1, SRC + i + 1))
        a("ds_write_b32 v%d, v%d offset:%d" % (O1 + i, DST + i, L1_STAGE))
        a("ds_write_b32 v%d, v%d offset:%d" % (O1 + i + 1, EV + i // 2, L1_STAGE))
    a("s_mov_b64 exec, -1")
    a("s_branch L_w7i")
    a.label("L_w7h")
    for i in range(4):
        a("v_lshl_add_u32 v%d, v%d, 23, s53" % (V_TAB + i, V_TAB + i))
        a("v_add_u32 v%d, v%d, v%d" % (V_TAB + i, V_TAB + i, STV + i))
    a("s_waitcnt vmcnt(9)")
    a.label("L_w7i")
    a("v_add_u32 v2, 1024, v0")
    a("v_cmp_gt_u32 vcc, s54, v2")
    a("s_add_u32 s53, s52, 8192")
    a("s_add_u32 s54, s52, 16384")
    a("s_waitcnt lgkmcnt(0)")
    a("s_barrier")
    stamp(a, "barB")
    CP = V_N[0]
    for i in range(3):
        a("ds_read_b128 %s, v%d offset:%d" % (vr(CP + 4 * i, 4), T16, L1_STAGE + 8192 * i))
    for tau in range(2):
        a("ds_read_b128 %s, v%d offset:%d" % (vr(XF + 8 * tau, 4), XB, 2048 * tau))
        a("ds_read_b128 %s, v%d offset:%d" % (vr(XF + 8 * tau + 4, 4), V_RC, 2048 * tau))
    for x in tr_frags(W2F, TA, L1_W2 - L1_W1):
        a(x)
    a("s_waitcnt lgkmcnt(14)")
    a("buffer_store_dwordx4 %s, v%d, %s, s52 offen %s" % (vr(CP, 4), T16, sr(S_WS, 4), SC))
    a("s_waitcnt lgkmcnt(13)")
    a("buffer_store_dwordx4 %s, v%d, %s, s53 offen %s" % (vr(CP + 4, 4), T16, sr(S_WS, 4), SC))
    a("s_waitcnt lgkmcnt(12)")
    a("s_mov_b64 exec, vcc")
    a("buffer_store_dwordx4 %s, v%d, %s, s54 offen %s" % (vr(CP + 8, 4), T16, sr(S_WS, 4), SC))
    a("s_mov_b64 exec, -1")
    stamp(a, "stiss")

    def qr_out(D, off):
        for tau in range(2):
            for i in range(4):
                a("v_pk_mul_f32 %s, %s, %s" % (vr(D + 8 * tau + 2 * i, 2), vr(D + 8 * tau + 2 * i, 2), sr(S_LG, 2)))
            a("s_mov_b64 exec, %s" % sr(S_QM + 2 * tau, 2))
            for blk in range(2):
                a("ds_write_b128 v%d, %s offset:%d" % (QW, vr(D + 8 * tau + 4 * blk, 4), off + 16 * RSTR * tau + 16 * blk))
            a("s_mov_b64 exec, -1")

    a("s_waitcnt lgkmcnt(0)")
    for x in tr_frags(WXF, TA, L1_WX - L1_W1):
        a(x)
    a("ds_read_u16 v%d, v%d offset:%d" % (W3, V_T0 + 5, L_W3))
    a("ds_read_u16 v%d, v%d offset:%d" % (W3 + 1, V_T0 + 5, L_W3 + 64))
    for x in tile_mfmas(QD, W2F, XF):
        a(x)
    a("s_waitcnt lgkmcnt(0)")
    for x in tile_mfmas(RD, WXF, XF):
        a(x)
    qr_out(QD, 0)
    a("v_cmp_eq_u32 vcc, 0, v%d" % HH)
    a("v_mov_b32 v%d, 0" % (V_AE + 1))
    a("v_mov_b32 v%d, 0" % (V_AE + 2))
    a("v_mov_b32 v%d, 0" % (V_AE + 5))
    a("v_mov_b32 v%d, 0" % (V_AE + 6))
    for X in range(2):
        a("v_lshlrev_b32 v2, 16, v%d" % (W3 + X))
        a("v_mul_f32 v2, s%d, v2" % S_LG)
        a("v_cvt_pk_bf16_f32 v3, v%d, v2" % (V_AE + 1))
        a("v_sub_f32 v2, v2, v3")
        a("v_cvt_pk_bf16_f32 v2, v%d, v2" % (V_AE + 1))
        a("v_cndmask_b32 v%d, v2, v3, vcc" % (V_AE + 4 * X))
        a("v_cndmask_b32 v%d, v2, v3, vcc" % (V_AE + 4 * X + 3))
    qr_out(RD, L_R - L_Q)
    a("v_mov_b32 v%d, 0" % SF)
    a("s_mov_b32 s50, 0x807fffff")
    a("s_cmp_lg_u32 s%d, 7" % S_W)
    stamp(a, "qr")
    a("s_waitcnt vmcnt(0)")
    stamp(a, "stack")
    a("s_cbranch_scc1 L_barC")
    a.label("L_fpoll")
    a("v_cmp_ne_u32 vcc, 1, v%d" % FLG)
    a("s_cbranch_vccnz L_fagain")
    a.label("L_barC")
    a("s_barrier")
    a("s_cbranch_scc1 L_nopub")
    a("global_store_dwordx4 v%d, %s, %s %s" % (TP, vr(V_TAB, 4), sr(P_WS, 2), SC))
    a.label("L_nopub")
    stamp(a, "barC")
    TABV = V_D[0]

    def tab_loads():
        for p in range(4):
            a("buffer_load_dword v%d, v%d, %s, s47 offen offset:%d %s" % (TABV + p, TAD, sr(S_WS, 4), 1024 * p, SC))

    tab_loads()
    a("ds_read_b32 v%d, v%d offset:%d" % (SF, SF, F_SLOW))
    a("s_waitcnt lgkmcnt(0)")
    a("v_cmp_lt_u32 vcc, 3, v%d" % SF)
    a("s_cbranch_vccnz L2_build")
    a("s_branch L_tcheck")
    a.label("L_tpoll_again")
    a("s_sub_u32 s%d, s%d, 1" % (S_TO, S_TO))
    a("s_cbranch_scc1 L_timeout")
    if SLEEP:
        a("s_sleep %d" % SLEEP)
    tab_loads()
    a.label("L_tcheck")
    a("s_waitcnt vmcnt(0)")
    a("v_max3_i32 v3, v%d, v%d, v%d" % (TABV, TABV + 1, TABV + 2))
    a("v_max_i32 v3, v3, v%d" % (TABV + 3))
    a("v_cmp_le_i32 vcc, 0, v3")
    a("s_cbranch_vccnz L_tpoll_again")
    stamp(a, "tab")
    RC = V_N[0]
    RT = V_T[0]
    ADR = V_T[0] + 12
    for p in range(4):
        a("v_add_u32 v%d, v%d, v%d" % (TABV + p, TABV + p, UC))
    a("v_cmp_le_u32 vcc, 0x%x, v3" % ((9 << 23) | (1 << 31)))
    a("s_cbranch_vccz L2_noextra")
    a("s_mov_b32 s%d, 1" % S_EXTRA)
    a("v_cmp_le_u32 vcc, 0x%x, v3" % ((17 << 23) | (1 << 31)))
    a("s_cbranch_vccz L2_noflag")
    a("s_mov_b32 s%d, 3" % S_EXTRA)
    a.label("L2_noflag")
    for p in range(4):
        a("v_add_u32 v3, 0x%x, v%d" % ((128 - (8 << 23)) & 0xffffffff, TABV + p))
        a("v_and_b32 v3, s50, v3")
        a("buffer_load_dwordx4 %s, v3, %s, 0 offen %s" % (vr(RC + 16 + 4 * p, 4), sr(S_WS, 4), SC))
    a.label("L2_noextra")
    for p in range(4):
        a("v_and_b32 v%d, s50, v%d" % (TABV + p, TABV + p))
        a("buffer_load_dwordx4 %s, v%d, %s, 0 offen %s" % (vr(RC + 4 * p, 4), TABV + p, sr(S_WS, 4), SC))
    a("v_mov_b32 v2, 4")

    def p1(rc, k):
        for i in range(3):
            a("v_lshlrev_b32_sdwa v%d, 2, v%d dst_sel:DWORD dst_unused:UNUSED_PAD src0_sel:DWORD src1_sel:BYTE_%d" % (ADR + k + i, rc + 3, i))
        for i in range(3):
            a("v_cmpx_ne_u32 vcc, 0, v%d" % (ADR + k + i))
            a("ds_add_rtn_u32 v%d, v%d, v2 offset:%d" % (RT + k + i, ADR + k + i, L_CNT))
        a("s_mov_b64 exec, -1")

    def p2(rc, k):
        for i in range(3):
            a("v_cmpx_ne_u32 vcc, 0, v%d" % (ADR + k + i))
            a("ds_write_b32 v%d, v%d" % (RT + k + i, rc + i))
        a("s_mov_b64 exec, -1")

    a("s_cmp_eq_u32 s%d, 0" % S_EXTRA)
    a("s_cbranch_scc1 L2_pl")
    a("s_waitcnt vmcnt(%d)" % (4 + NPF))
    for p in range(4):
        p1(RC + 16 + 4 * p, 3 * p)
    a("v_mov_b32 v3, s%d" % S_EXTRA)
    a("v_mov_b32 v%d, %d" % (V_U, F_SLOW))
    a("ds_or_b32 v%d, v3" % V_U)
    a("s_waitcnt lgkmcnt(0)")
    for p in range(4):
        p2(RC + 16 + 4 * p, 3 * p)
    a.label("L2_pl")
    a("s_waitcnt vmcnt(%d)" % (3 + NPF))
    stamp(a, "rec0")
    p1(RC, 0)
    a("s_waitcnt vmcnt(%d)" % (2 + NPF))
    p1(RC + 4, 3)
    a("s_waitcnt vmcnt(%d) lgkmcnt(0)" % (1 + NPF))
    p1(RC + 8, 6)
    p2(RC, 0)
    p2(RC + 4, 3)
    a("s_waitcnt vmcnt(%d)" % NPF)
    p1(RC + 12, 9)
    a("s_waitcnt lgkmcnt(0)")
    p2(RC + 8, 6)
    p2(RC + 12, 9)
    stamp(a, "placed")

    a.label("L2_build")
    L4, RB0, NC0, NC1 = V_U, V_U + 1, V_U + 2, V_U + 3
    C0, C1, FL = V_U + 4, V_U + 5, V_U + 6
    P0 = V_U + 8
    O0 = V_U + 10
    E0, E1 = V_N[0], V_N[0] + 8
    a("v_lshlrev_b32 v%d, 2, v%d" % (L4, V_LANE))
    a("s_mov_b32 s3, %d" % SSTR)
    a("v_mov_b32 v%d, %d" % (RB0, L_SLOT - 4))
    a("v_mad_u32_u24 v%d, v%d, s3, v%d" % (RB0, V_LANE, RB0))
    a("v_lshlrev_b32 v%d, 25, v%d" % (NC0, V_LANE))
    a("v_add3_u32 v%d, v%d, v%d, 4" % (NC0, NC0, RB0))
    a("v_add_u32 v%d, 0x%x, v%d" % (NC1, (64 << 25) + 64 * SSTR, NC0))
    a("s_cmp_lt_u32 s%d, %d" % (S_B, N - 97 * 256))
    a("s_cselect_b32 s%d, 3, 1" % (S_HI + 1))
    a("s_mov_b32 s%d, -1" % S_HI)
    a("s_mov_b32 s%d, 0" % S_LI)
    a("s_mov_b32 s%d, 0" % S_SAFE)
    a("v_mov_b32 v%d, %d" % (O0, L_SLOT + 98 * SSTR))
    a("s_lshl_b32 s3, s%d, 6" % S_W)
    a("v_and_b32 v3, 60, v%d" % L4)
    a("v_add_u32 v%d, s3, v3" % (V_T0 + 2))
    a("v_mov_b32 v2, 0x%x" % (127 << 25))
    a("ds_write_b32 v%d, v2 offset:%d" % (V_T0 + 2, L_NL))
    a("v_mov_b32 v%d, 0" % FL)
    a("v_add_u32 v3, %d, v%d" % (64 * SSTR, RB0))
    a("s_mov_b32 s42, 0x100401")
    a("s_waitcnt lgkmcnt(0)")
    a("s_barrier")
    stamp(a, "barD")
    a("ds_read_b32 v%d, v%d offset:%d" % (C0, L4, L_CNT + 4))
    a("ds_read_b32 v%d, v%d offset:%d" % (C1, L4, L_CNT + 4 + 256))
    a("ds_read_b32 v%d, v%d offset:%d" % (FL, FL, F_SLOW))
    a("ds_write_b32 v%d, v%d" % (V_T0 + 3, O0))
    a("s_waitcnt lgkmcnt(2)")
    a("v_sub_u32 v%d, v%d, v%d" % (C0, C0, RB0))
    a("v_sub_u32 v%d, v%d, v3" % (C1, C1))
    a("v_lshlrev_b32 v%d, 3, v%d" % (C0, C0))
    a("v_lshlrev_b32 v%d, 3, v%d" % (C1, C1))

    def lut_reads(off):
        a("ds_read_b128 %s, v%d offset:%d" % (vr(E0 + 4, 4), C0, off + 16))
        a("ds_read_b128 %s, v%d offset:%d" % (vr(E1 + 4, 4), C1, off + 16))
        a("ds_read_b128 %s, v%d offset:%d" % (vr(E0, 4), C0, off))
        a("ds_read_b128 %s, v%d offset:%d" % (vr(E1, 4), C1, off))

    lut_reads(L_LUT)
    a("v_max_u32 v2, v%d, v%d" % (C0, C1))
    a("v_cmp_lt_u32 vcc, %d, v2" % (32 * (DMAX + 1)))
    a("s_waitcnt lgkmcnt(4)")
    a("v_cmp_lt_u32_e64 s[40:41], 1, v%d" % FL)
    a("s_or_b64 vcc, vcc, s[40:41]")
    a("s_cbranch_vccnz L2_slow")
    a.label("L2_scan")
    a("s_waitcnt lgkmcnt(2)")
    a("v_add_u32 v%d, v%d, v%d" % (O0, E0 + 4, E1 + 4))
    a("v_add_u32 v%d, v%d, v%d" % (O0 + 1, E0 + 5, E1 + 5))
    a("v_mov_b32 v%d, v%d" % (P0, O0))
    a("v_mov_b32 v%d, v%d" % (P0 + 1, O0 + 1))
    a("s_waitcnt lgkmcnt(0)")
    dpp_scan(a, [P0, P0 + 1], fill=["v_add_u32 v%d, v%d, v%d" % (E0 + i, E0 + i, NC0) for i in range(4)] +
             ["v_add_u32 v%d, v%d, v%d" % (E1 + i, E1 + i, NC1) for i in range(4)])
    a("v_readlane_b32 s44, v%d, 63" % P0)
    a("v_readlane_b32 s45, v%d, 63" % (P0 + 1))
    a("v_sub_u32 v%d, v%d, v%d" % (P0, P0, O0))
    a("v_sub_u32 v%d, v%d, v%d" % (P0 + 1, P0 + 1, O0 + 1))
    a("s_mul_i32 s44, s44, s42")
    a("s_mul_i32 s45, s45, s42")
    a("s_bfe_u32 s46, s44, 0x%x" % ((10 << 16) | 20))
    a("s_bfe_u32 s47, s45, 0x%x" % ((10 << 16) | 20))
    a("s_lshl_b32 s44, s44, 10")
    a("s_lshl_b32 s45, s45, 10")
    a("s_add_u32 s47, s47, s46")
    a("s_mul_i32 s46, s46, s42")
    a("v_add_u32 v%d, s44, v%d" % (P0, P0))
    a("s_add_u32 s45, s45, s46")
    a("s_cmp_gt_u32 s47, 256")
    a("s_cbranch_scc1 L2_retry")
    a("v_add_u32 v%d, s45, v%d" % (P0 + 1, P0 + 1))
    a("v_lshrrev_b64 %s, v%d, %s" % (vr(O0, 2), E0 + 6, vr(P0, 2)))
    a("v_add_u32 v%d, v%d, v%d" % (P0, P0, E0 + 4))
    a("v_add_u32 v%d, v%d, v%d" % (P0 + 1, P0 + 1, E0 + 5))
    a("v_and_b32 v2, 0x1ff, v%d" % O0)
    a("v_lshrrev_b64 %s, v%d, %s" % (vr(O0, 2), E1 + 6, vr(P0, 2)))
    a("v_lshl_add_u32 v2, v2, 2, s%d" % S_XT)
    a("ds_write2_b32 v2, v%d, v%d offset0:2 offset1:3" % (E0 + 2, E0 + 3))
    a("v_and_b32 v3, 0x1ff, v%d" % O0)
    a("v_lshl_add_u32 v3, v3, 2, s%d" % S_XT)
    a("s_mov_b64 exec, %s" % sr(S_HI, 2))
    a("ds_write2_b32 v3, v%d, v%d offset0:2 offset1:3" % (E1 + 2, E1 + 3))
    a("ds_write2_b32 v3, v%d, v%d offset0:0 offset1:1" % (E1, E1 + 1))
    a("s_mov_b64 exec, -1")
    a("ds_write2_b32 v2, v%d, v%d offset0:0 offset1:1" % (E0, E0 + 1))
    a("s_lshl_b32 s3, s%d, 7" % S_BT)
    a("s_add_u32 s3, s3, s%d" % S_XT)
    a("v_lshrrev_b32 v2, 3, v%d" % V_LANE)
    a("v_lshl_add_u32 v2, v2, 2, s3")
    for i in range(4):
        a("ds_read_u16 v%d, v2 offset:%d" % (V_IA + i, 32 * i))
    a("ds_read_b32 v%d, v%d" % (V_W, V_T0 + 3))
    a("s_mov_b32 s%d, %d" % (S_X + 2, NP))
    a(dma_m0(0))
    a("s_mov_b32 s3, %d" % RSTR)
    a("v_lshlrev_b32 v3, 5, v%d" % HH)
    a("s_waitcnt lgkmcnt(1)")
    for x in idx_reads(0):
        a(x)
    a("s_waitcnt lgkmcnt(4)")
    a("v_and_b32 v%d, 0xffff, v%d" % (V_RA, V_W))
    a("v_bfe_u32 v%d, v%d, 16, 6" % (V_LEN, V_W))
    a("v_lshrrev_b32 v2, 25, v%d" % V_W)
    a("v_mad_u32_u24 v%d, v2, s3, v3" % V_QA)
    a("v_add_u32 v%d, %d, v%d" % (V_QA, L_Q, V_QA))
    d = dma_loads()
    for i in range(4):
        a("s_waitcnt lgkmcnt(%d)" % (3 - i))
        a(d[i])
    stamp(a, "dma0")
    for x in idx_reads(4):
        a(x)
    a("ds_read2_b32 %s, v%d offset0:0 offset1:1" % (vr(V_R, 2), V_RA))
    for x in row_reads(V_C, V_QA):
        a(x)
    KF = V_T0 + 4
    a("v_bfe_u32 v%d, v%d, 22, 3" % (KF, V_W))
    a("v_mov_b32 v%d, v%d" % (V_T0 + 5, V_LEN))
    a("v_cmp_ne_u32 vcc, 0, v%d" % KF)
    a("v_add_u32 v2, %d, v%d" % (L_R - L_Q, V_QA))
    a("v_add_u32 v%d, %d, v3" % (V_RC, L_ZERO))
    a("v_cndmask_b32 v%d, v%d, v2, vcc" % (V_RC, V_RC))
    a("v_mbcnt_lo_u32_b32 v2, vcc_lo, 0")
    a("s_lshl_b32 s40, s%d, 6" % S_W)
    a("v_lshl_add_u32 v2, v2, 2, s40")
    a("s_mov_b32 s41, 0xffc00000")
    a("v_and_or_b32 v%d, v%d, s41, v%d" % (V_NW, V_W, COL))
    a(dma_m0(1))
    a("s_waitcnt lgkmcnt(9)")
    for x in dma_loads():
        a(x)
    for x in idx_reads(8):
        a(x)
    a("s_mov_b32 exec_lo, vcc_lo")
    a("s_mov_b32 exec_hi, 0")
    a("ds_write_b32 v2, v%d offset:%d" % (V_NW, L_NL))
    a("s_mov_b64 exec, -1")
    a("v_and_b32 v2, 60, v%d" % V_LANE)
    a("v_add_u32 v2, s40, v2")
    a("ds_read_b32 v%d, v2 offset:%d" % (V_NW, L_NL))
    a("v_add_u32 v2, v%d, v%d" % (KF, COL))
    a("v_cmp_lt_u32 vcc, 32, v2")
    a("v_mad_u32_u24 v%d, v%d, s3, v3" % (V_YW, COL))
    a("v_add_u32 v%d, s%d, v%d" % (V_YW, S_XT, V_YW))
    a("s_cmp_lg_u64 vcc, 0")
    a("s_cselect_b32 s%d, 1, 0" % S_NEED)
    a("s_cmp_lg_u32 s%d, 7" % S_BT)
    a("s_cselect_b32 s%d, s%d, 0" % (S_NEED, S_NEED))
    dpp_scan(a, [V_T0 + 5], op="v_max_u32", fill=[
        "v_cmp_lt_u32_e64 %s, 0, v%d" % (sr(S_M0, 2), V_LEN),
        "v_cmp_lt_u32_e64 %s, 1, v%d" % (sr(S_M[1], 2), V_LEN),
        "v_mov_b32 v%d, 0" % V_S, "v_mov_b32 v%d, 0" % (V_S + 1)])
    a("s_nop 0")
    a("v_readlane_b32 s%d, v%d, 63" % (S_ML, V_T0 + 5))
    a("s_mov_b32 s%d, 1" % S_J)
    a("s_waitcnt vmcnt(4)")
    for x in b_reads(0):
        a(x)
    a("s_max_u32 s%d, s%d, 2" % (S_ML, S_ML))
    a("s_cmp_gt_u32 s%d, 2" % S_ML)
    a("s_cselect_b32 s%d, %d, 0" % (S_X + 2, NP))
    a(dma_m0(0))
    mf = mfma_chain(0, 0, V_N[0])
    a("s_waitcnt lgkmcnt(4)")
    a(mf[0])
    a("s_waitcnt lgkmcnt(0)")
    a(mf[1])
    a(mf[2])
    for x in dma_loads():
        a(x)
    stamp(a, "loop")
    a("s_nop 6")
    me(a, mfma_chain(1, 0, V_N[1]), exps(V_N[0]))
    a("s_waitcnt vmcnt(4)")
    for x in b_reads(1) + idx_reads(12) + pk_first(0):
        a(x)
    a("s_cmp_gt_u32 s%d, 3" % S_ML)
    a("s_cselect_b32 s%d, %d, 0" % (S_X + 2, NP))
    a(dma_m0(1))
    a("s_waitcnt lgkmcnt(0)")
    me(a, mfma_chain(0, 1, V_T[0]), exps(V_N[1]))
    for x in dma_loads():
        a(x)
    for x in pk_first(1):
        a(x)
    a.raw(".p2align 6")
    a.label("L2_loop")
    for par in (1, 0):
        me(a, mfma_chain(1, par, V_T[1]), exps(V_T[0]))
        a("s_add_u32 s%d, s%d, 1" % (S_J, S_J))
        a("s_waitcnt vmcnt(4)")
        for x in b_reads(par + 1) + idx_reads(16 if par else 20):
            a(x)
        if par == 1:
            a("ds_read2_b32 %s, v%d offset0:2 offset1:3" % (vr(V_R, 2), V_RA))
        a("s_cmp_ge_u32 s%d, s%d" % (S_J, S_ML))
        a("s_mov_b64 exec, %s" % sr(S_M[par], 2))
        for x in pk_update(0):
            a(x)
        a("s_cbranch_scc1 L2_last")
        a("s_mov_b64 exec, -1")
        a("s_add_u32 s%d, s%d, 2" % (S_T, S_J))
        a("s_cmp_lt_u32 s%d, s%d" % (S_T, S_ML))
        a("s_cselect_b32 s%d, %d, 0" % (S_X + 2, NP))
        a(dma_m0(par ^ 1))
        a("s_waitcnt lgkmcnt(0)")
        extra = ["v_cmp_lt_u32_e64 %s, s%d, v%d" % (sr(S_M[par ^ 1], 2), S_J, V_LEN)]
        if par == 0:
            extra += ["v_add_u32 v%d, 8, v%d" % (V_IA + i, V_IA + i) for i in range(4)] + ["v_add_u32 v%d, 8, v%d" % (V_RA, V_RA)]
        me(a, mfma_chain(0, par ^ 1, V_T[0]), exps(V_T[1]), extra)
        for x in dma_loads():
            a(x)
        a("s_mov_b64 exec, %s" % sr(S_M[par], 2))
        for x in pk_update(1):
            a(x)
        a("s_mov_b64 exec, -1")
    a("s_branch L2_loop")

    a.label("L2_last")
    a("s_mov_b64 %s, exec" % sr(S_T + 2, 2))
    a("s_mov_b64 exec, -1")
    a("s_waitcnt lgkmcnt(0)")
    stamp(a, "last")
    for x in row_reads(V_C, V_RC) + exps(V_T[1]) + wa_reads()[:7]:
        a(x)
    a("s_mov_b64 exec, %s" % sr(S_T + 2, 2))
    for x in pk_update(1):
        a(x)
    a("s_mov_b64 exec, -1")
    for x in wa_reads()[7:]:
        a(x)
    a.label("L2_final")
    PB = V_B[0]
    a("s_not_b64 exec, %s" % sr(S_M0, 2))
    a("s_cbranch_execz L2_nz")
    for i in range(16):
        a("v_mov_b32 v%d, 0" % (PB + i))
    a.label("L2_nz")
    a("s_mov_b64 exec, %s" % sr(S_M0, 2))

    def fin(X):
        n, d, t = V_N[X], V_D[X], V_T[X]
        r = ["v_rcp_f32 v%d, v%d" % (t + i, d + i) for i in range(16)]
        s = ["v_pk_fma_f32 %s, %s, %s, %s" % (vr(V_S, 2), vr(d + 4 * i, 2), vr(d + 4 * i + 2, 2), vr(V_S, 2)) for i in range(4)]
        m = ["v_pk_mul_f32 %s, %s, %s" % (vr(t + 2 * i, 2), vr(t + 2 * i, 2), vr(n + 2 * i, 2)) for i in range(8)]
        c = ["v_cvt_pk_bf16_f32 v%d, v%d, v%d" % (PB + 8 * X + i, t + 2 * i, t + 2 * i + 1) for i in range(8)]
        return r, [s[0], m[0], m[1], s[1], m[2], m[3], s[2], m[4], m[5], s[3], m[6], m[7]] + c

    def ymf(o, q):
        return "v_mfma_f32_32x32x16_bf16 %s, %s, %s, %s" % (vr(V_C[o], 16), vr(wa_reg(o, q), 4), vr(PB + 4 * q, 4), vr(V_C[o], 16))

    r, p = fin(0)
    for x in r + p:
        a(x)
    r, p = fin(1)
    a("s_waitcnt vmcnt(0) lgkmcnt(0)")
    a(r[0])
    phase(a, [ymf(0, 0), ymf(1, 0), ymf(0, 1), ymf(1, 1)], r[1:])
    for x in p:
        a(x)
    a("s_nop 1")
    for x in (ymf(0, 2), ymf(1, 2), ymf(0, 3), ymf(1, 3)):
        a(x)
    a("v_mov_b32 v2, 0x%08x" % f32(2.0 ** 120))
    a("v_add_f32 v3, v%d, v%d" % (V_S, V_S + 1))
    a("s_movk_i32 s40, 0x207")
    a("v_cmp_nlt_f32 vcc, v3, v2")
    a("s_mov_b64 exec, -1")
    YR, OA, KK = V_T0 + 2, V_T0 + 4, V_T0 + 5
    a("s_mov_b32 s3, %d" % RSTR)
    a("v_and_b32 v2, 3, v%d" % V_LANE)
    a("v_and_b32 v3, 0xff, v%d" % V_NW)
    a("v_lshl_add_u32 v%d, v2, 5, s%d" % (YR, S_XT))
    a("v_mad_u32_u24 v%d, v3, s3, v%d" % (YR, YR))
    a("v_lshrrev_b32 v3, 25, v%d" % V_NW)
    a("v_lshl_add_u32 v%d, v3, 8, s%d" % (OA, S_B))
    a("v_lshlrev_b32 v%d, 7, v%d" % (OA, OA))
    a("v_lshl_add_u32 v%d, v2, 4, v%d" % (OA, OA))
    a("v_bfe_u32 v%d, v%d, 22, 3" % (KK, V_NW))
    a("v_cmp_class_f32_e64 s[42:43], v%d, s40" % V_C[1])
    a("s_lshl_b32 s41, s%d, 2" % S_BT)
    a("s_and_b64 s[42:43], s[42:43], %s" % sr(S_M0, 2))
    a("s_or_b64 vcc, vcc, s[42:43]")
    a("s_cselect_b32 s42, 1, 0")
    a("s_andn2_b32 s42, s42, s%d" % S_SAFE)
    a("s_cbranch_scc1 L2_safe")
    for X in range(2):
        for q in range(4):
            a("ds_write_b128 v%d, %s offset:%d" % (V_YW, vr(V_C[X] + 4 * q, 4), row_off(X, q)))
    a("v_mov_b32 v2, s41")
    a("v_mov_b32 v3, 1")
    a("v_cmp_lt_u32_e64 s[44:45], 2, v%d" % KK)
    a("v_cmp_lt_u32_e64 s[46:47], 3, v%d" % KK)
    a("s_waitcnt lgkmcnt(0)")
    a("ds_write_b32 v2, v3 offset:%d" % L_FLAG)
    a("s_cmp_eq_u32 s%d, 0" % S_NEED)
    a("s_cbranch_scc1 L2_nowait")
    a.label("L2_poll")
    a("ds_read_b32 v3, v2 offset:%d" % (L_FLAG + 4))
    a("s_waitcnt lgkmcnt(0)")
    a("v_cmp_eq_u32 vcc, 0, v3")
    a("s_cbranch_vccnz L2_poll")
    a.label("L2_nowait")
    stamp(a, "ywait")
    Y = [V_N[0], V_N[1], V_D[0], V_D[1]]

    def yreads(i):
        for c in range(4):
            a("ds_read_b128 %s, v%d offset:%d" % (vr(Y[i] + 4 * c, 4), YR, RSTR * i + 128 * (c >> 1) + 16 * (c & 1)))

    def yadd(i):
        for c in range(8):
            a("v_pk_add_f32 %s, %s, %s" % (vr(Y[0] + 2 * c, 2), vr(Y[0] + 2 * c, 2), vr(Y[i] + 2 * c, 2)))

    yreads(0)
    yreads(1)
    yreads(2)
    a("s_mov_b32 s40, 0x%08x" % f32(-LN2))
    a("s_mov_b32 s41, 0x%08x" % f32(-LN2))
    a("s_cmp_eq_u64 s[46:47], 0")
    a("s_cbranch_scc1 L2_no4")
    yreads(3)
    a("s_waitcnt lgkmcnt(0)")
    a("s_mov_b64 exec, s[46:47]")
    yadd(3)
    a("s_mov_b64 exec, -1")
    a.label("L2_no4")
    a("s_waitcnt lgkmcnt(4)")
    yadd(1)
    a("s_waitcnt lgkmcnt(0)")
    a("s_mov_b64 exec, s[44:45]")
    yadd(2)
    a("s_mov_b64 exec, -1")
    a("s_cmp_eq_u32 s%d, 1" % S_MODE)
    a("s_cbranch_scc1 L2_writeback")
    U = V_U
    for i in range(16):
        a("v_exp_f32 v%d, v%d" % (U + i, Y[0] + i))
    for i in range(8):
        a("v_pk_add_f32 %s, %s, %s" % (vr(U + 2 * i, 2), vr(U + 2 * i, 2), sr(S_ONE, 2)))
    for i in range(16):
        a("v_rcp_f32 v%d, v%d" % (U + i, U + i))
    for i in range(8):
        a("v_pk_mul_f32 %s, %s, s[40:41]" % (vr(Y[0] + 2 * i, 2), vr(Y[0] + 2 * i, 2)))
    for i in range(8):
        a("v_pk_mul_f32 %s, %s, %s" % (vr(U + 2 * i, 2), vr(U + 2 * i, 2), vr(Y[0] + 2 * i, 2)))
    P = V_B[1]
    for i in range(4):
        a("v_cvt_pk_bf16_f32 v%d, v%d, v%d" % (P + i, U + 2 * i, U + 2 * i + 1))
    a("buffer_store_dwordx4 %s, v%d, %s, 0 offen" % (vr(P, 4), OA, sr(S_OUT, 4)))
    for i in range(4, 8):
        a("v_cvt_pk_bf16_f32 v%d, v%d, v%d" % (P + i, U + 2 * i, U + 2 * i + 1))
    a("buffer_store_dwordx4 %s, v%d, %s, 0 offen offset:64" % (vr(P + 4, 4), OA, sr(S_OUT, 4)))
    stamp_out(a)
    a.label("L_end")
    a("s_endpgm")

    a.label("L_fagain")
    a("s_sleep 2")
    a("global_load_dword v%d, v%d, %s %s" % (FLG, FA, sr(P_DBG, 2), SC))
    a("s_sub_u32 s%d, s%d, 1" % (S_TO, S_TO))
    a("s_waitcnt vmcnt(0)")
    a("s_cbranch_scc0 L_fpoll")
    a("s_mov_b32 s%d, 0" % S_TO)
    a("v_mov_b32 v3, 6")
    a("v_mov_b32 v2, %d" % F_SLOW)
    a("ds_or_b32 v2, v3")
    a("s_cmp_lg_u32 s%d, 7" % S_W)
    a("s_waitcnt lgkmcnt(0)")
    a("s_branch L_barC")
    a.label("L_timeout")
    a("v_mov_b32 v3, 6")
    a("v_mov_b32 v2, %d" % F_SLOW)
    a("ds_or_b32 v2, v3")
    a("s_branch L2_build")

    a.label("L2_retry")
    a("s_add_u32 s%d, s%d, 1" % (S_LI, S_LI))
    a("s_cmp_eq_u32 s%d, 1" % S_LI)
    a("s_cbranch_scc1 L2_retry1")
    a("s_barrier")
    a("s_cmp_eq_u32 s%d, 2" % S_LI)
    a("s_cselect_b32 s3, %d, %d" % (LS[2], LS[3]))
    lut_build(a, 3, V_T[0], L_LUT + 2048)
    a.label("L2_retry1")
    lut_reads(L_LUT + 2048)
    a("s_branch L2_scan")

    a.label("L2_safe")
    a("s_mov_b32 s%d, 1" % S_SAFE)
    a("s_mov_b32 s%d, %d" % (S_X + 2, NP))
    a("s_nop 7")
    for x in row_reads(V_C, V_QA):
        a(x)
    a("v_and_b32 v2, 0xffff, v%d" % V_W)
    a("v_sub_u32 v2, v%d, v2" % V_RA)
    for i in range(4):
        a("v_sub_u32 v%d, v%d, v2" % (V_IA + i, V_IA + i))
    a("v_sub_u32 v%d, v%d, v2" % (V_RA, V_RA))
    for i in range(32):
        a("v_mov_b32 v%d, 0" % (V_N[0] + i))
        a("v_mov_b32 v%d, 1.0" % (V_D[0] + i))
    a("v_mov_b32 v%d, 0x%x" % (V_R + 1, PAD))
    a("s_mov_b32 s%d, 0" % S_J)
    a.label("L2_safe_loop")
    for x in idx_reads(0):
        a(x)
    a("ds_read_b32 v%d, v%d" % (V_R, V_RA))
    a("s_waitcnt lgkmcnt(0)")
    dma_plain(a, 0)
    a("v_cmp_lt_u32_e64 %s, s%d, v%d" % (sr(S_M[0], 2), S_J, V_LEN))
    for i in range(4):
        a("v_add_u32 v%d, 4, v%d" % (V_IA + i, V_IA + i))
    a("v_add_u32 v%d, 4, v%d" % (V_RA, V_RA))
    a("s_waitcnt vmcnt(0)")
    for x in b_reads(0):
        a(x)
    a("s_waitcnt lgkmcnt(0)")
    for x in mfma_chain(0, 0, V_T[0]) + mfma_chain(1, 0, V_T[1]):
        a(x)
    a("s_nop 7")
    a("s_nop 3")
    a("s_mov_b64 exec, %s" % sr(S_M[0], 2))
    for X in range(2):
        for x in exps(V_T[X]):
            a(x)
        for i in range(8):
            a("v_pk_add_f32 %s, %s, %s" % (vr(U + 2 * i, 2), vr(U + 2 * i, 2), sr(S_ONE, 2)))
        for i in range(16):
            a("v_rcp_f32 v%d, v%d" % (U + i, U + i))
        for i in range(8):
            a("v_pk_fma_f32 %s, %s, %s, %s" % (vr(V_N[X] + 2 * i, 2), vr(V_T[X] + 2 * i, 2), vr(U + 2 * i, 2), vr(V_N[X] + 2 * i, 2)))
    a("s_mov_b64 exec, -1")
    a("s_add_u32 s%d, s%d, 1" % (S_J, S_J))
    a("s_cmp_lt_u32 s%d, s%d" % (S_J, S_ML))
    a("s_cbranch_scc1 L2_safe_loop")
    for x in row_reads(V_C, V_RC):
        a(x)
    a("s_branch L2_final")

    a.label("L2_slow")
    a("s_mov_b32 s%d, 1" % S_MODE)
    a("s_mov_b32 s%d, 0" % S_POS)
    a("v_mov_b32 v%d, 0" % V_DONE)
    a("v_cmp_gt_u32 vcc, 4, v%d" % FL)
    a("s_waitcnt vmcnt(0) lgkmcnt(0)")
    a("s_cbranch_vccnz L2_slow_round")
    a("s_barrier")
    t = V_U
    a("v_and_b32 v2, 16, v%d" % V_LANE)
    a("v_lshlrev_b32 v2, 2, v2")
    a("v_xor_b32 v2, v2, v%d" % V_L16)
    a("s_lshl_b32 s3, s%d, 10" % S_W)
    a("v_add_u32 v2, s3, v2")
    a("s_add_u32 m0, s3, %d" % L1_W1)
    a("v_lshrrev_b32 v3, 4, v%d" % V_LANE)
    a("global_load_lds_dwordx4 v2, %s" % sr(P_WM, 2))
    a("v_bfe_u32 v2, v%d, 2, 2" % V_LANE)
    a("v_lshl_add_u32 v%d, v3, 3, v2" % t)
    a("v_lshlrev_b32 v%d, 7, v%d" % (t, t))
    a("v_lshrrev_b32 v2, 1, v2")
    a("v_lshl_or_b32 v%d, v2, 6, v%d" % (t, t))
    a("v_and_b32 v2, 3, v%d" % V_LANE)
    a("v_lshl_or_b32 v%d, v2, 4, v%d" % (t, t))
    a("v_xor_b32 v%d, 64, v%d" % (t + 1, t))
    a("v_add_u32 v%d, %d, v%d" % (t, L1_W1, t))
    a("v_add_u32 v%d, %d, v%d" % (t + 1, L1_W1, t + 1))
    a("v_and_b32 v2, 15, v%d" % V_LANE)
    a("s_lshl_b32 s3, s%d, 4" % S_W)
    a("v_add_u32 v%d, s3, v2" % (t + 2))
    a("v_lshlrev_b32 v%d, 4, v3" % (t + 4))
    a("v_add_u32 v%d, 3072, v%d" % (t + 7, t + 4))
    a("s_mov_b32 s%d, %d" % (S_X + 2, NP))
    a("s_waitcnt vmcnt(0)")
    a("s_barrier")
    for x in tr_frags(V_C[0], t, 0):
        a(x)
    a("s_waitcnt lgkmcnt(0)")
    for x in tr_frags(V_C[1], t + 1, 0):
        a(x)
    a("s_mov_b32 s3, %d" % ((N + 127) // 128))
    a.label("L_allp")
    a("v_min_u32 v2, %d, v%d" % (N - 1, t + 2))
    a("v_lshl_add_u32 v2, v2, 7, v%d" % (t + 4))
    a("global_load_dwordx4 %s, v2, %s" % (vr(V_B[0], 4), sr(P_X, 2)))
    a("global_load_dwordx4 %s, v2, %s offset:64" % (vr(V_B[0] + 4, 4), sr(P_X, 2)))
    a("v_and_b32 v2, 255, v%d" % (t + 2))
    a("v_lshrrev_b32 v%d, 8, v%d" % (t + 6, t + 2))
    a("v_mul_u32_u24 v2, %d, v2" % NLOC)
    a("v_add_u32 v%d, v2, v%d" % (t + 6, t + 6))
    a("s_waitcnt vmcnt(0) lgkmcnt(0)")
    for s in range(2):
        for H in range(2):
            for blk in range(2):
                a(mf16(V_T[0] + 8 * H + 4 * blk, V_C[H] + 8 * blk + 4 * s, V_B[0] + 4 * s, s == 0))
    a("s_nop 7")
    for i in range(8):
        a("v_pk_mul_f32 %s, %s, %s" % (vr(V_T[0] + 2 * i, 2), vr(V_T[0] + 2 * i, 2), sr(S_LG, 2)))
    for i in range(8):
        a("v_cvt_pk_bf16_f32 v%d, v%d, v%d" % (V_T[1] + i, V_T[0] + 2 * i, V_T[0] + 2 * i + 1))
    a("buffer_store_dwordx4 %s, %s, %s, 0 idxen offen %s" % (vr(V_T[1], 4), vr(t + 6, 2), sr(S_X, 4), SC))
    a("buffer_store_dwordx4 %s, %s, %s, 0 idxen offen offset:64 %s" % (vr(V_T[1] + 4, 4), vr(t + 6, 2), sr(S_X, 4), SC))
    a("v_add_u32 v%d, 128, v%d" % (t + 2, t + 2))
    a("s_sub_u32 s3, s3, 1")
    a("s_cmp_lg_u32 s3, 0")
    a("s_cbranch_scc1 L_allp")
    a("s_waitcnt vmcnt(0)")
    a("s_branch L2_slow_round")
    a.label("L2_writeback")
    a("v_cmp_ne_u32 vcc, 0, v%d" % KK)
    a("v_lshrrev_b32 v3, 25, v%d" % V_NW)
    a("v_and_b32 v2, 3, v%d" % V_LANE)
    a("v_lshlrev_b32 v2, 5, v2")
    a("v_mad_u32_u24 v2, v3, s3, v2")
    a("v_add_u32 v2, %d, v2" % L_R)
    a("s_mov_b64 exec, vcc")
    for c in range(4):
        a("ds_write_b128 v2, %s offset:%d" % (vr(Y[0] + 4 * c, 4), 128 * (c >> 1) + 16 * (c & 1)))
    a("s_mov_b64 exec, -1")
    a("s_waitcnt lgkmcnt(0)")
    a.label("L2_slow_round")
    a("s_barrier")
    lds_init(a, V_U)
    a("s_waitcnt lgkmcnt(0)")
    a("s_barrier")
    a.label("L2_slow_step")
    a("s_cmp_lt_u32 s%d, %d" % (S_POS, E))
    a("s_cbranch_scc1 L2_slow_go")
    a("s_mov_b32 s%d, 2" % S_MODE)
    a("s_branch L2_build")
    a.label("L2_slow_go")
    a("v_add_u32 v2, s%d, v0" % S_POS)
    a("v_cmp_gt_u32 vcc, %d, v2" % E)
    a("v_min_u32 v2, %d, v2" % (E - 1))
    a("v_lshlrev_b32 v3, 1, v2")
    a("v_lshlrev_b32 v2, 2, v2")
    a("global_load_dword v%d, v2, %s" % (t, sr(P_DST, 2)))
    a("global_load_dword v%d, v2, %s" % (t + 1, sr(P_SRC, 2)))
    a("global_load_ushort v%d, v3, %s" % (t + 2, sr(P_E, 2)))
    a("v_cmp_eq_u32_e64 s[40:41], 0, v%d" % V_DONE)
    a("s_and_b64 s[40:41], s[40:41], vcc")
    a("s_mov_b32 s3, %d" % SSTR)
    a("v_mov_b32 v%d, %d" % (t + 4, L_SLOT + 4 * DMAX))
    a("v_mov_b32 v2, 4")
    a("s_waitcnt vmcnt(0)")
    a("v_and_b32 v3, 255, v%d" % t)
    a("v_cmp_eq_u32 vcc, s%d, v3" % S_B)
    a("v_lshrrev_b32 v3, 8, v%d" % t)
    a("v_mad_u32_u24 v%d, v3, s3, v%d" % (t + 4, t + 4))
    a("v_lshlrev_b32 v3, 2, v3")
    a("v_and_b32 v%d, 255, v%d" % (t + 5, t + 1))
    a("v_lshrrev_b32 v%d, 8, v%d" % (t + 1, t + 1))
    a("v_mul_u32_u24 v%d, %d, v%d" % (t + 5, NLOC, t + 5))
    a("v_add_u32 v%d, v%d, v%d" % (t + 1, t + 1, t + 5))
    a("v_lshl_or_b32 v%d, v%d, 16, v%d" % (t + 1, t + 2, t + 1))
    a("s_and_b64 exec, vcc, s[40:41]")
    a("ds_add_rtn_u32 v%d, v3, v2 offset:%d" % (t + 3, L_CNT + 4))
    a("s_waitcnt lgkmcnt(0)")
    a("v_cmp_lt_u32 vcc, v%d, v%d" % (t + 3, t + 4))
    a("s_andn2_b64 s[40:41], exec, vcc")
    a("s_mov_b64 exec, vcc")
    a("ds_write_b32 v%d, v%d" % (t + 3, t + 1))
    a("v_mov_b32 v%d, 1" % V_DONE)
    a("s_mov_b64 exec, s[40:41]")
    a("v_mov_b32 v%d, %d" % (t + 5, F_PEND))
    a("ds_write_b32 v%d, v2" % (t + 5))
    a("s_mov_b64 exec, -1")
    a("s_waitcnt lgkmcnt(0)")
    a("s_barrier")
    a("s_mov_b64 exec, s[40:41]")
    a("ds_min_u32 v3, v%d offset:%d" % (t + 4, L_CNT + 4))
    a("s_mov_b64 exec, -1")
    a("v_mov_b32 v%d, %d" % (t + 5, F_PEND))
    a("ds_read_b32 v%d, v%d" % (t + 5, t + 5))
    a("s_waitcnt lgkmcnt(0)")
    a("v_cmp_ne_u32 vcc, 0, v%d" % (t + 5))
    a("s_cbranch_vccnz L2_build")
    a("s_barrier")
    a("s_add_u32 s%d, s%d, 512" % (S_POS, S_POS))
    a("v_mov_b32 v%d, 0" % V_DONE)
    a("s_branch L2_slow_step")


def kd(name, vgpr, sgpr):
    return """.amdhsa_kernel %s
  .amdhsa_next_free_vgpr %d
  .amdhsa_next_free_sgpr %d
  .amdhsa_accum_offset %d
  .amdhsa_group_segment_fixed_size 0
  .amdhsa_kernarg_size 72
  .amdhsa_user_sgpr_count 2
  .amdhsa_user_sgpr_kernarg_segment_ptr 1
  .amdhsa_system_sgpr_workgroup_id_x 1
  .amdhsa_float_denorm_mode_32 3
.end_amdhsa_kernel
""" % (name, vgpr, sgpr, (vgpr + 3) // 4 * 4)


HEADER = """; Kernarg layout for this problem (72 bytes, ptrs only, base s[0:1]):
; Generated by dev/gen3.py (hand-written generator).
"""


def main():
    a = Asm()
    a.raw(HEADER.rstrip())
    a.raw("; @launch grid=(%d,1,1) block=(512,1,1) lds=%d" % (NB, LDS_SIZE))
    a.raw('.amdgcn_target "amdgcn-amd-amdhsa--gfx950"')
    a.raw(".text")
    gen(a)
    a.raw('.section .rodata,"a"')
    a.raw(".p2align 6")
    a.raw(kd(KNAME, 256, 96))
    out = sys.argv[1] if len(sys.argv) > 1 else "standalone__mpnn_edge_mlp__graph.s"
    txt = a.text()
    if DEBUG:
        txt = txt.replace("; Generated by", "; STAMPS " + " ".join(STAMP_NAMES) + "\n; Generated by")
    open(out, "w").write(txt)
    print("wrote", out, "LDS", LDS_SIZE)


if __name__ == "__main__":
    main()
```

```python
import struct, sys, os


def env(name, d):
    return int(os.environ.get(name, str(d)), 0)


DEBUG = env('DEBUG', 0)
X_TIMEOUT = env('X_TIMEOUT', 0)
POLLS = X_TIMEOUT if X_TIMEOUT else 20000
NPF = 0
SLEEP = env('SLEEP', 1)
X_NOPST = env('X_NOPST', 0)
X_TEST = env('X_TEST', 0)
PORD = env('PORD', 0)
WSL = env('WSL', 0)
WR = env('WR', 6)
WQ = env('WQ', 0)
NCLR = 32
LD_IN = os.environ.get('LD_IN', '')
SC = os.environ.get('SC', 'sc1')
SCP = os.environ.get('SCP', 'sc1')
SCG = os.environ.get('SCG', 'sc1')

N = 25000
E = 800000
NB = 256
NLOC = 98
NP = NB * NLOC
CU = 1216
DMAX = 62

WS_REC = 0
WS_TAB = 0x500000
WS_P = 0x580000
WS_SIZE = 0x580000
WS_DBG = 0xA00000
LS = (16, 17, 18, 32)
assert NB * CU * 16 <= WS_TAB

LOG2E = 1.4426950408889634
LN2 = 0.6931471805599453


def f32(x):
    return struct.unpack("<I", struct.pack("<f", x))[0]


class Asm:
    def __init__(self):
        self.l = []

    def __call__(self, s):
        for x in s.split("\n"):
            x = x.strip()
            if x:
                self.l.append("    " + x)

    def label(self, s):
        self.l.append(s + ":")

    def raw(self, s):
        self.l.append(s)

    def text(self):
        return "\n".join(self.l) + "\n"


def vr(a, n):
    return "v[%d:%d]" % (a, a + n - 1)


def sr(a, n):
    return "s[%d:%d]" % (a, a + n - 1)


DPP_STEPS = ["row_shr:1 row_mask:0xf", "row_shr:2 row_mask:0xf", "row_shr:4 row_mask:0xf", "row_shr:8 row_mask:0xf",
             "row_bcast:15 row_mask:0xa", "row_bcast:31 row_mask:0xc"]


def dpp_scan(a, regs, op="v_add_u32", fill=()):
    fill = list(fill)
    for st in DPP_STEPS:
        n = 3 - len(regs)
        while n > 0 and fill:
            a(fill.pop(0))
            n -= 1
        if n > 0:
            a("s_nop %d" % (n - 1))
        for v in regs:
            a("%s_dpp v%d, v%d, v%d %s bank_mask:0xf" % (op, v, v, v, st))
    for x in fill:
        a(x)


RSTR = 272
SSTR = 260
L_CNT = 0
L_FLAG = 544
L_ZERO = 608
L_ZEND = 880
L_W3 = 896
L_NL = 1136
L_LUT = 2048
L_SLOT = L_LUT + 4096
L_SEND = L_SLOT + (99 * SSTR + 160 + 15) // 16 * 16
L_XT = (L_SEND + 255) // 256 * 256
XSTR = 32 * RSTR
L_WA = L_XT + 8 * XSTR
L_Q = L_WA + 8192
L_R = (L_Q + NLOC * RSTR + 127) // 128 * 128
LDS_SIZE = L_R + NLOC * RSTR
L1_CNT = L_XT
L1_START = L1_CNT + 1024
L1_STAGE = L1_START + 1024
L1_X = L1_STAGE + CU * 16
L1_W1 = L1_X + 16384
L1_WX = L_WA - 8192
L1_W2 = L1_WX - 8192
L1_P = L_R
assert L1_W1 + 8192 <= L1_W2 and L1_P % 128 == 0 and L1_P + 16384 <= LDS_SIZE
assert L_SLOT + 97 * SSTR + NB * 48 * 4 <= L1_W2
assert L1_X < 65536 and L1_X % 128 == 0
assert L_NL + 512 <= L_LUT
assert L_SEND < 65536 - 256
assert LDS_SIZE <= 163840, LDS_SIZE
assert 8 * XSTR >= NB * 48 * 4
PAD = 0x7F00
F_SLOW = L_FLAG + 40
F_PEND = L_FLAG + 44

V_LANE = 1
V_BAD = 4
V_IA = 8
V_RA = 12
V_LEN = 13
V_S = 14
V_IDX = 16
V_R = 24
V_YW = 26
V_RC = 27
V_QA = 28
V_NW = 29
V_L16 = 30
V_W = 31
V_T0 = 32
V_DONE = 39
V_AE = 40
V_ID = 48
V_WA = 56
V_TRA = 72
V_ST = 74
V_TAB = 76
V_C = (80, 96)
V_T = (112, 128)
V_N = (144, 160)
V_D = (176, 192)
V_U = 208
V_B = (224, 240)

S_X = 4
S_WS = 8
S_OUT = 12
S_B = 16
S_W = 17
S_BT = 18
S_XT = 19
S_ML = 20
S_J = 21
S_ONE = 22
S_M = (24, 26)
S_M0 = 28
S_MODE = 30
S_SAFE = 31
S_HI = 32
S_NEED = 34
S_LI = 35
S_EXTRA = 36
S_XT1 = 37
S_POS = 38
S_TO = 39
S_T = 40
S_EM = 56
S_LG = 58
S_QM = 60
P_X, P_E, P_SRC, P_DST, P_WM, P_WU, P_OUT, P_DBG, P_WS = 64, 66, 68, 70, 72, 74, 76, 78, 80


def mfma_chain(X, j, dst):
    B = V_B[j & 1]
    out = ["v_mfma_f32_32x32x8_bf16 %s, %s, %s, %s" % (
        vr(dst, 16), vr(V_AE + 4 * X + 2 * (j & 1), 2), vr(V_R, 2), vr(V_C[X], 16))]
    for k in range(2):
        out.append("v_mfma_f32_32x32x16_bf16 %s, %s, %s, %s" % (
            vr(dst, 16), vr(V_ID + 4 * k, 4), vr(B + 8 * X + 4 * k, 4), vr(dst, 16)))
    return out


def exps(src):
    return ["v_exp_f32 v%d, v%d" % (V_U + i, src + i) for i in range(16)]


def pk_first(X):
    return ["v_pk_add_f32 %s, %s, %s" % (vr(V_D[X] + 2 * i, 2), vr(V_U + 2 * i, 2), sr(S_ONE, 2)) for i in range(8)]


def pk_update(X):
    n, d, u, t = V_N[X], V_D[X], V_U, V_T[X]
    A = ["v_pk_fma_f32 %s, %s, %s, %s" % (vr(n + 2 * i, 2), vr(n + 2 * i, 2), vr(u + 2 * i, 2), vr(n + 2 * i, 2)) for i in range(8)]
    B = ["v_pk_fma_f32 %s, %s, %s, %s" % (vr(n + 2 * i, 2), vr(t + 2 * i, 2), vr(d + 2 * i, 2), vr(n + 2 * i, 2)) for i in range(8)]
    C = ["v_pk_fma_f32 %s, %s, %s, %s" % (vr(d + 2 * i, 2), vr(d + 2 * i, 2), vr(u + 2 * i, 2), vr(d + 2 * i, 2)) for i in range(8)]
    return A + B + C


def phase(a, mf, ex):
    mf = list(mf)
    for i, e in enumerate(ex):
        if i % 3 == 0 and mf:
            a(mf.pop(0))
        a(e)
    assert not mf


def b_reads(tile):
    return ["ds_read_b128 %s, v%d offset:%d" % (vr(V_B[tile & 1] + 4 * k, 4), V_BAD + k, 4096 * (tile & 1)) for k in range(4)]


def idx_reads(off):
    return ["ds_read_u16 v%d, v%d offset:%d" % (V_IDX + 2 * i, V_IA + i, off) for i in range(4)]


def dma_m0(slot):
    return "s_mov_b32 m0, s%d" % (S_XT1 if slot else S_XT)


def dma_loads():
    return ["buffer_load_dwordx4 %s, %s, 0 idxen offen offset:%d %s lds" % (vr(V_IDX + 2 * i, 2), sr(S_X, 4), 1024 * i, SCG) for i in range(4)]


def dma_plain(a, slot):
    a(dma_m0(slot))
    a("s_nop 0")
    for x in dma_loads():
        a(x)


def row_off(X, q):
    return 128 * X + 64 * (q >> 1) + 16 * (q & 1)


def row_reads(dst, addr):
    return ["ds_read_b128 %s, v%d offset:%d" % (vr(dst[X] + 4 * q, 4), addr, row_off(X, q)) for X in range(2) for q in range(4)]


def wa_reg(o, q):
    return (V_WA if o == 0 else V_B[1]) + 4 * q


def wa_reads():
    return ["ds_read_b64_tr_b16 %s, v%d offset:%d" % (vr(wa_reg(o, q) + 2 * i, 2), V_TRA + o, 2048 * q + 512 * i)
            for q in range(4) for o in range(2) for i in range(2)]


NSTAMP = [0]
STAMP_NAMES = []


def stamp(a, name):
    if DEBUG:
        k = len(STAMP_NAMES)
        STAMP_NAMES.append(name)
        a("s_memtime s[88:89]")
        a("s_memrealtime s[90:91]")
        a("s_waitcnt lgkmcnt(0)")
        a("v_writelane_b32 v%d, s88, %d" % (V_ST, k))
        a("v_writelane_b32 v%d, s90, %d" % (V_ST, 32 + k))


def stamp_out(a):
    if DEBUG:
        a("s_mov_b64 exec, -1")
        a("s_waitcnt vmcnt(0)")
        stamp(a, "end")
        a("v_lshlrev_b32 v2, 2, v0")
        a("s_lshl_b32 s3, s2, 11")
        a("s_add_u32 s3, s3, %d" % WS_DBG)
        a("v_add_u32 v2, s3, v2")
        a("global_store_dword v2, v%d, %s" % (V_ST, sr(P_WS, 2)))


def lds_init(a, t):
    a("v_mov_b32 v%d, 0x%x" % (t, PAD))
    a("v_mov_b32 v%d, 0x%x" % (t + 1, PAD))
    a("v_mov_b32 v%d, 0x%x" % (t + 2, PAD))
    a("v_mov_b32 v%d, 0x%x" % (t + 3, PAD))
    a("v_lshlrev_b32 v%d, 4, v0" % (t + 4))
    n = (L_SEND - L_SLOT) // 16
    for i in range(n // 512):
        a("ds_write_b128 v%d, %s offset:%d" % (t + 4, vr(t, 4), L_SLOT + 8192 * i))
    a("v_cmp_gt_u32 vcc, %d, v0" % (n % 512))
    a("v_lshlrev_b32 v%d, 2, v0" % (t + 5))
    a("s_mov_b32 s%d, %d" % (S_T, SSTR))
    a("v_mov_b32 v%d, %d" % (t + 6, L_SLOT - SSTR))
    a("s_mov_b64 exec, vcc")
    a("ds_write_b128 v%d, %s offset:%d" % (t + 4, vr(t, 4), L_SLOT + 8192 * (n // 512)))
    a("s_mov_b64 exec, -1")
    a("v_mad_u32_u24 v%d, v0, s%d, v%d" % (t + 6, S_T, t + 6))
    a("s_cmp_lt_u32 s%d, %d" % (S_B, N - 97 * 256))
    a("s_addc_u32 s%d, %d, 0" % (S_T, NLOC - 1))
    a("v_cmp_lt_u32 vcc, s%d, v0" % S_T)
    a("v_subrev_u32 v%d, 4, v%d" % (t + 7, t + 6))
    a("v_mov_b32 v%d, %d" % (t + 4, L_FLAG // 4))
    a("v_cndmask_b32 v%d, v%d, v%d, vcc" % (t + 6, t + 6, t + 7))
    a("v_cmp_gt_u32 vcc, v%d, v0" % (t + 4))
    a("v_mov_b32 v%d, %d" % (t + 4, L_ZEND // 4))
    a("v_mov_b32 v%d, 0" % (t + 7))
    a("v_cndmask_b32 v%d, v%d, v%d, vcc" % (t + 6, t + 7, t + 6))
    a("v_cmp_gt_u32 vcc, v%d, v0" % (t + 4))
    a("s_mov_b64 exec, vcc")
    a("ds_write_b32 v%d, v%d" % (t + 5, t + 6))
    a("s_mov_b64 exec, -1")


def lut_build(a, sL, t, off):
    s1, s2, sm = S_T + 8, S_T + 9, S_T + 10
    d, k, m, ln, acc, x, y = t, t + 1, t + 2, t + 3, t + 4, t + 5, t + 6
    k64 = t + 8
    o = t + 12
    a("s_lshl_b32 s%d, s%d, 1" % (s1, sL))
    a("s_add_u32 s%d, s%d, s%d" % (s2, s1, sL))
    a("v_subrev_u32 v%d, 1, v%d" % (d, V_LANE))
    a("v_max_i32 v%d, 0, v%d" % (d, d))
    a("v_cmp_lt_u32 vcc, s%d, v%d" % (s1, d))
    a("v_cmp_lt_u32_e64 %s, s%d, v%d" % (sr(sm, 2), s2, d))
    a("v_mov_b32 v%d, 2" % k)
    a("v_mov_b32 v%d, 32768" % m)
    a("v_mov_b32 v%d, 21846" % ln)
    a("v_cndmask_b32_e64 v%d, v%d, 3, vcc" % (k, k))
    a("v_cndmask_b32 v%d, v%d, v%d, vcc" % (m, m, ln))
    a("v_mov_b32 v%d, 16384" % ln)
    a("v_cndmask_b32_e64 v%d, v%d, 4, %s" % (k, k, sr(sm, 2)))
    a("v_cndmask_b32_e64 v%d, v%d, v%d, %s" % (m, m, ln, sr(sm, 2)))
    a("v_add3_u32 v%d, v%d, v%d, -1" % (ln, d, k))
    a("v_mul_u32_u24 v%d, v%d, v%d" % (ln, ln, m))
    a("v_lshrrev_b32 v%d, 16, v%d" % (ln, ln))
    a("v_mov_b32 v%d, 0" % acc)
    for i in range(4):
        a("v_min_u32 v%d, v%d, v%d" % (x, acc, d))
        a("v_sub_u32 v%d, v%d, v%d" % (y, d, x))
        a("v_min_u32 v%d, v%d, v%d" % (y, y, ln))
        a("v_lshlrev_b32 v%d, 2, v%d" % (x, x))
        a("v_lshl_or_b32 v%d, v%d, 16, v%d" % (o + i, y, x))
        a("v_add_u32 v%d, v%d, v%d" % (acc, acc, ln))
    a("v_lshl_or_b32 v%d, v%d, 22, v%d" % (o, k, o))
    a("v_sub_u32 v%d, s%d, v%d" % (acc, sL, ln))
    a("v_min_u32 v%d, 5, v%d" % (acc, acc))
    a("v_mul_u32_u24 v%d, 10, v%d" % (o + 6, acc))
    a("v_cmp_le_u32 vcc, 3, v%d" % acc)
    a("v_add_u32 v%d, 2, v%d" % (x, o + 6))
    a("v_mov_b32 v%d, v%d" % (k64, k))
    a("v_mov_b32 v%d, 0" % (k64 + 1))
    a("v_cndmask_b32 v%d, v%d, v%d, vcc" % (o + 6, o + 6, x))
    a("v_cmp_ne_u32 vcc, 0, v%d" % V_LANE)
    a("v_lshlrev_b64 %s, v%d, %s" % (vr(o + 4, 2), o + 6, vr(k64, 2)))
    a("v_mov_b32 v%d, 0" % (o + 7))
    a("v_cndmask_b32 v%d, v%d, v%d, vcc" % (o + 4, k64 + 1, o + 4))
    a("v_cndmask_b32 v%d, v%d, v%d, vcc" % (o + 5, k64 + 1, o + 5))
    a("v_lshlrev_b32 v%d, 5, v%d" % (x, V_LANE))
    a("ds_write_b128 v%d, %s offset:%d" % (x, vr(o, 4), off))
    a("ds_write_b128 v%d, %s offset:%d" % (x, vr(o + 4, 4), off + 16))


PAT = os.environ.get('PAT', "MeeeeMeeeMeeeeeeeee")


def me(a, mf, ex, extra=(), pat=PAT):
    mf = list(mf)
    ex = list(ex)
    for c in pat:
        if c == "M":
            if mf:
                a(mf.pop(0))
        else:
            a(ex.pop(0))
    assert not mf and not ex
    for x in extra:
        a(x)


def mf16(d, A, B, first):
    return "v_mfma_f32_16x16x32_bf16 %s, %s, %s, %s" % (vr(d, 4), vr(A, 4), vr(B, 4), "0" if first else vr(d, 4))


def tr_frags(dst, addr, off):
    return ["ds_read_b64_tr_b16 %s, v%d offset:%d" % (vr(dst + 8 * blk + 4 * s + 2 * i, 2), addr, off + 4096 * s + 512 * i + 8 * blk)
            for blk in range(2) for s in range(2) for i in range(2)]


def tile_mfmas(d, A, B):
    out = []
    for s in range(2):
        for tau in range(2):
            for blk in range(2):
                out.append(mf16(d + 8 * tau + 4 * blk, A + 8 * blk + 4 * s, B + 8 * tau + 4 * s, s == 0))
    return out


KNAME = "standalone__mpnn_edge_mlp__graph_kernel"


def gen(a):
    COL, HH = V_T0, V_T0 + 1
    a.raw(".globl %s\n.p2align 8\n.type %s,@function" % (KNAME, KNAME))
    a.label(KNAME)
    a("s_cmp_ge_u32 s2, %d" % NB)
    a("s_cbranch_scc1 L_end")
    a("s_load_dwordx16 s[64:79], s[0:1], 0")
    a("s_load_dwordx2 s[80:81], s[0:1], 64")
    if DEBUG:
        a("v_mov_b32 v%d, 0" % V_ST)
        stamp(a, "start")
    DST, SRC, EV = V_N[0], V_N[0] + 8, V_N[1]
    AD, RK, O1, O2 = V_N[1] + 8, V_D[0], V_D[0] + 8, V_D[1]
    W3 = V_D[1] + 8
    DO, EO = V_D[1] + 10, V_N[1] + 4
    XA, WAD = V_D[1] + 12, V_D[1] + 14
    T16 = V_D[1] + 15
    WUD = V_N[1] + 6
    ZR = V_T[1]
    a("v_lshrrev_b32 v2, 6, v0")
    a("s_mul_i32 s40, s2, 3125")
    a("v_readfirstlane_b32 s%d, v2" % S_W)
    a("s_lshr_b32 s41, s40, 3")
    a("s_add_u32 s40, s40, 3125")
    a("s_lshr_b32 s40, s40, 3")
    a("s_sub_u32 s40, s40, s41")
    a("v_lshlrev_b32 v%d, 4, v0" % T16)
    a("s_lshl_b32 s41, s41, 5")
    a("v_add_u32 v%d, s41, v%d" % (DO, T16))
    a("s_lshl_b32 s3, s40, 4")
    a("v_add_u32 v%d, s3, v%d" % (DO + 1, DO))
    a("v_cmp_gt_u32_e64 %s, s40, v0" % sr(S_EM, 2))
    a("s_and_b32 s%d, s2, 7" % S_B)
    a("s_lshl_b32 s%d, s%d, 5" % (S_B, S_B))
    a("s_lshr_b32 s3, s2, 3")
    a("s_add_u32 s%d, s%d, s3" % (S_B, S_B))
    a("v_and_b32 v%d, 63, v0" % V_LANE)
    a("v_lshlrev_b32 v%d, 4, v%d" % (V_L16, V_LANE))
    for i in range(4):
        a("v_mov_b32 v%d, 0" % (ZR + i))
    a("v_and_b32 v2, 7, v%d" % V_LANE)
    a("v_lshrrev_b32 v3, 4, v%d" % V_LANE)
    a("v_xor_b32 v3, v2, v3")
    a("v_lshlrev_b32 v%d, 4, v3" % (V_IDX + 7))
    a("s_lshl_b32 s3, s%d, 12" % S_W)
    a("s_add_u32 s3, s3, s%d" % S_B)
    a("v_lshrrev_b32 v3, 3, v%d" % V_LANE)
    a("v_lshl_add_u32 v2, v3, 8, s3")
    a("v_xor_b32 v%d, 64, v%d" % (V_IDX + 5, V_IDX + 7))
    a("v_lshl_add_u32 v%d, v2, 7, v%d" % (XA + 1, V_IDX + 5))
    a("v_min_u32 v2, %d, v2" % (N - 1))
    a("v_lshl_add_u32 v%d, v2, 7, v%d" % (XA, V_IDX + 7))
    a("v_add_u32 v%d, %d, v%d" % (XA + 1, 2048 * 128 - 1024, XA + 1))
    a("v_and_b32 v2, 16, v%d" % V_LANE)
    a("v_lshlrev_b32 v2, 2, v2")
    a("v_xor_b32 v%d, v2, v%d" % (WUD, T16))
    a("v_xor_b32 v%d, v2, v%d" % (WAD, V_L16))
    a("s_lshl_b32 s42, s%d, 10" % S_W)
    a("s_lshl_b32 s43, s%d, 11" % S_W)
    a("s_add_u32 m0, s43, %d" % L1_X)
    a("s_add_u32 s44, s42, %d" % L1_W1)
    a("s_lshl_b32 s3, s2, 13")
    a("s_add_u32 s3, s3, %d" % WS_TAB)
    a("v_add_u32 v2, s3, v%d" % T16)
    a("s_cmp_ge_u32 s2, %d" % NCLR)
    a("s_waitcnt lgkmcnt(0)")
    a("s_cbranch_scc1 L_noclr")
    a("global_store_dwordx4 v2, %s, %s %s" % (vr(ZR, 4), sr(P_WS, 2), SC))
    a.label("L_noclr")
    a("s_cmp_lt_u32 s%d, 6" % S_W)
    a("s_cbranch_scc1 L_w7a")
    a("s_cmp_eq_u32 s%d, 7" % S_W)
    a("s_cbranch_scc1 L_w7b")
    a("global_load_lds_dwordx4 v%d, %s" % (XA, sr(P_X, 2)))
    a("s_mov_b32 m0, s44")
    a("s_nop 0")
    a("global_load_lds_dwordx4 v%d, %s offset:1024" % (WUD, sr(P_WM, 2)))
    a("s_branch L_w6b")
    a.label("L_w7a")
    a("global_load_lds_dwordx4 v%d, %s" % (XA, sr(P_X, 2)))
    a("global_load_lds_dwordx4 v%d, %s offset:1024" % (XA + 1, sr(P_X, 2)))
    a("s_mov_b32 m0, s44")
    a("s_nop 0")
    a.label("L_w6b")
    a("global_load_lds_dwordx4 v%d, %s" % (WUD, sr(P_WM, 2)))
    a.label("L_w7b")
    a("v_lshrrev_b32 v%d, 1, v%d" % (EO, DO))
    a("v_lshrrev_b32 v%d, 1, v%d" % (EO + 1, DO + 1))
    stamp(a, "issued")
    nz = (L1_X - L1_CNT) // 16
    for i in range(nz // 512):
        a("ds_write_b128 v%d, %s offset:%d" % (T16, vr(ZR, 4), L1_CNT + 8192 * i))
    a("v_cmp_gt_u32 vcc, %d, v0" % (nz % 512))
    a("v_and_b32 v%d, 31, v%d" % (COL, V_LANE))
    a("v_lshrrev_b32 v%d, 5, v%d" % (HH, V_LANE))
    a("v_and_b32 v2, 19, v%d" % COL)
    a("s_mov_b64 exec, vcc")
    a("ds_write_b128 v%d, %s offset:%d" % (T16, vr(ZR, 4), L1_CNT + 8192 * (nz // 512)))
    a("s_mov_b64 exec, -1")
    a("v_bfe_u32 v3, v%d, 2, 1" % COL)
    a("v_lshl_or_b32 v2, v3, 3, v2")
    a("v_bfe_u32 v3, v%d, 3, 1" % COL)
    a("v_lshl_or_b32 v%d, v3, 2, v2" % (V_T0 + 2))
    a("v_lshlrev_b32 v%d, 1, v%d" % (V_T0 + 5, V_T0 + 2))
    a("s_cmp_eq_u32 s%d, 7" % S_W)
    a("s_cbranch_scc1 L_w7c")
    a("s_mov_b64 exec, %s" % sr(S_EM, 2))
    a("global_load_dwordx4 %s, v%d, %s %s" % (vr(DST, 4), DO, sr(P_DST, 2), LD_IN))
    a("global_load_dwordx4 %s, v%d, %s %s" % (vr(DST + 4, 4), DO + 1, sr(P_DST, 2), LD_IN))
    a("s_mov_b64 exec, -1")
    a.label("L_w7c")
    stamp(a, "iss2")
    a("v_add_u32 v%d, 16384, v%d" % (W3, V_L16))
    a("s_mov_b32 s%d, s%d" % (S_WS, P_WS))
    a("s_mov_b32 s%d, s%d" % (S_WS + 1, P_WS + 1))
    a("s_mov_b32 s%d, %d" % (S_WS + 2, WS_SIZE))
    a("s_mov_b32 s%d, 0x00020000" % (S_WS + 3))
    a("s_add_u32 s%d, s%d, %d" % (S_X, P_WS, WS_P - 3072))
    a("s_addc_u32 s%d, s%d, 0" % (S_X + 1, P_WS + 1))
    a("s_and_b32 s%d, s%d, 0xffff" % (S_X + 1, S_X + 1))
    a("s_or_b32 s%d, s%d, 0x%x" % (S_X + 1, S_X + 1, 128 << 16))
    a("s_mov_b32 s%d, %d" % (S_X + 2, NP))
    a("s_mov_b32 s%d, 0x00020000" % (S_X + 3))
    a("s_mov_b32 s%d, s%d" % (S_OUT, P_OUT))
    a("s_mov_b32 s%d, s%d" % (S_OUT + 1, P_OUT + 1))
    a("s_mov_b32 s%d, %d" % (S_OUT + 2, N * 128))
    a("s_mov_b32 s%d, 0x00020000" % (S_OUT + 3))
    a("s_mov_b32 s%d, 0x%08x" % (S_LG, f32(-LOG2E)))
    a("s_mov_b32 s%d, 0x%08x" % (S_LG + 1, f32(-LOG2E)))
    XB, TA, QW = V_RA, V_LEN, V_YW
    PW, PR, PA = V_QA, V_NW, V_S
    TA2, PW2, XP = V_WA, V_WA + 1, V_WA + 2
    a("s_and_b32 s48, s%d, 3" % S_W)
    a("s_lshr_b32 s49, s%d, 2" % S_W)
    a("v_and_b32 v2, 15, v%d" % V_LANE)
    a("v_lshrrev_b32 v3, 4, v%d" % V_LANE)
    a("v_lshrrev_b32 v%d, 1, v2" % XB)
    a("v_xor_b32 v%d, v%d, v3" % (XB, XB))
    a("v_lshlrev_b32 v%d, 4, v%d" % (XB, XB))
    a("v_lshl_add_u32 v%d, v2, 7, v%d" % (XB, XB))
    a("s_add_u32 s3, s43, %d" % L1_X)
    a("v_add_u32 v%d, s3, v%d" % (XP, XB))
    a("v_xor_b32 v%d, 64, v%d" % (XP + 1, XP))
    a("s_lshl_b32 s3, s48, 12")
    a("s_add_u32 s3, s3, %d" % L1_X)
    a("v_add_u32 v%d, s3, v%d" % (XB, XB))
    a("v_xor_b32 v%d, 64, v%d" % (V_RC, XB))
    a("s_lshl_b32 s46, s49, 2")
    a("v_or_b32 v%d, s46, v3" % PW)
    a("v_xor_b32 v%d, v%d, v2" % (PW, PW))
    a("v_and_b32 v%d, 7, v%d" % (PW, PW))
    a("v_lshlrev_b32 v%d, 4, v%d" % (PW, PW))
    a("v_lshl_add_u32 v%d, v2, 7, v%d" % (PW, PW))
    a("s_add_u32 s45, s43, %d" % L1_P)
    a("v_add_u32 v%d, s45, v%d" % (PW, PW))
    a("v_xor_b32 v%d, 64, v%d" % (PW2, PW))
    a("s_lshl_b32 s3, s48, 5")
    a("v_add_u32 v2, s3, v2")
    a("v_cmp_gt_u32 vcc, %d, v2" % NLOC)
    a("s_lshl_b32 s3, s49, 7")
    a("s_add_u32 s3, s3, %d" % L_Q)
    a("v_lshl_add_u32 v%d, v3, 5, s3" % QW)
    a("s_mov_b64 %s, vcc" % sr(S_QM, 2))
    a("v_cmp_gt_u32 vcc, %d, v2" % (NLOC - 16))
    a("s_mov_b32 s3, %d" % RSTR)
    a("v_mad_u32_u24 v%d, v2, s3, v%d" % (QW, QW))
    a("s_mov_b64 %s, vcc" % sr(S_QM + 2, 2))
    a("v_bfe_u32 v2, v%d, 2, 2" % V_LANE)
    a("v_lshl_add_u32 v3, v3, 3, v2")
    a("v_lshrrev_b32 v2, 1, v2")
    a("v_xor_b32 v%d, s49, v2" % TA)
    a("v_lshlrev_b32 v%d, 6, v%d" % (TA, TA))
    a("v_lshl_add_u32 v%d, v3, 7, v%d" % (TA, TA))
    a("v_and_b32 v3, 3, v%d" % V_LANE)
    a("v_lshl_add_u32 v%d, v3, 4, v%d" % (TA, TA))
    a("v_add_u32 v%d, %d, v%d" % (TA, L1_W1, TA))
    a("v_xor_b32 v%d, 64, v%d" % (TA2, TA))
    a("v_lshrrev_b32 v2, 3, v%d" % V_LANE)
    a("s_lshl_b32 s3, s%d, 4" % S_W)
    a("v_add_u32 v3, s3, v2")
    a("s_mul_i32 s3, s%d, %d" % (S_B, NLOC))
    a("v_cmp_gt_u32 vcc, %d, v3" % NLOC)
    a("v_add_u32 v%d, s3, v3" % PA)
    a("s_cmp_lt_u32 s%d, 6" % S_W)
    a("s_cselect_b32 s3, 8, 0x10000")
    a("v_add_u32 v%d, s3, v%d" % (V_R, PA))
    a("v_cndmask_b32 v%d, -1, v%d, vcc" % (PA, PA))
    a("v_and_b32 v3, 0x70, v%d" % T16)
    a("v_add_u32 v%d, 3072, v3" % (PA + 1))
    a("v_mov_b32 v%d, v%d" % (V_R + 1, PA + 1))
    a("v_lshlrev_b32 v2, 4, v2")
    a("v_xor_b32 v%d, v2, v%d" % (PR, V_L16))
    a("v_add_u32 v%d, s45, v%d" % (PR, PR))
    lds_init(a, V_U)
    a("s_mov_b32 s%d, 0" % S_MODE)
    a("s_sub_u32 s3, 11, s%d" % S_W)
    a("s_cmp_lt_u32 s%d, 4" % S_W)
    a("s_cselect_b32 s%d, s%d, s3" % (S_BT, S_W))
    a("s_mul_i32 s%d, s%d, %d" % (S_XT, S_BT, XSTR))
    a("s_add_u32 s%d, s%d, %d" % (S_XT, S_XT, L_XT))
    a("s_add_u32 s%d, s%d, 4096" % (S_XT1, S_XT))
    a("s_mov_b32 s%d, 1.0" % S_ONE)
    a("s_mov_b32 s%d, 1.0" % (S_ONE + 1))
    a("s_mov_b32 s%d, %d" % (S_TO, POLLS))
    a("v_add_u32 v%d, 3072, v%d" % (V_IDX + 1, V_IDX + 7))
    a("v_add_u32 v%d, 2048, v%d" % (V_IDX + 3, V_IDX + 5))
    a("v_add_u32 v%d, 1024, v%d" % (V_IDX + 5, V_IDX + 7))
    a("v_xor_b32 v%d, 64, v%d" % (V_IDX + 7, V_IDX + 7))
    a("v_bfe_u32 v2, v%d, 1, 3" % COL)
    a("v_xor_b32 v2, v2, v%d" % HH)
    a("v_lshlrev_b32 v2, 4, v2")
    a("v_lshl_add_u32 v3, v%d, 7, s%d" % (COL, S_XT))
    for k in range(4):
        a("v_xor_b32 v%d, %d, v2" % (V_BAD + k, 32 * k))
        a("v_add_u32 v%d, v3, v%d" % (V_BAD + k, V_BAD + k))
    a("v_bfe_u32 v2, v%d, 3, 1" % (V_T0 + 2))
    a("v_xor_b32 v2, v2, v%d" % HH)
    a("v_bfe_u32 v3, v%d, 1, 2" % (V_T0 + 2))
    a("v_lshl_or_b32 v2, v2, 4, v3")
    a("v_lshrrev_b32 v3, 4, v%d" % COL)
    a("v_lshl_or_b32 v2, v3, 2, v2")
    a("v_and_b32 v3, 1, v%d" % COL)
    a("v_lshlrev_b32 v3, 4, v3")
    a("v_mov_b32 v%d, 0x3f80" % (V_T0 + 4))
    a("v_lshlrev_b32 v3, v3, v%d" % (V_T0 + 4))
    for i in range(4):
        a("v_cmp_eq_u32 vcc, %d, v2" % (2 * i))
        a("v_cmp_eq_u32_e64 s[48:49], %d, v2" % (2 * i + 1))
        a("s_nop 0")
        a("v_cndmask_b32 v%d, 0, v3, vcc" % (V_ID + 2 * i))
        a("v_cndmask_b32_e64 v%d, 0, v3, s[48:49]" % (V_ID + 2 * i + 1))
    a("v_bfe_u32 v2, v%d, 2, 2" % V_LANE)
    a("v_lshl_add_u32 v3, v%d, 3, v2" % HH)
    a("v_lshlrev_b32 v3, 7, v3")
    a("v_lshrrev_b32 v2, 1, v2")
    a("v_lshl_or_b32 v3, v2, 6, v3")
    a("v_bfe_u32 v2, v%d, 4, 1" % V_LANE)
    a("v_lshl_or_b32 v3, v2, 5, v3")
    a("v_and_b32 v2, 1, v%d" % V_LANE)
    a("v_lshl_or_b32 v3, v2, 4, v3")
    a("v_bfe_u32 v2, v%d, 1, 1" % V_LANE)
    a("v_lshl_or_b32 v3, v2, 3, v3")
    a("v_xor_b32 v2, 64, v3")
    a("v_add_u32 v%d, %d, v3" % (V_TRA, L_WA))
    a("v_add_u32 v%d, %d, v2" % (V_TRA + 1, L_WA))
    a("s_lshl_b32 s3, s%d, 7" % S_BT)
    a("s_add_u32 s3, s3, s%d" % S_XT)
    a("v_lshl_add_u32 v%d, v%d, 2, s3" % (V_T0 + 3, COL))
    def w_groups(k0, k1):
        for k in range(k0, k1):
            if X_TEST & 1:
                continue
            a("s_mov_b32 m0, %d" % ((L1_W1 if k < 2 else L1_W2 - 8192) + 4096 * k))
            a("v_add_u32 v%d, %d, v%d" % (WUD, 4096 * (k & 3), WAD))
            for i in range(4):
                a("global_load_lds_dwordx4 v%d, %s offset:%d" % (WUD, sr(P_WM if k < 4 else P_WU, 2), 1024 * i))

    TAD, UC, TP = V_IA, V_IA + 1, V_IA + 2
    a("v_lshrrev_b32 v2, 3, v0")
    a("v_lshlrev_b32 v%d, 12, v2" % TAD)
    a("v_and_b32 v2, 7, v0")
    a("v_mov_b32 v3, 0x%x" % ((16 - (1 << 23)) & 0xffffffff))
    a("v_mul_lo_u32 v2, v2, v3")
    a("v_subrev_u32 v%d, 0x%x, v2" % (UC, (1 << 23) + (1 << 31)))
    a("s_lshl_b32 s3, s2, 10")
    a("s_add_u32 s3, s3, %d" % WS_TAB)
    a("v_add_u32 v%d, s3, v%d" % (TP, V_L16))
    a("s_lshl_b32 s47, s%d, 2" % S_B)
    a("s_add_u32 s47, s47, %d" % WS_TAB)
    a("s_mov_b32 s%d, 0" % S_EXTRA)
    a("s_mul_i32 s52, s2, %d" % (CU * 16))
    a("s_or_b32 s53, s52, 0x80000000")
    a("s_mov_b32 s51, 21846")
    a("s_mov_b32 s50, %d" % NLOC)
    FLG, FA, SF = V_T[0], V_T[0] + 1, V_T[0] + 2
    a("v_lshlrev_b32 v%d, 2, v%d" % (FA, V_LANE))
    a("s_cmp_eq_u32 s%d, 7" % S_W)
    stamp(a, "setup")
    a("s_cbranch_scc1 L_w7f")
    a("s_waitcnt vmcnt(2) lgkmcnt(0)")
    a("s_barrier")
    stamp(a, "barW")
    PXF, PD, PB_ = V_B[0], V_B[1], V_B[0] + 8
    a("ds_read_b128 %s, v%d" % (vr(PXF, 4), XP))
    a("ds_read_b128 %s, v%d" % (vr(PXF + 4, 4), XP + 1))
    for x in tr_frags(V_C[0], TA, 0) + tr_frags(V_C[1], TA2, 0)[:4]:
        a(x)
    a("s_mov_b64 exec, %s" % sr(S_EM, 2))
    a("global_load_dwordx4 %s, v%d, %s %s" % (vr(SRC, 4), DO, sr(P_SRC, 2), LD_IN))
    a("global_load_dwordx4 %s, v%d, %s %s" % (vr(SRC + 4, 4), DO + 1, sr(P_SRC, 2), LD_IN))
    a("global_load_dwordx2 %s, v%d, %s %s" % (vr(EV, 2), EO, sr(P_E, 2), LD_IN))
    a("global_load_dwordx2 %s, v%d, %s %s" % (vr(EV + 2, 2), EO + 1, sr(P_E, 2), LD_IN))
    a("s_mov_b64 exec, -1")
    a("v_mov_b32 v2, 1")
    a("s_waitcnt lgkmcnt(4)")
    for x in tr_frags(V_C[1], TA2, 0)[4:]:
        a(x)
    for H in range(2):
        if H:
            a("s_waitcnt lgkmcnt(0)")
        for k in range(2):
            for blk in range(2):
                a(mf16(PD + 8 * H + 4 * blk, V_C[H] + 8 * blk + 4 * k, PXF + 4 * k, k == 0))

    def p_out():
        for H in range(2):
            for i in range(4):
                a("v_pk_mul_f32 %s, %s, %s" % (vr(PD + 8 * H + 2 * i, 2), vr(PD + 8 * H + 2 * i, 2), sr(S_LG, 2)))
            for i in range(4):
                a("v_cvt_pk_bf16_f32 v%d, v%d, v%d" % (PD + 8 * H + i, PD + 8 * H + 2 * i, PD + 8 * H + 2 * i + 1))
            a("ds_write_b128 v%d, %s" % (PW2 if H else PW, vr(PD + 8 * H, 4)))
        for i in range(2):
            a("ds_read_b128 %s, v%d offset:%d" % (vr(PB_ + 4 * i, 4), PR, 1024 * i))

    def p_stores():
        a("buffer_store_dwordx4 %s, %s, %s, 0 idxen offen %s" % (vr(PB_, 4), vr(PA, 2), sr(S_X, 4), SCP))
        a("buffer_store_dwordx4 %s, %s, %s, 0 idxen offen %s" % (vr(PB_ + 4, 4), vr(V_R, 2), sr(S_X, 4), SCP))
        stamp(a, "piss")

    if PORD == 0:
        a("s_nop 1")
        p_out()
        a("s_waitcnt lgkmcnt(0)")
        p_stores()
    a("s_mov_b64 exec, %s" % sr(S_EM, 2))
    for i in range(8):
        if i % 4 == 0:
            a("s_waitcnt vmcnt(%d)" % ((7 if PORD == 0 else 5) - i // 4))
            if i == 0:
                stamp(a, "dst")
        a("v_lshlrev_b32_sdwa v%d, 2, v%d dst_sel:DWORD dst_unused:UNUSED_PAD src0_sel:DWORD src1_sel:BYTE_0" % (AD + i, DST + i))
        a("ds_add_rtn_u32 v%d, v%d, v2 offset:%d" % (RK + i, AD + i, L1_CNT))
    a("s_mov_b64 exec, -1")
    if PORD:
        p_out()
    for i in range(8):
        a("v_lshrrev_b32 v%d, 8, v%d" % (DST + i, DST + i))
        a("v_add_u32 v%d, 1, v%d" % (DST + i, DST + i))
    for i in range(4):
        a("s_waitcnt lgkmcnt(%d)" % ((11 if PORD else 7) - i))
        a("v_mul_u32_u24 v%d, s51, v%d" % (O1 + i, RK + i))
        a("v_lshrrev_b32 v%d, 16, v%d" % (O1 + i, O1 + i))
        a("v_mad_u32_u24 v%d, v%d, 13, v%d" % (O2 + i, O1 + i, RK + i))
        a("v_add_lshl_u32 v%d, v%d, v%d, 2" % (O1 + i, O1 + i, RK + i))
    a("s_cmp_eq_u32 s%d, 6" % S_W)
    a("s_waitcnt lgkmcnt(%d)" % (4 if PORD else 0))
    a("s_barrier")
    stamp(a, "barA")
    CN = V_U
    SC_ = V_U + 4
    STV = V_U + 8
    W2F, WXF = V_C[1], V_C[0]
    QD, RD = V_B[1], V_T[1]
    XF = V_B[0]
    a("ds_read_b128 %s, v%d offset:%d" % (vr(CN, 4), V_L16, L1_CNT))
    if PORD:
        a("s_waitcnt lgkmcnt(1)")
        p_stores()
    for i in range(4, 8):
        a("v_mul_u32_u24 v%d, s51, v%d" % (O1 + i, RK + i))
        a("v_lshrrev_b32 v%d, 16, v%d" % (O1 + i, O1 + i))
    a("s_waitcnt lgkmcnt(0)")
    for i in range(4):
        a("v_add_u32 v%d, 2, v%d" % (CN + i, CN + i))
        a("v_mul_u32_u24 v%d, s51, v%d" % (CN + i, CN + i))
        a("v_lshrrev_b32 v%d, 16, v%d" % (CN + i, CN + i))
    a("v_add_u32 v%d, v%d, v%d" % (SC_, CN, CN + 1))
    a("v_add_u32 v%d, v%d, v%d" % (SC_ + 1, SC_, CN + 2))
    a("v_add_u32 v%d, v%d, v%d" % (SC_ + 2, SC_ + 1, CN + 3))
    a("v_mov_b32 v%d, v%d" % (SC_ + 3, SC_ + 2))
    dpp_scan(a, [SC_ + 3], fill=["v_mad_u32_u24 v%d, v%d, 13, v%d" % (O2 + i, O1 + i, RK + i) for i in range(4, 8)] +
             ["v_add_lshl_u32 v%d, v%d, v%d, 2" % (O1 + i, O1 + i, RK + i) for i in range(4, 8)] +
             ["v_min_u32 v%d, 255, v%d" % (V_TAB + i, CN + i) for i in range(4)])
    a("v_sub_u32 v%d, v%d, v%d" % (STV, SC_ + 3, SC_ + 2))
    a("v_add_lshl_u32 v%d, v%d, v%d, 4" % (STV + 1, STV, CN))
    a("v_add_lshl_u32 v%d, v%d, v%d, 4" % (STV + 2, STV, SC_))
    a("v_add_lshl_u32 v%d, v%d, v%d, 4" % (STV + 3, STV, SC_ + 1))
    a("v_lshlrev_b32 v%d, 4, v%d" % (STV, STV))
    a("v_readlane_b32 s54, v%d, 63" % (SC_ + 3))
    a("ds_write_b128 v%d, %s offset:%d" % (V_L16, vr(STV, 4), L1_START))
    a("s_mov_b64 exec, %s" % sr(S_EM, 2))
    for i in range(8):
        a("ds_read_b32 v%d, v%d offset:%d" % (RK + i, AD + i, L1_START))
    a("s_waitcnt vmcnt(2)")
    stamp(a, "src")
    for k in range(8):
        a("v_mul_u32_u24_sdwa v%d, v%d, s50 dst_sel:DWORD dst_unused:UNUSED_PAD src0_sel:BYTE_0 src1_sel:DWORD" % (AD + k, SRC + k))
    RE = V_T[1]
    for i in range(0, 8, 2):
        a("v_lshlrev_b32 v%d, 16, v%d" % (RE + i // 2, EV + i // 2))
    for i in range(0, 8, 2):
        a("v_add_u32_sdwa v%d, v%d, v%d dst_sel:WORD_0 dst_unused:UNUSED_PRESERVE src0_sel:DWORD src1_sel:BYTE_1" % (RE + i // 2, AD + i, SRC + i))
        a("v_add_u32_sdwa v%d, v%d, v%d dst_sel:WORD_0 dst_unused:UNUSED_PRESERVE src0_sel:DWORD src1_sel:BYTE_1" % (EV + i // 2, AD + i + 1, SRC + i + 1))
    for i in range(8):
        a("s_waitcnt lgkmcnt(%d)" % (7 + i))
        a("v_add_u32 v%d, v%d, v%d" % (O2 + i, O2 + i, RK + i))
        a("v_add_u32 v%d, v%d, v%d" % (O1 + i, O1 + i, RK + i))
        a("ds_write_b8 v%d, v%d offset:%d" % (O2 + i, DST + i, L1_STAGE + 12))
        a("ds_write_b32 v%d, v%d offset:%d" % (O1 + i, (EV if i & 1 else RE) + i // 2, L1_STAGE))
    a("s_mov_b64 exec, -1")
    a("s_cbranch_scc0 L_w7i")
    for i in range(4):
        a("v_lshl_add_u32 v%d, v%d, 23, s53" % (V_TAB + i, V_TAB + i))
        a("v_add_u32 v%d, v%d, v%d" % (V_TAB + i, V_TAB + i, STV + i))
    a("global_load_dword v%d, v%d, %s %s" % (FLG, FA, sr(P_DBG, 2), SC))
    a("s_branch L_w7i")
    a.label("L_w7f")
    a("s_mov_b32 s3, %d" % LS[0])
    lut_build(a, 3, V_C[0], L_LUT)
    a("s_mov_b32 s3, %d" % LS[1])
    lut_build(a, 3, V_C[0], L_LUT + 2048)
    a("s_lshl_b32 s3, s2, %d" % (8 - NCLR.bit_length() + 1))
    a("v_mov_b32 v2, s3")
    a("v_mov_b32 v%d, 1" % V_C[0])
    a("v_mov_b32 v%d, 1" % (V_C[0] + 1))
    a("s_cmp_ge_u32 s2, %d" % NCLR)
    a("s_waitcnt vmcnt(0) lgkmcnt(0)")
    a("s_barrier")
    a("s_cbranch_scc1 L_noflag")
    a("s_mov_b64 exec, 1")
    a("global_store_dwordx2 v2, %s, %s %s" % (vr(V_C[0], 2), sr(P_DBG, 2), SC))
    a("s_mov_b64 exec, -1")
    stamp(a, "clr")
    a.label("L_noflag")
    w_groups(2, 2 + WQ)
    a("s_barrier")
    if WSL:
        a("s_sleep %d" % WSL)
    a("s_mov_b32 m0, %d" % L_W3)
    a("s_mov_b64 exec, 0xff")
    a("global_load_lds_dwordx4 v%d, %s" % (W3, sr(P_WM, 2)))
    a("s_mov_b64 exec, -1")
    w_groups(2 + WQ, 2 + WR)
    stamp(a, "wiss")
    a("s_mov_b32 s54, 0")
    a.label("L_w7i")
    a("v_add_u32 v2, 1024, v0")
    a("v_cmp_gt_u32 vcc, s54, v2")
    a("s_add_u32 s53, s52, 8192")
    a("s_add_u32 s54, s52, 16384")
    a("s_cmp_eq_u32 s%d, 7" % S_W)
    a("s_waitcnt lgkmcnt(0)")
    a("s_barrier")
    stamp(a, "barB")
    CP = V_N[0]
    for i in range(3):
        a("ds_read_b128 %s, v%d offset:%d" % (vr(CP + 4 * i, 4), T16, L1_STAGE + 8192 * i))
    for tau in range(2):
        a("ds_read_b128 %s, v%d offset:%d" % (vr(XF + 8 * tau, 4), XB, 2048 * tau))
        a("ds_read_b128 %s, v%d offset:%d" % (vr(XF + 8 * tau + 4, 4), V_RC, 2048 * tau))
    a("s_waitcnt lgkmcnt(6)")
    a("buffer_store_dwordx4 %s, v%d, %s, s52 offen %s" % (vr(CP, 4), T16, sr(S_WS, 4), SC))
    a("s_waitcnt lgkmcnt(5)")
    a("buffer_store_dwordx4 %s, v%d, %s, s53 offen %s" % (vr(CP + 4, 4), T16, sr(S_WS, 4), SC))
    a("s_cbranch_vccz L_no3")
    a("s_waitcnt lgkmcnt(4)")
    a("s_mov_b64 exec, vcc")
    a("buffer_store_dwordx4 %s, v%d, %s, s54 offen %s" % (vr(CP + 8, 4), T16, sr(S_WS, 4), SC))
    a("s_mov_b64 exec, -1")
    a.label("L_no3")
    stamp(a, "stiss")
    if WR < 6:
        a("s_cbranch_scc0 L_pgo")
        w_groups(2 + WR, 8)
        a("s_waitcnt vmcnt(%d)" % (8 if WR <= 4 else 0))
        a("s_branch L_barC0")
        a.label("L_pgo")
    a("s_waitcnt vmcnt(0)")
    a.label("L_barC0")
    a("v_mov_b32 v%d, 0" % SF)
    a("s_mov_b32 s50, 0x807fffff")
    a("s_cmp_lg_u32 s%d, 6" % S_W)
    stamp(a, "stack")
    a("s_cbranch_scc1 L_barC")
    a.label("L_fpoll")
    a("v_cmp_ne_u32 vcc, 1, v%d" % FLG)
    a("s_cbranch_vccnz L_fagain")
    a.label("L_barC")
    a("s_barrier")
    a("s_cbranch_scc1 L_nopub")
    a("global_store_dwordx4 v%d, %s, %s %s" % (TP, vr(V_TAB, 4), sr(P_WS, 2), SC))
    a.label("L_nopub")
    stamp(a, "barC")
    TABV = V_D[0]

    def tab_loads():
        for p in range(4):
            a("buffer_load_dword v%d, v%d, %s, s47 offen offset:%d %s" % (TABV + p, TAD, sr(S_WS, 4), 1024 * p, SC))

    def qr_out(D, off):
        for tau in range(2):
            for i in range(4):
                a("v_pk_mul_f32 %s, %s, %s" % (vr(D + 8 * tau + 2 * i, 2), vr(D + 8 * tau + 2 * i, 2), sr(S_LG, 2)))
            a("s_mov_b64 exec, %s" % sr(S_QM + 2 * tau, 2))
            for blk in range(2):
                a("ds_write_b128 v%d, %s offset:%d" % (QW, vr(D + 8 * tau + 4 * blk, 4), off + 16 * RSTR * tau + 16 * blk))
            a("s_mov_b64 exec, -1")

    tab_loads()
    for x in tr_frags(W2F, TA, L1_W2 - L1_W1):
        a(x)
    a("ds_read_u16 v%d, v%d offset:%d" % (W3, V_T0 + 5, L_W3))
    a("ds_read_u16 v%d, v%d offset:%d" % (W3 + 1, V_T0 + 5, L_W3 + 64))
    a("ds_read_b32 v%d, v%d offset:%d" % (SF, SF, F_SLOW))
    a("v_cmp_eq_u32 vcc, 0, v%d" % HH)
    a("v_mov_b32 v%d, 0" % (V_AE + 1))
    a("v_mov_b32 v%d, 0" % (V_AE + 2))
    a("v_mov_b32 v%d, 0" % (V_AE + 5))
    a("v_mov_b32 v%d, 0" % (V_AE + 6))
    a("s_waitcnt lgkmcnt(3)")
    for x in tr_frags(WXF, TA, L1_WX - L1_W1):
        a(x)
    for x in tile_mfmas(QD, W2F, XF):
        a(x)
    a("s_waitcnt lgkmcnt(0)")
    for x in tile_mfmas(RD, WXF, XF):
        a(x)
    qr_out(QD, 0)
    for X in range(2):
        a("v_lshlrev_b32 v2, 16, v%d" % (W3 + X))
        a("v_mul_f32 v2, s%d, v2" % S_LG)
        a("v_cvt_pk_bf16_f32 v3, v%d, v2" % (V_AE + 1))
        a("v_sub_f32 v2, v2, v3")
        a("v_cvt_pk_bf16_f32 v2, v%d, v2" % (V_AE + 1))
        a("v_cndmask_b32 v%d, v2, v3, vcc" % (V_AE + 4 * X))
        a("v_cndmask_b32 v%d, v2, v3, vcc" % (V_AE + 4 * X + 3))
    qr_out(RD, L_R - L_Q)
    stamp(a, "qr")
    a("v_cmp_lt_u32 vcc, 3, v%d" % SF)
    a("s_cbranch_vccnz L2_build")
    a("s_branch L_tcheck")
    a.label("L_tpoll_again")
    a("s_sub_u32 s%d, s%d, 1" % (S_TO, S_TO))
    a("s_cbranch_scc1 L_timeout")
    if SLEEP:
        a("s_sleep %d" % SLEEP)
    tab_loads()
    a.label("L_tcheck")
    a("s_waitcnt vmcnt(0)")
    a("v_max3_i32 v3, v%d, v%d, v%d" % (TABV, TABV + 1, TABV + 2))
    a("v_max_i32 v3, v3, v%d" % (TABV + 3))
    a("v_cmp_le_i32 vcc, 0, v3")
    a("s_cbranch_vccnz L_tpoll_again")
    stamp(a, "tab")
    RC = V_N[0]
    RT = V_T[0]
    ADR = V_T[0] + 12
    for p in range(4):
        a("v_add_u32 v%d, v%d, v%d" % (TABV + p, TABV + p, UC))
    a("v_cmp_le_u32 vcc, 0x%x, v3" % ((9 << 23) | (1 << 31)))
    a("s_cbranch_vccz L2_noextra")
    a("s_mov_b32 s%d, 1" % S_EXTRA)
    a("v_cmp_le_u32 vcc, 0x%x, v3" % ((17 << 23) | (1 << 31)))
    a("s_cbranch_vccz L2_noflag")
    a("s_mov_b32 s%d, 3" % S_EXTRA)
    a.label("L2_noflag")
    for p in range(4):
        a("v_add_u32 v3, 0x%x, v%d" % ((128 - (8 << 23)) & 0xffffffff, TABV + p))
        a("v_and_b32 v3, s50, v3")
        a("buffer_load_dwordx4 %s, v3, %s, 0 offen %s" % (vr(RC + 16 + 4 * p, 4), sr(S_WS, 4), SC))
    a.label("L2_noextra")
    for p in range(4):
        a("v_and_b32 v%d, s50, v%d" % (TABV + p, TABV + p))
        a("buffer_load_dwordx4 %s, v%d, %s, 0 offen %s" % (vr(RC + 4 * p, 4), TABV + p, sr(S_WS, 4), SC))
    a("v_mov_b32 v2, 4")

    def p1(rc, k):
        for i in range(3):
            a("v_lshlrev_b32_sdwa v%d, 2, v%d dst_sel:DWORD dst_unused:UNUSED_PAD src0_sel:DWORD src1_sel:BYTE_%d" % (ADR + k + i, rc + 3, i))
        for i in range(3):
            a("v_cmpx_ne_u32 vcc, 0, v%d" % (ADR + k + i))
            a("ds_add_rtn_u32 v%d, v%d, v2 offset:%d" % (RT + k + i, ADR + k + i, L_CNT))
        a("s_mov_b64 exec, -1")

    def p2(rc, k):
        for i in range(3):
            a("v_cmpx_ne_u32 vcc, 0, v%d" % (ADR + k + i))
            a("ds_write_b32 v%d, v%d" % (RT + k + i, rc + i))
        a("s_mov_b64 exec, -1")

    a("s_cmp_eq_u32 s%d, 0" % S_EXTRA)
    a("s_cbranch_scc1 L2_pl")
    a("s_waitcnt vmcnt(%d)" % (4 + NPF))
    for p in range(4):
        p1(RC + 16 + 4 * p, 3 * p)
    a("v_mov_b32 v3, s%d" % S_EXTRA)
    a("v_mov_b32 v%d, %d" % (V_U, F_SLOW))
    a("ds_or_b32 v%d, v3" % V_U)
    a("s_waitcnt lgkmcnt(0)")
    for p in range(4):
        p2(RC + 16 + 4 * p, 3 * p)
    a.label("L2_pl")
    a("s_waitcnt vmcnt(%d)" % (3 + NPF))
    stamp(a, "rec0")
    p1(RC, 0)
    a("s_waitcnt vmcnt(%d)" % (2 + NPF))
    p1(RC + 4, 3)
    a("s_waitcnt vmcnt(%d) lgkmcnt(0)" % (1 + NPF))
    p1(RC + 8, 6)
    p2(RC, 0)
    p2(RC + 4, 3)
    a("s_waitcnt vmcnt(%d)" % NPF)
    p1(RC + 12, 9)
    a("s_waitcnt lgkmcnt(0)")
    p2(RC + 8, 6)
    p2(RC + 12, 9)
    stamp(a, "placed")

    a.label("L2_build")
    L4, RB0, NC0, NC1 = V_U, V_U + 1, V_U + 2, V_U + 3
    C0, C1, FL = V_U + 4, V_U + 5, V_U + 6
    P0 = V_U + 8
    O0 = V_U + 10
    E0, E1 = V_N[0], V_N[0] + 8
    a("v_lshlrev_b32 v%d, 2, v%d" % (L4, V_LANE))
    a("s_mov_b32 s3, %d" % SSTR)
    a("v_mov_b32 v%d, %d" % (RB0, L_SLOT - 4))
    a("v_mad_u32_u24 v%d, v%d, s3, v%d" % (RB0, V_LANE, RB0))
    a("v_lshlrev_b32 v%d, 25, v%d" % (NC0, V_LANE))
    a("v_add3_u32 v%d, v%d, v%d, 4" % (NC0, NC0, RB0))
    a("v_add_u32 v%d, 0x%x, v%d" % (NC1, (64 << 25) + 64 * SSTR, NC0))
    a("s_cmp_lt_u32 s%d, %d" % (S_B, N - 97 * 256))
    a("s_cselect_b32 s%d, 3, 1" % (S_HI + 1))
    a("s_mov_b32 s%d, -1" % S_HI)
    a("s_mov_b32 s%d, 0" % S_LI)
    a("s_mov_b32 s%d, 0" % S_SAFE)
    a("v_mov_b32 v%d, %d" % (O0, L_SLOT + 98 * SSTR))
    a("s_lshl_b32 s3, s%d, 6" % S_W)
    a("v_and_b32 v3, 60, v%d" % L4)
    a("v_add_u32 v%d, s3, v3" % (V_T0 + 2))
    a("v_mov_b32 v2, 0x%x" % (127 << 25))
    a("ds_write_b32 v%d, v2 offset:%d" % (V_T0 + 2, L_NL))
    a("v_mov_b32 v%d, 0" % FL)
    a("v_add_u32 v3, %d, v%d" % (64 * SSTR, RB0))
    a("s_mov_b32 s42, 0x100401")
    a("s_waitcnt lgkmcnt(0)")
    a("s_barrier")
    stamp(a, "barD")
    a("ds_read_b32 v%d, v%d offset:%d" % (C0, L4, L_CNT + 4))
    a("ds_read_b32 v%d, v%d offset:%d" % (C1, L4, L_CNT + 4 + 256))
    a("ds_read_b32 v%d, v%d offset:%d" % (FL, FL, F_SLOW))
    a("ds_write_b32 v%d, v%d" % (V_T0 + 3, O0))
    a("s_waitcnt lgkmcnt(2)")
    a("v_sub_u32 v%d, v%d, v%d" % (C0, C0, RB0))
    a("v_sub_u32 v%d, v%d, v3" % (C1, C1))
    a("v_lshlrev_b32 v%d, 3, v%d" % (C0, C0))
    a("v_lshlrev_b32 v%d, 3, v%d" % (C1, C1))

    def lut_reads(off):
        a("ds_read_b128 %s, v%d offset:%d" % (vr(E0 + 4, 4), C0, off + 16))
        a("ds_read_b128 %s, v%d offset:%d" % (vr(E1 + 4, 4), C1, off + 16))
        a("ds_read_b128 %s, v%d offset:%d" % (vr(E0, 4), C0, off))
        a("ds_read_b128 %s, v%d offset:%d" % (vr(E1, 4), C1, off))

    lut_reads(L_LUT)
    a("v_max_u32 v2, v%d, v%d" % (C0, C1))
    a("v_cmp_lt_u32 vcc, %d, v2" % (32 * (DMAX + 1)))
    a("s_waitcnt lgkmcnt(4)")
    a("v_cmp_lt_u32_e64 s[40:41], 1, v%d" % FL)
    a("s_or_b64 vcc, vcc, s[40:41]")
    a("s_cbranch_vccnz L2_slow")
    a.label("L2_scan")
    a("s_waitcnt lgkmcnt(2)")
    a("v_add_u32 v%d, v%d, v%d" % (O0, E0 + 4, E1 + 4))
    a("v_add_u32 v%d, v%d, v%d" % (O0 + 1, E0 + 5, E1 + 5))
    a("v_mov_b32 v%d, v%d" % (P0, O0))
    a("v_mov_b32 v%d, v%d" % (P0 + 1, O0 + 1))
    a("s_waitcnt lgkmcnt(0)")
    dpp_scan(a, [P0, P0 + 1], fill=["v_add_u32 v%d, v%d, v%d" % (E0 + i, E0 + i, NC0) for i in range(4)] +
             ["v_add_u32 v%d, v%d, v%d" % (E1 + i, E1 + i, NC1) for i in range(4)])
    a("v_readlane_b32 s44, v%d, 63" % P0)
    a("v_readlane_b32 s45, v%d, 63" % (P0 + 1))
    a("v_sub_u32 v%d, v%d, v%d" % (P0, P0, O0))
    a("v_sub_u32 v%d, v%d, v%d" % (P0 + 1, P0 + 1, O0 + 1))
    a("s_mul_i32 s44, s44, s42")
    a("s_mul_i32 s45, s45, s42")
    a("s_bfe_u32 s46, s44, 0x%x" % ((10 << 16) | 20))
    a("s_bfe_u32 s47, s45, 0x%x" % ((10 << 16) | 20))
    a("s_lshl_b32 s44, s44, 10")
    a("s_lshl_b32 s45, s45, 10")
    a("s_add_u32 s47, s47, s46")
    a("s_mul_i32 s46, s46, s42")
    a("v_add_u32 v%d, s44, v%d" % (P0, P0))
    a("s_add_u32 s45, s45, s46")
    a("s_cmp_gt_u32 s47, 256")
    a("s_cbranch_scc1 L2_retry")
    a("v_add_u32 v%d, s45, v%d" % (P0 + 1, P0 + 1))
    a("v_lshrrev_b64 %s, v%d, %s" % (vr(O0, 2), E0 + 6, vr(P0, 2)))
    a("v_add_u32 v%d, v%d, v%d" % (P0, P0, E0 + 4))
    a("v_add_u32 v%d, v%d, v%d" % (P0 + 1, P0 + 1, E0 + 5))
    a("v_and_b32 v2, 0x1ff, v%d" % O0)
    a("v_lshrrev_b64 %s, v%d, %s" % (vr(O0, 2), E1 + 6, vr(P0, 2)))
    a("v_lshl_add_u32 v2, v2, 2, s%d" % S_XT)
    a("ds_write2_b32 v2, v%d, v%d offset0:2 offset1:3" % (E0 + 2, E0 + 3))
    a("v_and_b32 v3, 0x1ff, v%d" % O0)
    a("v_lshl_add_u32 v3, v3, 2, s%d" % S_XT)
    a("s_mov_b64 exec, %s" % sr(S_HI, 2))
    a("ds_write2_b32 v3, v%d, v%d offset0:2 offset1:3" % (E1 + 2, E1 + 3))
    a("ds_write2_b32 v3, v%d, v%d offset0:0 offset1:1" % (E1, E1 + 1))
    a("s_mov_b64 exec, -1")
    a("ds_write2_b32 v2, v%d, v%d offset0:0 offset1:1" % (E0, E0 + 1))
    a("s_lshl_b32 s3, s%d, 7" % S_BT)
    a("s_add_u32 s3, s3, s%d" % S_XT)
    a("v_lshrrev_b32 v2, 3, v%d" % V_LANE)
    a("v_lshl_add_u32 v2, v2, 2, s3")
    for i in range(4):
        a("ds_read_u16 v%d, v2 offset:%d" % (V_IA + i, 32 * i))
    a("ds_read_b32 v%d, v%d" % (V_W, V_T0 + 3))
    a("s_mov_b32 s%d, %d" % (S_X + 2, NP))
    a(dma_m0(0))
    a("s_mov_b32 s3, %d" % RSTR)
    a("v_lshlrev_b32 v3, 5, v%d" % HH)
    a("s_waitcnt lgkmcnt(1)")
    for x in idx_reads(0):
        a(x)
    a("s_waitcnt lgkmcnt(4)")
    a("v_and_b32 v%d, 0xffff, v%d" % (V_RA, V_W))
    a("v_bfe_u32 v%d, v%d, 16, 6" % (V_LEN, V_W))
    a("v_lshrrev_b32 v2, 25, v%d" % V_W)
    a("v_mad_u32_u24 v%d, v2, s3, v3" % V_QA)
    a("v_add_u32 v%d, %d, v%d" % (V_QA, L_Q, V_QA))
    d = dma_loads()
    for i in range(4):
        a("s_waitcnt lgkmcnt(%d)" % (3 - i))
        a(d[i])
    stamp(a, "dma0")
    for x in idx_reads(4):
        a(x)
    a("ds_read2_b32 %s, v%d offset0:0 offset1:1" % (vr(V_R, 2), V_RA))
    for x in row_reads(V_C, V_QA):
        a(x)
    KF = V_T0 + 4
    a("v_bfe_u32 v%d, v%d, 22, 3" % (KF, V_W))
    a("v_mov_b32 v%d, v%d" % (V_T0 + 5, V_LEN))
    a("v_cmp_ne_u32 vcc, 0, v%d" % KF)
    a("v_add_u32 v2, %d, v%d" % (L_R - L_Q, V_QA))
    a("v_add_u32 v%d, %d, v3" % (V_RC, L_ZERO))
    a("v_cndmask_b32 v%d, v%d, v2, vcc" % (V_RC, V_RC))
    a("v_mbcnt_lo_u32_b32 v2, vcc_lo, 0")
    a("s_lshl_b32 s40, s%d, 6" % S_W)
    a("v_lshl_add_u32 v2, v2, 2, s40")
    a("s_mov_b32 s41, 0xffc00000")
    a("v_and_or_b32 v%d, v%d, s41, v%d" % (V_NW, V_W, COL))
    a(dma_m0(1))
    a("s_waitcnt lgkmcnt(9)")
    for x in dma_loads():
        a(x)
    for x in idx_reads(8):
        a(x)
    a("s_mov_b32 exec_lo, vcc_lo")
    a("s_mov_b32 exec_hi, 0")
    a("ds_write_b32 v2, v%d offset:%d" % (V_NW, L_NL))
    a("s_mov_b64 exec, -1")
    a("v_and_b32 v2, 60, v%d" % V_LANE)
    a("v_add_u32 v2, s40, v2")
    a("ds_read_b32 v%d, v2 offset:%d" % (V_NW, L_NL))
    a("v_add_u32 v2, v%d, v%d" % (KF, COL))
    a("v_cmp_lt_u32 vcc, 32, v2")
    a("v_mad_u32_u24 v%d, v%d, s3, v3" % (V_YW, COL))
    a("v_add_u32 v%d, s%d, v%d" % (V_YW, S_XT, V_YW))
    a("s_cmp_lg_u64 vcc, 0")
    a("s_cselect_b32 s%d, 1, 0" % S_NEED)
    a("s_cmp_lg_u32 s%d, 7" % S_BT)
    a("s_cselect_b32 s%d, s%d, 0" % (S_NEED, S_NEED))
    dpp_scan(a, [V_T0 + 5], op="v_max_u32", fill=[
        "v_cmp_lt_u32_e64 %s, 0, v%d" % (sr(S_M0, 2), V_LEN),
        "v_cmp_lt_u32_e64 %s, 1, v%d" % (sr(S_M[1], 2), V_LEN),
        "v_mov_b32 v%d, 0" % V_S, "v_mov_b32 v%d, 0" % (V_S + 1)])
    a("s_nop 0")
    a("v_readlane_b32 s%d, v%d, 63" % (S_ML, V_T0 + 5))
    a("s_mov_b32 s%d, 1" % S_J)
    a("s_waitcnt vmcnt(4)")
    for x in b_reads(0):
        a(x)
    a("s_max_u32 s%d, s%d, 2" % (S_ML, S_ML))
    a("s_cmp_gt_u32 s%d, 2" % S_ML)
    a("s_cselect_b32 s%d, %d, 0" % (S_X + 2, NP))
    a(dma_m0(0))
    mf = mfma_chain(0, 0, V_N[0])
    a("s_waitcnt lgkmcnt(4)")
    a(mf[0])
    a("s_waitcnt lgkmcnt(0)")
    a(mf[1])
    a(mf[2])
    for x in dma_loads():
        a(x)
    stamp(a, "loop")
    a("s_nop 6")
    me(a, mfma_chain(1, 0, V_N[1]), exps(V_N[0]))
    a("s_waitcnt vmcnt(4)")
    for x in b_reads(1) + idx_reads(12) + pk_first(0):
        a(x)
    a("s_cmp_gt_u32 s%d, 3" % S_ML)
    a("s_cselect_b32 s%d, %d, 0" % (S_X + 2, NP))
    a(dma_m0(1))
    a("s_waitcnt lgkmcnt(0)")
    me(a, mfma_chain(0, 1, V_T[0]), exps(V_N[1]))
    for x in dma_loads():
        a(x)
    for x in pk_first(1):
        a(x)
    a.raw(".p2align 6")
    a.label("L2_loop")
    for par in (1, 0):
        me(a, mfma_chain(1, par, V_T[1]), exps(V_T[0]))
        a("s_add_u32 s%d, s%d, 1" % (S_J, S_J))
        a("s_waitcnt vmcnt(4)")
        for x in b_reads(par + 1) + idx_reads(16 if par else 20):
            a(x)
        if par == 1:
            a("ds_read2_b32 %s, v%d offset0:2 offset1:3" % (vr(V_R, 2), V_RA))
        a("s_cmp_ge_u32 s%d, s%d" % (S_J, S_ML))
        a("s_mov_b64 exec, %s" % sr(S_M[par], 2))
        for x in pk_update(0):
            a(x)
        a("s_cbranch_scc1 L2_last")
        a("s_mov_b64 exec, -1")
        a("s_add_u32 s%d, s%d, 2" % (S_T, S_J))
        a("s_cmp_lt_u32 s%d, s%d" % (S_T, S_ML))
        a("s_cselect_b32 s%d, %d, 0" % (S_X + 2, NP))
        a(dma_m0(par ^ 1))
        a("s_waitcnt lgkmcnt(0)")
        extra = ["v_cmp_lt_u32_e64 %s, s%d, v%d" % (sr(S_M[par ^ 1], 2), S_J, V_LEN)]
        if par == 0:
            extra += ["v_add_u32 v%d, 8, v%d" % (V_IA + i, V_IA + i) for i in range(4)] + ["v_add_u32 v%d, 8, v%d" % (V_RA, V_RA)]
        me(a, mfma_chain(0, par ^ 1, V_T[0]), exps(V_T[1]), extra)
        for x in dma_loads():
            a(x)
        a("s_mov_b64 exec, %s" % sr(S_M[par], 2))
        for x in pk_update(1):
            a(x)
        a("s_mov_b64 exec, -1")
    a("s_branch L2_loop")

    a.label("L2_last")
    a("s_mov_b64 %s, exec" % sr(S_T + 2, 2))
    a("s_mov_b64 exec, -1")
    a("s_waitcnt lgkmcnt(0)")
    stamp(a, "last")
    for x in row_reads(V_C, V_RC) + exps(V_T[1]) + wa_reads()[:7]:
        a(x)
    a("s_mov_b64 exec, %s" % sr(S_T + 2, 2))
    for x in pk_update(1):
        a(x)
    a("s_mov_b64 exec, -1")
    for x in wa_reads()[7:]:
        a(x)
    a.label("L2_final")
    PB = V_B[0]
    a("s_not_b64 exec, %s" % sr(S_M0, 2))
    a("s_cbranch_execz L2_nz")
    for i in range(16):
        a("v_mov_b32 v%d, 0" % (PB + i))
    a.label("L2_nz")
    a("s_mov_b64 exec, %s" % sr(S_M0, 2))

    def fin(X):
        n, d, t = V_N[X], V_D[X], V_T[X]
        r = ["v_rcp_f32 v%d, v%d" % (t + i, d + i) for i in range(16)]
        s = ["v_pk_fma_f32 %s, %s, %s, %s" % (vr(V_S, 2), vr(d + 4 * i, 2), vr(d + 4 * i + 2, 2), vr(V_S, 2)) for i in range(4)]
        m = ["v_pk_mul_f32 %s, %s, %s" % (vr(t + 2 * i, 2), vr(t + 2 * i, 2), vr(n + 2 * i, 2)) for i in range(8)]
        c = ["v_cvt_pk_bf16_f32 v%d, v%d, v%d" % (PB + 8 * X + i, t + 2 * i, t + 2 * i + 1) for i in range(8)]
        return r, [s[0], m[0], m[1], s[1], m[2], m[3], s[2], m[4], m[5], s[3], m[6], m[7]] + c

    def ymf(o, q):
        return "v_mfma_f32_32x32x16_bf16 %s, %s, %s, %s" % (vr(V_C[o], 16), vr(wa_reg(o, q), 4), vr(PB + 4 * q, 4), vr(V_C[o], 16))

    r, p = fin(0)
    for x in r + p:
        a(x)
    r, p = fin(1)
    a("s_waitcnt vmcnt(0) lgkmcnt(0)")
    a(r[0])
    phase(a, [ymf(0, 0), ymf(1, 0), ymf(0, 1), ymf(1, 1)], r[1:])
    for x in p:
        a(x)
    a("s_nop 1")
    for x in (ymf(0, 2), ymf(1, 2), ymf(0, 3), ymf(1, 3)):
        a(x)
    a("v_mov_b32 v2, 0x%08x" % f32(2.0 ** 120))
    a("v_add_f32 v3, v%d, v%d" % (V_S, V_S + 1))
    a("s_movk_i32 s40, 0x207")
    a("v_cmp_nlt_f32 vcc, v3, v2")
    a("s_mov_b64 exec, -1")
    YR, OA, KK = V_T0 + 2, V_T0 + 4, V_T0 + 5
    a("s_mov_b32 s3, %d" % RSTR)
    a("v_and_b32 v2, 3, v%d" % V_LANE)
    a("v_and_b32 v3, 0xff, v%d" % V_NW)
    a("v_lshl_add_u32 v%d, v2, 5, s%d" % (YR, S_XT))
    a("v_mad_u32_u24 v%d, v3, s3, v%d" % (YR, YR))
    a("v_lshrrev_b32 v3, 25, v%d" % V_NW)
    a("v_lshl_add_u32 v%d, v3, 8, s%d" % (OA, S_B))
    a("v_lshlrev_b32 v%d, 7, v%d" % (OA, OA))
    a("v_lshl_add_u32 v%d, v2, 4, v%d" % (OA, OA))
    a("v_bfe_u32 v%d, v%d, 22, 3" % (KK, V_NW))
    a("v_cmp_class_f32_e64 s[42:43], v%d, s40" % V_C[1])
    a("s_lshl_b32 s41, s%d, 2" % S_BT)
    a("s_and_b64 s[42:43], s[42:43], %s" % sr(S_M0, 2))
    a("s_or_b64 vcc, vcc, s[42:43]")
    a("s_cselect_b32 s42, 1, 0")
    a("s_andn2_b32 s42, s42, s%d" % S_SAFE)
    a("s_cbranch_scc1 L2_safe")
    for X in range(2):
        for q in range(4):
            a("ds_write_b128 v%d, %s offset:%d" % (V_YW, vr(V_C[X] + 4 * q, 4), row_off(X, q)))
    a("v_mov_b32 v2, s41")
    a("v_mov_b32 v3, 1")
    a("v_cmp_lt_u32_e64 s[44:45], 2, v%d" % KK)
    a("v_cmp_lt_u32_e64 s[46:47], 3, v%d" % KK)
    a("s_waitcnt lgkmcnt(0)")
    a("ds_write_b32 v2, v3 offset:%d" % L_FLAG)
    a("s_cmp_eq_u32 s%d, 0" % S_NEED)
    a("s_cbranch_scc1 L2_nowait")
    a.label("L2_poll")
    a("ds_read_b32 v3, v2 offset:%d" % (L_FLAG + 4))
    a("s_waitcnt lgkmcnt(0)")
    a("v_cmp_eq_u32 vcc, 0, v3")
    a("s_cbranch_vccnz L2_poll")
    a.label("L2_nowait")
    stamp(a, "ywait")
    Y = [V_N[0], V_N[1], V_D[0], V_D[1]]

    def yreads(i):
        for c in range(4):
            a("ds_read_b128 %s, v%d offset:%d" % (vr(Y[i] + 4 * c, 4), YR, RSTR * i + 128 * (c >> 1) + 16 * (c & 1)))

    def yadd(i):
        for c in range(8):
            a("v_pk_add_f32 %s, %s, %s" % (vr(Y[0] + 2 * c, 2), vr(Y[0] + 2 * c, 2), vr(Y[i] + 2 * c, 2)))

    yreads(0)
    yreads(1)
    yreads(2)
    a("s_mov_b32 s40, 0x%08x" % f32(-LN2))
    a("s_mov_b32 s41, 0x%08x" % f32(-LN2))
    a("s_cmp_eq_u64 s[46:47], 0")
    a("s_cbranch_scc1 L2_no4")
    yreads(3)
    a("s_waitcnt lgkmcnt(0)")
    a("s_mov_b64 exec, s[46:47]")
    yadd(3)
    a("s_mov_b64 exec, -1")
    a.label("L2_no4")
    a("s_waitcnt lgkmcnt(4)")
    yadd(1)
    a("s_waitcnt lgkmcnt(0)")
    a("s_mov_b64 exec, s[44:45]")
    yadd(2)
    a("s_mov_b64 exec, -1")
    a("s_cmp_eq_u32 s%d, 1" % S_MODE)
    a("s_cbranch_scc1 L2_writeback")
    U = V_U
    for i in range(16):
        a("v_exp_f32 v%d, v%d" % (U + i, Y[0] + i))
    for i in range(8):
        a("v_pk_add_f32 %s, %s, %s" % (vr(U + 2 * i, 2), vr(U + 2 * i, 2), sr(S_ONE, 2)))
    for i in range(16):
        a("v_rcp_f32 v%d, v%d" % (U + i, U + i))
    for i in range(8):
        a("v_pk_mul_f32 %s, %s, s[40:41]" % (vr(Y[0] + 2 * i, 2), vr(Y[0] + 2 * i, 2)))
    for i in range(8):
        a("v_pk_mul_f32 %s, %s, %s" % (vr(U + 2 * i, 2), vr(U + 2 * i, 2), vr(Y[0] + 2 * i, 2)))
    P = V_B[1]
    for i in range(4):
        a("v_cvt_pk_bf16_f32 v%d, v%d, v%d" % (P + i, U + 2 * i, U + 2 * i + 1))
    a("buffer_store_dwordx4 %s, v%d, %s, 0 offen" % (vr(P, 4), OA, sr(S_OUT, 4)))
    for i in range(4, 8):
        a("v_cvt_pk_bf16_f32 v%d, v%d, v%d" % (P + i, U + 2 * i, U + 2 * i + 1))
    a("buffer_store_dwordx4 %s, v%d, %s, 0 offen offset:64" % (vr(P + 4, 4), OA, sr(S_OUT, 4)))
    stamp_out(a)
    a.label("L_end")
    a("s_endpgm")

    a.label("L_fagain")
    a("s_sleep 1")
    a("global_load_dword v%d, v%d, %s %s" % (FLG, FA, sr(P_DBG, 2), SC))
    a("s_sub_u32 s%d, s%d, 1" % (S_TO, S_TO))
    a("s_waitcnt vmcnt(0)")
    a("s_cbranch_scc0 L_fpoll")
    a("v_mov_b32 v3, 6")
    a("v_mov_b32 v2, %d" % F_SLOW)
    a("ds_or_b32 v2, v3")
    a("s_waitcnt lgkmcnt(0)")
    a("s_branch L_barC")
    a.label("L_timeout")
    a("v_mov_b32 v3, 6")
    a("v_mov_b32 v2, %d" % F_SLOW)
    a("ds_or_b32 v2, v3")
    a("s_branch L2_build")

    a.label("L2_retry")
    a("s_add_u32 s%d, s%d, 1" % (S_LI, S_LI))
    a("s_cmp_eq_u32 s%d, 1" % S_LI)
    a("s_cbranch_scc1 L2_retry1")
    a("s_barrier")
    a("s_cmp_eq_u32 s%d, 2" % S_LI)
    a("s_cselect_b32 s3, %d, %d" % (LS[2], LS[3]))
    lut_build(a, 3, V_T[0], L_LUT + 2048)
    a.label("L2_retry1")
    lut_reads(L_LUT + 2048)
    a("s_branch L2_scan")

    a.label("L2_safe")
    a("s_mov_b32 s%d, 1" % S_SAFE)
    a("s_mov_b32 s%d, %d" % (S_X + 2, NP))
    a("s_nop 7")
    for x in row_reads(V_C, V_QA):
        a(x)
    a("v_and_b32 v2, 0xffff, v%d" % V_W)
    a("v_sub_u32 v2, v%d, v2" % V_RA)
    for i in range(4):
        a("v_sub_u32 v%d, v%d, v2" % (V_IA + i, V_IA + i))
    a("v_sub_u32 v%d, v%d, v2" % (V_RA, V_RA))
    for i in range(32):
        a("v_mov_b32 v%d, 0" % (V_N[0] + i))
        a("v_mov_b32 v%d, 1.0" % (V_D[0] + i))
    a("v_mov_b32 v%d, 0x%x" % (V_R + 1, PAD))
    a("s_mov_b32 s%d, 0" % S_J)
    a.label("L2_safe_loop")
    for x in idx_reads(0):
        a(x)
    a("ds_read_b32 v%d, v%d" % (V_R, V_RA))
    a("s_waitcnt lgkmcnt(0)")
    dma_plain(a, 0)
    a("v_cmp_lt_u32_e64 %s, s%d, v%d" % (sr(S_M[0], 2), S_J, V_LEN))
    for i in range(4):
        a("v_add_u32 v%d, 4, v%d" % (V_IA + i, V_IA + i))
    a("v_add_u32 v%d, 4, v%d" % (V_RA, V_RA))
    a("s_waitcnt vmcnt(0)")
    for x in b_reads(0):
        a(x)
    a("s_waitcnt lgkmcnt(0)")
    for x in mfma_chain(0, 0, V_T[0]) + mfma_chain(1, 0, V_T[1]):
        a(x)
    a("s_nop 7")
    a("s_nop 3")
    a("s_mov_b64 exec, %s" % sr(S_M[0], 2))
    for X in range(2):
        for x in exps(V_T[X]):
            a(x)
        for i in range(8):
            a("v_pk_add_f32 %s, %s, %s" % (vr(U + 2 * i, 2), vr(U + 2 * i, 2), sr(S_ONE, 2)))
        for i in range(16):
            a("v_rcp_f32 v%d, v%d" % (U + i, U + i))
        for i in range(8):
            a("v_pk_fma_f32 %s, %s, %s, %s" % (vr(V_N[X] + 2 * i, 2), vr(V_T[X] + 2 * i, 2), vr(U + 2 * i, 2), vr(V_N[X] + 2 * i, 2)))
    a("s_mov_b64 exec, -1")
    a("s_add_u32 s%d, s%d, 1" % (S_J, S_J))
    a("s_cmp_lt_u32 s%d, s%d" % (S_J, S_ML))
    a("s_cbranch_scc1 L2_safe_loop")
    for x in row_reads(V_C, V_RC):
        a(x)
    a("s_branch L2_final")

    a.label("L2_slow")
    a("s_mov_b32 s%d, 1" % S_MODE)
    a("s_mov_b32 s%d, 0" % S_POS)
    a("v_mov_b32 v%d, 0" % V_DONE)
    a("v_cmp_gt_u32 vcc, 4, v%d" % FL)
    a("s_waitcnt vmcnt(0) lgkmcnt(0)")
    a("s_cbranch_vccnz L2_slow_round")
    a("s_barrier")
    t = V_U
    a("v_and_b32 v2, 16, v%d" % V_LANE)
    a("v_lshlrev_b32 v2, 2, v2")
    a("v_xor_b32 v2, v2, v%d" % V_L16)
    a("s_lshl_b32 s3, s%d, 10" % S_W)
    a("v_add_u32 v2, s3, v2")
    a("s_add_u32 m0, s3, %d" % L1_W1)
    a("v_lshrrev_b32 v3, 4, v%d" % V_LANE)
    a("global_load_lds_dwordx4 v2, %s" % sr(P_WM, 2))
    a("v_bfe_u32 v2, v%d, 2, 2" % V_LANE)
    a("v_lshl_add_u32 v%d, v3, 3, v2" % t)
    a("v_lshlrev_b32 v%d, 7, v%d" % (t, t))
    a("v_lshrrev_b32 v2, 1, v2")
    a("v_lshl_or_b32 v%d, v2, 6, v%d" % (t, t))
    a("v_and_b32 v2, 3, v%d" % V_LANE)
    a("v_lshl_or_b32 v%d, v2, 4, v%d" % (t, t))
    a("v_xor_b32 v%d, 64, v%d" % (t + 1, t))
    a("v_add_u32 v%d, %d, v%d" % (t, L1_W1, t))
    a("v_add_u32 v%d, %d, v%d" % (t + 1, L1_W1, t + 1))
    a("v_and_b32 v2, 15, v%d" % V_LANE)
    a("s_lshl_b32 s3, s%d, 4" % S_W)
    a("v_add_u32 v%d, s3, v2" % (t + 2))
    a("v_lshlrev_b32 v%d, 4, v3" % (t + 4))
    a("v_add_u32 v%d, 3072, v%d" % (t + 7, t + 4))
    a("s_mov_b32 s%d, %d" % (S_X + 2, NP))
    a("s_waitcnt vmcnt(0)")
    a("s_barrier")
    for x in tr_frags(V_C[0], t, 0):
        a(x)
    a("s_waitcnt lgkmcnt(0)")
    for x in tr_frags(V_C[1], t + 1, 0):
        a(x)
    a("s_mov_b32 s3, %d" % ((N + 127) // 128))
    a.label("L_allp")
    a("v_min_u32 v2, %d, v%d" % (N - 1, t + 2))
    a("v_lshl_add_u32 v2, v2, 7, v%d" % (t + 4))
    a("global_load_dwordx4 %s, v2, %s" % (vr(V_B[0], 4), sr(P_X, 2)))
    a("global_load_dwordx4 %s, v2, %s offset:64" % (vr(V_B[0] + 4, 4), sr(P_X, 2)))
    a("v_and_b32 v2, 255, v%d" % (t + 2))
    a("v_lshrrev_b32 v%d, 8, v%d" % (t + 6, t + 2))
    a("v_mul_u32_u24 v2, %d, v2" % NLOC)
    a("v_add_u32 v%d, v2, v%d" % (t + 6, t + 6))
    a("s_waitcnt vmcnt(0) lgkmcnt(0)")
    for s in range(2):
        for H in range(2):
            for blk in range(2):
                a(mf16(V_T[0] + 8 * H + 4 * blk, V_C[H] + 8 * blk + 4 * s, V_B[0] + 4 * s, s == 0))
    a("s_nop 7")
    for i in range(8):
        a("v_pk_mul_f32 %s, %s, %s" % (vr(V_T[0] + 2 * i, 2), vr(V_T[0] + 2 * i, 2), sr(S_LG, 2)))
    for i in range(8):
        a("v_cvt_pk_bf16_f32 v%d, v%d, v%d" % (V_T[1] + i, V_T[0] + 2 * i, V_T[0] + 2 * i + 1))
    a("buffer_store_dwordx4 %s, %s, %s, 0 idxen offen %s" % (vr(V_T[1], 4), vr(t + 6, 2), sr(S_X, 4), SC))
    a("buffer_store_dwordx4 %s, %s, %s, 0 idxen offen offset:64 %s" % (vr(V_T[1] + 4, 4), vr(t + 6, 2), sr(S_X, 4), SC))
    a("v_add_u32 v%d, 128, v%d" % (t + 2, t + 2))
    a("s_sub_u32 s3, s3, 1")
    a("s_cmp_lg_u32 s3, 0")
    a("s_cbranch_scc1 L_allp")
    a("s_waitcnt vmcnt(0)")
    a("s_branch L2_slow_round")
    a.label("L2_writeback")
    a("v_cmp_ne_u32 vcc, 0, v%d" % KK)
    a("v_lshrrev_b32 v3, 25, v%d" % V_NW)
    a("v_and_b32 v2, 3, v%d" % V_LANE)
    a("v_lshlrev_b32 v2, 5, v2")
    a("v_mad_u32_u24 v2, v3, s3, v2")
    a("v_add_u32 v2, %d, v2" % L_R)
    a("s_mov_b64 exec, vcc")
    for c in range(4):
        a("ds_write_b128 v2, %s offset:%d" % (vr(Y[0] + 4 * c, 4), 128 * (c >> 1) + 16 * (c & 1)))
    a("s_mov_b64 exec, -1")
    a("s_waitcnt lgkmcnt(0)")
    a.label("L2_slow_round")
    a("s_barrier")
    lds_init(a, V_U)
    a("s_waitcnt lgkmcnt(0)")
    a("s_barrier")
    a.label("L2_slow_step")
    a("s_cmp_lt_u32 s%d, %d" % (S_POS, E))
    a("s_cbranch_scc1 L2_slow_go")
    a("s_mov_b32 s%d, 2" % S_MODE)
    a("s_branch L2_build")
    a.label("L2_slow_go")
    a("v_add_u32 v2, s%d, v0" % S_POS)
    a("v_cmp_gt_u32 vcc, %d, v2" % E)
    a("v_min_u32 v2, %d, v2" % (E - 1))
    a("v_lshlrev_b32 v3, 1, v2")
    a("v_lshlrev_b32 v2, 2, v2")
    a("global_load_dword v%d, v2, %s" % (t, sr(P_DST, 2)))
    a("global_load_dword v%d, v2, %s" % (t + 1, sr(P_SRC, 2)))
    a("global_load_ushort v%d, v3, %s" % (t + 2, sr(P_E, 2)))
    a("v_cmp_eq_u32_e64 s[40:41], 0, v%d" % V_DONE)
    a("s_and_b64 s[40:41], s[40:41], vcc")
    a("s_mov_b32 s3, %d" % SSTR)
    a("v_mov_b32 v%d, %d" % (t + 4, L_SLOT + 4 * DMAX))
    a("v_mov_b32 v2, 4")
    a("s_waitcnt vmcnt(0)")
    a("v_and_b32 v3, 255, v%d" % t)
    a("v_cmp_eq_u32 vcc, s%d, v3" % S_B)
    a("v_lshrrev_b32 v3, 8, v%d" % t)
    a("v_mad_u32_u24 v%d, v3, s3, v%d" % (t + 4, t + 4))
    a("v_lshlrev_b32 v3, 2, v3")
    a("v_and_b32 v%d, 255, v%d" % (t + 5, t + 1))
    a("v_lshrrev_b32 v%d, 8, v%d" % (t + 1, t + 1))
    a("v_mul_u32_u24 v%d, %d, v%d" % (t + 5, NLOC, t + 5))
    a("v_add_u32 v%d, v%d, v%d" % (t + 1, t + 1, t + 5))
    a("v_lshl_or_b32 v%d, v%d, 16, v%d" % (t + 1, t + 2, t + 1))
    a("s_and_b64 exec, vcc, s[40:41]")
    a("ds_add_rtn_u32 v%d, v3, v2 offset:%d" % (t + 3, L_CNT + 4))
    a("s_waitcnt lgkmcnt(0)")
    a("v_cmp_lt_u32 vcc, v%d, v%d" % (t + 3, t + 4))
    a("s_andn2_b64 s[40:41], exec, vcc")
    a("s_mov_b64 exec, vcc")
    a("ds_write_b32 v%d, v%d" % (t + 3, t + 1))
    a("v_mov_b32 v%d, 1" % V_DONE)
    a("s_mov_b64 exec, s[40:41]")
    a("v_mov_b32 v%d, %d" % (t + 5, F_PEND))
    a("ds_write_b32 v%d, v2" % (t + 5))
    a("s_mov_b64 exec, -1")
    a("s_waitcnt lgkmcnt(0)")
    a("s_barrier")
    a("s_mov_b64 exec, s[40:41]")
    a("ds_min_u32 v3, v%d offset:%d" % (t + 4, L_CNT + 4))
    a("s_mov_b64 exec, -1")
    a("v_mov_b32 v%d, %d" % (t + 5, F_PEND))
    a("ds_read_b32 v%d, v%d" % (t + 5, t + 5))
    a("s_waitcnt lgkmcnt(0)")
    a("v_cmp_ne_u32 vcc, 0, v%d" % (t + 5))
    a("s_cbranch_vccnz L2_build")
    a("s_barrier")
    a("s_add_u32 s%d, s%d, 512" % (S_POS, S_POS))
    a("v_mov_b32 v%d, 0" % V_DONE)
    a("s_branch L2_slow_step")


def kd(name, vgpr, sgpr):
    return """.amdhsa_kernel %s
  .amdhsa_next_free_vgpr %d
  .amdhsa_next_free_sgpr %d
  .amdhsa_accum_offset %d
  .amdhsa_group_segment_fixed_size 0
  .amdhsa_kernarg_size 72
  .amdhsa_user_sgpr_count 2
  .amdhsa_user_sgpr_kernarg_segment_ptr 1
  .amdhsa_system_sgpr_workgroup_id_x 1
  .amdhsa_float_denorm_mode_32 3
.end_amdhsa_kernel
""" % (name, vgpr, sgpr, (vgpr + 3) // 4 * 4)


HEADER = """; Kernarg layout for this problem (72 bytes, ptrs only, base s[0:1]):
; Generated by dev/gen3.py (hand-written generator).
"""


def main():
    a = Asm()
    a.raw(HEADER.rstrip())
    a.raw("; @launch grid=(%d,1,1) block=(512,1,1) lds=%d" % (NB, LDS_SIZE))
    a.raw('.amdgcn_target "amdgcn-amd-amdhsa--gfx950"')
    a.raw(".text")
    gen(a)
    a.raw('.section .rodata,"a"')
    a.raw(".p2align 6")
    a.raw(kd(KNAME, 256, 96))
    out = sys.argv[1] if len(sys.argv) > 1 else "standalone__mpnn_edge_mlp__graph.s"
    txt = a.text()
    if DEBUG:
        txt = txt.replace("; Generated by", "; STAMPS " + " ".join(STAMP_NAMES) + "\n; Generated by")
    open(out, "w").write(txt)
    print("wrote", out, "LDS", LDS_SIZE)


if __name__ == "__main__":
    main()
```

```python
import struct, sys, os


def env(name, d):
    return int(os.environ.get(name, str(d)), 0)


DEBUG = env('DEBUG', 0)
X_TIMEOUT = env('X_TIMEOUT', 0)
POLLS = X_TIMEOUT if X_TIMEOUT else 20000
NPF = 1
PADS = env('PADS', 1)
PADA = [int(x, 0) for x in os.environ.get('PADA', '0x600 0xa00 0x1000 0x1500 0x1a00 0x2000 0x2600 0x2b00').split()]
SLEEP = env('SLEEP', 1)
X_NOPST = env('X_NOPST', 0)
X_TEST = env('X_TEST', 0)
SDEL = env('SDEL', 1)
CDEL = env('CDEL', 0)
WSL = env('WSL', 0)
WR = env('WR', 8)
WQ = env('WQ', 0)
NCLR = 32
LD_IN = os.environ.get('LD_IN', '')
SC = os.environ.get('SC', 'sc1')
SCP = os.environ.get('SCP', 'sc1')
SCG = os.environ.get('SCG', 'sc1')

N = 25000
E = 800000
NB = 256
NLOC = 98
NP = NB * NLOC
CU = 1216
DMAX = 62

WS_REC = 0
WS_TAB = 0x500000
WS_PT = 0x540000
WS_P = 0x580000
WS_SIZE = 0x580000
WS_DBG = 0xA00000
LS = (16, 17, 18, 32)
assert NB * CU * 16 <= WS_TAB

LOG2E = 1.4426950408889634
LN2 = 0.6931471805599453


def f32(x):
    return struct.unpack("<I", struct.pack("<f", x))[0]


class Asm:
    def __init__(self):
        self.l = []
        self.auto = 0
        self.n = 0

    def __call__(self, s):
        for x in s.split("\n"):
            x = x.strip()
            if x:
                self.l.append("    " + x)
                if self.auto:
                    self.n += 1
                    if self.n % self.auto == 0:
                        k, self.auto = self.auto, 0
                        stamp(self, "a%d" % self.n, True)
                        self.auto = k

    def label(self, s):
        self.l.append(s + ":")

    def raw(self, s):
        self.l.append(s)

    def text(self):
        return "\n".join(self.l) + "\n"


def vr(a, n):
    return "v[%d:%d]" % (a, a + n - 1)


def sr(a, n):
    return "s[%d:%d]" % (a, a + n - 1)


DPP_STEPS = ["row_shr:1 row_mask:0xf", "row_shr:2 row_mask:0xf", "row_shr:4 row_mask:0xf", "row_shr:8 row_mask:0xf",
             "row_bcast:15 row_mask:0xa", "row_bcast:31 row_mask:0xc"]


def dpp_scan(a, regs, op="v_add_u32", fill=()):
    fill = list(fill)
    for st in DPP_STEPS:
        n = 3 - len(regs)
        while n > 0 and fill:
            a(fill.pop(0))
            n -= 1
        if n > 0:
            a("s_nop %d" % (n - 1))
        for v in regs:
            a("%s_dpp v%d, v%d, v%d %s bank_mask:0xf" % (op, v, v, v, st))
    for x in fill:
        a(x)


RSTR = 272
SSTR = 260
L_CNT = 0
L_FLAG = 544
L_ZERO = 608
L_ZEND = 880
L_W3 = 896
L_NL = 1136
L_LUT = 2048
L_SLOT = L_LUT + 4096
L_SEND = L_SLOT + (99 * SSTR + 160 + 15) // 16 * 16
L_XT = (L_SEND + 255) // 256 * 256
XSTR = 32 * RSTR
L_WA = L_XT + 8 * XSTR
L_Q = L_WA + 8192
L_R = (L_Q + NLOC * RSTR + 127) // 128 * 128
LDS_SIZE = L_R + NLOC * RSTR
L1_CNT = L_XT
L1_START = L1_CNT + 1024
L1_STAGE = L1_START + 1024
L1_X = L1_STAGE + CU * 16
L1_WX = L_WA - 8192
L1_W2 = L1_WX - 8192
L1_W1 = L1_W2 - 8192
L1_P = L1_STAGE
assert L1_X + 16384 <= L1_W1 and L1_W1 % 128 == 0 and L1_P % 128 == 0 and L1_P + 16384 <= LDS_SIZE
assert (L1_X - L1_CNT) == 3 * 448 * 16
assert L1_X < 65536 and L1_X % 128 == 0
assert L_NL + 512 <= L_LUT
assert L_SEND < 65536 - 256
assert LDS_SIZE <= 163840, LDS_SIZE
PAD = 0x7F00
F_SLOW = L_FLAG + 40
F_PEND = L_FLAG + 44
F_PCNT = L_FLAG + 48

V_LANE = 1
V_BAD = 4
V_IA = 8
V_RA = 12
V_LEN = 13
V_S = 14
V_IDX = 16
V_R = 24
V_YW = 26
V_RC = 27
V_QA = 28
V_NW = 29
V_L16 = 30
V_W = 31
V_T0 = 32
V_PF = 38
V_DONE = 39
V_AE = 40
V_ID = 48
V_WA = 56
V_TRA = 72
V_ST = 74
V_TAB = 76
V_C = (80, 96)
V_T = (112, 128)
V_N = (144, 160)
V_D = (176, 192)
V_U = 208
V_B = (224, 240)

S_X = 4
S_WS = 8
S_OUT = 12
S_B = 16
S_W = 17
S_BT = 18
S_XT = 19
S_ML = 20
S_J = 21
S_ONE = 22
S_M = (24, 26)
S_M0 = 28
S_MODE = 30
S_SAFE = 31
S_HI = 32
S_NEED = 34
S_LI = 35
S_EXTRA = 36
S_XT1 = 37
S_POS = 38
S_TO = 39
S_T = 40
S_EM = 56
S_LG = 58
S_QM = 60
S_PCK = 82
S_ST = 83
P_X, P_E, P_SRC, P_DST, P_WM, P_WU, P_OUT, P_DBG, P_WS = 64, 66, 68, 70, 72, 74, 76, 78, 80


def mfma_chain(X, j, dst):
    B = V_B[j & 1]
    out = ["v_mfma_f32_32x32x8_bf16 %s, %s, %s, %s" % (
        vr(dst, 16), vr(V_AE + 4 * X + 2 * (j & 1), 2), vr(V_R, 2), vr(V_C[X], 16))]
    for k in range(2):
        out.append("v_mfma_f32_32x32x16_bf16 %s, %s, %s, %s" % (
            vr(dst, 16), vr(V_ID + 4 * k, 4), vr(B + 8 * X + 4 * k, 4), vr(dst, 16)))
    return out


def exps(src):
    return ["v_exp_f32 v%d, v%d" % (V_U + i, src + i) for i in range(16)]


def pk_first(X):
    return ["v_pk_add_f32 %s, %s, %s" % (vr(V_D[X] + 2 * i, 2), vr(V_U + 2 * i, 2), sr(S_ONE, 2)) for i in range(8)]


def pk_update(X):
    n, d, u, t = V_N[X], V_D[X], V_U, V_T[X]
    A = ["v_pk_fma_f32 %s, %s, %s, %s" % (vr(n + 2 * i, 2), vr(n + 2 * i, 2), vr(u + 2 * i, 2), vr(n + 2 * i, 2)) for i in range(8)]
    B = ["v_pk_fma_f32 %s, %s, %s, %s" % (vr(n + 2 * i, 2), vr(t + 2 * i, 2), vr(d + 2 * i, 2), vr(n + 2 * i, 2)) for i in range(8)]
    C = ["v_pk_fma_f32 %s, %s, %s, %s" % (vr(d + 2 * i, 2), vr(d + 2 * i, 2), vr(u + 2 * i, 2), vr(d + 2 * i, 2)) for i in range(8)]
    return A + B + C


def phase(a, mf, ex):
    mf = list(mf)
    for i, e in enumerate(ex):
        if i % 3 == 0 and mf:
            a(mf.pop(0))
        a(e)
    assert not mf


def b_reads(tile):
    return ["ds_read_b128 %s, v%d offset:%d" % (vr(V_B[tile & 1] + 4 * k, 4), V_BAD + k, 4096 * (tile & 1)) for k in range(4)]


def idx_reads(off):
    return ["ds_read_u16 v%d, v%d offset:%d" % (V_IDX + 2 * i, V_IA + i, off) for i in range(4)]


def dma_m0(slot):
    return "s_mov_b32 m0, s%d" % (S_XT1 if slot else S_XT)


def dma_loads():
    return ["buffer_load_dwordx4 %s, %s, 0 idxen offen offset:%d %s lds" % (vr(V_IDX + 2 * i, 2), sr(S_X, 4), 1024 * i, SCG) for i in range(4)]


def dma_plain(a, slot):
    a(dma_m0(slot))
    a("s_nop 0")
    for x in dma_loads():
        a(x)


def row_off(X, q):
    return 128 * X + 64 * (q >> 1) + 16 * (q & 1)


def row_reads(dst, addr):
    return ["ds_read_b128 %s, v%d offset:%d" % (vr(dst[X] + 4 * q, 4), addr, row_off(X, q)) for X in range(2) for q in range(4)]


def wa_reg(o, q):
    return (V_WA if o == 0 else V_B[1]) + 4 * q


def wa_reads():
    return ["ds_read_b64_tr_b16 %s, v%d offset:%d" % (vr(wa_reg(o, q) + 2 * i, 2), V_TRA + o, 2048 * q + 512 * i)
            for q in range(4) for o in range(2) for i in range(2)]


NSTAMP = [0]
STAMP_NAMES = []


def stamp(a, name, auto=False):
    if DEBUG == 2 and not auto and name not in ("start", "barW", "barA", "barB", "end"):
        return
    if name in os.environ.get("NOST", "issued iss2 dst stiss piss rec0 placed dma0 ywait xiss").split():
        return
    if DEBUG:
        au, a.auto = a.auto, 0
        k = len(STAMP_NAMES)
        STAMP_NAMES.append(name)
        cyc = name in ("start", "loop", "last", "end")
        if cyc:
            a("s_memtime s[88:89]")
        a("s_memrealtime s[90:91]")
        a("s_waitcnt lgkmcnt(0)")
        if cyc:
            a("v_writelane_b32 v%d, s88, %d" % (V_ST, k))
        a("v_writelane_b32 v%d, s90, %d" % (V_ST, 32 + k))
        a.auto = au


def stamp_out(a):
    if DEBUG:
        a("s_mov_b64 exec, -1")
        a("s_waitcnt vmcnt(0)")
        stamp(a, "end")
        a("v_lshlrev_b32 v2, 2, v0")
        a("s_lshl_b32 s3, s2, 11")
        a("s_add_u32 s3, s3, %d" % WS_DBG)
        a("v_add_u32 v2, s3, v2")
        a("global_store_dword v2, v%d, %s" % (V_ST, sr(P_WS, 2)))


def lds_init(a, t):
    a("v_mov_b32 v%d, 0x%x" % (t, PAD))
    a("v_mov_b32 v%d, 0x%x" % (t + 1, PAD))
    a("v_mov_b32 v%d, 0x%x" % (t + 2, PAD))
    a("v_mov_b32 v%d, 0x%x" % (t + 3, PAD))
    a("v_lshlrev_b32 v%d, 4, v0" % (t + 4))
    n = (L_SEND - L_SLOT) // 16
    for i in range(n // 512):
        a("ds_write_b128 v%d, %s offset:%d" % (t + 4, vr(t, 4), L_SLOT + 8192 * i))
    a("v_cmp_gt_u32 vcc, %d, v0" % (n % 512))
    a("v_lshlrev_b32 v%d, 2, v0" % (t + 5))
    a("s_mov_b32 s%d, %d" % (S_T, SSTR))
    a("v_mov_b32 v%d, %d" % (t + 6, L_SLOT - SSTR))
    a("s_mov_b64 exec, vcc")
    a("ds_write_b128 v%d, %s offset:%d" % (t + 4, vr(t, 4), L_SLOT + 8192 * (n // 512)))
    a("s_mov_b64 exec, -1")
    a("v_mad_u32_u24 v%d, v0, s%d, v%d" % (t + 6, S_T, t + 6))
    a("s_cmp_lt_u32 s%d, %d" % (S_B, N - 97 * 256))
    a("s_addc_u32 s%d, %d, 0" % (S_T, NLOC - 1))
    a("v_cmp_lt_u32 vcc, s%d, v0" % S_T)
    a("v_subrev_u32 v%d, 4, v%d" % (t + 7, t + 6))
    a("v_mov_b32 v%d, %d" % (t + 4, L_FLAG // 4))
    a("v_cndmask_b32 v%d, v%d, v%d, vcc" % (t + 6, t + 6, t + 7))
    a("v_cmp_gt_u32 vcc, v%d, v0" % (t + 4))
    a("v_mov_b32 v%d, %d" % (t + 4, L_ZEND // 4))
    a("v_mov_b32 v%d, 0" % (t + 7))
    a("v_cndmask_b32 v%d, v%d, v%d, vcc" % (t + 6, t + 7, t + 6))
    a("v_cmp_gt_u32 vcc, v%d, v0" % (t + 4))
    a("s_mov_b64 exec, vcc")
    a("ds_write_b32 v%d, v%d" % (t + 5, t + 6))
    a("s_mov_b64 exec, -1")


def lut_build(a, sL, t, off, sbase=None):
    s1, s2, sm = S_T + 8, S_T + 9, S_T + 10
    d, k, m, ln, acc, x, y = t, t + 1, t + 2, t + 3, t + 4, t + 5, t + 6
    k64 = t + 8
    o = t + 12
    a("s_lshl_b32 s%d, s%d, 1" % (s1, sL))
    a("s_add_u32 s%d, s%d, s%d" % (s2, s1, sL))
    a("v_subrev_u32 v%d, 1, v%d" % (d, V_LANE))
    a("v_max_i32 v%d, 0, v%d" % (d, d))
    a("v_cmp_lt_u32 vcc, s%d, v%d" % (s1, d))
    a("v_cmp_lt_u32_e64 %s, s%d, v%d" % (sr(sm, 2), s2, d))
    a("v_mov_b32 v%d, 2" % k)
    a("v_mov_b32 v%d, 32768" % m)
    a("v_mov_b32 v%d, 21846" % ln)
    a("v_cndmask_b32_e64 v%d, v%d, 3, vcc" % (k, k))
    a("v_cndmask_b32 v%d, v%d, v%d, vcc" % (m, m, ln))
    a("v_mov_b32 v%d, 16384" % ln)
    a("v_cndmask_b32_e64 v%d, v%d, 4, %s" % (k, k, sr(sm, 2)))
    a("v_cndmask_b32_e64 v%d, v%d, v%d, %s" % (m, m, ln, sr(sm, 2)))
    a("v_add3_u32 v%d, v%d, v%d, -1" % (ln, d, k))
    a("v_mul_u32_u24 v%d, v%d, v%d" % (ln, ln, m))
    a("v_lshrrev_b32 v%d, 16, v%d" % (ln, ln))
    a("v_mov_b32 v%d, 0" % acc)
    for i in range(4):
        a("v_min_u32 v%d, v%d, v%d" % (x, acc, d))
        a("v_sub_u32 v%d, v%d, v%d" % (y, d, x))
        a("v_min_u32 v%d, v%d, v%d" % (y, y, ln))
        a("v_lshlrev_b32 v%d, 2, v%d" % (x, x))
        a("v_lshl_or_b32 v%d, v%d, 16, v%d" % (o + i, y, x))
        a("v_add_u32 v%d, v%d, v%d" % (acc, acc, ln))
    a("v_lshl_or_b32 v%d, v%d, 22, v%d" % (o, k, o))
    a("v_sub_u32 v%d, s%d, v%d" % (acc, sL, ln))
    a("v_min_u32 v%d, 5, v%d" % (acc, acc))
    a("v_mul_u32_u24 v%d, 10, v%d" % (o + 6, acc))
    a("v_cmp_le_u32 vcc, 3, v%d" % acc)
    a("v_add_u32 v%d, 2, v%d" % (x, o + 6))
    a("v_mov_b32 v%d, v%d" % (k64, k))
    a("v_mov_b32 v%d, 0" % (k64 + 1))
    a("v_cndmask_b32 v%d, v%d, v%d, vcc" % (o + 6, o + 6, x))
    a("v_cmp_ne_u32 vcc, 0, v%d" % V_LANE)
    a("v_lshlrev_b64 %s, v%d, %s" % (vr(o + 4, 2), o + 6, vr(k64, 2)))
    a("v_mov_b32 v%d, 0" % (o + 7))
    a("v_cndmask_b32 v%d, v%d, v%d, vcc" % (o + 4, k64 + 1, o + 4))
    a("v_cndmask_b32 v%d, v%d, v%d, vcc" % (o + 5, k64 + 1, o + 5))
    if sbase is None:
        a("v_lshlrev_b32 v%d, 5, v%d" % (x, V_LANE))
    else:
        a("v_lshl_add_u32 v%d, v%d, 5, s%d" % (x, V_LANE, sbase))
    a("ds_write_b128 v%d, %s offset:%d" % (x, vr(o, 4), off))
    a("ds_write_b128 v%d, %s offset:%d" % (x, vr(o + 4, 4), off + 16))


PAT = os.environ.get('PAT', "MeeeeMeeeMeeeeeeeee")


def me(a, mf, ex, extra=(), pat=PAT):
    mf = list(mf)
    ex = list(ex)
    for c in pat:
        if c == "M":
            if mf:
                a(mf.pop(0))
        else:
            a(ex.pop(0))
    assert not mf and not ex
    for x in extra:
        a(x)


def mf16(d, A, B, first):
    return "v_mfma_f32_16x16x32_bf16 %s, %s, %s, %s" % (vr(d, 4), vr(A, 4), vr(B, 4), "0" if first else vr(d, 4))


def tr_frags(dst, addr, off):
    return ["ds_read_b64_tr_b16 %s, v%d offset:%d" % (vr(dst + 8 * blk + 4 * s + 2 * i, 2), addr, off + 4096 * s + 512 * i + 8 * blk)
            for blk in range(2) for s in range(2) for i in range(2)]


def tile_mfmas(d, A, B):
    out = []
    for s in range(2):
        for tau in range(2):
            for blk in range(2):
                out.append(mf16(d + 8 * tau + 4 * blk, A + 8 * blk + 4 * s, B + 8 * tau + 4 * s, s == 0))
    return out


KNAME = "standalone__mpnn_edge_mlp__graph_kernel"


def gen(a):
    COL, HH = V_T0, V_T0 + 1
    a.raw(".globl %s\n.p2align 12\n.type %s,@function" % (KNAME, KNAME))
    a.label(KNAME)
    a("s_cmp_ge_u32 s2, %d" % NB)
    a("s_cbranch_scc1 L_end")
    a("s_load_dwordx16 s[64:79], s[0:1], 0")
    a("s_load_dwordx2 s[80:81], s[0:1], 64")
    if DEBUG:
        a("v_mov_b32 v%d, 0" % V_ST)
        stamp(a, "start")
        if DEBUG == 2:
            a.auto = env('AUTO', 24)
    DST, SRC, EV = V_N[0], V_N[0] + 8, V_N[1]
    AD, RK, O1, O2 = V_N[1] + 8, V_D[0], V_D[0] + 8, V_D[1]
    W3 = V_D[1] + 8
    DO, EO = V_D[1] + 10, V_N[1] + 4
    XA, WAD = V_D[1] + 12, V_D[1] + 14
    T16 = V_D[1] + 15
    WUD = V_N[1] + 6
    ZR = V_T[1]
    a("v_lshrrev_b32 v2, 6, v0")
    a("s_mul_i32 s40, s2, 3125")
    a("v_readfirstlane_b32 s%d, v2" % S_W)
    a("s_lshr_b32 s41, s40, 3")
    a("s_add_u32 s40, s40, 3125")
    a("s_lshr_b32 s40, s40, 3")
    a("s_sub_u32 s40, s40, s41")
    if PADS:
        a("s_cmp_eq_u32 s%d, 7" % S_W)
        a("s_cbranch_scc1 L_touch")
        a.label("L_back7")
    a("v_lshlrev_b32 v%d, 4, v0" % T16)
    a("s_lshl_b32 s41, s41, 5")
    a("v_add_u32 v%d, s41, v%d" % (DO, T16))
    a("s_lshl_b32 s3, s40, 4")
    a("v_add_u32 v%d, s3, v%d" % (DO + 1, DO))
    a("v_cmp_gt_u32_e64 %s, s40, v0" % sr(S_EM, 2))
    for i in range(4):
        a("v_mov_b32 v%d, 0" % (ZR + i))
    a("v_lshrrev_b32 v%d, 1, v%d" % (EO, DO))
    a("v_lshrrev_b32 v%d, 1, v%d" % (EO + 1, DO + 1))
    a("v_and_b32 v%d, 63, v0" % V_LANE)
    a("v_lshlrev_b32 v%d, 4, v%d" % (V_L16, V_LANE))
    a("s_cmp_eq_u32 s%d, 7" % S_W)
    a("s_waitcnt lgkmcnt(0)")
    a("s_cbranch_scc1 L_clr")
    a("s_mov_b64 exec, %s" % sr(S_EM, 2))
    a("global_load_dwordx4 %s, v%d, %s %s" % (vr(DST, 4), DO, sr(P_DST, 2), LD_IN))
    a("global_load_dwordx4 %s, v%d, %s %s" % (vr(DST + 4, 4), DO + 1, sr(P_DST, 2), LD_IN))
    a("s_mov_b64 exec, -1")
    stamp(a, "issued")
    for i in range(3):
        a("ds_write_b128 v%d, %s offset:%d" % (T16, vr(ZR, 4), L1_CNT + 7168 * i))
    if SDEL:
        a("s_sleep %d" % SDEL)
    a("s_mov_b64 exec, %s" % sr(S_EM, 2))
    a("global_load_dwordx4 %s, v%d, %s %s" % (vr(SRC, 4), DO, sr(P_SRC, 2), LD_IN))
    a("global_load_dwordx4 %s, v%d, %s %s" % (vr(SRC + 4, 4), DO + 1, sr(P_SRC, 2), LD_IN))
    a("global_load_dwordx2 %s, v%d, %s %s" % (vr(EV, 2), EO, sr(P_E, 2), LD_IN))
    a("global_load_dwordx2 %s, v%d, %s %s" % (vr(EV + 2, 2), EO + 1, sr(P_E, 2), LD_IN))
    a("s_mov_b64 exec, -1")
    stamp(a, "iss2")
    a("s_branch L_setup")
    if PADS:
        a.label("L_touch")

        def tree(lo, n, bit):
            if n == 1:
                a("s_branch L_pad%d" % (lo % len(PADA)))
                return
            a("s_bitcmp1_b32 s2, %d" % bit)
            if n == 2:
                a("s_cbranch_scc1 L_pad%d" % ((lo + 1) % len(PADA)))
                tree(lo, 1, 0)
                return
            a("s_cbranch_scc1 L_tr%d_%d" % (lo + n // 2, n // 2))
            tree(lo, n // 2, bit + 1)
            a.label("L_tr%d_%d" % (lo + n // 2, n // 2))
            tree(lo + n // 2, n // 2, bit + 1)

        tree(0, 8 if len(PADA) <= 8 else 16, 3)
    a.label("L_clr")
    a("s_cmp_ge_u32 s2, %d" % NCLR)
    a("s_cbranch_scc1 L_setup")
    if CDEL:
        a("s_sleep %d" % CDEL)
    a("s_lshl_b32 s3, s2, 13")
    a("s_add_u32 s3, s3, %d" % (WS_TAB + 4096))
    a("v_add_u32 v2, s3, v%d" % V_L16)
    a("s_lshl_b32 s3, s2, 7")
    a("s_add_u32 s3, s3, %d" % WS_PT)
    a("v_add_u32 v3, s3, v%d" % V_L16)
    for i in range(8):
        a("global_store_dwordx4 v2, %s, %s offset:%d %s" % (vr(ZR, 4), sr(P_WS, 2), 1024 * i - 4096, SC))
    a("s_mov_b64 exec, 0xff")
    a("global_store_dwordx4 v3, %s, %s %s" % (vr(ZR, 4), sr(P_WS, 2), SC))
    a("s_mov_b64 exec, -1")
    a.label("L_setup")
    a("s_and_b32 s%d, s2, 7" % S_B)
    a("s_lshl_b32 s%d, s%d, 5" % (S_B, S_B))
    a("s_lshr_b32 s3, s2, 3")
    a("s_add_u32 s%d, s%d, s3" % (S_B, S_B))
    a("s_lshl_b32 s43, s%d, 11" % S_W)
    a("v_and_b32 v2, 7, v%d" % V_LANE)
    a("v_lshrrev_b32 v3, 4, v%d" % V_LANE)
    a("v_xor_b32 v3, v2, v3")
    a("v_lshlrev_b32 v%d, 4, v3" % (V_IDX + 7))
    a("v_xor_b32 v%d, 64, v%d" % (V_IDX + 5, V_IDX + 7))
    a("v_and_b32 v%d, 31, v%d" % (COL, V_LANE))
    a("v_lshrrev_b32 v%d, 5, v%d" % (HH, V_LANE))
    a("v_and_b32 v2, 19, v%d" % COL)
    a("v_bfe_u32 v3, v%d, 2, 1" % COL)
    a("v_lshl_or_b32 v2, v3, 3, v2")
    a("v_bfe_u32 v3, v%d, 3, 1" % COL)
    a("v_lshl_or_b32 v%d, v3, 2, v2" % (V_T0 + 2))
    a("v_lshlrev_b32 v%d, 1, v%d" % (V_T0 + 5, V_T0 + 2))
    a("s_mov_b32 s%d, s%d" % (S_WS, P_WS))
    a("s_mov_b32 s%d, s%d" % (S_WS + 1, P_WS + 1))
    a("s_mov_b32 s%d, %d" % (S_WS + 2, WS_SIZE))
    a("s_mov_b32 s%d, 0x00020000" % (S_WS + 3))
    a("s_add_u32 s%d, s%d, %d" % (S_X, P_WS, WS_P - 3072))
    a("s_addc_u32 s%d, s%d, 0" % (S_X + 1, P_WS + 1))
    a("s_and_b32 s%d, s%d, 0xffff" % (S_X + 1, S_X + 1))
    a("s_or_b32 s%d, s%d, 0x%x" % (S_X + 1, S_X + 1, 128 << 16))
    a("s_mov_b32 s%d, %d" % (S_X + 2, NP))
    a("s_mov_b32 s%d, 0x00020000" % (S_X + 3))
    a("s_mov_b32 s%d, s%d" % (S_OUT, P_OUT))
    a("s_mov_b32 s%d, s%d" % (S_OUT + 1, P_OUT + 1))
    a("s_mov_b32 s%d, %d" % (S_OUT + 2, N * 128))
    a("s_mov_b32 s%d, 0x00020000" % (S_OUT + 3))
    a("s_mov_b32 s%d, 0x%08x" % (S_LG, f32(-LOG2E)))
    a("s_mov_b32 s%d, 0x%08x" % (S_LG + 1, f32(-LOG2E)))
    XB, TA, QW = V_RA, V_LEN, V_YW
    PW, PR, PA = V_QA, V_NW, V_S
    TA2, PW2, XP = V_WA, V_WA + 1, V_WA + 2
    a("s_and_b32 s48, s%d, 3" % S_W)
    a("s_lshr_b32 s49, s%d, 2" % S_W)
    a("v_and_b32 v2, 15, v%d" % V_LANE)
    a("v_lshrrev_b32 v3, 4, v%d" % V_LANE)
    a("v_lshrrev_b32 v%d, 1, v2" % XB)
    a("v_xor_b32 v%d, v%d, v3" % (XB, XB))
    a("v_lshlrev_b32 v%d, 4, v%d" % (XB, XB))
    a("v_lshl_add_u32 v%d, v2, 7, v%d" % (XB, XB))
    a("s_add_u32 s3, s43, %d" % L1_X)
    a("v_add_u32 v%d, s3, v%d" % (XP, XB))
    a("v_xor_b32 v%d, 64, v%d" % (XP + 1, XP))
    a("s_lshl_b32 s3, s48, 12")
    a("s_add_u32 s3, s3, %d" % L1_X)
    a("v_add_u32 v%d, s3, v%d" % (XB, XB))
    a("v_xor_b32 v%d, 64, v%d" % (V_RC, XB))
    a("s_lshl_b32 s46, s49, 2")
    a("v_or_b32 v%d, s46, v3" % PW)
    a("v_xor_b32 v%d, v%d, v2" % (PW, PW))
    a("v_and_b32 v%d, 7, v%d" % (PW, PW))
    a("v_lshlrev_b32 v%d, 4, v%d" % (PW, PW))
    a("v_lshl_add_u32 v%d, v2, 7, v%d" % (PW, PW))
    a("s_add_u32 s45, s43, %d" % L1_P)
    a("v_add_u32 v%d, s45, v%d" % (PW, PW))
    a("v_xor_b32 v%d, 64, v%d" % (PW2, PW))
    a("s_lshl_b32 s3, s48, 5")
    a("v_add_u32 v2, s3, v2")
    a("v_cmp_gt_u32 vcc, %d, v2" % NLOC)
    a("s_lshl_b32 s3, s49, 7")
    a("s_add_u32 s3, s3, %d" % L_Q)
    a("v_lshl_add_u32 v%d, v3, 5, s3" % QW)
    a("s_mov_b64 %s, vcc" % sr(S_QM, 2))
    a("v_cmp_gt_u32 vcc, %d, v2" % (NLOC - 16))
    a("s_mov_b32 s3, %d" % RSTR)
    a("v_mad_u32_u24 v%d, v2, s3, v%d" % (QW, QW))
    a("s_mov_b64 %s, vcc" % sr(S_QM + 2, 2))
    a("v_bfe_u32 v2, v%d, 2, 2" % V_LANE)
    a("v_lshl_add_u32 v3, v3, 3, v2")
    a("v_lshrrev_b32 v2, 1, v2")
    a("v_xor_b32 v%d, s49, v2" % TA)
    a("v_lshlrev_b32 v%d, 6, v%d" % (TA, TA))
    a("v_lshl_add_u32 v%d, v3, 7, v%d" % (TA, TA))
    a("v_and_b32 v3, 3, v%d" % V_LANE)
    a("v_lshl_add_u32 v%d, v3, 4, v%d" % (TA, TA))
    a("v_add_u32 v%d, %d, v%d" % (TA, L1_W1, TA))
    a("v_xor_b32 v%d, 64, v%d" % (TA2, TA))
    a("v_lshrrev_b32 v2, 3, v%d" % V_LANE)
    a("s_lshl_b32 s3, s%d, 4" % S_W)
    a("v_add_u32 v3, s3, v2")
    a("s_mul_i32 s3, s%d, %d" % (S_B, NLOC))
    a("v_cmp_gt_u32 vcc, %d, v3" % NLOC)
    a("v_add_u32 v%d, s3, v3" % PA)
    a("s_cmp_lt_u32 s%d, 6" % S_W)
    a("s_cselect_b32 s3, 8, 0x10000")
    a("v_add_u32 v%d, s3, v%d" % (V_R, PA))
    a("v_cndmask_b32 v%d, -1, v%d, vcc" % (PA, PA))
    a("v_and_b32 v3, 0x70, v%d" % T16)
    a("v_add_u32 v%d, 3072, v3" % (PA + 1))
    a("v_mov_b32 v%d, v%d" % (V_R + 1, PA + 1))
    a("v_lshlrev_b32 v2, 4, v2")
    a("v_xor_b32 v%d, v2, v%d" % (PR, V_L16))
    a("v_add_u32 v%d, s45, v%d" % (PR, PR))
    lds_init(a, V_U)
    a("s_mov_b32 s%d, 0" % S_MODE)
    a("s_sub_u32 s3, 11, s%d" % S_W)
    a("s_cmp_lt_u32 s%d, 4" % S_W)
    a("s_cselect_b32 s%d, s%d, s3" % (S_BT, S_W))
    a("s_mul_i32 s%d, s%d, %d" % (S_XT, S_BT, XSTR))
    a("s_add_u32 s%d, s%d, %d" % (S_XT, S_XT, L_XT))
    a("s_add_u32 s%d, s%d, 4096" % (S_XT1, S_XT))
    a("s_mov_b32 s%d, 1.0" % S_ONE)
    a("s_mov_b32 s%d, 1.0" % (S_ONE + 1))
    a("s_mov_b32 s%d, %d" % (S_TO, POLLS))
    a("v_add_u32 v%d, 3072, v%d" % (V_IDX + 1, V_IDX + 7))
    a("v_add_u32 v%d, 2048, v%d" % (V_IDX + 3, V_IDX + 5))
    a("v_add_u32 v%d, 1024, v%d" % (V_IDX + 5, V_IDX + 7))
    a("v_xor_b32 v%d, 64, v%d" % (V_IDX + 7, V_IDX + 7))
    a("v_bfe_u32 v2, v%d, 1, 3" % COL)
    a("v_xor_b32 v2, v2, v%d" % HH)
    a("v_lshlrev_b32 v2, 4, v2")
    a("v_lshl_add_u32 v3, v%d, 7, s%d" % (COL, S_XT))
    for k in range(4):
        a("v_xor_b32 v%d, %d, v2" % (V_BAD + k, 32 * k))
        a("v_add_u32 v%d, v3, v%d" % (V_BAD + k, V_BAD + k))
    a("v_bfe_u32 v2, v%d, 3, 1" % (V_T0 + 2))
    a("v_xor_b32 v2, v2, v%d" % HH)
    a("v_bfe_u32 v3, v%d, 1, 2" % (V_T0 + 2))
    a("v_lshl_or_b32 v2, v2, 4, v3")
    a("v_lshrrev_b32 v3, 4, v%d" % COL)
    a("v_lshl_or_b32 v2, v3, 2, v2")
    a("v_and_b32 v3, 1, v%d" % COL)
    a("v_lshlrev_b32 v3, 4, v3")
    a("v_mov_b32 v%d, 0x3f80" % (V_T0 + 4))
    a("v_lshlrev_b32 v3, v3, v%d" % (V_T0 + 4))
    for i in range(4):
        a("v_cmp_eq_u32 vcc, %d, v2" % (2 * i))
        a("v_cmp_eq_u32_e64 s[48:49], %d, v2" % (2 * i + 1))
        a("s_nop 0")
        a("v_cndmask_b32 v%d, 0, v3, vcc" % (V_ID + 2 * i))
        a("v_cndmask_b32_e64 v%d, 0, v3, s[48:49]" % (V_ID + 2 * i + 1))
    a("v_bfe_u32 v2, v%d, 2, 2" % V_LANE)
    a("v_lshl_add_u32 v3, v%d, 3, v2" % HH)
    a("v_lshlrev_b32 v3, 7, v3")
    a("v_lshrrev_b32 v2, 1, v2")
    a("v_lshl_or_b32 v3, v2, 6, v3")
    a("v_bfe_u32 v2, v%d, 4, 1" % V_LANE)
    a("v_lshl_or_b32 v3, v2, 5, v3")
    a("v_and_b32 v2, 1, v%d" % V_LANE)
    a("v_lshl_or_b32 v3, v2, 4, v3")
    a("v_bfe_u32 v2, v%d, 1, 1" % V_LANE)
    a("v_lshl_or_b32 v3, v2, 3, v3")
    a("v_xor_b32 v2, 64, v3")
    a("v_add_u32 v%d, %d, v3" % (V_TRA, L_WA))
    a("v_add_u32 v%d, %d, v2" % (V_TRA + 1, L_WA))
    a("s_lshl_b32 s3, s%d, 7" % S_BT)
    a("s_add_u32 s3, s3, s%d" % S_XT)
    a("v_lshl_add_u32 v%d, v%d, 2, s3" % (V_T0 + 3, COL))
    TAD, UC, TP = V_IA, V_IA + 1, V_IA + 2
    a("v_lshrrev_b32 v2, 3, v0")
    a("v_lshlrev_b32 v%d, 12, v2" % TAD)
    a("v_and_b32 v2, 7, v0")
    a("v_mov_b32 v3, 0x%x" % ((16 - (1 << 23)) & 0xffffffff))
    a("v_mul_lo_u32 v2, v2, v3")
    a("v_subrev_u32 v%d, 0x%x, v2" % (UC, (1 << 23) + (1 << 31)))
    a("s_lshl_b32 s3, s2, 10")
    a("s_add_u32 s3, s3, %d" % WS_TAB)
    a("v_add_u32 v%d, s3, v%d" % (TP, V_L16))
    a("s_lshl_b32 s47, s%d, 2" % S_B)
    a("s_add_u32 s47, s47, %d" % WS_TAB)
    a("s_mov_b32 s%d, 0" % S_EXTRA)
    a("s_mul_i32 s52, s2, %d" % (CU * 16))
    a("s_or_b32 s53, s52, 0x80000000")
    a("s_mov_b32 s51, 21846")
    a("s_mov_b32 s50, %d" % NLOC)
    FLG, FA, SF = V_T[0], V_T[0] + 1, V_T[0] + 2
    a("v_lshlrev_b32 v%d, 2, v%d" % (FA, V_LANE))
    a("s_mov_b32 s%d, %d" % (S_PCK, 1 << 22))
    a("s_mov_b32 s%d, 0" % S_ST)
    a("v_add_u32 v%d, %d, v%d" % (V_PF, WS_PT, V_L16))
    a("s_cmp_eq_u32 s%d, 7" % S_W)
    stamp(a, "setup")
    a.auto = 0
    a("v_mov_b32 v2, 1")
    a("s_waitcnt lgkmcnt(0)")
    a("s_barrier")
    stamp(a, "bar0")
    a("s_cbranch_scc1 L_w7f")
    a("s_mov_b64 exec, %s" % sr(S_EM, 2))
    for i in range(8):
        if i % 4 == 0:
            a("s_waitcnt vmcnt(%d)" % (5 - i // 4))
            if i == 0:
                stamp(a, "dst")
        a("v_lshlrev_b32_sdwa v%d, 2, v%d dst_sel:DWORD dst_unused:UNUSED_PAD src0_sel:DWORD src1_sel:BYTE_0" % (AD + i, DST + i))
        a("ds_add_rtn_u32 v%d, v%d, v2 offset:%d" % (RK + i, AD + i, L1_CNT))
    for i in range(8):
        a("v_lshrrev_b32 v%d, 8, v%d" % (DST + i, DST + i))
        a("v_add_u32 v%d, 1, v%d" % (DST + i, DST + i))
    for i in range(4):
        a("s_waitcnt lgkmcnt(%d)" % (7 - i))
        a("v_mul_u32_u24 v%d, s51, v%d" % (O1 + i, RK + i))
        a("v_lshrrev_b32 v%d, 16, v%d" % (O1 + i, O1 + i))
        a("v_mad_u32_u24 v%d, v%d, 13, v%d" % (O2 + i, O1 + i, RK + i))
        a("v_add_lshl_u32 v%d, v%d, v%d, 2" % (O1 + i, O1 + i, RK + i))
    a("s_mov_b64 exec, -1")
    a("s_cmp_eq_u32 s%d, 6" % S_W)
    a("s_waitcnt lgkmcnt(0)")
    a("s_barrier")
    stamp(a, "barA")
    CN = V_U
    SC_ = V_U + 4
    STV = V_U + 8
    W2F, WXF = V_C[1], V_C[0]
    QD, RD = V_B[1], V_T[1]
    XF = V_B[0]
    a("ds_read_b128 %s, v%d offset:%d" % (vr(CN, 4), V_L16, L1_CNT))
    for i in range(4, 8):
        a("v_mul_u32_u24 v%d, s51, v%d" % (O1 + i, RK + i))
        a("v_lshrrev_b32 v%d, 16, v%d" % (O1 + i, O1 + i))
    a("s_waitcnt lgkmcnt(0)")
    for i in range(4):
        a("v_add_u32 v%d, 2, v%d" % (CN + i, CN + i))
        a("v_mul_u32_u24 v%d, s51, v%d" % (CN + i, CN + i))
        a("v_lshrrev_b32 v%d, 16, v%d" % (CN + i, CN + i))
    a("v_add_u32 v%d, v%d, v%d" % (SC_, CN, CN + 1))
    a("v_add_u32 v%d, v%d, v%d" % (SC_ + 1, SC_, CN + 2))
    a("v_add_u32 v%d, v%d, v%d" % (SC_ + 2, SC_ + 1, CN + 3))
    a("v_mov_b32 v%d, v%d" % (SC_ + 3, SC_ + 2))
    dpp_scan(a, [SC_ + 3], fill=["v_mad_u32_u24 v%d, v%d, 13, v%d" % (O2 + i, O1 + i, RK + i) for i in range(4, 8)] +
             ["v_add_lshl_u32 v%d, v%d, v%d, 2" % (O1 + i, O1 + i, RK + i) for i in range(4, 8)] +
             ["v_min_u32 v%d, 255, v%d" % (V_TAB + i, CN + i) for i in range(4)])
    a("v_sub_u32 v%d, v%d, v%d" % (STV, SC_ + 3, SC_ + 2))
    a("v_add_lshl_u32 v%d, v%d, v%d, 4" % (STV + 1, STV, CN))
    a("v_add_lshl_u32 v%d, v%d, v%d, 4" % (STV + 2, STV, SC_))
    a("v_add_lshl_u32 v%d, v%d, v%d, 4" % (STV + 3, STV, SC_ + 1))
    a("v_lshlrev_b32 v%d, 4, v%d" % (STV, STV))
    a("v_readlane_b32 s54, v%d, 63" % (SC_ + 3))
    a("ds_write_b128 v%d, %s offset:%d" % (V_L16, vr(STV, 4), L1_START))
    a("s_mov_b64 exec, %s" % sr(S_EM, 2))
    for i in range(8):
        a("ds_read_b32 v%d, v%d offset:%d" % (RK + i, AD + i, L1_START))
    a("s_waitcnt vmcnt(0)")
    stamp(a, "src")
    for k in range(8):
        a("v_mul_u32_u24_sdwa v%d, v%d, s50 dst_sel:DWORD dst_unused:UNUSED_PAD src0_sel:BYTE_0 src1_sel:DWORD" % (AD + k, SRC + k))
    RE = V_T[1]
    for i in range(0, 8, 2):
        a("v_lshlrev_b32 v%d, 16, v%d" % (RE + i // 2, EV + i // 2))
    for i in range(0, 8, 2):
        a("v_add_u32_sdwa v%d, v%d, v%d dst_sel:WORD_0 dst_unused:UNUSED_PRESERVE src0_sel:DWORD src1_sel:BYTE_1" % (RE + i // 2, AD + i, SRC + i))
        a("v_add_u32_sdwa v%d, v%d, v%d dst_sel:WORD_0 dst_unused:UNUSED_PRESERVE src0_sel:DWORD src1_sel:BYTE_1" % (EV + i // 2, AD + i + 1, SRC + i + 1))
    for i in range(8):
        a("s_waitcnt lgkmcnt(%d)" % (7 + i))
        a("v_add_u32 v%d, v%d, v%d" % (O2 + i, O2 + i, RK + i))
        a("v_add_u32 v%d, v%d, v%d" % (O1 + i, O1 + i, RK + i))
        a("ds_write_b8 v%d, v%d offset:%d" % (O2 + i, DST + i, L1_STAGE + 12))
        a("ds_write_b32 v%d, v%d offset:%d" % (O1 + i, (EV if i & 1 else RE) + i // 2, L1_STAGE))
    a("s_mov_b64 exec, -1")
    a("s_cbranch_scc0 L_w7i")
    for i in range(4):
        a("v_lshl_add_u32 v%d, v%d, 23, s53" % (V_TAB + i, V_TAB + i))
        a("v_add_u32 v%d, v%d, v%d" % (V_TAB + i, V_TAB + i, STV + i))
    a("global_load_dword v%d, v%d, %s %s" % (FLG, FA, sr(P_DBG, 2), SC))
    a("s_branch L_w7i")
    a.label("L_w7f")
    a("v_lshrrev_b32 v%d, 3, v%d" % (WAD, V_LANE))
    a("v_lshl_add_u32 v%d, v%d, 8, s%d" % (WAD, WAD, S_B))
    a("v_lshl_add_u32 v%d, v%d, 7, v%d" % (XA + 1, WAD, V_IDX + 7))
    a("v_xor_b32 v%d, 64, v%d" % (XA, XA + 1))
    a("v_add_u32 v%d, %d, v%d" % (XA + 1, 2048 * 128 - 1024, XA + 1))
    a("s_mov_b32 m0, %d" % L1_X)
    a("s_mov_b64 s[44:45], %s" % sr(P_X, 2))
    a("v_add_u32 v%d, %d, v%d" % (WAD, 96 * 256, WAD))
    a("v_min_u32 v%d, %d, v%d" % (WAD, N - 1, WAD))
    a("v_lshl_add_u32 v%d, v%d, 7, v%d" % (W3 + 1, WAD, V_IDX + 7))
    a("v_xor_b32 v%d, 64, v%d" % (W3 + 1, W3 + 1))
    a.label("L_xld")
    a("global_load_lds_dwordx4 v%d, s[44:45]" % XA)
    a("global_load_lds_dwordx4 v%d, s[44:45] offset:1024" % (XA + 1))
    a("s_add_u32 m0, m0, 2048")
    a("s_add_u32 s44, s44, %d" % (4096 * 128))
    a("s_addc_u32 s45, s45, 0")
    a("s_cmp_lg_u32 m0, %d" % (L1_X + 2048 * 6))
    a("s_cbranch_scc1 L_xld")
    a("global_load_lds_dwordx4 v%d, %s" % (W3 + 1, sr(P_X, 2)))
    a("v_and_b32 v2, 16, v%d" % V_LANE)
    a("v_lshlrev_b32 v2, 2, v2")
    a("v_xor_b32 v%d, v2, v%d" % (WAD, V_L16))
    a("v_add_u32 v%d, 16384, v%d" % (W3, V_L16))
    a("s_mov_b32 s3, %d" % LS[0])
    a("s_mov_b32 s54, %d" % L_LUT)
    stamp(a, "xiss")
    a("s_barrier")
    a.label("L_lut")
    lut_build(a, 3, V_C[0], 0, 54)
    a("s_add_u32 s54, s54, 2048")
    a("s_add_u32 s3, s3, %d" % (LS[1] - LS[0]))
    a("s_cmp_eq_u32 s3, %d" % LS[1])
    a("s_cbranch_scc1 L_lut")
    a("s_cmp_ge_u32 s2, %d" % NCLR)
    a("s_cbranch_scc1 L_noflag")
    a("s_lshl_b32 s3, s2, %d" % (8 - NCLR.bit_length() + 1))
    a("v_mov_b32 v%d, s3" % XA)
    a("v_mov_b32 v2, 1")
    a("v_mov_b32 v3, 1")
    a("s_mov_b64 exec, 1")
    a("s_waitcnt vmcnt(13)")
    stamp(a, "clr")
    a("global_store_dwordx2 v%d, v[2:3], %s %s" % (XA, sr(P_DBG, 2), SC))
    a.label("L_noflag")
    a("s_mov_b32 m0, %d" % L_W3)
    a("s_mov_b64 exec, 0xff")
    a("global_load_lds_dwordx4 v%d, %s" % (W3, sr(P_WM, 2)))
    a("s_mov_b64 exec, -1")
    a("s_mov_b32 m0, %d" % L1_W1)
    a("s_mov_b64 s[44:45], %s" % sr(P_WM, 2))
    a.label("L_wld")
    for i in range(4):
        a("global_load_lds_dwordx4 v%d, s[44:45] offset:%d" % (WAD, 1024 * i))
    a("s_add_u32 m0, m0, 4096")
    a("s_add_u32 s44, s44, 4096")
    a("s_addc_u32 s45, s45, 0")
    a("s_cmp_eq_u32 m0, %d" % L1_WX)
    a("s_cselect_b64 s[44:45], %s, s[44:45]" % sr(P_WU, 2))
    a("s_cmp_lg_u32 m0, %d" % (L_WA + 8192))
    a("s_cbranch_scc1 L_wld")
    stamp(a, "wiss")
    a("s_mov_b32 s54, 0")
    a.label("L_w7i")
    a("v_add_u32 v2, 1024, v0")
    a("v_cmp_gt_u32 vcc, s54, v2")
    a("s_add_u32 s53, s52, 8192")
    a("s_add_u32 s54, s52, 16384")
    a("s_waitcnt lgkmcnt(0)")
    a("s_barrier")
    stamp(a, "barB")
    CP = V_N[0]
    for i in range(3):
        a("ds_read_b128 %s, v%d offset:%d" % (vr(CP + 4 * i, 4), T16, L1_STAGE + 8192 * i))
    a("s_waitcnt lgkmcnt(2)")
    a("buffer_store_dwordx4 %s, v%d, %s, s52 offen %s" % (vr(CP, 4), T16, sr(S_WS, 4), SC))
    a("s_waitcnt lgkmcnt(1)")
    a("buffer_store_dwordx4 %s, v%d, %s, s53 offen %s" % (vr(CP + 4, 4), T16, sr(S_WS, 4), SC))
    a("s_cbranch_vccz L_no3")
    a("s_waitcnt lgkmcnt(0)")
    a("s_mov_b64 exec, vcc")
    a("buffer_store_dwordx4 %s, v%d, %s, s54 offen %s" % (vr(CP + 8, 4), T16, sr(S_WS, 4), SC))
    a("s_mov_b64 exec, -1")
    a.label("L_no3")
    stamp(a, "stiss")
    if PADS:
        a("s_branch L_page1")
        a.raw("@SEMI@")
        a.raw(".p2align 12")
        a.raw("@PAGE@")
        a.label("L_page1")
    a("v_mov_b32 v%d, 0" % SF)
    a("s_mov_b32 s50, 0x807fffff")
    a("s_cmp_lg_u32 s%d, 6" % S_W)
    a("s_waitcnt vmcnt(0) lgkmcnt(0)")
    stamp(a, "stack")
    a("s_cbranch_scc1 L_barC")
    a.label("L_fpoll")
    a("v_cmp_ne_u32 vcc, 1, v%d" % FLG)
    a("s_cbranch_vccnz L_fagain")
    a.label("L_barC")
    a("s_barrier")
    a("s_cbranch_scc1 L_nopub")
    a("global_store_dwordx4 v%d, %s, %s %s" % (TP, vr(V_TAB, 4), sr(P_WS, 2), SC))
    a.label("L_nopub")
    stamp(a, "barC")
    TABV = V_D[0]

    def tab_loads():
        for p in range(4):
            a("buffer_load_dword v%d, v%d, %s, s47 offen offset:%d %s" % (TABV + p, TAD, sr(S_WS, 4), 1024 * p, SC))

    def qr_out(D, off):
        for tau in range(2):
            for i in range(4):
                a("v_pk_mul_f32 %s, %s, %s" % (vr(D + 8 * tau + 2 * i, 2), vr(D + 8 * tau + 2 * i, 2), sr(S_LG, 2)))
            a("s_mov_b64 exec, %s" % sr(S_QM + 2 * tau, 2))
            for blk in range(2):
                a("ds_write_b128 v%d, %s offset:%d" % (QW, vr(D + 8 * tau + 4 * blk, 4), off + 16 * RSTR * tau + 16 * blk))
            a("s_mov_b64 exec, -1")

    PXF, PD, PB_ = V_U, V_B[1], V_U + 8
    a("ds_read_b128 %s, v%d" % (vr(PXF, 4), XP))
    a("ds_read_b128 %s, v%d" % (vr(PXF + 4, 4), XP + 1))
    for x in tr_frags(V_C[0], TA, 0) + tr_frags(V_C[1], TA2, 0)[:4]:
        a(x)
    tab_loads()
    a("s_waitcnt lgkmcnt(4)")
    for x in tr_frags(V_C[1], TA2, 0)[4:]:
        a(x)
    a("ds_read_b32 v%d, v%d offset:%d" % (SF, SF, F_SLOW))
    for tau in range(2):
        a("ds_read_b128 %s, v%d offset:%d" % (vr(XF + 8 * tau, 4), XB, 2048 * tau))
        a("ds_read_b128 %s, v%d offset:%d" % (vr(XF + 8 * tau + 4, 4), V_RC, 2048 * tau))
    for H in range(2):
        if H:
            a("s_waitcnt lgkmcnt(4)")
        for k in range(2):
            for blk in range(2):
                a(mf16(PD + 8 * H + 4 * blk, V_C[H] + 8 * blk + 4 * k, PXF + 4 * k, k == 0))
    a("v_cmp_lt_u32_e64 s[44:45], 3, v%d" % SF)
    a("v_mov_b32 v%d, 0" % (V_AE + 1))
    for H in range(2):
        for i in range(4):
            a("v_pk_mul_f32 %s, %s, %s" % (vr(PD + 8 * H + 2 * i, 2), vr(PD + 8 * H + 2 * i, 2), sr(S_LG, 2)))
        for i in range(4):
            a("v_cvt_pk_bf16_f32 v%d, v%d, v%d" % (PD + 8 * H + i, PD + 8 * H + 2 * i, PD + 8 * H + 2 * i + 1))
        a("ds_write_b128 v%d, %s" % (PW2 if H else PW, vr(PD + 8 * H, 4)))
    for i in range(2):
        a("ds_read_b128 %s, v%d offset:%d" % (vr(PB_ + 4 * i, 4), PR, 1024 * i))
    for x in tr_frags(W2F, TA, L1_W2 - L1_W1):
        a(x)
    a("ds_read_u16 v%d, v%d offset:%d" % (W3, V_T0 + 5, L_W3))
    a("ds_read_u16 v%d, v%d offset:%d" % (W3 + 1, V_T0 + 5, L_W3 + 64))
    a("s_waitcnt lgkmcnt(11)")
    a("buffer_store_dwordx4 %s, %s, %s, 0 idxen offen %s" % (vr(PB_, 4), vr(PA, 2), sr(S_X, 4), SC))
    a("s_waitcnt lgkmcnt(10)")
    a("buffer_store_dwordx4 %s, %s, %s, 0 idxen offen %s" % (vr(PB_ + 4, 4), vr(V_R, 2), sr(S_X, 4), SC))
    stamp(a, "piss")
    a("s_waitcnt lgkmcnt(2)")
    for x in tr_frags(WXF, TA, L1_WX - L1_W1):
        a(x)
    for x in tile_mfmas(QD, W2F, XF):
        a(x)
    a("s_waitcnt vmcnt(2)")
    a.label("L_tcheck")
    a("v_max3_i32 v3, v%d, v%d, v%d" % (TABV, TABV + 1, TABV + 2))
    a("v_max_i32 v3, v3, v%d" % (TABV + 3))
    a("v_cmp_le_i32 vcc, 0, v3")
    a("s_or_b64 vcc, vcc, s[44:45]")
    a("s_cbranch_vccnz L_tfail")
    stamp(a, "tab")
    RC = V_N[0]
    RT = V_T[0]
    ADR = V_T[0] + 12
    for p in range(4):
        a("v_add_u32 v%d, v%d, v%d" % (TABV + p, TABV + p, UC))
    a("v_cmp_le_u32 vcc, 0x%x, v3" % ((9 << 23) | (1 << 31)))
    a("s_cbranch_vccnz L2_extra")
    a.label("L2_noextra")
    for p in range(4):
        a("v_and_b32 v%d, s50, v%d" % (TABV + p, TABV + p))
        a("buffer_load_dwordx4 %s, v%d, %s, 0 offen %s" % (vr(RC + 4 * p, 4), TABV + p, sr(S_WS, 4), SC))
    a("s_cmp_eq_u32 s%d, 1" % S_ST)
    a("s_cbranch_scc1 L_after")
    a("s_mov_b32 s%d, 2" % S_ST)
    a.label("L_qr")
    a("v_cmp_eq_u32 vcc, 0, v%d" % HH)
    a("v_mov_b32 v%d, 0" % (V_AE + 2))
    a("v_mov_b32 v%d, 0" % (V_AE + 5))
    a("v_mov_b32 v%d, 0" % (V_AE + 6))
    a("s_waitcnt lgkmcnt(0)")
    for x in tile_mfmas(RD, WXF, XF):
        a(x)
    qr_out(QD, 0)
    for X in range(2):
        a("v_lshlrev_b32 v2, 16, v%d" % (W3 + X))
        a("v_mul_f32 v2, s%d, v2" % S_LG)
        a("v_cvt_pk_bf16_f32 v3, v%d, v2" % (V_AE + 1))
        a("v_sub_f32 v2, v2, v3")
        a("v_cvt_pk_bf16_f32 v2, v%d, v2" % (V_AE + 1))
        a("v_cndmask_b32 v%d, v2, v3, vcc" % (V_AE + 4 * X))
        a("v_cndmask_b32 v%d, v2, v3, vcc" % (V_AE + 4 * X + 3))
    qr_out(RD, L_R - L_Q)
    for i in range(12):
        a("v_mov_b32 v%d, -1" % (RT + i))
    stamp(a, "qr")
    a("s_cmp_lg_u32 s%d, 2" % S_ST)
    a("s_cbranch_scc1 L_tfail1")
    a.label("L_after")

    def p_ready(n):
        a("v_mov_b32 v2, 1")
        a("v_mov_b32 v3, %d" % F_PCNT)
        a("s_lshl_b32 s3, s2, 4")
        a("s_mov_b64 exec, 1")
        a("s_waitcnt vmcnt(%d)" % n)
        a("ds_add_rtn_u32 v3, v3, v2")
        a("s_add_u32 s3, s3, %d" % (WS_PT - (7 << 28) + (1 << 32)))
        a("s_mov_b32 s51, %d" % L_SEND)
        a("s_waitcnt lgkmcnt(0)")
        a("v_lshl_add_u32 v3, v3, 28, s3")
        a("buffer_store_dword v2, v3, %s, 0 offen %s" % (sr(S_WS, 4), SC))
        a("s_mov_b64 exec, -1")

    p_ready(4)
    stamp(a, "pack")
    a("v_mov_b32 v2, 4")

    def p1(rc, k):
        for i in range(3):
            a("v_lshlrev_b32_sdwa v%d, 2, v%d dst_sel:DWORD dst_unused:UNUSED_PAD src0_sel:DWORD src1_sel:BYTE_%d" % (ADR + k + i, rc + 3, i))
        for i in range(3):
            a("v_cmpx_ne_u32 vcc, 0, v%d" % (ADR + k + i))
            a("ds_add_rtn_u32 v%d, v%d, v2 offset:%d" % (RT + k + i, ADR + k + i, L_CNT))
        a("s_mov_b64 exec, -1")

    def p2(rc, k):
        for i in range(3):
            a("v_cmpx_gt_u32 vcc, s51, v%d" % (RT + k + i))
            a("ds_write_b32 v%d, v%d" % (RT + k + i, rc + i))
        a("s_mov_b64 exec, -1")

    a("s_cmp_lg_u32 s%d, 0" % S_EXTRA)
    a("s_cbranch_scc1 L2_xpl")
    a.label("L2_pl")
    a("s_waitcnt vmcnt(%d)" % (3 + NPF))
    stamp(a, "rec0")
    p1(RC, 0)
    a("s_waitcnt vmcnt(%d)" % (2 + NPF))
    p1(RC + 4, 3)
    a("s_waitcnt vmcnt(%d) lgkmcnt(0)" % (1 + NPF))
    p1(RC + 8, 6)
    p2(RC, 0)
    p2(RC + 4, 3)
    a("s_waitcnt vmcnt(%d)" % NPF)
    p1(RC + 12, 9)
    a("s_waitcnt lgkmcnt(0)")
    p2(RC + 8, 6)
    p2(RC + 12, 9)
    stamp(a, "placed")

    a.label("L2_build")
    L4, RB0, NC0, NC1 = V_U, V_U + 1, V_U + 2, V_U + 3
    C0, C1, FL = V_U + 4, V_U + 5, V_U + 6
    P0 = V_U + 8
    O0 = V_U + 10
    E0, E1 = V_N[0], V_N[0] + 8
    a("v_lshlrev_b32 v%d, 2, v%d" % (L4, V_LANE))
    a("s_mov_b32 s3, %d" % SSTR)
    a("v_mov_b32 v%d, %d" % (RB0, L_SLOT - 4))
    a("v_mad_u32_u24 v%d, v%d, s3, v%d" % (RB0, V_LANE, RB0))
    a("v_lshlrev_b32 v%d, 25, v%d" % (NC0, V_LANE))
    a("v_add3_u32 v%d, v%d, v%d, 4" % (NC0, NC0, RB0))
    a("v_add_u32 v%d, 0x%x, v%d" % (NC1, (64 << 25) + 64 * SSTR, NC0))
    a("s_cmp_lt_u32 s%d, %d" % (S_B, N - 97 * 256))
    a("s_cselect_b32 s%d, 3, 1" % (S_HI + 1))
    a("s_mov_b32 s%d, -1" % S_HI)
    a("s_mov_b32 s%d, 0" % S_LI)
    a("s_mov_b32 s%d, 0" % S_SAFE)
    a("v_mov_b32 v%d, %d" % (O0, L_SLOT + 98 * SSTR))
    a("s_lshl_b32 s3, s%d, 6" % S_W)
    a("v_and_b32 v3, 60, v%d" % L4)
    a("v_add_u32 v%d, s3, v3" % (V_T0 + 2))
    a("v_mov_b32 v2, 0x%x" % (127 << 25))
    a("ds_write_b32 v%d, v2 offset:%d" % (V_T0 + 2, L_NL))
    a("v_mov_b32 v%d, 0" % FL)
    a("v_add_u32 v3, %d, v%d" % (64 * SSTR, RB0))
    a("s_mov_b32 s42, 0x100401")
    a("s_waitcnt lgkmcnt(0)")
    a("s_barrier")
    stamp(a, "barD")
    PFV = V_D[0]

    def pf_loads():
        for k in range(4):
            a("global_load_dword v%d, v%d, %s offset:%d %s" % (PFV + k, V_PF, sr(P_WS, 2), 1024 * k, SC))

    pf_loads()
    a("ds_read_b32 v%d, v%d offset:%d" % (C0, L4, L_CNT + 4))
    a("ds_read_b32 v%d, v%d offset:%d" % (C1, L4, L_CNT + 4 + 256))
    a("ds_read_b32 v%d, v%d offset:%d" % (FL, FL, F_SLOW))
    a("ds_write_b32 v%d, v%d" % (V_T0 + 3, O0))
    a("s_waitcnt lgkmcnt(2)")
    a("v_sub_u32 v%d, v%d, v%d" % (C0, C0, RB0))
    a("v_sub_u32 v%d, v%d, v3" % (C1, C1))
    a("v_lshlrev_b32 v%d, 3, v%d" % (C0, C0))
    a("v_lshlrev_b32 v%d, 3, v%d" % (C1, C1))

    def lut_reads(off):
        a("ds_read_b128 %s, v%d offset:%d" % (vr(E0 + 4, 4), C0, off + 16))
        a("ds_read_b128 %s, v%d offset:%d" % (vr(E1 + 4, 4), C1, off + 16))
        a("ds_read_b128 %s, v%d offset:%d" % (vr(E0, 4), C0, off))
        a("ds_read_b128 %s, v%d offset:%d" % (vr(E1, 4), C1, off))

    lut_reads(L_LUT)
    a("v_max_u32 v2, v%d, v%d" % (C0, C1))
    a("v_cmp_lt_u32 vcc, %d, v2" % (32 * (DMAX + 1)))
    a("s_waitcnt lgkmcnt(4)")
    a("v_cmp_lt_u32_e64 s[40:41], 1, v%d" % FL)
    a("s_or_b64 vcc, vcc, s[40:41]")
    a("s_cbranch_vccnz L2_slow")
    a.label("L2_scan")
    a("s_waitcnt lgkmcnt(2)")
    a("v_add_u32 v%d, v%d, v%d" % (O0, E0 + 4, E1 + 4))
    a("v_add_u32 v%d, v%d, v%d" % (O0 + 1, E0 + 5, E1 + 5))
    a("v_mov_b32 v%d, v%d" % (P0, O0))
    a("v_mov_b32 v%d, v%d" % (P0 + 1, O0 + 1))
    a("s_waitcnt lgkmcnt(0)")
    dpp_scan(a, [P0, P0 + 1], fill=["v_add_u32 v%d, v%d, v%d" % (E0 + i, E0 + i, NC0) for i in range(4)] +
             ["v_add_u32 v%d, v%d, v%d" % (E1 + i, E1 + i, NC1) for i in range(4)])
    a("v_readlane_b32 s44, v%d, 63" % P0)
    a("v_readlane_b32 s45, v%d, 63" % (P0 + 1))
    a("v_sub_u32 v%d, v%d, v%d" % (P0, P0, O0))
    a("v_sub_u32 v%d, v%d, v%d" % (P0 + 1, P0 + 1, O0 + 1))
    a("s_mul_i32 s44, s44, s42")
    a("s_mul_i32 s45, s45, s42")
    a("s_bfe_u32 s46, s44, 0x%x" % ((10 << 16) | 20))
    a("s_bfe_u32 s47, s45, 0x%x" % ((10 << 16) | 20))
    a("s_lshl_b32 s44, s44, 10")
    a("s_lshl_b32 s45, s45, 10")
    a("s_add_u32 s47, s47, s46")
    a("s_mul_i32 s46, s46, s42")
    a("v_add_u32 v%d, s44, v%d" % (P0, P0))
    a("s_add_u32 s45, s45, s46")
    a("s_cmp_gt_u32 s47, 256")
    a("s_cbranch_scc1 L2_retry")
    a("v_add_u32 v%d, s45, v%d" % (P0 + 1, P0 + 1))
    a("v_lshrrev_b64 %s, v%d, %s" % (vr(O0, 2), E0 + 6, vr(P0, 2)))
    a("v_add_u32 v%d, v%d, v%d" % (P0, P0, E0 + 4))
    a("v_add_u32 v%d, v%d, v%d" % (P0 + 1, P0 + 1, E0 + 5))
    a("v_and_b32 v2, 0x1ff, v%d" % O0)
    a("v_lshrrev_b64 %s, v%d, %s" % (vr(O0, 2), E1 + 6, vr(P0, 2)))
    a("v_lshl_add_u32 v2, v2, 2, s%d" % S_XT)
    a("ds_write2_b32 v2, v%d, v%d offset0:2 offset1:3" % (E0 + 2, E0 + 3))
    a("v_and_b32 v3, 0x1ff, v%d" % O0)
    a("v_lshl_add_u32 v3, v3, 2, s%d" % S_XT)
    a("s_mov_b64 exec, %s" % sr(S_HI, 2))
    a("ds_write2_b32 v3, v%d, v%d offset0:2 offset1:3" % (E1 + 2, E1 + 3))
    a("ds_write2_b32 v3, v%d, v%d offset0:0 offset1:1" % (E1, E1 + 1))
    a("s_mov_b64 exec, -1")
    a("ds_write2_b32 v2, v%d, v%d offset0:0 offset1:1" % (E0, E0 + 1))
    a("s_lshl_b32 s3, s%d, 7" % S_BT)
    a("s_add_u32 s3, s3, s%d" % S_XT)
    a("v_lshrrev_b32 v2, 3, v%d" % V_LANE)
    a("v_lshl_add_u32 v2, v2, 2, s3")
    for i in range(4):
        a("ds_read_u16 v%d, v2 offset:%d" % (V_IA + i, 32 * i))
    a("ds_read_b32 v%d, v%d" % (V_W, V_T0 + 3))
    a("s_mov_b32 s%d, %d" % (S_X + 2, NP))
    a(dma_m0(0))
    a("s_mov_b32 s3, %d" % RSTR)
    a("v_lshlrev_b32 v3, 5, v%d" % HH)
    a("s_waitcnt lgkmcnt(1)")
    for x in idx_reads(0):
        a(x)
    a("s_waitcnt lgkmcnt(4)")
    a("v_and_b32 v%d, 0xffff, v%d" % (V_RA, V_W))
    a("v_bfe_u32 v%d, v%d, 16, 6" % (V_LEN, V_W))
    a("v_lshrrev_b32 v2, 25, v%d" % V_W)
    a("v_mad_u32_u24 v%d, v2, s3, v3" % V_QA)
    a("v_add_u32 v%d, %d, v%d" % (V_QA, L_Q, V_QA))
    a("s_waitcnt vmcnt(0)")
    a.label("L_pf_check")
    a("v_and_b32 v2, v%d, v%d" % (PFV, PFV + 1))
    a("v_and_b32 v2, v2, v%d" % (PFV + 2))
    a("v_and_b32 v2, v2, v%d" % (PFV + 3))
    a("v_cmp_ne_u32 vcc, 1, v2")
    a("s_cbranch_vccnz L_pf_again")
    a.label("L_pf_ok")
    stamp(a, "pf")
    d = dma_loads()
    for i in range(4):
        a("s_waitcnt lgkmcnt(%d)" % (3 - i))
        a(d[i])
    stamp(a, "dma0")
    for x in idx_reads(4):
        a(x)
    a("ds_read2_b32 %s, v%d offset0:0 offset1:1" % (vr(V_R, 2), V_RA))
    for x in row_reads(V_C, V_QA):
        a(x)
    KF = V_T0 + 4
    a("v_bfe_u32 v%d, v%d, 22, 3" % (KF, V_W))
    a("v_mov_b32 v%d, v%d" % (V_T0 + 5, V_LEN))
    a("v_cmp_ne_u32 vcc, 0, v%d" % KF)
    a("v_add_u32 v2, %d, v%d" % (L_R - L_Q, V_QA))
    a("v_add_u32 v%d, %d, v3" % (V_RC, L_ZERO))
    a("v_cndmask_b32 v%d, v%d, v2, vcc" % (V_RC, V_RC))
    a("v_mbcnt_lo_u32_b32 v2, vcc_lo, 0")
    a("s_lshl_b32 s40, s%d, 6" % S_W)
    a("v_lshl_add_u32 v2, v2, 2, s40")
    a("s_mov_b32 s41, 0xffc00000")
    a("v_and_or_b32 v%d, v%d, s41, v%d" % (V_NW, V_W, COL))
    a(dma_m0(1))
    a("s_waitcnt lgkmcnt(9)")
    for x in dma_loads():
        a(x)
    for x in idx_reads(8):
        a(x)
    a("s_mov_b32 exec_lo, vcc_lo")
    a("s_mov_b32 exec_hi, 0")
    a("ds_write_b32 v2, v%d offset:%d" % (V_NW, L_NL))
    a("s_mov_b64 exec, -1")
    a("v_and_b32 v2, 60, v%d" % V_LANE)
    a("v_add_u32 v2, s40, v2")
    a("ds_read_b32 v%d, v2 offset:%d" % (V_NW, L_NL))
    a("v_add_u32 v2, v%d, v%d" % (KF, COL))
    a("v_cmp_lt_u32 vcc, 32, v2")
    a("v_mad_u32_u24 v%d, v%d, s3, v3" % (V_YW, COL))
    a("v_add_u32 v%d, s%d, v%d" % (V_YW, S_XT, V_YW))
    a("s_cmp_lg_u64 vcc, 0")
    a("s_cselect_b32 s%d, 1, 0" % S_NEED)
    a("s_cmp_lg_u32 s%d, 7" % S_BT)
    a("s_cselect_b32 s%d, s%d, 0" % (S_NEED, S_NEED))
    dpp_scan(a, [V_T0 + 5], op="v_max_u32", fill=[
        "v_cmp_lt_u32_e64 %s, 0, v%d" % (sr(S_M0, 2), V_LEN),
        "v_cmp_lt_u32_e64 %s, 1, v%d" % (sr(S_M[1], 2), V_LEN),
        "v_mov_b32 v%d, 0" % V_S, "v_mov_b32 v%d, 0" % (V_S + 1)])
    a("s_nop 0")
    a("v_readlane_b32 s%d, v%d, 63" % (S_ML, V_T0 + 5))
    a("s_mov_b32 s%d, 1" % S_J)
    a("s_waitcnt vmcnt(4)")
    for x in b_reads(0):
        a(x)
    a("s_max_u32 s%d, s%d, 2" % (S_ML, S_ML))
    a("s_cmp_gt_u32 s%d, 2" % S_ML)
    a("s_cselect_b32 s%d, %d, 0" % (S_X + 2, NP))
    a(dma_m0(0))
    mf = mfma_chain(0, 0, V_N[0])
    a("s_waitcnt lgkmcnt(4)")
    a(mf[0])
    a("s_waitcnt lgkmcnt(0)")
    a(mf[1])
    a(mf[2])
    for x in dma_loads():
        a(x)
    stamp(a, "loop")
    a("s_nop 6")
    me(a, mfma_chain(1, 0, V_N[1]), exps(V_N[0]))
    a("s_waitcnt vmcnt(4)")
    for x in b_reads(1) + idx_reads(12) + pk_first(0):
        a(x)
    a("s_cmp_gt_u32 s%d, 3" % S_ML)
    a("s_cselect_b32 s%d, %d, 0" % (S_X + 2, NP))
    a(dma_m0(1))
    a("s_waitcnt lgkmcnt(0)")
    me(a, mfma_chain(0, 1, V_T[0]), exps(V_N[1]))
    for x in dma_loads():
        a(x)
    for x in pk_first(1):
        a(x)
    a("s_branch L2_loop")
    semi0 = len(a.l)
    a.label("L_tfail")
    tab_loads()
    a("s_cmp_eq_u32 s%d, 0" % S_ST)
    a("s_cbranch_scc1 L_qr")
    a("s_sub_u32 s%d, s%d, 1" % (S_TO, S_TO))
    a("s_cbranch_scc1 L_timeout")
    a.label("L_tback")
    a("s_waitcnt vmcnt(0)")
    a("s_branch L_tcheck")
    a.label("L_tfail1")
    a("s_mov_b32 s%d, 1" % S_ST)
    a("s_cmp_lg_u64 s[44:45], 0")
    a("s_cbranch_scc1 L2_build")
    a("s_branch %s" % ("L_padt" if PADS else "L_tback"))
    a.label("L2_extra")
    a("s_mov_b32 s%d, 1" % S_EXTRA)
    a("v_cmp_le_u32 vcc, 0x%x, v3" % ((17 << 23) | (1 << 31)))
    a("s_cbranch_vccz L2_noflag")
    a("s_mov_b32 s%d, 3" % S_EXTRA)
    a.label("L2_noflag")
    for p in range(4):
        a("v_add_u32 v3, 0x%x, v%d" % ((128 - (8 << 23)) & 0xffffffff, TABV + p))
        a("v_and_b32 v3, s50, v3")
        a("buffer_load_dwordx4 %s, v3, %s, 0 offen %s" % (vr(RC + 16 + 4 * p, 4), sr(S_WS, 4), SC))
    a("s_branch L2_noextra")
    a.label("L_fagain")
    a("s_sleep 1")
    a("global_load_dword v%d, v%d, %s %s" % (FLG, FA, sr(P_DBG, 2), SC))
    a("s_sub_u32 s%d, s%d, 1" % (S_TO, S_TO))
    a("s_waitcnt vmcnt(0)")
    a("s_cbranch_scc0 L_fpoll")
    a("v_mov_b32 v3, 6")
    a("v_mov_b32 v2, %d" % F_SLOW)
    a("ds_or_b32 v2, v3")
    a("s_waitcnt lgkmcnt(0)")
    a("s_branch L_barC")
    a.label("L_pf_again")
    a("s_sub_u32 s%d, s%d, 1" % (S_PCK, S_PCK))
    a("s_cselect_b32 s%d, 0, s%d" % (S_PCK, S_PCK))
    a("s_cbranch_scc1 L_pf_ok")
    a("s_sleep 1")
    pf_loads()
    a("s_waitcnt vmcnt(0)")
    a("s_branch L_pf_check")
    a.label("L2_retry")
    a("s_add_u32 s%d, s%d, 1" % (S_LI, S_LI))
    a("s_cmp_lg_u32 s%d, 1" % S_LI)
    a("s_cbranch_scc1 L2_retry2")
    a.label("L2_retry1")
    lut_reads(L_LUT + 2048)
    a("s_branch L2_scan")
    if PADS:
        semi = a.l[semi0:]
        del a.l[semi0:]
        k = a.l.index("@SEMI@")
        a.l[k:k + 1] = semi
        a.raw(".p2align 12")
        a.raw("@PAGE@")
        a.label("L_padt")
        a("s_branch L_tback")
    a.raw(".p2align 6")
    a.label("L2_loop")
    for par in (1, 0):
        me(a, mfma_chain(1, par, V_T[1]), exps(V_T[0]))
        a("s_add_u32 s%d, s%d, 1" % (S_J, S_J))
        a("s_waitcnt vmcnt(4)")
        for x in b_reads(par + 1) + idx_reads(16 if par else 20):
            a(x)
        if par == 1:
            a("ds_read2_b32 %s, v%d offset0:2 offset1:3" % (vr(V_R, 2), V_RA))
        a("s_cmp_ge_u32 s%d, s%d" % (S_J, S_ML))
        a("s_mov_b64 exec, %s" % sr(S_M[par], 2))
        for x in pk_update(0):
            a(x)
        a("s_cbranch_scc1 L2_last")
        a("s_mov_b64 exec, -1")
        a("s_add_u32 s%d, s%d, 2" % (S_T, S_J))
        a("s_cmp_lt_u32 s%d, s%d" % (S_T, S_ML))
        a("s_cselect_b32 s%d, %d, 0" % (S_X + 2, NP))
        a(dma_m0(par ^ 1))
        a("s_waitcnt lgkmcnt(0)")
        extra = ["v_cmp_lt_u32_e64 %s, s%d, v%d" % (sr(S_M[par ^ 1], 2), S_J, V_LEN)]
        if par == 0:
            extra += ["v_add_u32 v%d, 8, v%d" % (V_IA + i, V_IA + i) for i in range(4)] + ["v_add_u32 v%d, 8, v%d" % (V_RA, V_RA)]
        me(a, mfma_chain(0, par ^ 1, V_T[0]), exps(V_T[1]), extra)
        for x in dma_loads():
            a(x)
        a("s_mov_b64 exec, %s" % sr(S_M[par], 2))
        for x in pk_update(1):
            a(x)
        a("s_mov_b64 exec, -1")
    a("s_branch L2_loop")

    a.label("L2_last")
    a("s_mov_b64 %s, exec" % sr(S_T + 2, 2))
    a("s_mov_b64 exec, -1")
    a("s_waitcnt lgkmcnt(0)")
    stamp(a, "last")
    for x in row_reads(V_C, V_RC) + exps(V_T[1]) + wa_reads()[:7]:
        a(x)
    a("s_mov_b64 exec, %s" % sr(S_T + 2, 2))
    for x in pk_update(1):
        a(x)
    a("s_mov_b64 exec, -1")
    for x in wa_reads()[7:]:
        a(x)
    a.label("L2_final")
    PB = V_B[0]
    a("s_not_b64 exec, %s" % sr(S_M0, 2))
    a("s_cbranch_execz L2_nz")
    for i in range(16):
        a("v_mov_b32 v%d, 0" % (PB + i))
    a.label("L2_nz")
    a("s_mov_b64 exec, %s" % sr(S_M0, 2))

    def fin(X):
        n, d, t = V_N[X], V_D[X], V_T[X]
        r = ["v_rcp_f32 v%d, v%d" % (t + i, d + i) for i in range(16)]
        s = ["v_pk_fma_f32 %s, %s, %s, %s" % (vr(V_S, 2), vr(d + 4 * i, 2), vr(d + 4 * i + 2, 2), vr(V_S, 2)) for i in range(4)]
        m = ["v_pk_mul_f32 %s, %s, %s" % (vr(t + 2 * i, 2), vr(t + 2 * i, 2), vr(n + 2 * i, 2)) for i in range(8)]
        c = ["v_cvt_pk_bf16_f32 v%d, v%d, v%d" % (PB + 8 * X + i, t + 2 * i, t + 2 * i + 1) for i in range(8)]
        return r, [s[0], m[0], m[1], s[1], m[2], m[3], s[2], m[4], m[5], s[3], m[6], m[7]] + c

    def ymf(o, q):
        return "v_mfma_f32_32x32x16_bf16 %s, %s, %s, %s" % (vr(V_C[o], 16), vr(wa_reg(o, q), 4), vr(PB + 4 * q, 4), vr(V_C[o], 16))

    r, p = fin(0)
    for x in r + p:
        a(x)
    r, p = fin(1)
    a("s_waitcnt vmcnt(0) lgkmcnt(0)")
    a(r[0])
    phase(a, [ymf(0, 0), ymf(1, 0), ymf(0, 1), ymf(1, 1)], r[1:])
    for x in p:
        a(x)
    a("s_nop 1")
    for x in (ymf(0, 2), ymf(1, 2), ymf(0, 3), ymf(1, 3)):
        a(x)
    a("v_mov_b32 v2, 0x%08x" % f32(2.0 ** 120))
    a("v_add_f32 v3, v%d, v%d" % (V_S, V_S + 1))
    a("s_movk_i32 s40, 0x207")
    a("v_cmp_nlt_f32 vcc, v3, v2")
    a("s_mov_b64 exec, -1")
    YR, OA, KK = V_T0 + 2, V_T0 + 4, V_T0 + 5
    a("s_mov_b32 s3, %d" % RSTR)
    a("v_and_b32 v2, 3, v%d" % V_LANE)
    a("v_and_b32 v3, 0xff, v%d" % V_NW)
    a("v_lshl_add_u32 v%d, v2, 5, s%d" % (YR, S_XT))
    a("v_mad_u32_u24 v%d, v3, s3, v%d" % (YR, YR))
    a("v_lshrrev_b32 v3, 25, v%d" % V_NW)
    a("v_lshl_add_u32 v%d, v3, 8, s%d" % (OA, S_B))
    a("v_lshlrev_b32 v%d, 7, v%d" % (OA, OA))
    a("v_lshl_add_u32 v%d, v2, 4, v%d" % (OA, OA))
    a("v_bfe_u32 v%d, v%d, 22, 3" % (KK, V_NW))
    a("v_cmp_class_f32_e64 s[42:43], v%d, s40" % V_C[1])
    a("s_lshl_b32 s41, s%d, 2" % S_BT)
    a("s_and_b64 s[42:43], s[42:43], %s" % sr(S_M0, 2))
    a("s_or_b64 vcc, vcc, s[42:43]")
    a("s_cselect_b32 s42, 1, 0")
    a("s_andn2_b32 s42, s42, s%d" % S_SAFE)
    a("s_cbranch_scc1 L2_safe")
    for X in range(2):
        for q in range(4):
            a("ds_write_b128 v%d, %s offset:%d" % (V_YW, vr(V_C[X] + 4 * q, 4), row_off(X, q)))
    a("v_mov_b32 v2, s41")
    a("v_mov_b32 v3, 1")
    a("v_cmp_lt_u32_e64 s[44:45], 2, v%d" % KK)
    a("v_cmp_lt_u32_e64 s[46:47], 3, v%d" % KK)
    a("s_waitcnt lgkmcnt(0)")
    a("ds_write_b32 v2, v3 offset:%d" % L_FLAG)
    a("s_cmp_eq_u32 s%d, 0" % S_NEED)
    a("s_cbranch_scc1 L2_nowait")
    a.label("L2_poll")
    a("ds_read_b32 v3, v2 offset:%d" % (L_FLAG + 4))
    a("s_waitcnt lgkmcnt(0)")
    a("v_cmp_eq_u32 vcc, 0, v3")
    a("s_cbranch_vccnz L2_poll")
    a.label("L2_nowait")
    stamp(a, "ywait")
    Y = [V_N[0], V_N[1], V_D[0], V_D[1]]

    def yreads(i):
        for c in range(4):
            a("ds_read_b128 %s, v%d offset:%d" % (vr(Y[i] + 4 * c, 4), YR, RSTR * i + 128 * (c >> 1) + 16 * (c & 1)))

    def yadd(i):
        for c in range(8):
            a("v_pk_add_f32 %s, %s, %s" % (vr(Y[0] + 2 * c, 2), vr(Y[0] + 2 * c, 2), vr(Y[i] + 2 * c, 2)))

    yreads(0)
    yreads(1)
    yreads(2)
    a("s_mov_b32 s40, 0x%08x" % f32(-LN2))
    a("s_mov_b32 s41, 0x%08x" % f32(-LN2))
    a("s_cmp_eq_u64 s[46:47], 0")
    a("s_cbranch_scc1 L2_no4")
    yreads(3)
    a("s_waitcnt lgkmcnt(0)")
    a("s_mov_b64 exec, s[46:47]")
    yadd(3)
    a("s_mov_b64 exec, -1")
    a.label("L2_no4")
    a("s_waitcnt lgkmcnt(4)")
    yadd(1)
    a("s_waitcnt lgkmcnt(0)")
    a("s_mov_b64 exec, s[44:45]")
    yadd(2)
    a("s_mov_b64 exec, -1")
    a("s_cmp_eq_u32 s%d, 1" % S_MODE)
    a("s_cbranch_scc1 L2_writeback")
    U = V_U
    for i in range(16):
        a("v_exp_f32 v%d, v%d" % (U + i, Y[0] + i))
    for i in range(8):
        a("v_pk_add_f32 %s, %s, %s" % (vr(U + 2 * i, 2), vr(U + 2 * i, 2), sr(S_ONE, 2)))
    for i in range(16):
        a("v_rcp_f32 v%d, v%d" % (U + i, U + i))
    for i in range(8):
        a("v_pk_mul_f32 %s, %s, s[40:41]" % (vr(Y[0] + 2 * i, 2), vr(Y[0] + 2 * i, 2)))
    for i in range(8):
        a("v_pk_mul_f32 %s, %s, %s" % (vr(U + 2 * i, 2), vr(U + 2 * i, 2), vr(Y[0] + 2 * i, 2)))
    P = V_B[1]
    for i in range(4):
        a("v_cvt_pk_bf16_f32 v%d, v%d, v%d" % (P + i, U + 2 * i, U + 2 * i + 1))
    a("buffer_store_dwordx4 %s, v%d, %s, 0 offen" % (vr(P, 4), OA, sr(S_OUT, 4)))
    for i in range(4, 8):
        a("v_cvt_pk_bf16_f32 v%d, v%d, v%d" % (P + i, U + 2 * i, U + 2 * i + 1))
    a("buffer_store_dwordx4 %s, v%d, %s, 0 offen offset:64" % (vr(P + 4, 4), OA, sr(S_OUT, 4)))
    stamp_out(a)
    a.label("L_end")
    a("s_endpgm")

    a.label("L2_xpl")
    a("s_waitcnt vmcnt(%d)" % (4 + NPF))
    for p in range(4):
        p1(RC + 16 + 4 * p, 3 * p)
    a("v_mov_b32 v3, s%d" % S_EXTRA)
    a("v_mov_b32 v%d, %d" % (V_U, F_SLOW))
    a("ds_or_b32 v%d, v3" % V_U)
    a("s_waitcnt lgkmcnt(0)")
    for p in range(4):
        p2(RC + 16 + 4 * p, 3 * p)
    a("s_branch L2_pl")
    a.label("L_timeout")
    a("v_mov_b32 v3, 6")
    a("v_mov_b32 v2, %d" % F_SLOW)
    a("ds_or_b32 v2, v3")
    p_ready(0)
    a("s_branch L2_build")

    a.label("L2_retry2")
    a("s_barrier")
    a("s_cmp_eq_u32 s%d, 2" % S_LI)
    a("s_cselect_b32 s3, %d, %d" % (LS[2], LS[3]))
    lut_build(a, 3, V_T[0], L_LUT + 2048)
    a("s_branch L2_retry1")

    a.label("L2_safe")
    a("s_mov_b32 s%d, 1" % S_SAFE)
    a("s_mov_b32 s%d, %d" % (S_X + 2, NP))
    a("s_nop 7")
    for x in row_reads(V_C, V_QA):
        a(x)
    a("v_and_b32 v2, 0xffff, v%d" % V_W)
    a("v_sub_u32 v2, v%d, v2" % V_RA)
    for i in range(4):
        a("v_sub_u32 v%d, v%d, v2" % (V_IA + i, V_IA + i))
    a("v_sub_u32 v%d, v%d, v2" % (V_RA, V_RA))
    for i in range(32):
        a("v_mov_b32 v%d, 0" % (V_N[0] + i))
        a("v_mov_b32 v%d, 1.0" % (V_D[0] + i))
    a("v_mov_b32 v%d, 0x%x" % (V_R + 1, PAD))
    a("s_mov_b32 s%d, 0" % S_J)
    a.label("L2_safe_loop")
    for x in idx_reads(0):
        a(x)
    a("ds_read_b32 v%d, v%d" % (V_R, V_RA))
    a("s_waitcnt lgkmcnt(0)")
    dma_plain(a, 0)
    a("v_cmp_lt_u32_e64 %s, s%d, v%d" % (sr(S_M[0], 2), S_J, V_LEN))
    for i in range(4):
        a("v_add_u32 v%d, 4, v%d" % (V_IA + i, V_IA + i))
    a("v_add_u32 v%d, 4, v%d" % (V_RA, V_RA))
    a("s_waitcnt vmcnt(0)")
    for x in b_reads(0):
        a(x)
    a("s_waitcnt lgkmcnt(0)")
    for x in mfma_chain(0, 0, V_T[0]) + mfma_chain(1, 0, V_T[1]):
        a(x)
    a("s_nop 7")
    a("s_nop 3")
    a("s_mov_b64 exec, %s" % sr(S_M[0], 2))
    for X in range(2):
        for x in exps(V_T[X]):
            a(x)
        for i in range(8):
            a("v_pk_add_f32 %s, %s, %s" % (vr(U + 2 * i, 2), vr(U + 2 * i, 2), sr(S_ONE, 2)))
        for i in range(16):
            a("v_rcp_f32 v%d, v%d" % (U + i, U + i))
        for i in range(8):
            a("v_pk_fma_f32 %s, %s, %s, %s" % (vr(V_N[X] + 2 * i, 2), vr(V_T[X] + 2 * i, 2), vr(U + 2 * i, 2), vr(V_N[X] + 2 * i, 2)))
    a("s_mov_b64 exec, -1")
    a("s_add_u32 s%d, s%d, 1" % (S_J, S_J))
    a("s_cmp_lt_u32 s%d, s%d" % (S_J, S_ML))
    a("s_cbranch_scc1 L2_safe_loop")
    for x in row_reads(V_C, V_RC):
        a(x)
    a("s_branch L2_final")

    a.label("L2_slow")
    a("s_mov_b32 s%d, 1" % S_MODE)
    a("s_mov_b32 s%d, 0" % S_POS)
    a("v_mov_b32 v%d, 0" % V_DONE)
    a("v_cmp_gt_u32 vcc, 4, v%d" % FL)
    a("s_waitcnt vmcnt(0) lgkmcnt(0)")
    a("s_cbranch_vccnz L2_slow_round")
    a("s_barrier")
    t = V_U
    a("v_and_b32 v2, 16, v%d" % V_LANE)
    a("v_lshlrev_b32 v2, 2, v2")
    a("v_xor_b32 v2, v2, v%d" % V_L16)
    a("s_lshl_b32 s3, s%d, 10" % S_W)
    a("v_add_u32 v2, s3, v2")
    a("s_add_u32 m0, s3, %d" % L1_W1)
    a("v_lshrrev_b32 v3, 4, v%d" % V_LANE)
    a("global_load_lds_dwordx4 v2, %s" % sr(P_WM, 2))
    a("v_bfe_u32 v2, v%d, 2, 2" % V_LANE)
    a("v_lshl_add_u32 v%d, v3, 3, v2" % t)
    a("v_lshlrev_b32 v%d, 7, v%d" % (t, t))
    a("v_lshrrev_b32 v2, 1, v2")
    a("v_lshl_or_b32 v%d, v2, 6, v%d" % (t, t))
    a("v_and_b32 v2, 3, v%d" % V_LANE)
    a("v_lshl_or_b32 v%d, v2, 4, v%d" % (t, t))
    a("v_xor_b32 v%d, 64, v%d" % (t + 1, t))
    a("v_add_u32 v%d, %d, v%d" % (t, L1_W1, t))
    a("v_add_u32 v%d, %d, v%d" % (t + 1, L1_W1, t + 1))
    a("v_and_b32 v2, 15, v%d" % V_LANE)
    a("s_lshl_b32 s3, s%d, 4" % S_W)
    a("v_add_u32 v%d, s3, v2" % (t + 2))
    a("v_lshlrev_b32 v%d, 4, v3" % (t + 4))
    a("v_add_u32 v%d, 3072, v%d" % (t + 7, t + 4))
    a("s_mov_b32 s%d, %d" % (S_X + 2, NP))
    a("s_waitcnt vmcnt(0)")
    a("s_barrier")
    for x in tr_frags(V_C[0], t, 0):
        a(x)
    a("s_waitcnt lgkmcnt(0)")
    for x in tr_frags(V_C[1], t + 1, 0):
        a(x)
    a("s_mov_b32 s3, %d" % ((N + 127) // 128))
    a("s_mov_b32 s%d, 0" % S_PCK)
    a.label("L_allp")
    a("v_min_u32 v2, %d, v%d" % (N - 1, t + 2))
    a("v_lshl_add_u32 v2, v2, 7, v%d" % (t + 4))
    a("global_load_dwordx4 %s, v2, %s" % (vr(V_B[0], 4), sr(P_X, 2)))
    a("global_load_dwordx4 %s, v2, %s offset:64" % (vr(V_B[0] + 4, 4), sr(P_X, 2)))
    a("v_and_b32 v2, 255, v%d" % (t + 2))
    a("v_lshrrev_b32 v%d, 8, v%d" % (t + 6, t + 2))
    a("v_mul_u32_u24 v2, %d, v2" % NLOC)
    a("v_add_u32 v%d, v2, v%d" % (t + 6, t + 6))
    a("s_waitcnt vmcnt(0) lgkmcnt(0)")
    for s in range(2):
        for H in range(2):
            for blk in range(2):
                a(mf16(V_T[0] + 8 * H + 4 * blk, V_C[H] + 8 * blk + 4 * s, V_B[0] + 4 * s, s == 0))
    a("s_nop 7")
    for i in range(8):
        a("v_pk_mul_f32 %s, %s, %s" % (vr(V_T[0] + 2 * i, 2), vr(V_T[0] + 2 * i, 2), sr(S_LG, 2)))
    for i in range(8):
        a("v_cvt_pk_bf16_f32 v%d, v%d, v%d" % (V_T[1] + i, V_T[0] + 2 * i, V_T[0] + 2 * i + 1))
    a("buffer_store_dwordx4 %s, %s, %s, 0 idxen offen %s" % (vr(V_T[1], 4), vr(t + 6, 2), sr(S_X, 4), SC))
    a("buffer_store_dwordx4 %s, %s, %s, 0 idxen offen offset:64 %s" % (vr(V_T[1] + 4, 4), vr(t + 6, 2), sr(S_X, 4), SC))
    a("v_add_u32 v%d, 128, v%d" % (t + 2, t + 2))
    a("s_sub_u32 s3, s3, 1")
    a("s_cmp_lg_u32 s3, 0")
    a("s_cbranch_scc1 L_allp")
    a("s_waitcnt vmcnt(0)")
    a("s_branch L2_slow_round")
    a.label("L2_writeback")
    a("v_cmp_ne_u32 vcc, 0, v%d" % KK)
    a("v_lshrrev_b32 v3, 25, v%d" % V_NW)
    a("v_and_b32 v2, 3, v%d" % V_LANE)
    a("v_lshlrev_b32 v2, 5, v2")
    a("v_mad_u32_u24 v2, v3, s3, v2")
    a("v_add_u32 v2, %d, v2" % L_R)
    a("s_mov_b64 exec, vcc")
    for c in range(4):
        a("ds_write_b128 v2, %s offset:%d" % (vr(Y[0] + 4 * c, 4), 128 * (c >> 1) + 16 * (c & 1)))
    a("s_mov_b64 exec, -1")
    a("s_waitcnt lgkmcnt(0)")
    a.label("L2_slow_round")
    a("s_barrier")
    lds_init(a, V_U)
    a("s_waitcnt lgkmcnt(0)")
    a("s_barrier")
    a.label("L2_slow_step")
    a("s_cmp_lt_u32 s%d, %d" % (S_POS, E))
    a("s_cbranch_scc1 L2_slow_go")
    a("s_mov_b32 s%d, 2" % S_MODE)
    a("s_branch L2_build")
    a.label("L2_slow_go")
    a("v_add_u32 v2, s%d, v0" % S_POS)
    a("v_cmp_gt_u32 vcc, %d, v2" % E)
    a("v_min_u32 v2, %d, v2" % (E - 1))
    a("v_lshlrev_b32 v3, 1, v2")
    a("v_lshlrev_b32 v2, 2, v2")
    a("global_load_dword v%d, v2, %s" % (t, sr(P_DST, 2)))
    a("global_load_dword v%d, v2, %s" % (t + 1, sr(P_SRC, 2)))
    a("global_load_ushort v%d, v3, %s" % (t + 2, sr(P_E, 2)))
    a("v_cmp_eq_u32_e64 s[40:41], 0, v%d" % V_DONE)
    a("s_and_b64 s[40:41], s[40:41], vcc")
    a("s_mov_b32 s3, %d" % SSTR)
    a("v_mov_b32 v%d, %d" % (t + 4, L_SLOT + 4 * DMAX))
    a("v_mov_b32 v2, 4")
    a("s_waitcnt vmcnt(0)")
    a("v_and_b32 v3, 255, v%d" % t)
    a("v_cmp_eq_u32 vcc, s%d, v3" % S_B)
    a("v_lshrrev_b32 v3, 8, v%d" % t)
    a("v_mad_u32_u24 v%d, v3, s3, v%d" % (t + 4, t + 4))
    a("v_lshlrev_b32 v3, 2, v3")
    a("v_and_b32 v%d, 255, v%d" % (t + 5, t + 1))
    a("v_lshrrev_b32 v%d, 8, v%d" % (t + 1, t + 1))
    a("v_mul_u32_u24 v%d, %d, v%d" % (t + 5, NLOC, t + 5))
    a("v_add_u32 v%d, v%d, v%d" % (t + 1, t + 1, t + 5))
    a("v_lshl_or_b32 v%d, v%d, 16, v%d" % (t + 1, t + 2, t + 1))
    a("s_and_b64 exec, vcc, s[40:41]")
    a("ds_add_rtn_u32 v%d, v3, v2 offset:%d" % (t + 3, L_CNT + 4))
    a("s_waitcnt lgkmcnt(0)")
    a("v_cmp_lt_u32 vcc, v%d, v%d" % (t + 3, t + 4))
    a("s_andn2_b64 s[40:41], exec, vcc")
    a("s_mov_b64 exec, vcc")
    a("ds_write_b32 v%d, v%d" % (t + 3, t + 1))
    a("v_mov_b32 v%d, 1" % V_DONE)
    a("s_mov_b64 exec, s[40:41]")
    a("v_mov_b32 v%d, %d" % (t + 5, F_PEND))
    a("ds_write_b32 v%d, v2" % (t + 5))
    a("s_mov_b64 exec, -1")
    a("s_waitcnt lgkmcnt(0)")
    a("s_barrier")
    a("s_mov_b64 exec, s[40:41]")
    a("ds_min_u32 v3, v%d offset:%d" % (t + 4, L_CNT + 4))
    a("s_mov_b64 exec, -1")
    a("v_mov_b32 v%d, %d" % (t + 5, F_PEND))
    a("ds_read_b32 v%d, v%d" % (t + 5, t + 5))
    a("s_waitcnt lgkmcnt(0)")
    a("v_cmp_ne_u32 vcc, 0, v%d" % (t + 5))
    a("s_cbranch_vccnz L2_build")
    a("s_barrier")
    a("s_add_u32 s%d, s%d, 512" % (S_POS, S_POS))
    a("v_mov_b32 v%d, 0" % V_DONE)
    a("s_branch L2_slow_step")


def kd(name, vgpr, sgpr):
    return """.amdhsa_kernel %s
  .amdhsa_next_free_vgpr %d
  .amdhsa_next_free_sgpr %d
  .amdhsa_accum_offset %d
  .amdhsa_group_segment_fixed_size 0
  .amdhsa_kernarg_size 72
  .amdhsa_user_sgpr_count 2
  .amdhsa_user_sgpr_kernarg_segment_ptr 1
  .amdhsa_system_sgpr_workgroup_id_x 1
  .amdhsa_float_denorm_mode_32 3
.end_amdhsa_kernel
""" % (name, vgpr, sgpr, (vgpr + 3) // 4 * 4)


HEADER = """; Kernarg layout for this problem (72 bytes, ptrs only, base s[0:1]):
; Generated by dev/gen3.py (hand-written generator).
"""


def addresses(lines):
    import subprocess, tempfile
    k = lines.index(".text")
    e = [i for i, x in enumerate(lines) if x.startswith(".section")][0]
    t = []
    for i, x in enumerate(lines):
        if k < i < e:
            t.append("Z_%d:" % i)
        t.append("" if x == "@PAGE@" else x)
    missing = ["L_pad%d" % p for p in range(len(PADA)) if ("L_pad%d:" % p) not in lines]
    t = t[:t.index(lines[e])] + [m + ":" for m in missing] + t[t.index(lines[e]):]
    with tempfile.TemporaryDirectory() as d:
        open(d + "/a.s", "w").write("\n".join(t) + "\n")
        subprocess.check_call(["clang", "-x", "assembler", "-target", "amdgcn-amd-amdhsa", "-mcpu=gfx950", "-c", d + "/a.s", "-o", d + "/a.o"])
        o = subprocess.check_output(["llvm-objdump", "-t", d + "/a.o"]).decode()
    ad = {}
    for l in o.split("\n"):
        f = l.split()
        if f and f[-1].startswith("Z_"):
            ad[int(f[-1][2:])] = int(f[0], 16)
    return ad


def place_pads(a):
    for p, target in enumerate(PADA):
        ad = addresses(a.l)
        i = min(i for i in ad if ad[i] >= target - 4 and (a.l[i].startswith("    ") or a.l[i] == "@PAGE@"))
        if a.l[i].startswith("    s_branch"):
            i += 1
        if a.l[i] == "@PAGE@":
            a.l[i:i + 1] = ["L_pad%d:" % p, "    s_branch L_back7"]
        elif a.l[i - 1].startswith("    s_branch"):
            a.l[i:i] = ["L_pad%d:" % p, "    s_branch L_back7"]
        else:
            a.l[i:i] = ["    s_branch L_over%d" % p, "L_pad%d:" % p, "    s_branch L_back7", "L_over%d:" % p]
    a.l = [x for x in a.l if x != "@PAGE@"]


def main():
    a = Asm()
    a.raw(HEADER.rstrip())
    a.raw("; @launch grid=(%d,1,1) block=(512,1,1) lds=%d" % (NB, LDS_SIZE))
    a.raw('.amdgcn_target "amdgcn-amd-amdhsa--gfx950"')
    a.raw(".text")
    gen(a)
    a.raw('.section .rodata,"a"')
    a.raw(".p2align 6")
    a.raw(kd(KNAME, 256, 96))
    out = sys.argv[1] if len(sys.argv) > 1 else "standalone__mpnn_edge_mlp__graph.s"
    if PADS:
        place_pads(a)
    txt = a.text()
    if DEBUG:
        txt = txt.replace("; Generated by", "; STAMPS " + " ".join(STAMP_NAMES) + "\n; Generated by")
    open(out, "w").write(txt)
    print("wrote", out, "LDS", LDS_SIZE)


if __name__ == "__main__":
    main()
```

```python
import struct, sys, os


def env(name, d):
    return int(os.environ.get(name, str(d)), 0)


DEBUG = env('DEBUG', 0)
X_TIMEOUT = env('X_TIMEOUT', 0)
POLLS = X_TIMEOUT if X_TIMEOUT else 20000
NPF = 1
PADS = env('PADS', 1)
PADA = [int(x, 0) for x in os.environ.get('PADA', '0x600 0xa00 0x1000 0x1500 0x1a00 0x2000 0x2600 0x2b00').split()]
SLEEP = env('SLEEP', 1)
X_NOPST = env('X_NOPST', 0)
X_TEST = env('X_TEST', 0)
SDEL = env('SDEL', 1)
CDEL = env('CDEL', 0)
WSL = env('WSL', 0)
TOUCH = env('TOUCH', 0)
SMF = env('SMF', 1)
XL = env('XL', 2)
CPAD = env('CPAD', 1)
XPOS = env('XPOS', 0)
PSB = env('PSB', 0)
FPOS = env('FPOS', 1)
WR = env('WR', 8)
WQ = env('WQ', 0)
NCLR = 32
LD_IN = os.environ.get('LD_IN', '')
SC = os.environ.get('SC', 'sc1')
SCP = os.environ.get('SCP', 'sc1')
SCO = os.environ.get('SCO', '')
SCG = os.environ.get('SCG', 'sc1')

N = 25000
E = 800000
NB = 256
NLOC = 98
NP = NB * NLOC
CU = 1216
DMAX = 62

WS_REC = 0
WS_TAB = 0x500000
WS_PT = 0x540000
WS_P = 0x580000
WS_SIZE = 0x580000
WS_DBG = 0xA00000
LS = (16, 17, 18, 32)
assert NB * CU * 16 <= WS_TAB

LOG2E = 1.4426950408889634
LN2 = 0.6931471805599453


def f32(x):
    return struct.unpack("<I", struct.pack("<f", x))[0]


class Asm:
    def __init__(self):
        self.l = []
        self.auto = 0
        self.n = 0

    def __call__(self, s):
        for x in s.split("\n"):
            x = x.strip()
            if x:
                self.l.append("    " + x)
                if self.auto:
                    self.n += 1
                    if self.n % self.auto == 0:
                        k, self.auto = self.auto, 0
                        stamp(self, "a%d" % self.n, True)
                        self.auto = k

    def label(self, s):
        self.l.append(s + ":")

    def raw(self, s):
        self.l.append(s)

    def text(self):
        return "\n".join(self.l) + "\n"


def vr(a, n):
    return "v[%d:%d]" % (a, a + n - 1)


def sr(a, n):
    return "s[%d:%d]" % (a, a + n - 1)


DPP_STEPS = ["row_shr:1 row_mask:0xf", "row_shr:2 row_mask:0xf", "row_shr:4 row_mask:0xf", "row_shr:8 row_mask:0xf",
             "row_bcast:15 row_mask:0xa", "row_bcast:31 row_mask:0xc"]


def dpp_scan(a, regs, op="v_add_u32", fill=()):
    fill = list(fill)
    for st in DPP_STEPS:
        n = 3 - len(regs)
        while n > 0 and fill:
            a(fill.pop(0))
            n -= 1
        if n > 0:
            a("s_nop %d" % (n - 1))
        for v in regs:
            a("%s_dpp v%d, v%d, v%d %s bank_mask:0xf" % (op, v, v, v, st))
    for x in fill:
        a(x)


RSTR = 272
SSTR = 260
L_CNT = 0
L_FLAG = 544
L_ZERO = 608
L_ZEND = 880
L_W3 = 896
L_NL = 1136
L_LUT = 2048
L_SLOT = L_LUT + 4096
L_SEND = L_SLOT + (99 * SSTR + 160 + 15) // 16 * 16
L_XT = (L_SEND + 255) // 256 * 256
XSTR = 32 * RSTR
L_WA = L_XT + 8 * XSTR
L_Q = L_WA + 8192
L_R = (L_Q + NLOC * RSTR + 127) // 128 * 128
LDS_SIZE = L_R + NLOC * RSTR
L1_CNT = L_XT
L1_START = L1_CNT + 1024
L1_STAGE = L1_START + 1024
L1_X = L1_STAGE + CU * 16
L1_WX = L_WA - 8192
L1_W2 = L1_WX - 8192
L1_W1 = L1_W2 - 8192
L1_P = L1_STAGE
assert L1_X + 16384 <= L1_W1 and L1_W1 % 128 == 0 and L1_P % 128 == 0 and L1_P + 16384 <= LDS_SIZE
assert (L1_X - L1_CNT) == 3 * 448 * 16
assert L1_X < 65536 and L1_X % 128 == 0
assert L_NL + 512 <= L_LUT
assert L_SEND < 65536 - 256
assert LDS_SIZE <= 163840, LDS_SIZE
PAD = 0x7F00
F_SLOW = L_FLAG + 40
F_PEND = L_FLAG + 44
F_PCNT = L_FLAG + 48

V_LANE = 1
V_BAD = 4
V_IA = 8
V_RA = 12
V_LEN = 13
V_S = 14
V_IDX = 16
V_R = 24
V_YW = 26
V_RC = 27
V_QA = 28
V_NW = 29
V_L16 = 30
V_W = 31
V_T0 = 32
V_PF = 38
V_DONE = 39
V_AE = 40
V_ID = 48
V_WA = 56
V_TRA = 72
V_ST = 74
V_TAB = 76
V_C = (80, 96)
V_T = (112, 128)
V_N = (144, 160)
V_D = (176, 192)
V_U = 208
V_B = (224, 240)

S_X = 4
S_WS = 8
S_OUT = 12
S_B = 16
S_W = 17
S_BT = 18
S_XT = 19
S_ML = 20
S_J = 21
S_ONE = 22
S_M = (24, 26)
S_M0 = 28
S_MODE = 30
S_SAFE = 31
S_HI = 32
S_NEED = 34
S_LI = 35
S_EXTRA = 36
S_XT1 = 37
S_POS = 38
S_TO = 39
S_T = 40
S_EM = 56
S_LG = 58
S_QM = 60
S_PCK = 82
S_ST = 83
P_X, P_E, P_SRC, P_DST, P_WM, P_WU, P_OUT, P_DBG, P_WS = 64, 66, 68, 70, 72, 74, 76, 78, 80


def mfma_chain(X, j, dst):
    B = V_B[j & 1]
    out = ["v_mfma_f32_32x32x8_bf16 %s, %s, %s, %s" % (
        vr(dst, 16), vr(V_AE + 4 * X + 2 * (j & 1), 2), vr(V_R, 2), vr(V_C[X], 16))]
    if X_TEST & 2:
        for k in range(4):
            out.append("v_mfma_f32_32x32x16_bf16 %s, %s, %s, %s" % (
                vr(dst, 16), vr(V_ID + 4 * k + 8 * X, 4), vr(B + 4 * k, 4), vr(dst, 16)))
        return out
    if SMF:
        out.append("v_smfmac_f32_32x32x32_bf16 %s, %s, %s, v%d" % (vr(dst, 16), vr(V_ID, 4), vr(B + 8 * X, 8), V_ID + 4))
        return out
    for k in range(2):
        out.append("v_mfma_f32_32x32x16_bf16 %s, %s, %s, %s" % (
            vr(dst, 16), vr(V_ID + 4 * k, 4), vr(B + 8 * X + 4 * k, 4), vr(dst, 16)))
    return out


def exps(src):
    return ["v_exp_f32 v%d, v%d" % (V_U + i, src + i) for i in range(16)]


def pk_first(X):
    return ["v_pk_add_f32 %s, %s, %s" % (vr(V_D[X] + 2 * i, 2), vr(V_U + 2 * i, 2), sr(S_ONE, 2)) for i in range(8)]


def pk_update(X):
    n, d, u, t = V_N[X], V_D[X], V_U, V_T[X]
    A = ["v_pk_fma_f32 %s, %s, %s, %s" % (vr(n + 2 * i, 2), vr(n + 2 * i, 2), vr(u + 2 * i, 2), vr(n + 2 * i, 2)) for i in range(8)]
    B = ["v_pk_fma_f32 %s, %s, %s, %s" % (vr(n + 2 * i, 2), vr(t + 2 * i, 2), vr(d + 2 * i, 2), vr(n + 2 * i, 2)) for i in range(8)]
    C = ["v_pk_fma_f32 %s, %s, %s, %s" % (vr(d + 2 * i, 2), vr(d + 2 * i, 2), vr(u + 2 * i, 2), vr(d + 2 * i, 2)) for i in range(8)]
    return A + B + C


def phase(a, mf, ex):
    mf = list(mf)
    for i, e in enumerate(ex):
        if i % 3 == 0 and mf:
            a(mf.pop(0))
        a(e)
    assert not mf


def b_reads(tile):
    return ["ds_read_b128 %s, v%d offset:%d" % (vr(V_B[tile & 1] + 4 * k, 4), V_BAD + k, 4096 * (tile & 1)) for k in range(4)]


def idx_reads(off):
    return ["ds_read_u16 v%d, v%d offset:%d" % (V_IDX + 2 * i, V_IA + i, off) for i in range(4)]


def dma_m0(slot):
    return "s_mov_b32 m0, s%d" % (S_XT1 if slot else S_XT)


def dma_loads():
    return ["buffer_load_dwordx4 %s, %s, 0 idxen offen offset:%d %s lds" % (vr(V_IDX + 2 * i, 2), sr(S_X, 4), 1024 * i, SCG) for i in range(4)]


def dma_plain(a, slot):
    a(dma_m0(slot))
    a("s_nop 0")
    for x in dma_loads():
        a(x)


def row_off(X, q):
    return 128 * X + 64 * (q >> 1) + 16 * (q & 1)


def row_reads(dst, addr):
    return ["ds_read_b128 %s, v%d offset:%d" % (vr(dst[X] + 4 * q, 4), addr, row_off(X, q)) for X in range(2) for q in range(4)]


def wa_reg(o, q):
    return (V_WA if o == 0 else V_B[1]) + 4 * q


def wa_reads():
    return ["ds_read_b64_tr_b16 %s, v%d offset:%d" % (vr(wa_reg(o, q) + 2 * i, 2), V_TRA + o, 2048 * q + 512 * i)
            for q in range(4) for o in range(2) for i in range(2)]


NSTAMP = [0]
STAMP_NAMES = []


def stamp(a, name, auto=False):
    if DEBUG == 2 and not auto and name not in ("start", "barW", "barA", "barB", "end"):
        return
    if name in os.environ.get("NOST", "issued iss2 dst stiss piss rec0 placed dma0 ywait xiss").split():
        return
    if DEBUG:
        au, a.auto = a.auto, 0
        k = len(STAMP_NAMES)
        STAMP_NAMES.append(name)
        cyc = name in ("start", "loop", "last", "end")
        if cyc:
            a("s_memtime s[88:89]")
        a("s_memrealtime s[90:91]")
        a("s_waitcnt lgkmcnt(0)")
        if cyc:
            a("v_writelane_b32 v%d, s88, %d" % (V_ST, k))
        a("v_writelane_b32 v%d, s90, %d" % (V_ST, 32 + k))
        a.auto = au


def stamp_out(a):
    if DEBUG:
        a("s_mov_b64 exec, -1")
        a("s_waitcnt vmcnt(0)")
        stamp(a, "end")
        a("v_lshlrev_b32 v2, 2, v0")
        a("s_lshl_b32 s3, s2, 11")
        a("s_add_u32 s3, s3, %d" % WS_DBG)
        a("v_add_u32 v2, s3, v2")
        a("global_store_dword v2, v%d, %s" % (V_ST, sr(P_WS, 2)))


def lds_init(a, t):
    a("v_mov_b32 v%d, 0x%x" % (t, PAD))
    a("v_mov_b32 v%d, 0x%x" % (t + 1, PAD))
    a("v_mov_b32 v%d, 0x%x" % (t + 2, PAD))
    a("v_mov_b32 v%d, 0x%x" % (t + 3, PAD))
    a("v_lshlrev_b32 v%d, 4, v0" % (t + 4))
    n = (L_SEND - L_SLOT) // 16
    for i in range(n // 512):
        a("ds_write_b128 v%d, %s offset:%d" % (t + 4, vr(t, 4), L_SLOT + 8192 * i))
    a("v_cmp_gt_u32 vcc, %d, v0" % (n % 512))
    a("v_lshlrev_b32 v%d, 2, v0" % (t + 5))
    a("s_mov_b32 s%d, %d" % (S_T, SSTR))
    a("v_mov_b32 v%d, %d" % (t + 6, L_SLOT - SSTR))
    a("s_mov_b64 exec, vcc")
    a("ds_write_b128 v%d, %s offset:%d" % (t + 4, vr(t, 4), L_SLOT + 8192 * (n // 512)))
    a("s_mov_b64 exec, -1")
    a("v_mad_u32_u24 v%d, v0, s%d, v%d" % (t + 6, S_T, t + 6))
    a("s_cmp_lt_u32 s%d, %d" % (S_B, N - 97 * 256))
    a("s_addc_u32 s%d, %d, 0" % (S_T, NLOC - 1))
    a("v_cmp_lt_u32 vcc, s%d, v0" % S_T)
    a("v_subrev_u32 v%d, 4, v%d" % (t + 7, t + 6))
    a("v_mov_b32 v%d, %d" % (t + 4, L_FLAG // 4))
    a("v_cndmask_b32 v%d, v%d, v%d, vcc" % (t + 6, t + 6, t + 7))
    a("v_cmp_gt_u32 vcc, v%d, v0" % (t + 4))
    a("v_mov_b32 v%d, %d" % (t + 4, L_ZEND // 4))
    a("v_mov_b32 v%d, 0" % (t + 7))
    a("v_cndmask_b32 v%d, v%d, v%d, vcc" % (t + 6, t + 7, t + 6))
    a("v_cmp_gt_u32 vcc, v%d, v0" % (t + 4))
    a("s_mov_b64 exec, vcc")
    a("ds_write_b32 v%d, v%d" % (t + 5, t + 6))
    a("s_mov_b64 exec, -1")


def lut_build(a, sL, t, off, sbase=None):
    s1, s2, sm = S_T + 8, S_T + 9, S_T + 10
    d, k, m, ln, acc, x, y = t, t + 1, t + 2, t + 3, t + 4, t + 5, t + 6
    k64 = t + 8
    o = t + 12
    a("s_lshl_b32 s%d, s%d, 1" % (s1, sL))
    a("s_add_u32 s%d, s%d, s%d" % (s2, s1, sL))
    a("v_subrev_u32 v%d, 1, v%d" % (d, V_LANE))
    a("v_max_i32 v%d, 0, v%d" % (d, d))
    a("v_cmp_lt_u32 vcc, s%d, v%d" % (s1, d))
    a("v_cmp_lt_u32_e64 %s, s%d, v%d" % (sr(sm, 2), s2, d))
    a("v_mov_b32 v%d, 2" % k)
    a("v_mov_b32 v%d, 32768" % m)
    a("v_mov_b32 v%d, 21846" % ln)
    a("v_cndmask_b32_e64 v%d, v%d, 3, vcc" % (k, k))
    a("v_cndmask_b32 v%d, v%d, v%d, vcc" % (m, m, ln))
    a("v_mov_b32 v%d, 16384" % ln)
    a("v_cndmask_b32_e64 v%d, v%d, 4, %s" % (k, k, sr(sm, 2)))
    a("v_cndmask_b32_e64 v%d, v%d, v%d, %s" % (m, m, ln, sr(sm, 2)))
    a("v_add3_u32 v%d, v%d, v%d, -1" % (ln, d, k))
    a("v_mul_u32_u24 v%d, v%d, v%d" % (ln, ln, m))
    a("v_lshrrev_b32 v%d, 16, v%d" % (ln, ln))
    a("v_mov_b32 v%d, 0" % acc)
    for i in range(4):
        a("v_min_u32 v%d, v%d, v%d" % (x, acc, d))
        a("v_sub_u32 v%d, v%d, v%d" % (y, d, x))
        a("v_min_u32 v%d, v%d, v%d" % (y, y, ln))
        a("v_lshlrev_b32 v%d, 2, v%d" % (x, x))
        a("v_lshl_or_b32 v%d, v%d, 16, v%d" % (o + i, y, x))
        a("v_add_u32 v%d, v%d, v%d" % (acc, acc, ln))
    a("v_lshl_or_b32 v%d, v%d, 22, v%d" % (o, k, o))
    a("v_sub_u32 v%d, s%d, v%d" % (acc, sL, ln))
    a("v_min_u32 v%d, 5, v%d" % (acc, acc))
    a("v_mul_u32_u24 v%d, 10, v%d" % (o + 6, acc))
    a("v_cmp_le_u32 vcc, 3, v%d" % acc)
    a("v_add_u32 v%d, 2, v%d" % (x, o + 6))
    a("v_mov_b32 v%d, v%d" % (k64, k))
    a("v_mov_b32 v%d, 0" % (k64 + 1))
    a("v_cndmask_b32 v%d, v%d, v%d, vcc" % (o + 6, o + 6, x))
    a("v_cmp_ne_u32 vcc, 0, v%d" % V_LANE)
    a("v_lshlrev_b64 %s, v%d, %s" % (vr(o + 4, 2), o + 6, vr(k64, 2)))
    a("v_mov_b32 v%d, 0" % (o + 7))
    a("v_cndmask_b32 v%d, v%d, v%d, vcc" % (o + 4, k64 + 1, o + 4))
    a("v_cndmask_b32 v%d, v%d, v%d, vcc" % (o + 5, k64 + 1, o + 5))
    if sbase is None:
        a("v_lshlrev_b32 v%d, 5, v%d" % (x, V_LANE))
    else:
        a("v_lshl_add_u32 v%d, v%d, 5, s%d" % (x, V_LANE, sbase))
    a("ds_write_b128 v%d, %s offset:%d" % (x, vr(o, 4), off))
    a("ds_write_b128 v%d, %s offset:%d" % (x, vr(o + 4, 4), off + 16))


PAT = os.environ.get('PAT', "MeeeeMeeeMeeeMeeeMeee" if X_TEST & 2 else "MeeeeMeeeMeeeeeeeee")


def me(a, mf, ex, extra=(), pat=PAT):
    mf = list(mf)
    ex = list(ex)
    for c in pat:
        if c == "M":
            if mf:
                a(mf.pop(0))
        else:
            a(ex.pop(0))
    assert not mf and not ex
    for x in extra:
        a(x)


def mf16(d, A, B, first):
    return "v_mfma_f32_16x16x32_bf16 %s, %s, %s, %s" % (vr(d, 4), vr(A, 4), vr(B, 4), "0" if first else vr(d, 4))


def tr_frags(dst, addr, off):
    return ["ds_read_b64_tr_b16 %s, v%d offset:%d" % (vr(dst + 8 * blk + 4 * s + 2 * i, 2), addr, off + 4096 * s + 512 * i + 8 * blk)
            for blk in range(2) for s in range(2) for i in range(2)]


def tile_mfmas(d, A, B):
    out = []
    for s in range(2):
        for tau in range(2):
            for blk in range(2):
                out.append(mf16(d + 8 * tau + 4 * blk, A + 8 * blk + 4 * s, B + 8 * tau + 4 * s, s == 0))
    return out


KNAME = "standalone__mpnn_edge_mlp__graph_kernel"


def gen(a):
    COL, HH = V_T0, V_T0 + 1
    a.raw(".globl %s\n.p2align 12\n.type %s,@function" % (KNAME, KNAME))
    a.label(KNAME)
    a("s_cmp_ge_u32 s2, %d" % NB)
    a("s_cbranch_scc1 L_end")
    a("s_load_dwordx16 s[64:79], s[0:1], 0")
    a("s_load_dwordx2 s[80:81], s[0:1], 64")
    if DEBUG:
        a("v_mov_b32 v%d, 0" % V_ST)
        stamp(a, "start")
        if DEBUG == 2:
            a.auto = env('AUTO', 24)
    DST, SRC, EV = V_N[0], V_N[0] + 8, V_N[1]
    AD, RK, O1, O2 = V_N[1] + 8, V_D[0], V_D[0] + 8, V_D[1]
    W3 = V_D[1] + 8
    DO, EO = V_D[1] + 10, V_N[1] + 4
    XA, WAD = V_D[1] + 12, V_D[1] + 14
    T16 = V_D[1] + 15
    WUD = V_N[1] + 6
    ZR = V_T[1]
    a("v_lshrrev_b32 v2, 6, v0")
    a("s_mul_i32 s40, s2, 3125")
    a("v_readfirstlane_b32 s%d, v2" % S_W)
    a("s_lshr_b32 s41, s40, 3")
    a("s_add_u32 s40, s40, 3125")
    a("s_lshr_b32 s40, s40, 3")
    a("s_sub_u32 s40, s40, s41")
    if PADS:
        a("s_cmp_eq_u32 s%d, 7" % S_W)
        a("s_cbranch_scc1 L_touch")
        a.label("L_back7")
    a("v_lshlrev_b32 v%d, 4, v0" % T16)
    a("s_lshl_b32 s41, s41, 5")
    a("v_add_u32 v%d, s41, v%d" % (DO, T16))
    a("s_lshl_b32 s3, s40, 4")
    a("v_add_u32 v%d, s3, v%d" % (DO + 1, DO))
    a("v_cmp_gt_u32_e64 %s, s40, v0" % sr(S_EM, 2))
    for i in range(4):
        a("v_mov_b32 v%d, 0" % (ZR + i))
    a("v_lshrrev_b32 v%d, 1, v%d" % (EO, DO))
    a("v_lshrrev_b32 v%d, 1, v%d" % (EO + 1, DO + 1))
    a("v_and_b32 v%d, 63, v0" % V_LANE)
    a("v_lshlrev_b32 v%d, 4, v%d" % (V_L16, V_LANE))
    a("s_cmp_eq_u32 s%d, 7" % S_W)
    a("s_waitcnt lgkmcnt(0)")
    a("s_cbranch_scc1 L_clr")
    a("s_mov_b64 exec, %s" % sr(S_EM, 2))
    a("global_load_dwordx4 %s, v%d, %s %s" % (vr(DST, 4), DO, sr(P_DST, 2), LD_IN))
    a("global_load_dwordx4 %s, v%d, %s %s" % (vr(DST + 4, 4), DO + 1, sr(P_DST, 2), LD_IN))
    a("s_mov_b64 exec, -1")
    stamp(a, "issued")
    for i in range(3):
        a("ds_write_b128 v%d, %s offset:%d" % (T16, vr(ZR, 4), L1_CNT + 7168 * i))
    if SDEL:
        a("s_sleep %d" % SDEL)
    a("s_mov_b64 exec, %s" % sr(S_EM, 2))
    a("global_load_dwordx4 %s, v%d, %s %s" % (vr(SRC, 4), DO, sr(P_SRC, 2), LD_IN))
    a("global_load_dwordx4 %s, v%d, %s %s" % (vr(SRC + 4, 4), DO + 1, sr(P_SRC, 2), LD_IN))
    a("global_load_dwordx2 %s, v%d, %s %s" % (vr(EV, 2), EO, sr(P_E, 2), LD_IN))
    a("global_load_dwordx2 %s, v%d, %s %s" % (vr(EV + 2, 2), EO + 1, sr(P_E, 2), LD_IN))
    a("s_mov_b64 exec, -1")
    stamp(a, "iss2")
    a("s_branch L_setup")
    if PADS:
        a.label("L_touch")
        if not CPAD:
            a("s_cmp_lt_u32 s2, %d" % NCLR)
            a("s_cbranch_scc1 L_back7")

        def tree(lo, n, bit):
            if n == 1:
                a("s_branch L_pad%d" % (lo % len(PADA)))
                return
            a("s_bitcmp1_b32 s2, %d" % bit)
            if n == 2:
                a("s_cbranch_scc1 L_pad%d" % ((lo + 1) % len(PADA)))
                tree(lo, 1, 0)
                return
            a("s_cbranch_scc1 L_tr%d_%d" % (lo + n // 2, n // 2))
            tree(lo, n // 2, bit + 1)
            a.label("L_tr%d_%d" % (lo + n // 2, n // 2))
            tree(lo + n // 2, n // 2, bit + 1)

        tree(0, 8 if len(PADA) <= 8 else 16, 3)
    a.label("L_clr")
    if TOUCH & 1:
        a("v_lshlrev_b32 v2, 18, v%d" % V_LANE)
        a("s_mov_b64 exec, 0x1fff")
        a("global_load_dword v%d, v2, %s" % (V_TAB, sr(P_OUT, 2)))
        a("s_mov_b64 exec, 1")
        a("global_load_dword v%d, v2, %s" % (V_TAB + 1, sr(P_DBG, 2)))
        a("s_mov_b32 exec_lo, -1")
        a("s_mov_b32 exec_hi, 15")
        a("global_load_dword v%d, v2, %s" % (V_TAB + 2, sr(P_WS, 2)))
        a("s_mov_b64 exec, -1")
    a("s_cmp_ge_u32 s2, %d" % NCLR)
    a("s_cbranch_scc1 L_setup")
    if CDEL:
        a("s_sleep %d" % CDEL)
    a("s_lshl_b32 s3, s2, 13")
    a("s_add_u32 s3, s3, %d" % (WS_TAB + 4096))
    a("v_add_u32 v2, s3, v%d" % V_L16)
    a("s_lshl_b32 s3, s2, 7")
    a("s_add_u32 s3, s3, %d" % WS_PT)
    a("v_add_u32 v3, s3, v%d" % V_L16)
    for i in range(8):
        a("global_store_dwordx4 v2, %s, %s offset:%d %s" % (vr(ZR, 4), sr(P_WS, 2), 1024 * i - 4096, SC))
    a("s_mov_b64 exec, 0xff")
    a("global_store_dwordx4 v3, %s, %s %s" % (vr(ZR, 4), sr(P_WS, 2), SC))
    a("s_mov_b64 exec, -1")
    a.label("L_setup")
    a("s_and_b32 s%d, s2, 7" % S_B)
    a("s_lshl_b32 s%d, s%d, 5" % (S_B, S_B))
    a("s_lshr_b32 s3, s2, 3")
    a("s_add_u32 s%d, s%d, s3" % (S_B, S_B))
    a("s_lshl_b32 s43, s%d, 11" % S_W)
    a("v_and_b32 v2, 7, v%d" % V_LANE)
    a("v_lshrrev_b32 v3, 4, v%d" % V_LANE)
    a("v_xor_b32 v3, v2, v3")
    a("v_lshlrev_b32 v%d, 4, v3" % (V_IDX + 7))
    a("v_xor_b32 v%d, 64, v%d" % (V_IDX + 5, V_IDX + 7))
    a("v_and_b32 v%d, 31, v%d" % (COL, V_LANE))
    a("v_lshrrev_b32 v%d, 5, v%d" % (HH, V_LANE))
    a("v_and_b32 v2, 19, v%d" % COL)
    a("v_bfe_u32 v3, v%d, 2, 1" % COL)
    a("v_lshl_or_b32 v2, v3, 3, v2")
    a("v_bfe_u32 v3, v%d, 3, 1" % COL)
    a("v_lshl_or_b32 v%d, v3, 2, v2" % (V_T0 + 2))
    a("v_lshlrev_b32 v%d, 1, v%d" % (V_T0 + 5, V_T0 + 2))
    a("s_mov_b32 s%d, s%d" % (S_WS, P_WS))
    a("s_mov_b32 s%d, s%d" % (S_WS + 1, P_WS + 1))
    a("s_mov_b32 s%d, %d" % (S_WS + 2, WS_SIZE))
    a("s_mov_b32 s%d, 0x00020000" % (S_WS + 3))
    a("s_add_u32 s%d, s%d, %d" % (S_X, P_WS, WS_P - 3072))
    a("s_addc_u32 s%d, s%d, 0" % (S_X + 1, P_WS + 1))
    a("s_and_b32 s%d, s%d, 0xffff" % (S_X + 1, S_X + 1))
    a("s_or_b32 s%d, s%d, 0x%x" % (S_X + 1, S_X + 1, 128 << 16))
    a("s_mov_b32 s%d, %d" % (S_X + 2, NP))
    a("s_mov_b32 s%d, 0x00020000" % (S_X + 3))
    a("s_mov_b32 s%d, s%d" % (S_OUT, P_OUT))
    a("s_mov_b32 s%d, s%d" % (S_OUT + 1, P_OUT + 1))
    a("s_mov_b32 s%d, %d" % (S_OUT + 2, N * 128))
    a("s_mov_b32 s%d, 0x00020000" % (S_OUT + 3))
    a("s_mov_b32 s%d, 0x%08x" % (S_LG, f32(-LOG2E)))
    a("s_mov_b32 s%d, 0x%08x" % (S_LG + 1, f32(-LOG2E)))
    XB, TA, QW = V_RA, V_LEN, V_YW
    PW, PR, PA = V_QA, V_NW, V_S
    TA2, PW2, XP = V_WA, V_WA + 1, V_WA + 2
    a("s_and_b32 s48, s%d, 3" % S_W)
    a("s_lshr_b32 s49, s%d, 2" % S_W)
    a("v_and_b32 v2, 15, v%d" % V_LANE)
    a("v_lshrrev_b32 v3, 4, v%d" % V_LANE)
    a("v_lshrrev_b32 v%d, 1, v2" % XB)
    a("v_xor_b32 v%d, v%d, v3" % (XB, XB))
    a("v_lshlrev_b32 v%d, 4, v%d" % (XB, XB))
    a("v_lshl_add_u32 v%d, v2, 7, v%d" % (XB, XB))
    a("s_add_u32 s3, s43, %d" % L1_X)
    a("v_add_u32 v%d, s3, v%d" % (XP, XB))
    a("v_xor_b32 v%d, 64, v%d" % (XP + 1, XP))
    a("s_lshl_b32 s3, s48, 12")
    a("s_add_u32 s3, s3, %d" % L1_X)
    a("v_add_u32 v%d, s3, v%d" % (XB, XB))
    a("v_xor_b32 v%d, 64, v%d" % (V_RC, XB))
    a("s_lshl_b32 s46, s49, 2")
    a("v_or_b32 v%d, s46, v3" % PW)
    a("v_xor_b32 v%d, v%d, v2" % (PW, PW))
    a("v_and_b32 v%d, 7, v%d" % (PW, PW))
    a("v_lshlrev_b32 v%d, 4, v%d" % (PW, PW))
    a("v_lshl_add_u32 v%d, v2, 7, v%d" % (PW, PW))
    a("s_add_u32 s45, s43, %d" % L1_P)
    a("v_add_u32 v%d, s45, v%d" % (PW, PW))
    a("v_xor_b32 v%d, 64, v%d" % (PW2, PW))
    a("s_lshl_b32 s3, s48, 5")
    a("v_add_u32 v2, s3, v2")
    a("v_cmp_gt_u32 vcc, %d, v2" % NLOC)
    a("s_lshl_b32 s3, s49, 7")
    a("s_add_u32 s3, s3, %d" % L_Q)
    a("v_lshl_add_u32 v%d, v3, 5, s3" % QW)
    a("s_mov_b64 %s, vcc" % sr(S_QM, 2))
    a("v_cmp_gt_u32 vcc, %d, v2" % (NLOC - 16))
    a("s_mov_b32 s3, %d" % RSTR)
    a("v_mad_u32_u24 v%d, v2, s3, v%d" % (QW, QW))
    a("s_mov_b64 %s, vcc" % sr(S_QM + 2, 2))
    a("v_bfe_u32 v2, v%d, 2, 2" % V_LANE)
    a("v_lshl_add_u32 v3, v3, 3, v2")
    a("v_lshrrev_b32 v2, 1, v2")
    a("v_xor_b32 v%d, s49, v2" % TA)
    a("v_lshlrev_b32 v%d, 6, v%d" % (TA, TA))
    a("v_lshl_add_u32 v%d, v3, 7, v%d" % (TA, TA))
    a("v_and_b32 v3, 3, v%d" % V_LANE)
    a("v_lshl_add_u32 v%d, v3, 4, v%d" % (TA, TA))
    a("v_add_u32 v%d, %d, v%d" % (TA, L1_W1, TA))
    a("v_xor_b32 v%d, 64, v%d" % (TA2, TA))
    a("v_lshrrev_b32 v2, 3, v%d" % V_LANE)
    a("s_lshl_b32 s3, s%d, 4" % S_W)
    a("v_add_u32 v3, s3, v2")
    a("s_mul_i32 s3, s%d, %d" % (S_B, NLOC))
    a("v_cmp_gt_u32 vcc, %d, v3" % NLOC)
    a("v_add_u32 v%d, s3, v3" % PA)
    a("s_cmp_lt_u32 s%d, 6" % S_W)
    a("s_cselect_b32 s3, 8, 0x10000")
    a("v_add_u32 v%d, s3, v%d" % (V_R, PA))
    a("v_cndmask_b32 v%d, -1, v%d, vcc" % (PA, PA))
    a("v_and_b32 v3, 0x70, v%d" % T16)
    a("v_add_u32 v%d, 3072, v3" % (PA + 1))
    a("v_mov_b32 v%d, v%d" % (V_R + 1, PA + 1))
    a("v_lshlrev_b32 v2, 4, v2")
    a("v_xor_b32 v%d, v2, v%d" % (PR, V_L16))
    a("v_add_u32 v%d, s45, v%d" % (PR, PR))
    lds_init(a, V_U)
    a("s_mov_b32 s%d, 0" % S_MODE)
    a("s_sub_u32 s3, 11, s%d" % S_W)
    a("s_cmp_lt_u32 s%d, 4" % S_W)
    a("s_cselect_b32 s%d, s%d, s3" % (S_BT, S_W))
    a("s_mul_i32 s%d, s%d, %d" % (S_XT, S_BT, XSTR))
    a("s_add_u32 s%d, s%d, %d" % (S_XT, S_XT, L_XT))
    a("s_add_u32 s%d, s%d, 4096" % (S_XT1, S_XT))
    a("s_mov_b32 s%d, 1.0" % S_ONE)
    a("s_mov_b32 s%d, 1.0" % (S_ONE + 1))
    a("s_mov_b32 s%d, %d" % (S_TO, POLLS))
    a("v_add_u32 v%d, 3072, v%d" % (V_IDX + 1, V_IDX + 7))
    a("v_add_u32 v%d, 2048, v%d" % (V_IDX + 3, V_IDX + 5))
    a("v_add_u32 v%d, 1024, v%d" % (V_IDX + 5, V_IDX + 7))
    a("v_xor_b32 v%d, 64, v%d" % (V_IDX + 7, V_IDX + 7))
    a("v_bfe_u32 v2, v%d, 1, 3" % COL)
    a("v_xor_b32 v2, v2, v%d" % HH)
    a("v_lshlrev_b32 v2, 4, v2")
    a("v_lshl_add_u32 v3, v%d, 7, s%d" % (COL, S_XT))
    for k in range(4):
        a("v_xor_b32 v%d, %d, v2" % (V_BAD + k, 32 * k))
        a("v_add_u32 v%d, v3, v%d" % (V_BAD + k, V_BAD + k))
    if SMF:
        a("v_lshrrev_b32 v2, 4, v%d" % COL)
        a("v_xor_b32 v2, v2, v%d" % HH)
        a("v_bfe_u32 v3, v%d, 2, 2" % (V_T0 + 2))
        a("v_lshl_or_b32 v2, v2, 2, v3")
        a("v_and_b32 v3, 3, v%d" % COL)
        a("v_mov_b32 v%d, 0x5555" % (V_T0 + 4))
        a("v_mul_u32_u24 v%d, v3, v%d" % (V_ID + 4, V_T0 + 4))
        a("v_mov_b32 v3, 0x3f80")
        for i in range(2):
            a("v_cmp_eq_u32 vcc, %d, v2" % (2 * i))
            a("v_cmp_eq_u32_e64 s[48:49], %d, v2" % (2 * i + 1))
            a("s_nop 0")
            a("v_cndmask_b32 v%d, 0, v3, vcc" % (V_ID + 2 * i))
            a("v_cndmask_b32_e64 v%d, 0, v3, s[48:49]" % (V_ID + 2 * i + 1))
    else:
        a("v_bfe_u32 v2, v%d, 3, 1" % (V_T0 + 2))
        a("v_xor_b32 v2, v2, v%d" % HH)
        a("v_bfe_u32 v3, v%d, 1, 2" % (V_T0 + 2))
        a("v_lshl_or_b32 v2, v2, 4, v3")
        a("v_lshrrev_b32 v3, 4, v%d" % COL)
        a("v_lshl_or_b32 v2, v3, 2, v2")
        a("v_and_b32 v3, 1, v%d" % COL)
        a("v_lshlrev_b32 v3, 4, v3")
        a("v_mov_b32 v%d, 0x3f80" % (V_T0 + 4))
        a("v_lshlrev_b32 v3, v3, v%d" % (V_T0 + 4))
        for i in range(4):
            a("v_cmp_eq_u32 vcc, %d, v2" % (2 * i))
            a("v_cmp_eq_u32_e64 s[48:49], %d, v2" % (2 * i + 1))
            a("s_nop 0")
            a("v_cndmask_b32 v%d, 0, v3, vcc" % (V_ID + 2 * i))
            a("v_cndmask_b32_e64 v%d, 0, v3, s[48:49]" % (V_ID + 2 * i + 1))
    a("v_bfe_u32 v2, v%d, 2, 2" % V_LANE)
    a("v_lshl_add_u32 v3, v%d, 3, v2" % HH)
    a("v_lshlrev_b32 v3, 7, v3")
    a("v_lshrrev_b32 v2, 1, v2")
    a("v_lshl_or_b32 v3, v2, 6, v3")
    a("v_bfe_u32 v2, v%d, 4, 1" % V_LANE)
    a("v_lshl_or_b32 v3, v2, 5, v3")
    a("v_and_b32 v2, 1, v%d" % V_LANE)
    a("v_lshl_or_b32 v3, v2, 4, v3")
    a("v_bfe_u32 v2, v%d, 1, 1" % V_LANE)
    a("v_lshl_or_b32 v3, v2, 3, v3")
    a("v_xor_b32 v2, 64, v3")
    a("v_add_u32 v%d, %d, v3" % (V_TRA, L_WA))
    a("v_add_u32 v%d, %d, v2" % (V_TRA + 1, L_WA))
    a("s_lshl_b32 s3, s%d, 7" % S_BT)
    a("s_add_u32 s3, s3, s%d" % S_XT)
    a("v_lshl_add_u32 v%d, v%d, 2, s3" % (V_T0 + 3, COL))
    if XL:
        a("v_lshrrev_b32 v2, 3, v%d" % V_LANE)
        a("s_lshl_b32 s3, s%d, 12" % S_W)
        a("s_add_u32 s3, s3, s%d" % S_B)
        a("v_lshl_add_u32 v2, v2, 8, s3")
        a("v_add_u32 v3, 2048, v2")
        a("v_min_u32 v2, %d, v2" % (N - 1))
        a("v_min_u32 v3, %d, v3" % (N - 1))
        a("v_lshl_add_u32 v%d, v2, 7, v%d" % (XA, V_IDX + 7))
        a("v_lshl_add_u32 v%d, v3, 7, v%d" % (XA + 1, V_IDX + 7))
        a("v_xor_b32 v%d, 64, v%d" % (XA, XA))
        a("v_subrev_u32 v%d, 1024, v%d" % (XA + 1, XA + 1))
        a("v_and_b32 v2, 16, v%d" % V_LANE)
        a("v_lshlrev_b32 v2, 2, v2")
        a("v_xor_b32 v%d, v2, v%d" % (WAD, T16))
        a("s_lshr_b32 s42, s43, 1")
        a("s_add_u32 s42, s42, %d" % L1_W1)
    def xw1_loads():
        a("s_mov_b32 m0, s42")
        a("v_add_u32 v%d, 8192, v%d" % (DO, WAD))
        a("global_load_lds_dwordx4 v%d, %s" % (WAD, sr(P_WM, 2)))
        a("s_add_u32 m0, s43, %d" % L1_X)
        a("s_nop 0")
        a("global_load_lds_dwordx4 v%d, %s" % (XA, sr(P_X, 2)))
        a("global_load_lds_dwordx4 v%d, %s offset:1024" % (XA + 1, sr(P_X, 2)))

    TAD, UC, TP = V_IA, V_IA + 1, V_IA + 2
    a("v_lshrrev_b32 v2, 3, v0")
    a("v_lshlrev_b32 v%d, 12, v2" % TAD)
    a("v_and_b32 v2, 7, v0")
    a("v_mov_b32 v3, 0x%x" % ((16 - (1 << 23)) & 0xffffffff))
    a("v_mul_lo_u32 v2, v2, v3")
    a("v_subrev_u32 v%d, 0x%x, v2" % (UC, (1 << 23) + (1 << 31)))
    a("s_lshl_b32 s3, s2, 10")
    a("s_add_u32 s3, s3, %d" % WS_TAB)
    a("v_add_u32 v%d, s3, v%d" % (TP, V_L16))
    a("s_lshl_b32 s47, s%d, 2" % S_B)
    a("s_add_u32 s47, s47, %d" % WS_TAB)
    a("s_mov_b32 s%d, 0" % S_EXTRA)
    a("s_mul_i32 s52, s2, %d" % (CU * 16))
    a("s_or_b32 s53, s52, 0x80000000")
    a("s_mov_b32 s51, 21846")
    a("s_mov_b32 s50, %d" % (4 if X_TEST & 1 else NLOC))
    FLG, FA, SF = V_T[0], V_T[0] + 1, V_T[0] + 2
    a("v_lshlrev_b32 v%d, 2, v%d" % (FA, V_LANE))
    a("s_mov_b32 s%d, %d" % (S_PCK, 1 << 22))
    a("s_mov_b32 s%d, 0" % S_ST)
    a("v_add_u32 v%d, %d, v%d" % (V_PF, WS_PT, V_L16))
    a("s_cmp_eq_u32 s%d, 7" % S_W)
    stamp(a, "setup")
    a.auto = 0
    a("v_mov_b32 v2, 1")
    a("s_waitcnt lgkmcnt(0)")
    a("s_barrier")
    stamp(a, "bar0")
    a("s_cbranch_scc1 L_w7f")
    a("s_mov_b64 exec, %s" % sr(S_EM, 2))
    for i in range(8):
        if i % 4 == 0:
            a("s_waitcnt vmcnt(%d)" % (5 - i // 4))
            if i == 0:
                stamp(a, "dst")
        a("v_lshlrev_b32_sdwa v%d, 2, v%d dst_sel:DWORD dst_unused:UNUSED_PAD src0_sel:DWORD src1_sel:BYTE_0" % (AD + i, DST + i))
        a("ds_add_rtn_u32 v%d, v%d, v2 offset:%d" % (RK + i, AD + i, L1_CNT))
    for i in range(8):
        a("v_lshrrev_b32 v%d, 8, v%d" % (DST + i, DST + i))
        a("v_add_u32 v%d, 1, v%d" % (DST + i, DST + i))
    for i in range(4):
        a("s_waitcnt lgkmcnt(%d)" % (7 - i))
        a("v_mul_u32_u24 v%d, s51, v%d" % (O1 + i, RK + i))
        a("v_lshrrev_b32 v%d, 16, v%d" % (O1 + i, O1 + i))
        a("v_mad_u32_u24 v%d, v%d, 13, v%d" % (O2 + i, O1 + i, RK + i))
        a("v_add_lshl_u32 v%d, v%d, v%d, 2" % (O1 + i, O1 + i, RK + i))
    a("s_mov_b64 exec, -1")
    if XL == 2 and XPOS == 1:
        xw1_loads()
    a("s_cmp_eq_u32 s%d, 6" % S_W)
    a("s_waitcnt lgkmcnt(0)")
    a("s_barrier")
    stamp(a, "barA")
    CN = V_U
    SC_ = V_U + 4
    STV = V_U + 8
    W2F, WXF = V_C[1], V_C[0]
    QD, RD = V_B[1], V_T[1]
    XF = V_B[0]
    a("ds_read_b128 %s, v%d offset:%d" % (vr(CN, 4), V_L16, L1_CNT))
    if XL == 2 and XPOS == 0:
        xw1_loads()
        a("s_cmp_eq_u32 s%d, 6" % S_W)
    for i in range(4, 8):
        a("v_mul_u32_u24 v%d, s51, v%d" % (O1 + i, RK + i))
        a("v_lshrrev_b32 v%d, 16, v%d" % (O1 + i, O1 + i))
    a("s_waitcnt lgkmcnt(0)")
    for i in range(4):
        a("v_add_u32 v%d, 2, v%d" % (CN + i, CN + i))
        a("v_mul_u32_u24 v%d, s51, v%d" % (CN + i, CN + i))
        a("v_lshrrev_b32 v%d, 16, v%d" % (CN + i, CN + i))
    a("v_add_u32 v%d, v%d, v%d" % (SC_, CN, CN + 1))
    a("v_add_u32 v%d, v%d, v%d" % (SC_ + 1, SC_, CN + 2))
    a("v_add_u32 v%d, v%d, v%d" % (SC_ + 2, SC_ + 1, CN + 3))
    a("v_mov_b32 v%d, v%d" % (SC_ + 3, SC_ + 2))
    dpp_scan(a, [SC_ + 3], fill=["v_mad_u32_u24 v%d, v%d, 13, v%d" % (O2 + i, O1 + i, RK + i) for i in range(4, 8)] +
             ["v_add_lshl_u32 v%d, v%d, v%d, 2" % (O1 + i, O1 + i, RK + i) for i in range(4, 8)] +
             ["v_min_u32 v%d, 255, v%d" % (V_TAB + i, CN + i) for i in range(4)])
    a("v_sub_u32 v%d, v%d, v%d" % (STV, SC_ + 3, SC_ + 2))
    a("v_add_lshl_u32 v%d, v%d, v%d, 4" % (STV + 1, STV, CN))
    a("v_add_lshl_u32 v%d, v%d, v%d, 4" % (STV + 2, STV, SC_))
    a("v_add_lshl_u32 v%d, v%d, v%d, 4" % (STV + 3, STV, SC_ + 1))
    a("v_lshlrev_b32 v%d, 4, v%d" % (STV, STV))
    a("v_readlane_b32 s54, v%d, 63" % (SC_ + 3))
    a("ds_write_b128 v%d, %s offset:%d" % (V_L16, vr(STV, 4), L1_START))
    a("s_mov_b64 exec, %s" % sr(S_EM, 2))
    for i in range(8):
        a("ds_read_b32 v%d, v%d offset:%d" % (RK + i, AD + i, L1_START))
    a("s_waitcnt vmcnt(%d)" % (3 if XL == 2 else 0))
    stamp(a, "src")
    for k in range(8):
        a("v_mul_u32_u24_sdwa v%d, v%d, s50 dst_sel:DWORD dst_unused:UNUSED_PAD src0_sel:BYTE_0 src1_sel:DWORD" % (AD + k, SRC + k))
    RE = V_T[1]
    for i in range(0, 8, 2):
        a("v_lshlrev_b32 v%d, 16, v%d" % (RE + i // 2, EV + i // 2))
    for i in range(0, 8, 2):
        a("v_add_u32_sdwa v%d, v%d, v%d dst_sel:WORD_0 dst_unused:UNUSED_PRESERVE src0_sel:DWORD src1_sel:BYTE_1" % (RE + i // 2, AD + i, SRC + i))
        a("v_add_u32_sdwa v%d, v%d, v%d dst_sel:WORD_0 dst_unused:UNUSED_PRESERVE src0_sel:DWORD src1_sel:BYTE_1" % (EV + i // 2, AD + i + 1, SRC + i + 1))
    for i in range(8):
        a("s_waitcnt lgkmcnt(%d)" % (7 + i))
        a("v_add_u32 v%d, v%d, v%d" % (O2 + i, O2 + i, RK + i))
        a("v_add_u32 v%d, v%d, v%d" % (O1 + i, O1 + i, RK + i))
        a("ds_write_b8 v%d, v%d offset:%d" % (O2 + i, DST + i, L1_STAGE + 12))
        a("ds_write_b32 v%d, v%d offset:%d" % (O1 + i, (EV if i & 1 else RE) + i // 2, L1_STAGE))
    a("s_mov_b64 exec, -1")
    a("s_cbranch_scc0 L_w7i")
    for i in range(4):
        a("v_lshl_add_u32 v%d, v%d, 23, s53" % (V_TAB + i, V_TAB + i))
        a("v_add_u32 v%d, v%d, v%d" % (V_TAB + i, V_TAB + i, STV + i))
    if XL != 2:
        a("global_load_dword v%d, v%d, %s %s" % (FLG, FA, sr(P_DBG, 2), SC))
    a("s_branch L_w7i")
    a.label("L_w7f")
    if XL:
        a("v_add_u32 v%d, 16384, v%d" % (W3, V_L16))
        a("s_mov_b32 m0, %d" % L_W3)
        a("s_mov_b64 exec, 0xff")
        a("global_load_lds_dwordx4 v%d, %s" % (W3, sr(P_WM, 2)))
        a("s_mov_b64 exec, -1")
        a("s_mov_b32 s3, %d" % LS[0])
        a("s_mov_b32 s54, %d" % L_LUT)
        a("s_lshl_b32 s44, s2, %d" % (8 - NCLR.bit_length() + 1))
        a("v_mov_b32 v%d, s44" % W3)
        a("v_mov_b32 v2, 1")
        a("v_mov_b32 v3, 1")
        if XL == 2:
            xw1_loads()
        a("s_cmp_ge_u32 s2, %d" % NCLR)
        if FPOS:
            a("s_barrier")
        a("s_cbranch_scc1 L_nofl")
        a("s_mov_b64 exec, 1")
        a("s_waitcnt vmcnt(%d)" % (4 if XL == 2 else 1))
        stamp(a, "clr")
        a("global_store_dwordx2 v%d, v[2:3], %s %s" % (W3, sr(P_DBG, 2), SC))
        a("s_mov_b64 exec, -1")
        a.label("L_nofl")
        if not FPOS:
            a("s_barrier")
        a.label("L_lut")
        lut_build(a, 3, V_C[0], 0, 54)
        a("s_add_u32 s54, s54, 2048")
        a("s_add_u32 s3, s3, %d" % (LS[1] - LS[0]))
        a("s_cmp_eq_u32 s3, %d" % LS[1])
        a("s_cbranch_scc1 L_lut")
    else:
        a("v_lshrrev_b32 v%d, 3, v%d" % (WAD, V_LANE))
        a("v_lshl_add_u32 v%d, v%d, 8, s%d" % (WAD, WAD, S_B))
        a("v_lshl_add_u32 v%d, v%d, 7, v%d" % (XA + 1, WAD, V_IDX + 7))
        a("v_xor_b32 v%d, 64, v%d" % (XA, XA + 1))
        a("v_add_u32 v%d, %d, v%d" % (XA + 1, 2048 * 128 - 1024, XA + 1))
        a("s_mov_b32 m0, %d" % L1_X)
        a("s_mov_b64 s[44:45], %s" % sr(P_X, 2))
        a("v_add_u32 v%d, %d, v%d" % (WAD, 96 * 256, WAD))
        a("v_min_u32 v%d, %d, v%d" % (WAD, N - 1, WAD))
        a("v_lshl_add_u32 v%d, v%d, 7, v%d" % (W3 + 1, WAD, V_IDX + 7))
        a("v_xor_b32 v%d, 64, v%d" % (W3 + 1, W3 + 1))
        a.label("L_xld")
        a("global_load_lds_dwordx4 v%d, s[44:45]" % XA)
        a("global_load_lds_dwordx4 v%d, s[44:45] offset:1024" % (XA + 1))
        a("s_add_u32 m0, m0, 2048")
        a("s_add_u32 s44, s44, %d" % (4096 * 128))
        a("s_addc_u32 s45, s45, 0")
        a("s_cmp_lg_u32 m0, %d" % (L1_X + 2048 * 6))
        a("s_cbranch_scc1 L_xld")
        a("global_load_lds_dwordx4 v%d, %s" % (W3 + 1, sr(P_X, 2)))
        a("v_and_b32 v2, 16, v%d" % V_LANE)
        a("v_lshlrev_b32 v2, 2, v2")
        a("v_xor_b32 v%d, v2, v%d" % (WAD, V_L16))
        a("v_add_u32 v%d, 16384, v%d" % (W3, V_L16))
        a("s_mov_b32 s3, %d" % LS[0])
        a("s_mov_b32 s54, %d" % L_LUT)
        stamp(a, "xiss")
        a("s_barrier")
        a.label("L_lut")
        lut_build(a, 3, V_C[0], 0, 54)
        a("s_add_u32 s54, s54, 2048")
        a("s_add_u32 s3, s3, %d" % (LS[1] - LS[0]))
        a("s_cmp_eq_u32 s3, %d" % LS[1])
        a("s_cbranch_scc1 L_lut")
        a("s_cmp_ge_u32 s2, %d" % NCLR)
        a("s_cbranch_scc1 L_noflag")
        a("s_lshl_b32 s3, s2, %d" % (8 - NCLR.bit_length() + 1))
        a("v_mov_b32 v%d, s3" % XA)
        a("v_mov_b32 v2, 1")
        a("v_mov_b32 v3, 1")
        a("s_mov_b64 exec, 1")
        a("s_waitcnt vmcnt(13)")
        stamp(a, "clr")
        a("global_store_dwordx2 v%d, v[2:3], %s %s" % (XA, sr(P_DBG, 2), SC))
        a.label("L_noflag")
        a("s_mov_b32 m0, %d" % L_W3)
        a("s_mov_b64 exec, 0xff")
        a("global_load_lds_dwordx4 v%d, %s" % (W3, sr(P_WM, 2)))
        a("s_mov_b64 exec, -1")
        a("s_mov_b32 m0, %d" % L1_W1)
        a("s_mov_b64 s[44:45], %s" % sr(P_WM, 2))
        a.label("L_wld")
        for i in range(4):
            a("global_load_lds_dwordx4 v%d, s[44:45] offset:%d" % (WAD, 1024 * i))
        a("s_add_u32 m0, m0, 4096")
        a("s_add_u32 s44, s44, 4096")
        a("s_addc_u32 s45, s45, 0")
        a("s_cmp_eq_u32 m0, %d" % L1_WX)
        a("s_cselect_b64 s[44:45], %s, s[44:45]" % sr(P_WU, 2))
        a("s_cmp_lg_u32 m0, %d" % (L_WA + 8192))
        a("s_cbranch_scc1 L_wld")
        stamp(a, "wiss")
    a("s_mov_b32 s54, 0")
    a.label("L_w7i")
    a("v_add_u32 v2, 1024, v0")
    a("v_cmp_gt_u32 vcc, s54, v2")
    a("s_add_u32 s53, s52, 8192")
    a("s_add_u32 s54, s52, 16384")
    a("s_waitcnt lgkmcnt(0)")
    a("s_barrier")
    stamp(a, "barB")
    CP = V_N[0]
    for i in range(3):
        a("ds_read_b128 %s, v%d offset:%d" % (vr(CP + 4 * i, 4), T16, L1_STAGE + 8192 * i))
    a("s_waitcnt lgkmcnt(2)")
    a("buffer_store_dwordx4 %s, v%d, %s, s52 offen %s" % (vr(CP, 4), T16, sr(S_WS, 4), SC))
    a("s_waitcnt lgkmcnt(1)")
    a("buffer_store_dwordx4 %s, v%d, %s, s53 offen %s" % (vr(CP + 4, 4), T16, sr(S_WS, 4), SC))
    if XL != 2:
        a("s_cbranch_vccz L_no3")
    a("s_waitcnt lgkmcnt(0)")
    a("s_mov_b64 exec, vcc")
    a("buffer_store_dwordx4 %s, v%d, %s, s54 offen %s" % (vr(CP + 8, 4), T16, sr(S_WS, 4), SC))
    a("s_mov_b64 exec, -1")
    a.label("L_no3")
    stamp(a, "stiss")
    if XL:
        if XL == 1:
            xw1_loads()
        a("s_mov_b32 s50, 0x807fffff")
        a("s_add_u32 m0, s42, 8192")
        a("v_mov_b32 v%d, 0" % SF)
        a("global_load_lds_dwordx4 v%d, %s" % (DO, sr(P_WM, 2)))
        a("s_add_u32 m0, s42, 16384")
        a("s_nop 0")
        a("global_load_lds_dwordx4 v%d, %s" % (WAD, sr(P_WU, 2)))
        a("s_add_u32 m0, s42, 24576")
        a("s_nop 0")
        a("global_load_lds_dwordx4 v%d, %s" % (DO, sr(P_WU, 2)))
    if PADS:
        a("s_branch L_page1")
        a.raw("@SEMI@")
        a.raw(".p2align 12")
        a.raw("@PAGE@")
        a.label("L_page1")
    TABV = V_D[0]
    PXF, PD, PB_ = V_U, V_B[1], V_U + 8

    def tab_loads():
        for p in range(4):
            a("buffer_load_dword v%d, v%d, %s, s47 offen offset:%d %s" % (TABV + p, TAD, sr(S_WS, 4), 1024 * p, SC))

    def qr_out(D, off):
        for tau in range(2):
            for i in range(4):
                a("v_pk_mul_f32 %s, %s, %s" % (vr(D + 8 * tau + 2 * i, 2), vr(D + 8 * tau + 2 * i, 2), sr(S_LG, 2)))
            a("s_mov_b64 exec, %s" % sr(S_QM + 2 * tau, 2))
            for blk in range(2):
                a("ds_write_b128 v%d, %s offset:%d" % (QW, vr(D + 8 * tau + 4 * blk, 4), off + 16 * RSTR * tau + 16 * blk))
            a("s_mov_b64 exec, -1")

    def bar_c(n):
        a("s_cmp_lg_u32 s%d, 6" % S_W)
        a("s_waitcnt vmcnt(%d) lgkmcnt(0)" % n)
        stamp(a, "stack")
        a("s_cbranch_scc1 L_barC")
        a.label("L_fpoll")
        a("v_cmp_ne_u32 vcc, 1, v%d" % FLG)
        a("s_cbranch_vccnz L_fagain")
        a.label("L_barC")
        a("s_barrier")
        a("s_cbranch_scc1 L_nopub")
        a("global_store_dwordx4 v%d, %s, %s %s" % (TP, vr(V_TAB, 4), sr(P_WS, 2), SC))
        a.label("L_nopub")
        stamp(a, "barC")

    def p_stores(n):
        a("s_waitcnt lgkmcnt(%d)" % (n + 1))
        a("buffer_store_dwordx4 %s, %s, %s, 0 idxen offen %s" % (vr(PB_, 4), vr(PA, 2), sr(S_X, 4), SC))
        a("s_waitcnt lgkmcnt(%d)" % n)
        a("buffer_store_dwordx4 %s, %s, %s, 0 idxen offen %s" % (vr(PB_ + 4, 4), vr(V_R, 2), sr(S_X, 4), SC))
        stamp(a, "piss")

    if XL == 2:
        a("s_waitcnt vmcnt(6)")
        a("s_barrier")
        stamp(a, "barB2")
    else:
        if not XL:
            a("v_mov_b32 v%d, 0" % SF)
            a("s_mov_b32 s50, 0x807fffff")
        bar_c(6 if XL else 0)
    if XL == 1:
        tab_loads()
        a("s_waitcnt vmcnt(5)")
        a("s_barrier")
        stamp(a, "barC2")
    a("ds_read_b128 %s, v%d" % (vr(PXF, 4), XP))
    a("ds_read_b128 %s, v%d" % (vr(PXF + 4, 4), XP + 1))
    for x in tr_frags(V_C[0], TA, 0) + tr_frags(V_C[1], TA2, 0)[:4]:
        a(x)
    if not XL:
        tab_loads()
    a("s_waitcnt lgkmcnt(4)")
    for x in tr_frags(V_C[1], TA2, 0)[4:]:
        a(x)
    if XL != 2:
        a("ds_read_b32 v%d, v%d offset:%d" % (SF, SF, F_SLOW))
    for tau in range(2):
        a("ds_read_b128 %s, v%d offset:%d" % (vr(XF + 8 * tau, 4), XB, 2048 * tau))
        a("ds_read_b128 %s, v%d offset:%d" % (vr(XF + 8 * tau + 4, 4), V_RC, 2048 * tau))
    for H in range(2):
        if H:
            a("s_waitcnt lgkmcnt(4)")
        for k in range(2):
            for blk in range(2):
                a(mf16(PD + 8 * H + 4 * blk, V_C[H] + 8 * blk + 4 * k, PXF + 4 * k, k == 0))
    if XL != 2:
        a("v_cmp_lt_u32_e64 s[44:45], 3, v%d" % SF)
    else:
        a("s_cmp_lg_u32 s%d, 6" % S_W)
        a("s_cbranch_scc1 L_nofld")
        a("global_load_dword v%d, v%d, %s %s" % (FLG, FA, sr(P_DBG, 2), SC))
        a.label("L_nofld")
    a("v_mov_b32 v%d, 0" % (V_AE + 1))
    for H in range(2):
        for i in range(4):
            a("v_pk_mul_f32 %s, %s, %s" % (vr(PD + 8 * H + 2 * i, 2), vr(PD + 8 * H + 2 * i, 2), sr(S_LG, 2)))
        for i in range(4):
            a("v_cvt_pk_bf16_f32 v%d, v%d, v%d" % (PD + 8 * H + i, PD + 8 * H + 2 * i, PD + 8 * H + 2 * i + 1))
        a("ds_write_b128 v%d, %s" % (PW2 if H else PW, vr(PD + 8 * H, 4)))
    for i in range(2):
        a("ds_read_b128 %s, v%d offset:%d" % (vr(PB_ + 4 * i, 4), PR, 1024 * i))
    if XL == 2:
        a("ds_read_u16 v%d, v%d offset:%d" % (W3, V_T0 + 5, L_W3))
        a("ds_read_u16 v%d, v%d offset:%d" % (W3 + 1, V_T0 + 5, L_W3 + 64))
        if PSB:
            p_stores(2)
        bar_c(2 if PSB else 0)
        a("ds_read_b32 v%d, v%d offset:%d" % (SF, SF, F_SLOW))
        for x in tr_frags(W2F, TA, L1_W2 - L1_W1):
            a(x)
        tab_loads()
        if not PSB:
            p_stores(14)
        a("s_waitcnt lgkmcnt(0)")
        a("v_cmp_lt_u32_e64 s[44:45], 3, v%d" % SF)
    else:
        for x in tr_frags(W2F, TA, L1_W2 - L1_W1):
            a(x)
        a("ds_read_u16 v%d, v%d offset:%d" % (W3, V_T0 + 5, L_W3))
        a("ds_read_u16 v%d, v%d offset:%d" % (W3 + 1, V_T0 + 5, L_W3 + 64))
        p_stores(10)
        a("s_waitcnt lgkmcnt(2)")
    for x in tr_frags(WXF, TA, L1_WX - L1_W1):
        a(x)
    for x in tile_mfmas(QD, W2F, XF):
        a(x)
    a("s_waitcnt vmcnt(%d)" % (0 if XL == 2 and PSB else 2))
    a.label("L_tcheck")
    a("v_max3_i32 v3, v%d, v%d, v%d" % (TABV, TABV + 1, TABV + 2))
    a("v_max_i32 v3, v3, v%d" % (TABV + 3))
    a("v_cmp_le_i32 vcc, 0, v3")
    a("s_or_b64 vcc, vcc, s[44:45]")
    a("s_cbranch_vccnz L_tfail")
    stamp(a, "tab")
    RC = V_N[0]
    RT = V_T[0]
    ADR = V_T[0] + 12
    for p in range(4):
        a("v_add_u32 v%d, v%d, v%d" % (TABV + p, TABV + p, UC))
    a("v_cmp_le_u32 vcc, 0x%x, v3" % ((9 << 23) | (1 << 31)))
    a("s_cbranch_vccnz L2_extra")
    a.label("L2_noextra")
    for p in range(4):
        a("v_and_b32 v%d, s50, v%d" % (TABV + p, TABV + p))
        a("buffer_load_dwordx4 %s, v%d, %s, 0 offen %s" % (vr(RC + 4 * p, 4), TABV + p, sr(S_WS, 4), SC))
    a("s_cmp_eq_u32 s%d, 1" % S_ST)
    a("s_cbranch_scc1 L_after")
    a("s_mov_b32 s%d, 2" % S_ST)
    a.label("L_qr")
    a("v_cmp_eq_u32 vcc, 0, v%d" % HH)
    a("v_mov_b32 v%d, 0" % (V_AE + 2))
    a("v_mov_b32 v%d, 0" % (V_AE + 5))
    a("v_mov_b32 v%d, 0" % (V_AE + 6))
    a("s_waitcnt lgkmcnt(0)")
    for x in tile_mfmas(RD, WXF, XF):
        a(x)
    qr_out(QD, 0)
    for X in range(2):
        a("v_lshlrev_b32 v2, 16, v%d" % (W3 + X))
        a("v_mul_f32 v2, s%d, v2" % S_LG)
        a("v_cvt_pk_bf16_f32 v3, v%d, v2" % (V_AE + 1))
        a("v_sub_f32 v2, v2, v3")
        a("v_cvt_pk_bf16_f32 v2, v%d, v2" % (V_AE + 1))
        a("v_cndmask_b32 v%d, v2, v3, vcc" % (V_AE + 4 * X))
        a("v_cndmask_b32 v%d, v2, v3, vcc" % (V_AE + 4 * X + 3))
    qr_out(RD, L_R - L_Q)
    for i in range(12):
        a("v_mov_b32 v%d, -1" % (RT + i))
    stamp(a, "qr")
    a("s_cmp_lg_u32 s%d, 2" % S_ST)
    a("s_cbranch_scc1 L_tfail1")
    a.label("L_after")

    def p_ready(n):
        a("v_mov_b32 v2, 1")
        a("v_mov_b32 v3, %d" % F_PCNT)
        a("s_lshl_b32 s3, s2, 4")
        a("s_mov_b64 exec, 1")
        a("s_waitcnt vmcnt(%d)" % n)
        a("ds_add_rtn_u32 v3, v3, v2")
        a("s_add_u32 s3, s3, %d" % (WS_PT - (7 << 28) + (1 << 32)))
        a("s_mov_b32 s51, %d" % L_SEND)
        a("s_waitcnt lgkmcnt(0)")
        a("v_lshl_add_u32 v3, v3, 28, s3")
        a("buffer_store_dword v2, v3, %s, 0 offen %s" % (sr(S_WS, 4), SC))
        a("s_mov_b64 exec, -1")

    p_ready(4)
    stamp(a, "pack")
    a("v_mov_b32 v2, 4")

    def p1(rc, k):
        for i in range(3):
            a("v_lshlrev_b32_sdwa v%d, 2, v%d dst_sel:DWORD dst_unused:UNUSED_PAD src0_sel:DWORD src1_sel:BYTE_%d" % (ADR + k + i, rc + 3, i))
        for i in range(3):
            a("v_cmpx_ne_u32 vcc, 0, v%d" % (ADR + k + i))
            a("ds_add_rtn_u32 v%d, v%d, v2 offset:%d" % (RT + k + i, ADR + k + i, L_CNT))
        a("s_mov_b64 exec, -1")

    def p2(rc, k):
        for i in range(3):
            a("v_cmpx_gt_u32 vcc, s51, v%d" % (RT + k + i))
            a("ds_write_b32 v%d, v%d" % (RT + k + i, rc + i))
        a("s_mov_b64 exec, -1")

    a("s_cmp_lg_u32 s%d, 0" % S_EXTRA)
    a("s_cbranch_scc1 L2_xpl")
    a.label("L2_pl")
    a("s_waitcnt vmcnt(%d)" % (3 + NPF))
    stamp(a, "rec0")
    p1(RC, 0)
    a("s_waitcnt vmcnt(%d)" % (2 + NPF))
    p1(RC + 4, 3)
    a("s_waitcnt vmcnt(%d) lgkmcnt(0)" % (1 + NPF))
    p1(RC + 8, 6)
    p2(RC, 0)
    p2(RC + 4, 3)
    a("s_waitcnt vmcnt(%d)" % NPF)
    p1(RC + 12, 9)
    a("s_waitcnt lgkmcnt(0)")
    p2(RC + 8, 6)
    p2(RC + 12, 9)
    stamp(a, "placed")

    a.label("L2_build")
    L4, RB0, NC0, NC1 = V_U, V_U + 1, V_U + 2, V_U + 3
    C0, C1, FL = V_U + 4, V_U + 5, V_U + 6
    P0 = V_U + 8
    O0 = V_U + 10
    E0, E1 = V_N[0], V_N[0] + 8
    a("v_lshlrev_b32 v%d, 2, v%d" % (L4, V_LANE))
    a("s_mov_b32 s3, %d" % SSTR)
    a("v_mov_b32 v%d, %d" % (RB0, L_SLOT - 4))
    a("v_mad_u32_u24 v%d, v%d, s3, v%d" % (RB0, V_LANE, RB0))
    a("v_lshlrev_b32 v%d, 25, v%d" % (NC0, V_LANE))
    a("v_add3_u32 v%d, v%d, v%d, 4" % (NC0, NC0, RB0))
    a("v_add_u32 v%d, 0x%x, v%d" % (NC1, (64 << 25) + 64 * SSTR, NC0))
    a("s_cmp_lt_u32 s%d, %d" % (S_B, N - 97 * 256))
    a("s_cselect_b32 s%d, 3, 1" % (S_HI + 1))
    a("s_mov_b32 s%d, -1" % S_HI)
    a("s_mov_b32 s%d, 0" % S_LI)
    a("s_mov_b32 s%d, 0" % S_SAFE)
    a("v_mov_b32 v%d, %d" % (O0, L_SLOT + 98 * SSTR))
    a("s_lshl_b32 s3, s%d, 6" % S_W)
    a("v_and_b32 v3, 60, v%d" % L4)
    a("v_add_u32 v%d, s3, v3" % (V_T0 + 2))
    a("v_mov_b32 v2, 0x%x" % (127 << 25))
    a("ds_write_b32 v%d, v2 offset:%d" % (V_T0 + 2, L_NL))
    a("v_mov_b32 v%d, 0" % FL)
    a("v_add_u32 v3, %d, v%d" % (64 * SSTR, RB0))
    a("s_mov_b32 s42, 0x100401")
    a("s_waitcnt lgkmcnt(0)")
    a("s_barrier")
    stamp(a, "barD")
    PFV = V_D[0]

    def pf_loads():
        for k in range(4):
            a("global_load_dword v%d, v%d, %s offset:%d %s" % (PFV + k, V_PF, sr(P_WS, 2), 1024 * k, SC))

    pf_loads()
    if X_TEST & 2:
        for i in range(16):
            a("v_mov_b32 v%d, v%d" % (V_WA + i, V_ID + (i & 7)))
    a("ds_read_b32 v%d, v%d offset:%d" % (C0, L4, L_CNT + 4))
    a("ds_read_b32 v%d, v%d offset:%d" % (C1, L4, L_CNT + 4 + 256))
    a("ds_read_b32 v%d, v%d offset:%d" % (FL, FL, F_SLOW))
    a("ds_write_b32 v%d, v%d" % (V_T0 + 3, O0))
    a("s_waitcnt lgkmcnt(2)")
    a("v_sub_u32 v%d, v%d, v%d" % (C0, C0, RB0))
    a("v_sub_u32 v%d, v%d, v3" % (C1, C1))
    a("v_lshlrev_b32 v%d, 3, v%d" % (C0, C0))
    a("v_lshlrev_b32 v%d, 3, v%d" % (C1, C1))

    def lut_reads(off):
        a("ds_read_b128 %s, v%d offset:%d" % (vr(E0 + 4, 4), C0, off + 16))
        a("ds_read_b128 %s, v%d offset:%d" % (vr(E1 + 4, 4), C1, off + 16))
        a("ds_read_b128 %s, v%d offset:%d" % (vr(E0, 4), C0, off))
        a("ds_read_b128 %s, v%d offset:%d" % (vr(E1, 4), C1, off))

    lut_reads(L_LUT)
    a("v_max_u32 v2, v%d, v%d" % (C0, C1))
    a("v_cmp_lt_u32 vcc, %d, v2" % (32 * (DMAX + 1)))
    a("s_waitcnt lgkmcnt(4)")
    a("v_cmp_lt_u32_e64 s[40:41], 1, v%d" % FL)
    a("s_or_b64 vcc, vcc, s[40:41]")
    a("s_cbranch_vccnz L2_slow")
    a.label("L2_scan")
    a("s_waitcnt lgkmcnt(2)")
    a("v_add_u32 v%d, v%d, v%d" % (O0, E0 + 4, E1 + 4))
    a("v_add_u32 v%d, v%d, v%d" % (O0 + 1, E0 + 5, E1 + 5))
    a("v_mov_b32 v%d, v%d" % (P0, O0))
    a("v_mov_b32 v%d, v%d" % (P0 + 1, O0 + 1))
    a("s_waitcnt lgkmcnt(0)")
    dpp_scan(a, [P0, P0 + 1], fill=["v_add_u32 v%d, v%d, v%d" % (E0 + i, E0 + i, NC0) for i in range(4)] +
             ["v_add_u32 v%d, v%d, v%d" % (E1 + i, E1 + i, NC1) for i in range(4)])
    a("v_readlane_b32 s44, v%d, 63" % P0)
    a("v_readlane_b32 s45, v%d, 63" % (P0 + 1))
    a("v_sub_u32 v%d, v%d, v%d" % (P0, P0, O0))
    a("v_sub_u32 v%d, v%d, v%d" % (P0 + 1, P0 + 1, O0 + 1))
    a("s_mul_i32 s44, s44, s42")
    a("s_mul_i32 s45, s45, s42")
    a("s_bfe_u32 s46, s44, 0x%x" % ((10 << 16) | 20))
    a("s_bfe_u32 s47, s45, 0x%x" % ((10 << 16) | 20))
    a("s_lshl_b32 s44, s44, 10")
    a("s_lshl_b32 s45, s45, 10")
    a("s_add_u32 s47, s47, s46")
    a("s_mul_i32 s46, s46, s42")
    a("v_add_u32 v%d, s44, v%d" % (P0, P0))
    a("s_add_u32 s45, s45, s46")
    a("s_cmp_gt_u32 s47, 256")
    a("s_cbranch_scc1 L2_retry")
    a("v_add_u32 v%d, s45, v%d" % (P0 + 1, P0 + 1))
    a("v_lshrrev_b64 %s, v%d, %s" % (vr(O0, 2), E0 + 6, vr(P0, 2)))
    a("v_add_u32 v%d, v%d, v%d" % (P0, P0, E0 + 4))
    a("v_add_u32 v%d, v%d, v%d" % (P0 + 1, P0 + 1, E0 + 5))
    a("v_and_b32 v2, 0x1ff, v%d" % O0)
    a("v_lshrrev_b64 %s, v%d, %s" % (vr(O0, 2), E1 + 6, vr(P0, 2)))
    a("v_lshl_add_u32 v2, v2, 2, s%d" % S_XT)
    a("ds_write2_b32 v2, v%d, v%d offset0:2 offset1:3" % (E0 + 2, E0 + 3))
    a("v_and_b32 v3, 0x1ff, v%d" % O0)
    a("v_lshl_add_u32 v3, v3, 2, s%d" % S_XT)
    a("s_mov_b64 exec, %s" % sr(S_HI, 2))
    a("ds_write2_b32 v3, v%d, v%d offset0:2 offset1:3" % (E1 + 2, E1 + 3))
    a("ds_write2_b32 v3, v%d, v%d offset0:0 offset1:1" % (E1, E1 + 1))
    a("s_mov_b64 exec, -1")
    a("ds_write2_b32 v2, v%d, v%d offset0:0 offset1:1" % (E0, E0 + 1))
    a("s_lshl_b32 s3, s%d, 7" % S_BT)
    a("s_add_u32 s3, s3, s%d" % S_XT)
    a("v_lshrrev_b32 v2, 3, v%d" % V_LANE)
    a("v_lshl_add_u32 v2, v2, 2, s3")
    for i in range(4):
        a("ds_read_u16 v%d, v2 offset:%d" % (V_IA + i, 32 * i))
    a("ds_read_b32 v%d, v%d" % (V_W, V_T0 + 3))
    a("s_mov_b32 s%d, %d" % (S_X + 2, NP))
    a(dma_m0(0))
    a("s_mov_b32 s3, %d" % RSTR)
    a("v_lshlrev_b32 v3, 5, v%d" % HH)
    a("s_waitcnt lgkmcnt(1)")
    for x in idx_reads(0):
        a(x)
    a("s_waitcnt lgkmcnt(4)")
    a("v_and_b32 v%d, 0xffff, v%d" % (V_RA, V_W))
    a("v_bfe_u32 v%d, v%d, 16, 6" % (V_LEN, V_W))
    a("v_lshrrev_b32 v2, 25, v%d" % V_W)
    a("v_mad_u32_u24 v%d, v2, s3, v3" % V_QA)
    a("v_add_u32 v%d, %d, v%d" % (V_QA, L_Q, V_QA))
    a("s_waitcnt vmcnt(0)")
    a.label("L_pf_check")
    a("v_and_b32 v2, v%d, v%d" % (PFV, PFV + 1))
    a("v_and_b32 v2, v2, v%d" % (PFV + 2))
    a("v_and_b32 v2, v2, v%d" % (PFV + 3))
    a("v_cmp_ne_u32 vcc, 1, v2")
    a("s_cbranch_vccnz L_pf_again")
    a.label("L_pf_ok")
    stamp(a, "pf")
    d = dma_loads()
    for i in range(4):
        a("s_waitcnt lgkmcnt(%d)" % (3 - i))
        a(d[i])
    stamp(a, "dma0")
    for x in idx_reads(4):
        a(x)
    a("ds_read2_b32 %s, v%d offset0:0 offset1:1" % (vr(V_R, 2), V_RA))
    for x in row_reads(V_C, V_QA):
        a(x)
    KF = V_T0 + 4
    a("v_bfe_u32 v%d, v%d, 22, 3" % (KF, V_W))
    a("v_mov_b32 v%d, v%d" % (V_T0 + 5, V_LEN))
    a("v_cmp_ne_u32 vcc, 0, v%d" % KF)
    a("v_add_u32 v2, %d, v%d" % (L_R - L_Q, V_QA))
    a("v_add_u32 v%d, %d, v3" % (V_RC, L_ZERO))
    a("v_cndmask_b32 v%d, v%d, v2, vcc" % (V_RC, V_RC))
    a("v_mbcnt_lo_u32_b32 v2, vcc_lo, 0")
    a("s_lshl_b32 s40, s%d, 6" % S_W)
    a("v_lshl_add_u32 v2, v2, 2, s40")
    a("s_mov_b32 s41, 0xffc00000")
    a("v_and_or_b32 v%d, v%d, s41, v%d" % (V_NW, V_W, COL))
    a(dma_m0(1))
    a("s_waitcnt lgkmcnt(9)")
    for x in dma_loads():
        a(x)
    for x in idx_reads(8):
        a(x)
    a("s_mov_b32 exec_lo, vcc_lo")
    a("s_mov_b32 exec_hi, 0")
    a("ds_write_b32 v2, v%d offset:%d" % (V_NW, L_NL))
    a("s_mov_b64 exec, -1")
    a("v_and_b32 v2, 60, v%d" % V_LANE)
    a("v_add_u32 v2, s40, v2")
    a("ds_read_b32 v%d, v2 offset:%d" % (V_NW, L_NL))
    a("v_add_u32 v2, v%d, v%d" % (KF, COL))
    a("v_cmp_lt_u32 vcc, 32, v2")
    a("v_mad_u32_u24 v%d, v%d, s3, v3" % (V_YW, COL))
    a("v_add_u32 v%d, s%d, v%d" % (V_YW, S_XT, V_YW))
    a("s_cmp_lg_u64 vcc, 0")
    a("s_cselect_b32 s%d, 1, 0" % S_NEED)
    a("s_cmp_lg_u32 s%d, 7" % S_BT)
    a("s_cselect_b32 s%d, s%d, 0" % (S_NEED, S_NEED))
    dpp_scan(a, [V_T0 + 5], op="v_max_u32", fill=[
        "v_cmp_lt_u32_e64 %s, 0, v%d" % (sr(S_M0, 2), V_LEN),
        "v_cmp_lt_u32_e64 %s, 1, v%d" % (sr(S_M[1], 2), V_LEN),
        "v_mov_b32 v%d, 0" % V_S, "v_mov_b32 v%d, 0" % (V_S + 1)])
    a("s_nop 0")
    a("v_readlane_b32 s%d, v%d, 63" % (S_ML, V_T0 + 5))
    a("s_mov_b32 s%d, 1" % S_J)
    a("s_waitcnt vmcnt(4)")
    for x in b_reads(0):
        a(x)
    a("s_max_u32 s%d, s%d, 2" % (S_ML, S_ML))
    a("s_cmp_gt_u32 s%d, 2" % S_ML)
    a("s_cselect_b32 s%d, %d, 0" % (S_X + 2, NP))
    a(dma_m0(0))
    mf = mfma_chain(0, 0, V_N[0])
    a("s_waitcnt lgkmcnt(4)")
    a(mf[0])
    a("s_waitcnt lgkmcnt(0)")
    for x in mf[1:]:
        a(x)
    for x in dma_loads():
        a(x)
    stamp(a, "loop")
    a("s_nop 6")
    me(a, mfma_chain(1, 0, V_N[1]), exps(V_N[0]))
    a("s_waitcnt vmcnt(4)")
    for x in b_reads(1) + idx_reads(12) + pk_first(0):
        a(x)
    a("s_cmp_gt_u32 s%d, 3" % S_ML)
    a("s_cselect_b32 s%d, %d, 0" % (S_X + 2, NP))
    a(dma_m0(1))
    a("s_waitcnt lgkmcnt(0)")
    me(a, mfma_chain(0, 1, V_T[0]), exps(V_N[1]))
    for x in dma_loads():
        a(x)
    for x in pk_first(1):
        a(x)
    a("s_branch L2_loop")
    a.label("L_tfail")
    tab_loads()
    a("s_cmp_eq_u32 s%d, 0" % S_ST)
    a("s_cbranch_scc1 L_qr")
    a("s_sub_u32 s%d, s%d, 1" % (S_TO, S_TO))
    a("s_cbranch_scc1 L_timeout")
    a.label("L_tback")
    a("s_waitcnt vmcnt(0)")
    a("s_branch L_tcheck")
    a.label("L_tfail1")
    a("s_mov_b32 s%d, 1" % S_ST)
    a("s_cmp_lg_u64 s[44:45], 0")
    a("s_cbranch_scc1 L2_build")
    a("s_branch %s" % ("L_padt" if PADS else "L_tback"))
    a.label("L_fagain")
    a("s_sleep 1")
    a("global_load_dword v%d, v%d, %s %s" % (FLG, FA, sr(P_DBG, 2), SC))
    a("s_sub_u32 s%d, s%d, 1" % (S_TO, S_TO))
    a("s_waitcnt vmcnt(0)")
    a("s_cbranch_scc0 L_fpoll")
    a("v_mov_b32 v3, 6")
    a("v_mov_b32 v2, %d" % F_SLOW)
    a("ds_or_b32 v2, v3")
    a("s_waitcnt lgkmcnt(0)")
    a("s_branch L_barC")
    a.label("L_pf_again")
    a("s_sub_u32 s%d, s%d, 1" % (S_PCK, S_PCK))
    a("s_cselect_b32 s%d, 0, s%d" % (S_PCK, S_PCK))
    a("s_cbranch_scc1 L_pf_ok")
    a("s_sleep 1")
    pf_loads()
    a("s_waitcnt vmcnt(0)")
    a("s_branch L_pf_check")
    semi0 = len(a.l)
    a.label("L2_extra")
    a("s_mov_b32 s%d, 1" % S_EXTRA)
    a("v_cmp_le_u32 vcc, 0x%x, v3" % ((17 << 23) | (1 << 31)))
    a("s_cbranch_vccz L2_noflag")
    a("s_mov_b32 s%d, 3" % S_EXTRA)
    a.label("L2_noflag")
    for p in range(4):
        a("v_add_u32 v3, 0x%x, v%d" % ((128 - (8 << 23)) & 0xffffffff, TABV + p))
        a("v_and_b32 v3, s50, v3")
        a("buffer_load_dwordx4 %s, v3, %s, 0 offen %s" % (vr(RC + 16 + 4 * p, 4), sr(S_WS, 4), SC))
    a("s_branch L2_noextra")
    a.label("L2_retry")
    a("s_add_u32 s%d, s%d, 1" % (S_LI, S_LI))
    a("s_cmp_lg_u32 s%d, 1" % S_LI)
    a("s_cbranch_scc1 L2_retry2")
    a.label("L2_retry1")
    lut_reads(L_LUT + 2048)
    a("s_branch L2_scan")
    if PADS:
        semi = a.l[semi0:]
        del a.l[semi0:]
        k = a.l.index("@SEMI@")
        a.l[k:k + 1] = semi
        a.raw(".p2align 12")
        a.raw("@PAGE@")
        a.label("L_padt")
        a("s_branch L_tback")
    a.raw(".p2align 6")
    a.label("L2_loop")
    for par in (1, 0):
        me(a, mfma_chain(1, par, V_T[1]), exps(V_T[0]))
        a("s_add_u32 s%d, s%d, 1" % (S_J, S_J))
        a("s_waitcnt vmcnt(4)")
        for x in b_reads(par + 1) + idx_reads(16 if par else 20):
            a(x)
        if par == 1:
            a("ds_read2_b32 %s, v%d offset0:2 offset1:3" % (vr(V_R, 2), V_RA))
        a("s_cmp_ge_u32 s%d, s%d" % (S_J, S_ML))
        a("s_mov_b64 exec, %s" % sr(S_M[par], 2))
        for x in pk_update(0):
            a(x)
        a("s_cbranch_scc1 L2_last")
        a("s_mov_b64 exec, -1")
        a("s_add_u32 s%d, s%d, 2" % (S_T, S_J))
        a("s_cmp_lt_u32 s%d, s%d" % (S_T, S_ML))
        a("s_cselect_b32 s%d, %d, 0" % (S_X + 2, NP))
        a(dma_m0(par ^ 1))
        a("s_waitcnt lgkmcnt(0)")
        extra = ["v_cmp_lt_u32_e64 %s, s%d, v%d" % (sr(S_M[par ^ 1], 2), S_J, V_LEN)]
        if par == 0:
            extra += ["v_add_u32 v%d, 8, v%d" % (V_IA + i, V_IA + i) for i in range(4)] + ["v_add_u32 v%d, 8, v%d" % (V_RA, V_RA)]
        me(a, mfma_chain(0, par ^ 1, V_T[0]), exps(V_T[1]), extra)
        for x in dma_loads():
            a(x)
        a("s_mov_b64 exec, %s" % sr(S_M[par], 2))
        for x in pk_update(1):
            a(x)
        a("s_mov_b64 exec, -1")
    a("s_branch L2_loop")

    a.label("L2_last")
    a("s_mov_b64 %s, exec" % sr(S_T + 2, 2))
    a("s_mov_b64 exec, -1")
    a("s_waitcnt lgkmcnt(0)")
    stamp(a, "last")
    for x in row_reads(V_C, V_RC) + exps(V_T[1]) + wa_reads()[:7]:
        a(x)
    a("s_mov_b64 exec, %s" % sr(S_T + 2, 2))
    for x in pk_update(1):
        a(x)
    a("s_mov_b64 exec, -1")
    for x in wa_reads()[7:]:
        a(x)
    a.label("L2_final")
    PB = V_B[0]
    a("s_not_b64 exec, %s" % sr(S_M0, 2))
    a("s_cbranch_execz L2_nz")
    for i in range(16):
        a("v_mov_b32 v%d, 0" % (PB + i))
    a.label("L2_nz")
    a("s_mov_b64 exec, %s" % sr(S_M0, 2))

    def fin(X):
        n, d, t = V_N[X], V_D[X], V_T[X]
        r = ["v_rcp_f32 v%d, v%d" % (t + i, d + i) for i in range(16)]
        s = ["v_pk_fma_f32 %s, %s, %s, %s" % (vr(V_S, 2), vr(d + 4 * i, 2), vr(d + 4 * i + 2, 2), vr(V_S, 2)) for i in range(4)]
        m = ["v_pk_mul_f32 %s, %s, %s" % (vr(t + 2 * i, 2), vr(t + 2 * i, 2), vr(n + 2 * i, 2)) for i in range(8)]
        c = ["v_cvt_pk_bf16_f32 v%d, v%d, v%d" % (PB + 8 * X + i, t + 2 * i, t + 2 * i + 1) for i in range(8)]
        return r, [s[0], m[0], m[1], s[1], m[2], m[3], s[2], m[4], m[5], s[3], m[6], m[7]] + c

    def ymf(o, q):
        return "v_mfma_f32_32x32x16_bf16 %s, %s, %s, %s" % (vr(V_C[o], 16), vr(wa_reg(o, q), 4), vr(PB + 4 * q, 4), vr(V_C[o], 16))

    r, p = fin(0)
    for x in r + p:
        a(x)
    r, p = fin(1)
    a("s_waitcnt vmcnt(0) lgkmcnt(0)")
    a(r[0])
    phase(a, [ymf(0, 0), ymf(1, 0), ymf(0, 1), ymf(1, 1)], r[1:])
    for x in p:
        a(x)
    a("s_nop 1")
    for x in (ymf(0, 2), ymf(1, 2), ymf(0, 3), ymf(1, 3)):
        a(x)
    a("v_mov_b32 v2, 0x%08x" % f32(2.0 ** 120))
    a("v_add_f32 v3, v%d, v%d" % (V_S, V_S + 1))
    a("s_movk_i32 s40, 0x207")
    a("v_cmp_nlt_f32 vcc, v3, v2")
    a("s_mov_b64 exec, -1")
    YR, OA, KK = V_T0 + 2, V_T0 + 4, V_T0 + 5
    a("s_mov_b32 s3, %d" % RSTR)
    a("v_and_b32 v2, 3, v%d" % V_LANE)
    a("v_and_b32 v3, 0xff, v%d" % V_NW)
    a("v_lshl_add_u32 v%d, v2, 5, s%d" % (YR, S_XT))
    a("v_mad_u32_u24 v%d, v3, s3, v%d" % (YR, YR))
    a("v_lshrrev_b32 v3, 25, v%d" % V_NW)
    a("v_lshl_add_u32 v%d, v3, 8, s%d" % (OA, S_B))
    a("v_lshlrev_b32 v%d, 7, v%d" % (OA, OA))
    a("v_lshl_add_u32 v%d, v2, 4, v%d" % (OA, OA))
    a("v_bfe_u32 v%d, v%d, 22, 3" % (KK, V_NW))
    a("v_cmp_class_f32_e64 s[42:43], v%d, s40" % V_C[1])
    a("s_lshl_b32 s41, s%d, 2" % S_BT)
    a("s_and_b64 s[42:43], s[42:43], %s" % sr(S_M0, 2))
    a("s_or_b64 vcc, vcc, s[42:43]")
    a("s_cselect_b32 s42, 1, 0")
    a("s_andn2_b32 s42, s42, s%d" % S_SAFE)
    a("s_cbranch_scc1 L2_safe")
    for X in range(2):
        for q in range(4):
            a("ds_write_b128 v%d, %s offset:%d" % (V_YW, vr(V_C[X] + 4 * q, 4), row_off(X, q)))
    a("v_mov_b32 v2, s41")
    a("v_mov_b32 v3, 1")
    a("v_cmp_lt_u32_e64 s[44:45], 2, v%d" % KK)
    a("v_cmp_lt_u32_e64 s[46:47], 3, v%d" % KK)
    a("s_waitcnt lgkmcnt(0)")
    a("ds_write_b32 v2, v3 offset:%d" % L_FLAG)
    a("s_cmp_eq_u32 s%d, 0" % S_NEED)
    a("s_cbranch_scc1 L2_nowait")
    a.label("L2_poll")
    a("ds_read_b32 v3, v2 offset:%d" % (L_FLAG + 4))
    a("s_waitcnt lgkmcnt(0)")
    a("v_cmp_eq_u32 vcc, 0, v3")
    a("s_cbranch_vccnz L2_poll")
    a.label("L2_nowait")
    stamp(a, "ywait")
    Y = [V_N[0], V_N[1], V_D[0], V_D[1]]

    def yreads(i):
        for c in range(4):
            a("ds_read_b128 %s, v%d offset:%d" % (vr(Y[i] + 4 * c, 4), YR, RSTR * i + 128 * (c >> 1) + 16 * (c & 1)))

    def yadd(i):
        for c in range(8):
            a("v_pk_add_f32 %s, %s, %s" % (vr(Y[0] + 2 * c, 2), vr(Y[0] + 2 * c, 2), vr(Y[i] + 2 * c, 2)))

    yreads(0)
    yreads(1)
    yreads(2)
    a("s_mov_b32 s40, 0x%08x" % f32(-LN2))
    a("s_mov_b32 s41, 0x%08x" % f32(-LN2))
    a("s_cmp_eq_u64 s[46:47], 0")
    a("s_cbranch_scc1 L2_no4")
    yreads(3)
    a("s_waitcnt lgkmcnt(0)")
    a("s_mov_b64 exec, s[46:47]")
    yadd(3)
    a("s_mov_b64 exec, -1")
    a.label("L2_no4")
    a("s_waitcnt lgkmcnt(4)")
    yadd(1)
    a("s_waitcnt lgkmcnt(0)")
    a("s_mov_b64 exec, s[44:45]")
    yadd(2)
    a("s_mov_b64 exec, -1")
    a("s_cmp_eq_u32 s%d, 1" % S_MODE)
    a("s_cbranch_scc1 L2_writeback")
    U = V_U
    for i in range(16):
        a("v_exp_f32 v%d, v%d" % (U + i, Y[0] + i))
    for i in range(8):
        a("v_pk_add_f32 %s, %s, %s" % (vr(U + 2 * i, 2), vr(U + 2 * i, 2), sr(S_ONE, 2)))
    for i in range(16):
        a("v_rcp_f32 v%d, v%d" % (U + i, U + i))
    for i in range(8):
        a("v_pk_mul_f32 %s, %s, s[40:41]" % (vr(Y[0] + 2 * i, 2), vr(Y[0] + 2 * i, 2)))
    for i in range(8):
        a("v_pk_mul_f32 %s, %s, %s" % (vr(U + 2 * i, 2), vr(U + 2 * i, 2), vr(Y[0] + 2 * i, 2)))
    P = V_B[1]
    for i in range(4):
        a("v_cvt_pk_bf16_f32 v%d, v%d, v%d" % (P + i, U + 2 * i, U + 2 * i + 1))
    a("buffer_store_dwordx4 %s, v%d, %s, 0 offen %s" % (vr(P, 4), OA, sr(S_OUT, 4), SCO))
    for i in range(4, 8):
        a("v_cvt_pk_bf16_f32 v%d, v%d, v%d" % (P + i, U + 2 * i, U + 2 * i + 1))
    a("buffer_store_dwordx4 %s, v%d, %s, 0 offen offset:64 %s" % (vr(P + 4, 4), OA, sr(S_OUT, 4), SCO))
    stamp_out(a)
    a.label("L_end")
    a("s_endpgm")

    a.label("L2_xpl")
    a("s_waitcnt vmcnt(%d)" % (4 + NPF))
    for p in range(4):
        p1(RC + 16 + 4 * p, 3 * p)
    a("v_mov_b32 v3, s%d" % S_EXTRA)
    a("v_mov_b32 v%d, %d" % (V_U, F_SLOW))
    a("ds_or_b32 v%d, v3" % V_U)
    a("s_waitcnt lgkmcnt(0)")
    for p in range(4):
        p2(RC + 16 + 4 * p, 3 * p)
    a("s_branch L2_pl")
    a.label("L_timeout")
    a("v_mov_b32 v3, 6")
    a("v_mov_b32 v2, %d" % F_SLOW)
    a("ds_or_b32 v2, v3")
    p_ready(0)
    a("s_branch L2_build")

    a.label("L2_retry2")
    a("s_barrier")
    a("s_cmp_eq_u32 s%d, 2" % S_LI)
    a("s_cselect_b32 s3, %d, %d" % (LS[2], LS[3]))
    lut_build(a, 3, V_T[0], L_LUT + 2048)
    a("s_branch L2_retry1")

    a.label("L2_safe")
    a("s_mov_b32 s%d, 1" % S_SAFE)
    a("s_mov_b32 s%d, %d" % (S_X + 2, NP))
    a("s_nop 7")
    for x in row_reads(V_C, V_QA):
        a(x)
    a("v_and_b32 v2, 0xffff, v%d" % V_W)
    a("v_sub_u32 v2, v%d, v2" % V_RA)
    for i in range(4):
        a("v_sub_u32 v%d, v%d, v2" % (V_IA + i, V_IA + i))
    a("v_sub_u32 v%d, v%d, v2" % (V_RA, V_RA))
    for i in range(32):
        a("v_mov_b32 v%d, 0" % (V_N[0] + i))
        a("v_mov_b32 v%d, 1.0" % (V_D[0] + i))
    a("v_mov_b32 v%d, 0x%x" % (V_R + 1, PAD))
    a("s_mov_b32 s%d, 0" % S_J)
    a.label("L2_safe_loop")
    for x in idx_reads(0):
        a(x)
    a("ds_read_b32 v%d, v%d" % (V_R, V_RA))
    a("s_waitcnt lgkmcnt(0)")
    dma_plain(a, 0)
    a("v_cmp_lt_u32_e64 %s, s%d, v%d" % (sr(S_M[0], 2), S_J, V_LEN))
    for i in range(4):
        a("v_add_u32 v%d, 4, v%d" % (V_IA + i, V_IA + i))
    a("v_add_u32 v%d, 4, v%d" % (V_RA, V_RA))
    a("s_waitcnt vmcnt(0)")
    for x in b_reads(0):
        a(x)
    a("s_waitcnt lgkmcnt(0)")
    for x in mfma_chain(0, 0, V_T[0]) + mfma_chain(1, 0, V_T[1]):
        a(x)
    a("s_nop 7")
    a("s_nop 3")
    a("s_mov_b64 exec, %s" % sr(S_M[0], 2))
    for X in range(2):
        for x in exps(V_T[X]):
            a(x)
        for i in range(8):
            a("v_pk_add_f32 %s, %s, %s" % (vr(U + 2 * i, 2), vr(U + 2 * i, 2), sr(S_ONE, 2)))
        for i in range(16):
            a("v_rcp_f32 v%d, v%d" % (U + i, U + i))
        for i in range(8):
            a("v_pk_fma_f32 %s, %s, %s, %s" % (vr(V_N[X] + 2 * i, 2), vr(V_T[X] + 2 * i, 2), vr(U + 2 * i, 2), vr(V_N[X] + 2 * i, 2)))
    a("s_mov_b64 exec, -1")
    a("s_add_u32 s%d, s%d, 1" % (S_J, S_J))
    a("s_cmp_lt_u32 s%d, s%d" % (S_J, S_ML))
    a("s_cbranch_scc1 L2_safe_loop")
    for x in row_reads(V_C, V_RC):
        a(x)
    a("s_branch L2_final")

    a.label("L2_slow")
    a("s_mov_b32 s%d, 1" % S_MODE)
    a("s_mov_b32 s%d, 0" % S_POS)
    a("v_mov_b32 v%d, 0" % V_DONE)
    a("v_cmp_gt_u32 vcc, 4, v%d" % FL)
    a("s_waitcnt vmcnt(0) lgkmcnt(0)")
    a("s_cbranch_vccnz L2_slow_round")
    a("s_barrier")
    t = V_U
    a("v_and_b32 v2, 16, v%d" % V_LANE)
    a("v_lshlrev_b32 v2, 2, v2")
    a("v_xor_b32 v2, v2, v%d" % V_L16)
    a("s_lshl_b32 s3, s%d, 10" % S_W)
    a("v_add_u32 v2, s3, v2")
    a("s_add_u32 m0, s3, %d" % L1_W1)
    a("v_lshrrev_b32 v3, 4, v%d" % V_LANE)
    a("global_load_lds_dwordx4 v2, %s" % sr(P_WM, 2))
    a("v_bfe_u32 v2, v%d, 2, 2" % V_LANE)
    a("v_lshl_add_u32 v%d, v3, 3, v2" % t)
    a("v_lshlrev_b32 v%d, 7, v%d" % (t, t))
    a("v_lshrrev_b32 v2, 1, v2")
    a("v_lshl_or_b32 v%d, v2, 6, v%d" % (t, t))
    a("v_and_b32 v2, 3, v%d" % V_LANE)
    a("v_lshl_or_b32 v%d, v2, 4, v%d" % (t, t))
    a("v_xor_b32 v%d, 64, v%d" % (t + 1, t))
    a("v_add_u32 v%d, %d, v%d" % (t, L1_W1, t))
    a("v_add_u32 v%d, %d, v%d" % (t + 1, L1_W1, t + 1))
    a("v_and_b32 v2, 15, v%d" % V_LANE)
    a("s_lshl_b32 s3, s%d, 4" % S_W)
    a("v_add_u32 v%d, s3, v2" % (t + 2))
    a("v_lshlrev_b32 v%d, 4, v3" % (t + 4))
    a("v_add_u32 v%d, 3072, v%d" % (t + 7, t + 4))
    a("s_mov_b32 s%d, %d" % (S_X + 2, NP))
    a("s_waitcnt vmcnt(0)")
    a("s_barrier")
    for x in tr_frags(V_C[0], t, 0):
        a(x)
    a("s_waitcnt lgkmcnt(0)")
    for x in tr_frags(V_C[1], t + 1, 0):
        a(x)
    a("s_mov_b32 s3, %d" % ((N + 127) // 128))
    a("s_mov_b32 s%d, 0" % S_PCK)
    a.label("L_allp")
    a("v_min_u32 v2, %d, v%d" % (N - 1, t + 2))
    a("v_lshl_add_u32 v2, v2, 7, v%d" % (t + 4))
    a("global_load_dwordx4 %s, v2, %s" % (vr(V_B[0], 4), sr(P_X, 2)))
    a("global_load_dwordx4 %s, v2, %s offset:64" % (vr(V_B[0] + 4, 4), sr(P_X, 2)))
    a("v_and_b32 v2, 255, v%d" % (t + 2))
    a("v_lshrrev_b32 v%d, 8, v%d" % (t + 6, t + 2))
    a("v_mul_u32_u24 v2, %d, v2" % NLOC)
    a("v_add_u32 v%d, v2, v%d" % (t + 6, t + 6))
    a("s_waitcnt vmcnt(0) lgkmcnt(0)")
    for s in range(2):
        for H in range(2):
            for blk in range(2):
                a(mf16(V_T[0] + 8 * H + 4 * blk, V_C[H] + 8 * blk + 4 * s, V_B[0] + 4 * s, s == 0))
    a("s_nop 7")
    for i in range(8):
        a("v_pk_mul_f32 %s, %s, %s" % (vr(V_T[0] + 2 * i, 2), vr(V_T[0] + 2 * i, 2), sr(S_LG, 2)))
    for i in range(8):
        a("v_cvt_pk_bf16_f32 v%d, v%d, v%d" % (V_T[1] + i, V_T[0] + 2 * i, V_T[0] + 2 * i + 1))
    a("buffer_store_dwordx4 %s, %s, %s, 0 idxen offen %s" % (vr(V_T[1], 4), vr(t + 6, 2), sr(S_X, 4), SC))
    a("buffer_store_dwordx4 %s, %s, %s, 0 idxen offen offset:64 %s" % (vr(V_T[1] + 4, 4), vr(t + 6, 2), sr(S_X, 4), SC))
    a("v_add_u32 v%d, 128, v%d" % (t + 2, t + 2))
    a("s_sub_u32 s3, s3, 1")
    a("s_cmp_lg_u32 s3, 0")
    a("s_cbranch_scc1 L_allp")
    a("s_waitcnt vmcnt(0)")
    a("s_branch L2_slow_round")
    a.label("L2_writeback")
    a("v_cmp_ne_u32 vcc, 0, v%d" % KK)
    a("v_lshrrev_b32 v3, 25, v%d" % V_NW)
    a("v_and_b32 v2, 3, v%d" % V_LANE)
    a("v_lshlrev_b32 v2, 5, v2")
    a("v_mad_u32_u24 v2, v3, s3, v2")
    a("v_add_u32 v2, %d, v2" % L_R)
    a("s_mov_b64 exec, vcc")
    for c in range(4):
        a("ds_write_b128 v2, %s offset:%d" % (vr(Y[0] + 4 * c, 4), 128 * (c >> 1) + 16 * (c & 1)))
    a("s_mov_b64 exec, -1")
    a("s_waitcnt lgkmcnt(0)")
    a.label("L2_slow_round")
    a("s_barrier")
    lds_init(a, V_U)
    a("s_waitcnt lgkmcnt(0)")
    a("s_barrier")
    a.label("L2_slow_step")
    a("s_cmp_lt_u32 s%d, %d" % (S_POS, E))
    a("s_cbranch_scc1 L2_slow_go")
    a("s_mov_b32 s%d, 2" % S_MODE)
    a("s_branch L2_build")
    a.label("L2_slow_go")
    a("v_add_u32 v2, s%d, v0" % S_POS)
    a("v_cmp_gt_u32 vcc, %d, v2" % E)
    a("v_min_u32 v2, %d, v2" % (E - 1))
    a("v_lshlrev_b32 v3, 1, v2")
    a("v_lshlrev_b32 v2, 2, v2")
    a("global_load_dword v%d, v2, %s" % (t, sr(P_DST, 2)))
    a("global_load_dword v%d, v2, %s" % (t + 1, sr(P_SRC, 2)))
    a("global_load_ushort v%d, v3, %s" % (t + 2, sr(P_E, 2)))
    a("v_cmp_eq_u32_e64 s[40:41], 0, v%d" % V_DONE)
    a("s_and_b64 s[40:41], s[40:41], vcc")
    a("s_mov_b32 s3, %d" % SSTR)
    a("v_mov_b32 v%d, %d" % (t + 4, L_SLOT + 4 * DMAX))
    a("v_mov_b32 v2, 4")
    a("s_waitcnt vmcnt(0)")
    a("v_and_b32 v3, 255, v%d" % t)
    a("v_cmp_eq_u32 vcc, s%d, v3" % S_B)
    a("v_lshrrev_b32 v3, 8, v%d" % t)
    a("v_mad_u32_u24 v%d, v3, s3, v%d" % (t + 4, t + 4))
    a("v_lshlrev_b32 v3, 2, v3")
    a("v_and_b32 v%d, 255, v%d" % (t + 5, t + 1))
    a("v_lshrrev_b32 v%d, 8, v%d" % (t + 1, t + 1))
    a("v_mul_u32_u24 v%d, %d, v%d" % (t + 5, NLOC, t + 5))
    a("v_add_u32 v%d, v%d, v%d" % (t + 1, t + 1, t + 5))
    a("v_lshl_or_b32 v%d, v%d, 16, v%d" % (t + 1, t + 2, t + 1))
    a("s_and_b64 exec, vcc, s[40:41]")
    a("ds_add_rtn_u32 v%d, v3, v2 offset:%d" % (t + 3, L_CNT + 4))
    a("s_waitcnt lgkmcnt(0)")
    a("v_cmp_lt_u32 vcc, v%d, v%d" % (t + 3, t + 4))
    a("s_andn2_b64 s[40:41], exec, vcc")
    a("s_mov_b64 exec, vcc")
    a("ds_write_b32 v%d, v%d" % (t + 3, t + 1))
    a("v_mov_b32 v%d, 1" % V_DONE)
    a("s_mov_b64 exec, s[40:41]")
    a("v_mov_b32 v%d, %d" % (t + 5, F_PEND))
    a("ds_write_b32 v%d, v2" % (t + 5))
    a("s_mov_b64 exec, -1")
    a("s_waitcnt lgkmcnt(0)")
    a("s_barrier")
    a("s_mov_b64 exec, s[40:41]")
    a("ds_min_u32 v3, v%d offset:%d" % (t + 4, L_CNT + 4))
    a("s_mov_b64 exec, -1")
    a("v_mov_b32 v%d, %d" % (t + 5, F_PEND))
    a("ds_read_b32 v%d, v%d" % (t + 5, t + 5))
    a("s_waitcnt lgkmcnt(0)")
    a("v_cmp_ne_u32 vcc, 0, v%d" % (t + 5))
    a("s_cbranch_vccnz L2_build")
    a("s_barrier")
    a("s_add_u32 s%d, s%d, 512" % (S_POS, S_POS))
    a("v_mov_b32 v%d, 0" % V_DONE)
    a("s_branch L2_slow_step")


def kd(name, vgpr, sgpr):
    return """.amdhsa_kernel %s
  .amdhsa_next_free_vgpr %d
  .amdhsa_next_free_sgpr %d
  .amdhsa_accum_offset %d
  .amdhsa_group_segment_fixed_size 0
  .amdhsa_kernarg_size 72
  .amdhsa_user_sgpr_count 2
  .amdhsa_user_sgpr_kernarg_segment_ptr 1
  .amdhsa_system_sgpr_workgroup_id_x 1
  .amdhsa_float_denorm_mode_32 3
.end_amdhsa_kernel
""" % (name, vgpr, sgpr, (vgpr + 3) // 4 * 4)


HEADER = """; Kernarg layout for this problem (72 bytes, ptrs only, base s[0:1]):
; Generated by dev/gen3.py (hand-written generator).
"""


def addresses(lines):
    import subprocess, tempfile
    k = lines.index(".text")
    e = [i for i, x in enumerate(lines) if x.startswith(".section")][0]
    t = []
    for i, x in enumerate(lines):
        if k < i < e:
            t.append("Z_%d:" % i)
        t.append("" if x == "@PAGE@" else x)
    missing = ["L_pad%d" % p for p in range(len(PADA)) if ("L_pad%d:" % p) not in lines]
    t = t[:t.index(lines[e])] + [m + ":" for m in missing] + t[t.index(lines[e]):]
    with tempfile.TemporaryDirectory() as d:
        open(d + "/a.s", "w").write("\n".join(t) + "\n")
        subprocess.check_call(["clang", "-x", "assembler", "-target", "amdgcn-amd-amdhsa", "-mcpu=gfx950", "-c", d + "/a.s", "-o", d + "/a.o"])
        o = subprocess.check_output(["llvm-objdump", "-t", d + "/a.o"]).decode()
    ad = {}
    for l in o.split("\n"):
        f = l.split()
        if f and f[-1].startswith("Z_"):
            ad[int(f[-1][2:])] = int(f[0], 16)
    return ad


def place_pads(a):
    for p, target in enumerate(PADA):
        ad = addresses(a.l)
        i = min(i for i in ad if ad[i] >= target - 4 and (a.l[i].startswith("    ") or a.l[i] == "@PAGE@"))
        if a.l[i].startswith("    s_branch"):
            i += 1
        if a.l[i] == "@PAGE@":
            a.l[i:i + 1] = ["L_pad%d:" % p, "    s_branch L_back7"]
        elif a.l[i - 1].startswith("    s_branch"):
            a.l[i:i] = ["L_pad%d:" % p, "    s_branch L_back7"]
        else:
            a.l[i:i] = ["    s_branch L_over%d" % p, "L_pad%d:" % p, "    s_branch L_back7", "L_over%d:" % p]
    a.l = [x for x in a.l if x != "@PAGE@"]


def main():
    a = Asm()
    a.raw(HEADER.rstrip())
    a.raw("; @launch grid=(%d,1,1) block=(512,1,1) lds=%d" % (NB, LDS_SIZE))
    a.raw('.amdgcn_target "amdgcn-amd-amdhsa--gfx950"')
    a.raw(".text")
    gen(a)
    a.raw('.section .rodata,"a"')
    a.raw(".p2align 6")
    a.raw(kd(KNAME, 256, 96))
    out = sys.argv[1] if len(sys.argv) > 1 else "standalone__mpnn_edge_mlp__graph.s"
    if PADS:
        place_pads(a)
    txt = a.text()
    if DEBUG:
        txt = txt.replace("; Generated by", "; STAMPS " + " ".join(STAMP_NAMES) + "\n; Generated by")
    open(out, "w").write(txt)
    print("wrote", out, "LDS", LDS_SIZE)


if __name__ == "__main__":
    main()
```

```python
import struct, sys, os


def env(name, d):
    return int(os.environ.get(name, str(d)), 0)


DEBUG = env('DEBUG', 0)
X_TIMEOUT = env('X_TIMEOUT', 0)
POLLS = X_TIMEOUT if X_TIMEOUT else 20000
NPF = 2 if env('PSB', 0) == 2 else 1
PADS = env('PADS', 1)
PADA = [int(x, 0) for x in os.environ.get('PADA', '0x600 0xa00 0x1000 0x1500 0x1a00 0x2000 0x2600 0x2b00').split()]
SLEEP = env('SLEEP', 1)
X_NOPST = env('X_NOPST', 0)
X_TEST = env('X_TEST', 0)
SDEL = env('SDEL', 1)
CDEL = env('CDEL', 0)
WSL = env('WSL', 0)
TOUCH = env('TOUCH', 0)
SMF = env('SMF', 1)
XL = env('XL', 2)
CPAD = env('CPAD', 1)
XPOS = env('XPOS', 0)
PSB = env('PSB', 0)
FPOS = env('FPOS', 1)
W7B = env('W7B', 1)
B8E = env('B8E', 1)
WR = env('WR', 8)
WQ = env('WQ', 0)
NCLR = 32
LD_IN = os.environ.get('LD_IN', '')
SC = os.environ.get('SC', 'sc1')
SCP = os.environ.get('SCP', 'sc1')
SCO = os.environ.get('SCO', 'sc1')
SCS = os.environ.get('SCS', 'sc1')
TORD = env('TORD', 0)
PRE = env('PRE', 1)
PDEP = env('PDEP', 2)
PSL = env('PSL', 8)
QF = env('QF', 1)
PRW = env('PRW', 0)
YSL = env('YSL', 0)
PRI = env('PRI', 2)
PRT = env('PRT', 0)
TBL = env('TBL', 5)
SCT = os.environ.get('SCT', 'sc1')
SCW = os.environ.get('SCW', 'sc1')
SCG = os.environ.get('SCG', 'sc1')

N = 25000
E = 800000
NB = 256
NLOC = 98
NP = NB * NLOC
CU = 1216
DMAX = 62

WS_REC = 0
WS_TAB = 0x500000
WS_PT = 0x540000
WS_P = 0x580000
WS_SIZE = 0x580000
WS_DBG = 0xA00000
LS = tuple(int(x) for x in os.environ.get('LS', '31 32 36 64').split())
assert NB * CU * 16 <= WS_TAB

LOG2E = 1.4426950408889634
LN2 = 0.6931471805599453


def f32(x):
    return struct.unpack("<I", struct.pack("<f", x))[0]


class Asm:
    def __init__(self):
        self.l = []
        self.auto = 0
        self.n = 0

    def __call__(self, s):
        for x in s.split("\n"):
            x = x.strip()
            if x:
                self.l.append("    " + x)
                if self.auto:
                    self.n += 1
                    if self.n % self.auto == 0:
                        k, self.auto = self.auto, 0
                        stamp(self, "a%d" % self.n, True)
                        self.auto = k

    def label(self, s):
        self.l.append(s + ":")

    def raw(self, s):
        self.l.append(s)

    def text(self):
        return "\n".join(self.l) + "\n"


def vr(a, n):
    return "v[%d:%d]" % (a, a + n - 1)


def sr(a, n):
    return "s[%d:%d]" % (a, a + n - 1)


DPP_STEPS = ["row_shr:1 row_mask:0xf", "row_shr:2 row_mask:0xf", "row_shr:4 row_mask:0xf", "row_shr:8 row_mask:0xf",
             "row_bcast:15 row_mask:0xa", "row_bcast:31 row_mask:0xc"]


def dpp_scan(a, regs, op="v_add_u32", fill=()):
    fill = list(fill)
    for st in DPP_STEPS:
        n = 3 - len(regs)
        while n > 0 and fill:
            a(fill.pop(0))
            n -= 1
        if n > 0:
            a("s_nop %d" % (n - 1))
        for v in regs:
            a("%s_dpp v%d, v%d, v%d %s bank_mask:0xf" % (op, v, v, v, st))
    for x in fill:
        a(x)


RSTR = 272
SSTR = 260
L_CNT = 0
L_FLAG = 544
L_ZERO = 608
L_ZEND = 880
L_W3 = 896
L_NL = 1136
L_LUT = 2048
L_SLOT = L_LUT + 4096
L_SEND = L_SLOT + (99 * SSTR + 160 + 15) // 16 * 16
L_XT = (L_SEND + 255) // 256 * 256
XSTR = 32 * RSTR
L_WA = L_XT + 8 * XSTR
L_Q = L_WA + 8192
L_R = (L_Q + NLOC * RSTR + 127) // 128 * 128
LDS_SIZE = L_R + NLOC * RSTR
L1_CNT = L_XT
L1_START = L1_CNT + 1024
L1_STAGE = L1_START + 1024
L1_X = L1_STAGE + CU * 16
L1_WX = L_WA - 8192
L1_W2 = L1_WX - 8192
L1_W1 = L1_W2 - 8192
L1_P = L1_STAGE
assert L1_X + 16384 <= L1_W1 and L1_W1 % 128 == 0 and L1_P % 128 == 0 and L1_P + 16384 <= LDS_SIZE
assert (L1_X - L1_CNT) == 3 * 448 * 16
assert L1_X < 65536 and L1_X % 128 == 0
assert L_NL + 512 <= L_LUT
assert L_SEND < 65536 - 256
assert LDS_SIZE <= 163840, LDS_SIZE
PAD = 0x7F00
F_SLOW = L_FLAG + 40
F_PEND = L_FLAG + 44
F_PCNT = L_FLAG + 48

V_LANE = 1
V_BAD = 4
V_IA = 8
V_RA = 12
V_LEN = 13
V_S = 14
V_IDX = 16
V_R = 24
V_YW = 26
V_RC = 27
V_QA = 28
V_NW = 29
V_L16 = 30
V_W = 31
V_T0 = 32
V_PF = 38
V_DONE = 39
V_AE = 40
V_ID = 48
V_WA = 56
V_TRA = 72
V_ST = 74
V_TAB = 76
V_C = (80, 96)
V_T = (112, 128)
V_N = (144, 160)
V_D = (176, 192)
V_U = 208
V_B = (224, 240)

S_X = 4
S_WS = 8
S_OUT = 12
S_B = 16
S_W = 17
S_BT = 18
S_XT = 19
S_ML = 20
S_J = 21
S_ONE = 22
S_M = (24, 26)
S_M0 = 28
S_MODE = 30
S_SAFE = 31
S_HI = 32
S_NEED = 34
S_LI = 35
S_EXTRA = 36
S_XT1 = 37
S_POS = 38
S_TO = 39
S_T = 40
S_EM = 56
S_LG = 58
S_QM = 60
S_PCK = 82
S_ST = 83
P_X, P_E, P_SRC, P_DST, P_WM, P_WU, P_OUT, P_DBG, P_WS = 64, 66, 68, 70, 72, 74, 76, 78, 80


def mfma_chain(X, j, dst):
    B = V_B[j & 1]
    out = ["v_mfma_f32_32x32x8_bf16 %s, %s, %s, %s" % (
        vr(dst, 16), vr(V_AE + 4 * X + 2 * (j & 1), 2), vr(V_R, 2), vr(V_C[X], 16))]
    if X_TEST & 2:
        for k in range(4):
            out.append("v_mfma_f32_32x32x16_bf16 %s, %s, %s, %s" % (
                vr(dst, 16), vr(V_ID + 4 * k + 8 * X, 4), vr(B + 4 * k, 4), vr(dst, 16)))
        return out
    if SMF:
        out.append("v_smfmac_f32_32x32x32_bf16 %s, %s, %s, v%d" % (vr(dst, 16), vr(V_ID, 4), vr(B + 8 * X, 8), V_ID + 4))
        return out
    for k in range(2):
        out.append("v_mfma_f32_32x32x16_bf16 %s, %s, %s, %s" % (
            vr(dst, 16), vr(V_ID + 4 * k, 4), vr(B + 8 * X + 4 * k, 4), vr(dst, 16)))
    return out


def exps(src):
    return ["v_exp_f32 v%d, v%d" % (V_U + i, src + i) for i in range(16)]


def pk_first(X):
    return ["v_pk_add_f32 %s, %s, %s" % (vr(V_D[X] + 2 * i, 2), vr(V_U + 2 * i, 2), sr(S_ONE, 2)) for i in range(8)]


def pk_update(X):
    n, d, u, t = V_N[X], V_D[X], V_U, V_T[X]
    A = ["v_pk_fma_f32 %s, %s, %s, %s" % (vr(n + 2 * i, 2), vr(n + 2 * i, 2), vr(u + 2 * i, 2), vr(n + 2 * i, 2)) for i in range(8)]
    B = ["v_pk_fma_f32 %s, %s, %s, %s" % (vr(n + 2 * i, 2), vr(t + 2 * i, 2), vr(d + 2 * i, 2), vr(n + 2 * i, 2)) for i in range(8)]
    C = ["v_pk_fma_f32 %s, %s, %s, %s" % (vr(d + 2 * i, 2), vr(d + 2 * i, 2), vr(u + 2 * i, 2), vr(d + 2 * i, 2)) for i in range(8)]
    return A + B + C


def phase(a, mf, ex):
    mf = list(mf)
    for i, e in enumerate(ex):
        if i % 3 == 0 and mf:
            a(mf.pop(0))
        a(e)
    assert not mf


def b_reads(tile):
    return ["ds_read_b128 %s, v%d offset:%d" % (vr(V_B[tile & 1] + 4 * k, 4), V_BAD + k, 4096 * (tile & 1)) for k in range(4)]


def idx_reads(off):
    return ["ds_read_u16 v%d, v%d offset:%d" % (V_IDX + 2 * i, V_IA + i, off) for i in range(4)]


def dma_m0(slot):
    return "s_mov_b32 m0, s%d" % (S_XT1 if slot else S_XT)


def dma_loads():
    return ["buffer_load_dwordx4 %s, %s, 0 idxen offen offset:%d %s lds" % (vr(V_IDX + 2 * i, 2), sr(S_X, 4), 1024 * i, SCG) for i in range(4)]


def dma_plain(a, slot):
    a(dma_m0(slot))
    a("s_nop 0")
    for x in dma_loads():
        a(x)


def row_off(X, q):
    return 128 * X + 64 * (q >> 1) + 16 * (q & 1)


def row_reads(dst, addr):
    return ["ds_read_b128 %s, v%d offset:%d" % (vr(dst[X] + 4 * q, 4), addr, row_off(X, q)) for X in range(2) for q in range(4)]


def wa_reg(o, q):
    return (V_WA if o == 0 else V_B[1]) + 4 * q


def wa_reads():
    return ["ds_read_b64_tr_b16 %s, v%d offset:%d" % (vr(wa_reg(o, q) + 2 * i, 2), V_TRA + o, 2048 * q + 512 * i)
            for q in range(4) for o in range(2) for i in range(2)]


NSTAMP = [0]
STAMP_NAMES = []


def stamp(a, name, auto=False):
    if DEBUG == 2 and not auto and name not in ("start", "barW", "barA", "barB", "end"):
        return
    if name in os.environ.get("NOST", "issued iss2 dst stiss piss rec0 placed dma0 ywait xiss preA preB preB2").split():
        return
    if DEBUG:
        au, a.auto = a.auto, 0
        k = len(STAMP_NAMES)
        STAMP_NAMES.append(name)
        cyc = name in ("start", "loop", "last", "end")
        if cyc:
            a("s_memtime s[88:89]")
        a("s_memrealtime s[90:91]")
        a("s_waitcnt lgkmcnt(0)")
        if cyc:
            a("v_writelane_b32 v%d, s88, %d" % (V_ST, k))
        a("v_writelane_b32 v%d, s90, %d" % (V_ST, 32 + k))
        a.auto = au


def stamp_out(a):
    if DEBUG:
        a("s_mov_b64 exec, -1")
        a("s_waitcnt vmcnt(0)")
        stamp(a, "end")
        a("v_lshlrev_b32 v2, 2, v0")
        a("s_lshl_b32 s3, s2, 11")
        a("s_add_u32 s3, s3, %d" % WS_DBG)
        a("v_add_u32 v2, s3, v2")
        a("global_store_dword v2, v%d, %s" % (V_ST, sr(P_WS, 2)))


def lds_init(a, t):
    a("v_mov_b32 v%d, 0x%x" % (t, PAD))
    a("v_mov_b32 v%d, 0x%x" % (t + 1, PAD))
    a("v_mov_b32 v%d, 0x%x" % (t + 2, PAD))
    a("v_mov_b32 v%d, 0x%x" % (t + 3, PAD))
    a("v_lshlrev_b32 v%d, 4, v0" % (t + 4))
    n = (L_SEND - L_SLOT) // 16
    for i in range(n // 512):
        a("ds_write_b128 v%d, %s offset:%d" % (t + 4, vr(t, 4), L_SLOT + 8192 * i))
    a("v_cmp_gt_u32 vcc, %d, v0" % (n % 512))
    a("v_lshlrev_b32 v%d, 2, v0" % (t + 5))
    a("s_mov_b32 s%d, %d" % (S_T, SSTR))
    a("v_mov_b32 v%d, %d" % (t + 6, L_SLOT - SSTR))
    a("s_mov_b64 exec, vcc")
    a("ds_write_b128 v%d, %s offset:%d" % (t + 4, vr(t, 4), L_SLOT + 8192 * (n // 512)))
    a("s_mov_b64 exec, -1")
    a("v_mad_u32_u24 v%d, v0, s%d, v%d" % (t + 6, S_T, t + 6))
    a("s_cmp_lt_u32 s%d, %d" % (S_B, N - 97 * 256))
    a("s_addc_u32 s%d, %d, 0" % (S_T, NLOC - 1))
    a("v_cmp_lt_u32 vcc, s%d, v0" % S_T)
    a("v_subrev_u32 v%d, 4, v%d" % (t + 7, t + 6))
    a("v_mov_b32 v%d, %d" % (t + 4, L_FLAG // 4))
    a("v_cndmask_b32 v%d, v%d, v%d, vcc" % (t + 6, t + 6, t + 7))
    a("v_cmp_gt_u32 vcc, v%d, v0" % (t + 4))
    a("v_mov_b32 v%d, %d" % (t + 4, L_ZEND // 4))
    a("v_mov_b32 v%d, 0" % (t + 7))
    a("v_cndmask_b32 v%d, v%d, v%d, vcc" % (t + 6, t + 7, t + 6))
    a("v_cmp_gt_u32 vcc, v%d, v0" % (t + 4))
    a("s_mov_b64 exec, vcc")
    a("ds_write_b32 v%d, v%d" % (t + 5, t + 6))
    a("s_mov_b64 exec, -1")


def lut_build(a, sL, t, off, sbase=None):
    s1 = sL
    sL, s2, sm = S_T + 8, S_T + 9, S_T + 10
    d, k, m, ln, acc, x, y = t, t + 1, t + 2, t + 3, t + 4, t + 5, t + 6
    k64 = t + 8
    o = t + 12
    a("s_add_u32 s%d, s%d, 1" % (sL, s1))
    a("s_lshr_b32 s%d, s%d, 1" % (sL, sL))
    a("s_mul_i32 s%d, s%d, 3" % (s2, sL))
    a("v_subrev_u32 v%d, 1, v%d" % (d, V_LANE))
    a("v_max_i32 v%d, 0, v%d" % (d, d))
    a("v_cmp_lt_u32 vcc, s%d, v%d" % (s1, d))
    a("v_cmp_lt_u32_e64 %s, s%d, v%d" % (sr(sm, 2), s2, d))
    a("v_mov_b32 v%d, 2" % k)
    a("v_mov_b32 v%d, 32768" % m)
    a("v_mov_b32 v%d, 21846" % ln)
    a("v_cndmask_b32_e64 v%d, v%d, 3, vcc" % (k, k))
    a("v_cndmask_b32 v%d, v%d, v%d, vcc" % (m, m, ln))
    a("v_mov_b32 v%d, 16384" % ln)
    a("v_cndmask_b32_e64 v%d, v%d, 4, %s" % (k, k, sr(sm, 2)))
    a("v_cndmask_b32_e64 v%d, v%d, v%d, %s" % (m, m, ln, sr(sm, 2)))
    a("v_add3_u32 v%d, v%d, v%d, -1" % (ln, d, k))
    a("v_mul_u32_u24 v%d, v%d, v%d" % (ln, ln, m))
    a("v_lshrrev_b32 v%d, 16, v%d" % (ln, ln))
    a("v_mov_b32 v%d, 0" % acc)
    for i in range(4):
        a("v_min_u32 v%d, v%d, v%d" % (x, acc, d))
        a("v_sub_u32 v%d, v%d, v%d" % (y, d, x))
        a("v_min_u32 v%d, v%d, v%d" % (y, y, ln))
        a("v_lshlrev_b32 v%d, 2, v%d" % (x, x))
        a("v_lshl_or_b32 v%d, v%d, 16, v%d" % (o + i, y, x))
        a("v_add_u32 v%d, v%d, v%d" % (acc, acc, ln))
    a("v_lshl_or_b32 v%d, v%d, 22, v%d" % (o, k, o))
    a("v_sub_u32 v%d, s%d, v%d" % (acc, sL, ln))
    a("v_min_u32 v%d, 5, v%d" % (acc, acc))
    a("v_mul_u32_u24 v%d, 10, v%d" % (o + 6, acc))
    a("v_cmp_le_u32 vcc, 3, v%d" % acc)
    a("v_add_u32 v%d, 2, v%d" % (x, o + 6))
    a("v_mov_b32 v%d, v%d" % (k64, k))
    a("v_mov_b32 v%d, 0" % (k64 + 1))
    a("v_cndmask_b32 v%d, v%d, v%d, vcc" % (o + 6, o + 6, x))
    a("v_cmp_ne_u32 vcc, 0, v%d" % V_LANE)
    a("v_lshlrev_b64 %s, v%d, %s" % (vr(o + 4, 2), o + 6, vr(k64, 2)))
    a("v_mov_b32 v%d, 0" % (o + 7))
    a("v_cndmask_b32 v%d, v%d, v%d, vcc" % (o + 4, k64 + 1, o + 4))
    a("v_cndmask_b32 v%d, v%d, v%d, vcc" % (o + 5, k64 + 1, o + 5))
    if sbase is None:
        a("v_lshlrev_b32 v%d, 5, v%d" % (x, V_LANE))
    else:
        a("v_lshl_add_u32 v%d, v%d, 5, s%d" % (x, V_LANE, sbase))
    a("ds_write_b128 v%d, %s offset:%d" % (x, vr(o, 4), off))
    a("ds_write_b128 v%d, %s offset:%d" % (x, vr(o + 4, 4), off + 16))


PAT = os.environ.get('PAT', "MeeeeMeeeMeeeMeeeMeee" if X_TEST & 2 else "MeeeeMeeeMeeeeeeeee")


def me(a, mf, ex, extra=(), pat=PAT):
    mf = list(mf)
    ex = list(ex)
    for c in pat:
        if c == "M":
            if mf:
                a(mf.pop(0))
        else:
            a(ex.pop(0))
    assert not mf and not ex
    for x in extra:
        a(x)


def mf16(d, A, B, first):
    return "v_mfma_f32_16x16x32_bf16 %s, %s, %s, %s" % (vr(d, 4), vr(A, 4), vr(B, 4), "0" if first else vr(d, 4))


def tr_frags(dst, addr, off):
    return ["ds_read_b64_tr_b16 %s, v%d offset:%d" % (vr(dst + 8 * blk + 4 * s + 2 * i, 2), addr, off + 4096 * s + 512 * i + 8 * blk)
            for blk in range(2) for s in range(2) for i in range(2)]


def tile_mfmas(d, A, B):
    out = []
    for s in range(2):
        for tau in range(2):
            for blk in range(2):
                out.append(mf16(d + 8 * tau + 4 * blk, A + 8 * blk + 4 * s, B + 8 * tau + 4 * s, s == 0))
    return out


KNAME = "standalone__mpnn_edge_mlp__graph_kernel"


def gen(a):
    COL, HH = V_T0, V_T0 + 1
    a.raw(".globl %s\n.p2align 12\n.type %s,@function" % (KNAME, KNAME))
    a.label(KNAME)
    a("s_cmp_ge_u32 s2, %d" % NB)
    a("s_cbranch_scc1 L_end")
    a("s_load_dwordx16 s[64:79], s[0:1], 0")
    a("s_load_dwordx2 s[80:81], s[0:1], 64")
    if DEBUG:
        a("v_mov_b32 v%d, 0" % V_ST)
        stamp(a, "start")
        if DEBUG == 2:
            a.auto = env('AUTO', 24)
    DST, SRC, EV = V_N[0], V_N[0] + 8, V_N[1]
    AD, RK, O1, O2 = V_N[1] + 8, V_D[0], V_D[0] + 8, V_D[1]
    W3 = V_D[1] + 8
    DO, EO = V_D[1] + 10, V_N[1] + 4
    XA, WAD = V_D[1] + 12, V_D[1] + 14
    T16 = V_D[1] + 15
    WUD = V_N[1] + 6
    ZR = V_T[1]
    a("v_lshrrev_b32 v2, 6, v0")
    a("s_mul_i32 s40, s2, 3125")
    a("v_readfirstlane_b32 s%d, v2" % S_W)
    a("s_lshr_b32 s41, s40, 3")
    a("s_add_u32 s40, s40, 3125")
    a("s_lshr_b32 s40, s40, 3")
    a("s_sub_u32 s40, s40, s41")
    if PADS:
        a("s_cmp_eq_u32 s%d, 7" % S_W)
        a("s_cbranch_scc1 L_touch")
        a.label("L_back7")
    a("v_lshlrev_b32 v%d, 4, v0" % T16)
    a("s_lshl_b32 s41, s41, 5")
    a("v_add_u32 v%d, s41, v%d" % (DO, T16))
    a("s_lshl_b32 s3, s40, 4")
    a("v_add_u32 v%d, s3, v%d" % (DO + 1, DO))
    a("v_cmp_gt_u32_e64 %s, s40, v0" % sr(S_EM, 2))
    for i in range(4):
        a("v_mov_b32 v%d, 0" % (ZR + i))
    a("v_lshrrev_b32 v%d, 1, v%d" % (EO, DO))
    a("v_lshrrev_b32 v%d, 1, v%d" % (EO + 1, DO + 1))
    a("v_and_b32 v%d, 63, v0" % V_LANE)
    a("v_lshlrev_b32 v%d, 4, v%d" % (V_L16, V_LANE))
    a("s_cmp_eq_u32 s%d, 7" % S_W)
    a("s_waitcnt lgkmcnt(0)")
    a("s_cbranch_scc1 L_clr")
    a("s_mov_b64 exec, %s" % sr(S_EM, 2))
    a("global_load_dwordx4 %s, v%d, %s %s" % (vr(DST, 4), DO, sr(P_DST, 2), LD_IN))
    a("global_load_dwordx4 %s, v%d, %s %s" % (vr(DST + 4, 4), DO + 1, sr(P_DST, 2), LD_IN))
    a("s_mov_b64 exec, -1")
    stamp(a, "issued")
    for i in range(3):
        a("ds_write_b128 v%d, %s offset:%d" % (T16, vr(ZR, 4), L1_CNT + 7168 * i))
    if SDEL:
        a("s_sleep %d" % SDEL)
    a("s_mov_b64 exec, %s" % sr(S_EM, 2))
    a("global_load_dwordx4 %s, v%d, %s %s" % (vr(SRC, 4), DO, sr(P_SRC, 2), LD_IN))
    a("global_load_dwordx4 %s, v%d, %s %s" % (vr(SRC + 4, 4), DO + 1, sr(P_SRC, 2), LD_IN))
    a("global_load_dwordx2 %s, v%d, %s %s" % (vr(EV, 2), EO, sr(P_E, 2), LD_IN))
    a("global_load_dwordx2 %s, v%d, %s %s" % (vr(EV + 2, 2), EO + 1, sr(P_E, 2), LD_IN))
    a("s_mov_b64 exec, -1")
    stamp(a, "iss2")
    a("s_branch L_setup")
    if PADS:
        a.label("L_touch")
        if not CPAD:
            a("s_cmp_lt_u32 s2, %d" % NCLR)
            a("s_cbranch_scc1 L_back7")

        def tree(lo, n, bit):
            if n == 1:
                a("s_branch L_pad%d" % (lo % len(PADA)))
                return
            a("s_bitcmp1_b32 s2, %d" % bit)
            if n == 2:
                a("s_cbranch_scc1 L_pad%d" % ((lo + 1) % len(PADA)))
                tree(lo, 1, 0)
                return
            a("s_cbranch_scc1 L_tr%d_%d" % (lo + n // 2, n // 2))
            tree(lo, n // 2, bit + 1)
            a.label("L_tr%d_%d" % (lo + n // 2, n // 2))
            tree(lo + n // 2, n // 2, bit + 1)

        tree(0, 8 if len(PADA) <= 8 else 16, 3)
    a.label("L_clr")
    if TOUCH & 1:
        a("v_lshlrev_b32 v2, 18, v%d" % V_LANE)
        a("s_mov_b64 exec, 0x1fff")
        a("global_load_dword v%d, v2, %s" % (V_TAB, sr(P_OUT, 2)))
        a("s_mov_b64 exec, 1")
        a("global_load_dword v%d, v2, %s" % (V_TAB + 1, sr(P_DBG, 2)))
        a("s_mov_b32 exec_lo, -1")
        a("s_mov_b32 exec_hi, 15")
        a("global_load_dword v%d, v2, %s" % (V_TAB + 2, sr(P_WS, 2)))
        a("s_mov_b64 exec, -1")
    a("s_cmp_ge_u32 s2, %d" % NCLR)
    a("s_cbranch_scc1 %s" % ("L_b0" if W7B else "L_setup"))
    if CDEL:
        a("s_sleep %d" % CDEL)
    a("s_lshl_b32 s3, s2, 13")
    a("s_add_u32 s3, s3, %d" % (WS_TAB + 4096))
    a("v_add_u32 v2, s3, v%d" % V_L16)
    a("s_lshl_b32 s3, s2, 7")
    a("s_add_u32 s3, s3, %d" % WS_PT)
    a("v_add_u32 v3, s3, v%d" % V_L16)
    for i in range(8):
        a("global_store_dwordx4 v2, %s, %s offset:%d %s" % (vr(ZR, 4), sr(P_WS, 2), 1024 * i - 4096, SC))
    a("s_mov_b64 exec, 0xff")
    a("global_store_dwordx4 v3, %s, %s %s" % (vr(ZR, 4), sr(P_WS, 2), SC))
    a("s_mov_b64 exec, -1")
    if W7B:
        a.label("L_b0")
        a("s_barrier")
    a.label("L_setup")
    a("s_and_b32 s%d, s2, 7" % S_B)
    a("s_lshl_b32 s%d, s%d, 5" % (S_B, S_B))
    a("s_lshr_b32 s3, s2, 3")
    a("s_add_u32 s%d, s%d, s3" % (S_B, S_B))
    a("s_lshl_b32 s43, s%d, 11" % S_W)
    a("v_and_b32 v2, 7, v%d" % V_LANE)
    a("v_lshrrev_b32 v3, 4, v%d" % V_LANE)
    a("v_xor_b32 v3, v2, v3")
    a("v_lshlrev_b32 v%d, 4, v3" % (V_IDX + 7))
    a("v_xor_b32 v%d, 64, v%d" % (V_IDX + 5, V_IDX + 7))
    a("v_and_b32 v%d, 31, v%d" % (COL, V_LANE))
    a("v_lshrrev_b32 v%d, 5, v%d" % (HH, V_LANE))
    a("v_and_b32 v2, 19, v%d" % COL)
    a("v_bfe_u32 v3, v%d, 2, 1" % COL)
    a("v_lshl_or_b32 v2, v3, 3, v2")
    a("v_bfe_u32 v3, v%d, 3, 1" % COL)
    a("v_lshl_or_b32 v%d, v3, 2, v2" % (V_T0 + 2))
    a("v_lshlrev_b32 v%d, 1, v%d" % (V_T0 + 5, V_T0 + 2))
    a("s_mov_b32 s%d, s%d" % (S_WS, P_WS))
    a("s_mov_b32 s%d, s%d" % (S_WS + 1, P_WS + 1))
    a("s_mov_b32 s%d, %d" % (S_WS + 2, WS_SIZE))
    a("s_mov_b32 s%d, 0x00020000" % (S_WS + 3))
    a("s_add_u32 s%d, s%d, %d" % (S_X, P_WS, WS_P - 3072))
    a("s_addc_u32 s%d, s%d, 0" % (S_X + 1, P_WS + 1))
    a("s_and_b32 s%d, s%d, 0xffff" % (S_X + 1, S_X + 1))
    a("s_or_b32 s%d, s%d, 0x%x" % (S_X + 1, S_X + 1, 128 << 16))
    a("s_mov_b32 s%d, %d" % (S_X + 2, NP))
    a("s_mov_b32 s%d, 0x00020000" % (S_X + 3))
    a("s_mov_b32 s%d, s%d" % (S_OUT, P_OUT))
    a("s_mov_b32 s%d, s%d" % (S_OUT + 1, P_OUT + 1))
    a("s_mov_b32 s%d, %d" % (S_OUT + 2, N * 128))
    a("s_mov_b32 s%d, 0x00020000" % (S_OUT + 3))
    a("s_mov_b32 s%d, 0x%08x" % (S_LG, f32(-LOG2E)))
    a("s_mov_b32 s%d, 0x%08x" % (S_LG + 1, f32(-LOG2E)))
    XB, TA, QW = V_RA, V_LEN, V_YW
    PW, PR, PA = V_QA, V_NW, V_S
    TA2, PW2, XP = V_WA, V_WA + 1, V_WA + 2
    a("s_and_b32 s48, s%d, 3" % S_W)
    a("s_lshr_b32 s49, s%d, 2" % S_W)
    a("v_and_b32 v2, 15, v%d" % V_LANE)
    a("v_lshrrev_b32 v3, 4, v%d" % V_LANE)
    a("v_lshrrev_b32 v%d, 1, v2" % XB)
    a("v_xor_b32 v%d, v%d, v3" % (XB, XB))
    a("v_lshlrev_b32 v%d, 4, v%d" % (XB, XB))
    a("v_lshl_add_u32 v%d, v2, 7, v%d" % (XB, XB))
    a("s_add_u32 s3, s43, %d" % L1_X)
    a("v_add_u32 v%d, s3, v%d" % (XP, XB))
    a("v_xor_b32 v%d, 64, v%d" % (XP + 1, XP))
    a("s_lshl_b32 s3, s48, 12")
    a("s_add_u32 s3, s3, %d" % L1_X)
    a("v_add_u32 v%d, s3, v%d" % (XB, XB))
    a("v_xor_b32 v%d, 64, v%d" % (V_RC, XB))
    a("s_lshl_b32 s46, s49, 2")
    a("v_or_b32 v%d, s46, v3" % PW)
    a("v_xor_b32 v%d, v%d, v2" % (PW, PW))
    a("v_and_b32 v%d, 7, v%d" % (PW, PW))
    a("v_lshlrev_b32 v%d, 4, v%d" % (PW, PW))
    a("v_lshl_add_u32 v%d, v2, 7, v%d" % (PW, PW))
    a("s_add_u32 s45, s43, %d" % L1_P)
    a("v_add_u32 v%d, s45, v%d" % (PW, PW))
    a("v_xor_b32 v%d, 64, v%d" % (PW2, PW))
    a("s_lshl_b32 s3, s48, 5")
    a("v_add_u32 v2, s3, v2")
    a("v_cmp_gt_u32 vcc, %d, v2" % NLOC)
    a("s_lshl_b32 s3, s49, 7")
    a("s_add_u32 s3, s3, %d" % L_Q)
    a("v_lshl_add_u32 v%d, v3, 5, s3" % QW)
    a("s_mov_b64 %s, vcc" % sr(S_QM, 2))
    a("v_cmp_gt_u32 vcc, %d, v2" % (NLOC - 16))
    a("s_mov_b32 s3, %d" % RSTR)
    a("v_mad_u32_u24 v%d, v2, s3, v%d" % (QW, QW))
    a("s_mov_b64 %s, vcc" % sr(S_QM + 2, 2))
    a("v_bfe_u32 v2, v%d, 2, 2" % V_LANE)
    a("v_lshl_add_u32 v3, v3, 3, v2")
    a("v_lshrrev_b32 v2, 1, v2")
    a("v_xor_b32 v%d, s49, v2" % TA)
    a("v_lshlrev_b32 v%d, 6, v%d" % (TA, TA))
    a("v_lshl_add_u32 v%d, v3, 7, v%d" % (TA, TA))
    a("v_and_b32 v3, 3, v%d" % V_LANE)
    a("v_lshl_add_u32 v%d, v3, 4, v%d" % (TA, TA))
    a("v_add_u32 v%d, %d, v%d" % (TA, L1_W1, TA))
    a("v_xor_b32 v%d, 64, v%d" % (TA2, TA))
    a("v_lshrrev_b32 v2, 3, v%d" % V_LANE)
    a("s_lshl_b32 s3, s%d, 4" % S_W)
    a("v_add_u32 v3, s3, v2")
    a("s_mul_i32 s3, s%d, %d" % (S_B, NLOC))
    a("v_cmp_gt_u32 vcc, %d, v3" % NLOC)
    a("v_add_u32 v%d, s3, v3" % PA)
    a("s_cmp_lt_u32 s%d, 6" % S_W)
    a("s_cselect_b32 s3, 8, 0x10000")
    a("v_add_u32 v%d, s3, v%d" % (V_R, PA))
    a("v_cndmask_b32 v%d, -1, v%d, vcc" % (PA, PA))
    a("v_and_b32 v3, 0x70, v%d" % T16)
    a("v_add_u32 v%d, 3072, v3" % (PA + 1))
    a("v_mov_b32 v%d, v%d" % (V_R + 1, PA + 1))
    a("v_lshlrev_b32 v2, 4, v2")
    a("v_xor_b32 v%d, v2, v%d" % (PR, V_L16))
    a("v_add_u32 v%d, s45, v%d" % (PR, PR))
    lds_init(a, V_U)
    a("s_mov_b32 s%d, 0" % S_MODE)
    a("s_sub_u32 s3, 11, s%d" % S_W)
    a("s_cmp_lt_u32 s%d, 4" % S_W)
    a("s_cselect_b32 s%d, s%d, s3" % (S_BT, S_W))
    a("s_mul_i32 s%d, s%d, %d" % (S_XT, S_BT, XSTR))
    a("s_add_u32 s%d, s%d, %d" % (S_XT, S_XT, L_XT))
    a("s_add_u32 s%d, s%d, 4096" % (S_XT1, S_XT))
    a("s_mov_b32 s%d, 1.0" % S_ONE)
    a("s_mov_b32 s%d, 1.0" % (S_ONE + 1))
    a("s_mov_b32 s%d, %d" % (S_TO, POLLS))
    a("v_add_u32 v%d, 3072, v%d" % (V_IDX + 1, V_IDX + 7))
    a("v_add_u32 v%d, 2048, v%d" % (V_IDX + 3, V_IDX + 5))
    a("v_add_u32 v%d, 1024, v%d" % (V_IDX + 5, V_IDX + 7))
    a("v_xor_b32 v%d, 64, v%d" % (V_IDX + 7, V_IDX + 7))
    a("v_bfe_u32 v2, v%d, 1, 3" % COL)
    a("v_xor_b32 v2, v2, v%d" % HH)
    a("v_lshlrev_b32 v2, 4, v2")
    a("v_lshl_add_u32 v3, v%d, 7, s%d" % (COL, S_XT))
    for k in range(4):
        a("v_xor_b32 v%d, %d, v2" % (V_BAD + k, 32 * k))
        a("v_add_u32 v%d, v3, v%d" % (V_BAD + k, V_BAD + k))
    if SMF:
        a("v_lshrrev_b32 v2, 4, v%d" % COL)
        a("v_xor_b32 v2, v2, v%d" % HH)
        a("v_bfe_u32 v3, v%d, 2, 2" % (V_T0 + 2))
        a("v_lshl_or_b32 v2, v2, 2, v3")
        a("v_and_b32 v3, 3, v%d" % COL)
        a("v_mov_b32 v%d, 0x5555" % (V_T0 + 4))
        a("v_mul_u32_u24 v%d, v3, v%d" % (V_ID + 4, V_T0 + 4))
        a("v_mov_b32 v3, 0x3f80")
        for i in range(2):
            a("v_cmp_eq_u32 vcc, %d, v2" % (2 * i))
            a("v_cmp_eq_u32_e64 s[48:49], %d, v2" % (2 * i + 1))
            a("s_nop 0")
            a("v_cndmask_b32 v%d, 0, v3, vcc" % (V_ID + 2 * i))
            a("v_cndmask_b32_e64 v%d, 0, v3, s[48:49]" % (V_ID + 2 * i + 1))
    else:
        a("v_bfe_u32 v2, v%d, 3, 1" % (V_T0 + 2))
        a("v_xor_b32 v2, v2, v%d" % HH)
        a("v_bfe_u32 v3, v%d, 1, 2" % (V_T0 + 2))
        a("v_lshl_or_b32 v2, v2, 4, v3")
        a("v_lshrrev_b32 v3, 4, v%d" % COL)
        a("v_lshl_or_b32 v2, v3, 2, v2")
        a("v_and_b32 v3, 1, v%d" % COL)
        a("v_lshlrev_b32 v3, 4, v3")
        a("v_mov_b32 v%d, 0x3f80" % (V_T0 + 4))
        a("v_lshlrev_b32 v3, v3, v%d" % (V_T0 + 4))
        for i in range(4):
            a("v_cmp_eq_u32 vcc, %d, v2" % (2 * i))
            a("v_cmp_eq_u32_e64 s[48:49], %d, v2" % (2 * i + 1))
            a("s_nop 0")
            a("v_cndmask_b32 v%d, 0, v3, vcc" % (V_ID + 2 * i))
            a("v_cndmask_b32_e64 v%d, 0, v3, s[48:49]" % (V_ID + 2 * i + 1))
    a("v_bfe_u32 v2, v%d, 2, 2" % V_LANE)
    a("v_lshl_add_u32 v3, v%d, 3, v2" % HH)
    a("v_lshlrev_b32 v3, 7, v3")
    a("v_lshrrev_b32 v2, 1, v2")
    a("v_lshl_or_b32 v3, v2, 6, v3")
    a("v_bfe_u32 v2, v%d, 4, 1" % V_LANE)
    a("v_lshl_or_b32 v3, v2, 5, v3")
    a("v_and_b32 v2, 1, v%d" % V_LANE)
    a("v_lshl_or_b32 v3, v2, 4, v3")
    a("v_bfe_u32 v2, v%d, 1, 1" % V_LANE)
    a("v_lshl_or_b32 v3, v2, 3, v3")
    a("v_xor_b32 v2, 64, v3")
    a("v_add_u32 v%d, %d, v3" % (V_TRA, L_WA))
    a("v_add_u32 v%d, %d, v2" % (V_TRA + 1, L_WA))
    a("s_lshl_b32 s3, s%d, 7" % S_BT)
    a("s_add_u32 s3, s3, s%d" % S_XT)
    a("v_lshl_add_u32 v%d, v%d, 2, s3" % (V_T0 + 3, COL))
    if XL:
        a("v_lshrrev_b32 v2, 3, v%d" % V_LANE)
        a("s_lshl_b32 s3, s%d, 12" % S_W)
        a("s_add_u32 s3, s3, s%d" % S_B)
        a("v_lshl_add_u32 v2, v2, 8, s3")
        a("v_add_u32 v3, 2048, v2")
        a("v_min_u32 v2, %d, v2" % (N - 1))
        a("v_min_u32 v3, %d, v3" % (N - 1))
        a("v_lshl_add_u32 v%d, v2, 7, v%d" % (XA, V_IDX + 7))
        a("v_lshl_add_u32 v%d, v3, 7, v%d" % (XA + 1, V_IDX + 7))
        a("v_xor_b32 v%d, 64, v%d" % (XA, XA))
        a("v_subrev_u32 v%d, 1024, v%d" % (XA + 1, XA + 1))
        a("v_and_b32 v2, 16, v%d" % V_LANE)
        a("v_lshlrev_b32 v2, 2, v2")
        a("v_xor_b32 v%d, v2, v%d" % (WAD, T16))
        a("s_lshr_b32 s42, s43, 1")
        a("s_add_u32 s42, s42, %d" % L1_W1)
    def xw1_loads():
        a("s_mov_b32 m0, s42")
        a("v_add_u32 v%d, 8192, v%d" % (DO, WAD))
        a("global_load_lds_dwordx4 v%d, %s" % (WAD, sr(P_WM, 2)))
        a("s_add_u32 m0, s43, %d" % L1_X)
        a("s_nop 0")
        a("global_load_lds_dwordx4 v%d, %s" % (XA, sr(P_X, 2)))
        a("global_load_lds_dwordx4 v%d, %s offset:1024" % (XA + 1, sr(P_X, 2)))

    TAD, UC, TP = V_IA, V_IA + 1, V_IA + 2
    a("v_lshrrev_b32 v2, 3, v0")
    a("v_lshlrev_b32 v%d, %d, v2" % (TAD, TBL + 4))
    a("v_and_b32 v2, 7, v0")
    a("v_mov_b32 v3, 0x%x" % ((16 - (1 << 23)) & 0xffffffff))
    a("v_mul_lo_u32 v2, v2, v3")
    a("v_subrev_u32 v%d, 0x%x, v2" % (UC, (1 << 23) + (1 << 31)))
    a("s_lshl_b32 s3, s2, %d" % (TBL + 2))
    a("s_add_u32 s3, s3, %d" % WS_TAB)
    if TBL == 8:
        a("v_add_u32 v%d, s3, v%d" % (TP, V_L16))
    elif TBL == 2:
        a("v_lshl_add_u32 v%d, v%d, 12, s3" % (TP, V_LANE))
    else:
        a("v_lshrrev_b32 v2, %d, v%d" % (TBL - 2, V_LANE))
        a("v_lshl_add_u32 v%d, v2, %d, s3" % (TP, TBL + 10))
        a("v_and_b32 v2, %d, v%d" % ((4 << TBL) - 1, V_L16))
        a("v_add_u32 v%d, v2, v%d" % (TP, TP))
    a("s_lshr_b32 s47, s%d, %d" % (S_B, TBL))
    a("s_lshl_b32 s47, s47, %d" % (TBL + 8))
    a("s_and_b32 s3, s%d, %d" % (S_B, (1 << TBL) - 1))
    a("s_add_u32 s47, s47, s3")
    a("s_lshl_b32 s47, s47, 2")
    a("s_add_u32 s47, s47, %d" % WS_TAB)
    a("s_mov_b32 s%d, 0" % S_EXTRA)
    a("s_mul_i32 s52, s2, %d" % (CU * 16))
    a("s_or_b32 s53, s52, 0x80000000")
    a("s_mov_b32 s51, 21846")
    a("s_mov_b32 s50, %d" % (4 if X_TEST & 1 else NLOC))
    FLG, FA, SF = V_T[0], V_T[0] + 1, V_T[0] + 2
    a("v_lshlrev_b32 v%d, 2, v%d" % (FA, V_LANE))
    a("s_mov_b32 s%d, %d" % (S_PCK, 1 << 22))
    a("s_mov_b32 s%d, 0" % S_ST)
    a("v_add_u32 v%d, %d, v%d" % (V_PF, WS_PT, V_L16))
    a("s_cmp_eq_u32 s%d, 7" % S_W)
    stamp(a, "setup")
    a.auto = 0
    a("v_mov_b32 v2, 1")
    a("s_waitcnt lgkmcnt(0)")
    a("s_barrier")
    stamp(a, "bar0")
    a("s_cbranch_scc1 L_w7f")
    a("s_mov_b64 exec, %s" % sr(S_EM, 2))
    for i in range(8):
        if i % 4 == 0:
            a("s_waitcnt vmcnt(%d)" % (5 - i // 4))
            if i == 0:
                stamp(a, "dst")
        a("v_lshlrev_b32_sdwa v%d, 2, v%d dst_sel:DWORD dst_unused:UNUSED_PAD src0_sel:DWORD src1_sel:BYTE_0" % (AD + i, DST + i))
        a("ds_add_rtn_u32 v%d, v%d, v2 offset:%d" % (RK + i, AD + i, L1_CNT))
    for i in range(8):
        a("v_lshrrev_b32 v%d, 8, v%d" % (DST + i, DST + i))
        a("v_add_u32 v%d, 1, v%d" % (DST + i, DST + i))
    for i in range(4):
        a("s_waitcnt lgkmcnt(%d)" % (7 - i))
        a("v_mul_u32_u24 v%d, s51, v%d" % (O1 + i, RK + i))
        a("v_lshrrev_b32 v%d, 16, v%d" % (O1 + i, O1 + i))
        a("v_mad_u32_u24 v%d, v%d, 13, v%d" % (O2 + i, O1 + i, RK + i))
        a("v_add_lshl_u32 v%d, v%d, v%d, 2" % (O1 + i, O1 + i, RK + i))
    a("s_mov_b64 exec, -1")
    if XL == 2 and XPOS == 1:
        xw1_loads()
    a("s_cmp_eq_u32 s%d, 6" % S_W)
    a("s_waitcnt lgkmcnt(0)")
    stamp(a, "preA")
    a("s_barrier")
    stamp(a, "barA")
    CN = V_U
    SC_ = V_U + 4
    STV = V_U + 8
    W2F, WXF = V_C[1], V_C[0]
    QD, RD = V_B[1], V_T[1]
    XF = V_B[0]
    a("ds_read_b128 %s, v%d offset:%d" % (vr(CN, 4), V_L16, L1_CNT))
    if XL == 2 and XPOS == 0:
        xw1_loads()
        a("s_cmp_eq_u32 s%d, 6" % S_W)
    for i in range(4, 8):
        a("v_mul_u32_u24 v%d, s51, v%d" % (O1 + i, RK + i))
        a("v_lshrrev_b32 v%d, 16, v%d" % (O1 + i, O1 + i))
    a("s_waitcnt lgkmcnt(0)")
    for i in range(4):
        a("v_add_u32 v%d, 2, v%d" % (CN + i, CN + i))
        a("v_mul_u32_u24 v%d, s51, v%d" % (CN + i, CN + i))
        a("v_lshrrev_b32 v%d, 16, v%d" % (CN + i, CN + i))
    a("v_add_u32 v%d, v%d, v%d" % (SC_, CN, CN + 1))
    a("v_add_u32 v%d, v%d, v%d" % (SC_ + 1, SC_, CN + 2))
    a("v_add_u32 v%d, v%d, v%d" % (SC_ + 2, SC_ + 1, CN + 3))
    a("v_mov_b32 v%d, v%d" % (SC_ + 3, SC_ + 2))
    dpp_scan(a, [SC_ + 3], fill=["v_mad_u32_u24 v%d, v%d, 13, v%d" % (O2 + i, O1 + i, RK + i) for i in range(4, 8)] +
             ["v_add_lshl_u32 v%d, v%d, v%d, 2" % (O1 + i, O1 + i, RK + i) for i in range(4, 8)] +
             ["v_min_u32 v%d, 255, v%d" % (V_TAB + i, CN + i) for i in range(4)])
    a("v_sub_u32 v%d, v%d, v%d" % (STV, SC_ + 3, SC_ + 2))
    a("v_add_lshl_u32 v%d, v%d, v%d, 4" % (STV + 1, STV, CN))
    a("v_add_lshl_u32 v%d, v%d, v%d, 4" % (STV + 2, STV, SC_))
    a("v_add_lshl_u32 v%d, v%d, v%d, 4" % (STV + 3, STV, SC_ + 1))
    a("v_lshlrev_b32 v%d, 4, v%d" % (STV, STV))
    a("v_readlane_b32 s54, v%d, 63" % (SC_ + 3))
    a("ds_write_b128 v%d, %s offset:%d" % (V_L16, vr(STV, 4), L1_START))
    a("s_mov_b64 exec, %s" % sr(S_EM, 2))
    for i in range(8):
        a("ds_read_b32 v%d, v%d offset:%d" % (RK + i, AD + i, L1_START))
    if B8E:
        for i in range(8):
            a("s_waitcnt lgkmcnt(7)")
            a("v_add_u32 v%d, v%d, v%d" % (O2 + i, O2 + i, RK + i))
            a("v_add_u32 v%d, v%d, v%d" % (O1 + i, O1 + i, RK + i))
            a("ds_write_b8 v%d, v%d offset:%d" % (O2 + i, DST + i, L1_STAGE + 12))
        NX = 3 if XL == 2 else 0
        RE = V_T[1]
        for hh in range(2):
            a("s_waitcnt vmcnt(%d)" % (NX + 3 - hh))
            for k in range(4 * hh, 4 * hh + 4):
                a("v_mul_u32_u24_sdwa v%d, v%d, s50 dst_sel:DWORD dst_unused:UNUSED_PAD src0_sel:BYTE_0 src1_sel:DWORD" % (AD + k, SRC + k))
        for hh in range(2):
            a("s_waitcnt vmcnt(%d)" % (NX + 1 - hh))
            if hh:
                stamp(a, "src")
            for i in range(4 * hh, 4 * hh + 4, 2):
                a("v_lshlrev_b32 v%d, 16, v%d" % (RE + i // 2, EV + i // 2))
            for i in range(4 * hh, 4 * hh + 4, 2):
                a("v_add_u32_sdwa v%d, v%d, v%d dst_sel:WORD_0 dst_unused:UNUSED_PRESERVE src0_sel:DWORD src1_sel:BYTE_1" % (RE + i // 2, AD + i, SRC + i))
                a("v_add_u32_sdwa v%d, v%d, v%d dst_sel:WORD_0 dst_unused:UNUSED_PRESERVE src0_sel:DWORD src1_sel:BYTE_1" % (EV + i // 2, AD + i + 1, SRC + i + 1))
            for i in range(4 * hh, 4 * hh + 4):
                a("ds_write_b32 v%d, v%d offset:%d" % (O1 + i, (EV if i & 1 else RE) + i // 2, L1_STAGE))
    else:
        a("s_waitcnt vmcnt(%d)" % (3 if XL == 2 else 0))
        stamp(a, "src")
        for k in range(8):
            a("v_mul_u32_u24_sdwa v%d, v%d, s50 dst_sel:DWORD dst_unused:UNUSED_PAD src0_sel:BYTE_0 src1_sel:DWORD" % (AD + k, SRC + k))
        RE = V_T[1]
        for i in range(0, 8, 2):
            a("v_lshlrev_b32 v%d, 16, v%d" % (RE + i // 2, EV + i // 2))
        for i in range(0, 8, 2):
            a("v_add_u32_sdwa v%d, v%d, v%d dst_sel:WORD_0 dst_unused:UNUSED_PRESERVE src0_sel:DWORD src1_sel:BYTE_1" % (RE + i // 2, AD + i, SRC + i))
            a("v_add_u32_sdwa v%d, v%d, v%d dst_sel:WORD_0 dst_unused:UNUSED_PRESERVE src0_sel:DWORD src1_sel:BYTE_1" % (EV + i // 2, AD + i + 1, SRC + i + 1))
        for i in range(8):
            a("s_waitcnt lgkmcnt(%d)" % (7 + i))
            a("v_add_u32 v%d, v%d, v%d" % (O2 + i, O2 + i, RK + i))
            a("v_add_u32 v%d, v%d, v%d" % (O1 + i, O1 + i, RK + i))
            a("ds_write_b8 v%d, v%d offset:%d" % (O2 + i, DST + i, L1_STAGE + 12))
            a("ds_write_b32 v%d, v%d offset:%d" % (O1 + i, (EV if i & 1 else RE) + i // 2, L1_STAGE))
    a("s_mov_b64 exec, -1")
    a("s_cbranch_scc0 L_w7i")
    for i in range(4):
        a("v_lshl_add_u32 v%d, v%d, 23, s53" % (V_TAB + i, V_TAB + i))
        a("v_add_u32 v%d, v%d, v%d" % (V_TAB + i, V_TAB + i, STV + i))
    if XL != 2:
        a("global_load_dword v%d, v%d, %s %s" % (FLG, FA, sr(P_DBG, 2), SCT))
    a("s_branch L_w7i")
    a.label("L_w7f")
    if XL:
        a("v_add_u32 v%d, 16384, v%d" % (W3, V_L16))
        a("s_mov_b32 m0, %d" % L_W3)
        a("s_mov_b64 exec, 0xff")
        a("global_load_lds_dwordx4 v%d, %s" % (W3, sr(P_WM, 2)))
        a("s_mov_b64 exec, -1")
        a("s_mov_b32 s3, %d" % LS[0])
        a("s_mov_b32 s54, %d" % L_LUT)
        a("s_lshl_b32 s44, s2, %d" % (8 - NCLR.bit_length() + 1))
        a("v_mov_b32 v%d, s44" % W3)
        a("v_mov_b32 v2, 1")
        a("v_mov_b32 v3, 1")
        if XL == 2:
            xw1_loads()
        a("s_cmp_ge_u32 s2, %d" % NCLR)
        if FPOS and not W7B:
            a("s_barrier")
        a("s_cbranch_scc1 L_nofl")
        a("s_mov_b64 exec, 1")
        a("s_waitcnt vmcnt(%d)" % (4 if XL == 2 else 1))
        stamp(a, "clr")
        a("global_store_dwordx2 v%d, v[2:3], %s %s" % (W3, sr(P_DBG, 2), SCW))
        a("s_mov_b64 exec, -1")
        a.label("L_nofl")
        if not FPOS and not W7B:
            a("s_barrier")
        a.label("L_lut")
        lut_build(a, 3, V_C[0], 0, 54)
        a("s_add_u32 s54, s54, 2048")
        a("s_add_u32 s3, s3, %d" % (LS[1] - LS[0]))
        a("s_cmp_eq_u32 s3, %d" % LS[1])
        a("s_cbranch_scc1 L_lut")
    else:
        a("v_lshrrev_b32 v%d, 3, v%d" % (WAD, V_LANE))
        a("v_lshl_add_u32 v%d, v%d, 8, s%d" % (WAD, WAD, S_B))
        a("v_lshl_add_u32 v%d, v%d, 7, v%d" % (XA + 1, WAD, V_IDX + 7))
        a("v_xor_b32 v%d, 64, v%d" % (XA, XA + 1))
        a("v_add_u32 v%d, %d, v%d" % (XA + 1, 2048 * 128 - 1024, XA + 1))
        a("s_mov_b32 m0, %d" % L1_X)
        a("s_mov_b64 s[44:45], %s" % sr(P_X, 2))
        a("v_add_u32 v%d, %d, v%d" % (WAD, 96 * 256, WAD))
        a("v_min_u32 v%d, %d, v%d" % (WAD, N - 1, WAD))
        a("v_lshl_add_u32 v%d, v%d, 7, v%d" % (W3 + 1, WAD, V_IDX + 7))
        a("v_xor_b32 v%d, 64, v%d" % (W3 + 1, W3 + 1))
        a.label("L_xld")
        a("global_load_lds_dwordx4 v%d, s[44:45]" % XA)
        a("global_load_lds_dwordx4 v%d, s[44:45] offset:1024" % (XA + 1))
        a("s_add_u32 m0, m0, 2048")
        a("s_add_u32 s44, s44, %d" % (4096 * 128))
        a("s_addc_u32 s45, s45, 0")
        a("s_cmp_lg_u32 m0, %d" % (L1_X + 2048 * 6))
        a("s_cbranch_scc1 L_xld")
        a("global_load_lds_dwordx4 v%d, %s" % (W3 + 1, sr(P_X, 2)))
        a("v_and_b32 v2, 16, v%d" % V_LANE)
        a("v_lshlrev_b32 v2, 2, v2")
        a("v_xor_b32 v%d, v2, v%d" % (WAD, V_L16))
        a("v_add_u32 v%d, 16384, v%d" % (W3, V_L16))
        a("s_mov_b32 s3, %d" % LS[0])
        a("s_mov_b32 s54, %d" % L_LUT)
        stamp(a, "xiss")
        a("s_barrier")
        a.label("L_lut")
        lut_build(a, 3, V_C[0], 0, 54)
        a("s_add_u32 s54, s54, 2048")
        a("s_add_u32 s3, s3, %d" % (LS[1] - LS[0]))
        a("s_cmp_eq_u32 s3, %d" % LS[1])
        a("s_cbranch_scc1 L_lut")
        a("s_cmp_ge_u32 s2, %d" % NCLR)
        a("s_cbranch_scc1 L_noflag")
        a("s_lshl_b32 s3, s2, %d" % (8 - NCLR.bit_length() + 1))
        a("v_mov_b32 v%d, s3" % XA)
        a("v_mov_b32 v2, 1")
        a("v_mov_b32 v3, 1")
        a("s_mov_b64 exec, 1")
        a("s_waitcnt vmcnt(13)")
        stamp(a, "clr")
        a("global_store_dwordx2 v%d, v[2:3], %s %s" % (XA, sr(P_DBG, 2), SC))
        a.label("L_noflag")
        a("s_mov_b32 m0, %d" % L_W3)
        a("s_mov_b64 exec, 0xff")
        a("global_load_lds_dwordx4 v%d, %s" % (W3, sr(P_WM, 2)))
        a("s_mov_b64 exec, -1")
        a("s_mov_b32 m0, %d" % L1_W1)
        a("s_mov_b64 s[44:45], %s" % sr(P_WM, 2))
        a.label("L_wld")
        for i in range(4):
            a("global_load_lds_dwordx4 v%d, s[44:45] offset:%d" % (WAD, 1024 * i))
        a("s_add_u32 m0, m0, 4096")
        a("s_add_u32 s44, s44, 4096")
        a("s_addc_u32 s45, s45, 0")
        a("s_cmp_eq_u32 m0, %d" % L1_WX)
        a("s_cselect_b64 s[44:45], %s, s[44:45]" % sr(P_WU, 2))
        a("s_cmp_lg_u32 m0, %d" % (L_WA + 8192))
        a("s_cbranch_scc1 L_wld")
        stamp(a, "wiss")
    a("s_mov_b32 s54, 0")
    a.label("L_w7i")
    a("v_add_u32 v2, 1024, v0")
    a("v_cmp_gt_u32 vcc, s54, v2")
    a("s_add_u32 s53, s52, 8192")
    a("s_add_u32 s54, s52, 16384")
    a("s_waitcnt lgkmcnt(0)")
    stamp(a, "preB")
    a("s_barrier")
    stamp(a, "barB")
    CP = V_N[0]
    for i in range(3):
        a("ds_read_b128 %s, v%d offset:%d" % (vr(CP + 4 * i, 4), T16, L1_STAGE + 8192 * i))
    a("s_waitcnt lgkmcnt(2)")
    a("buffer_store_dwordx4 %s, v%d, %s, s52 offen %s" % (vr(CP, 4), T16, sr(S_WS, 4), SCS))
    a("s_waitcnt lgkmcnt(1)")
    a("buffer_store_dwordx4 %s, v%d, %s, s53 offen %s" % (vr(CP + 4, 4), T16, sr(S_WS, 4), SCS))
    if XL != 2:
        a("s_cbranch_vccz L_no3")
    a("s_waitcnt lgkmcnt(0)")
    a("s_mov_b64 exec, vcc")
    a("buffer_store_dwordx4 %s, v%d, %s, s54 offen %s" % (vr(CP + 8, 4), T16, sr(S_WS, 4), SCS))
    a("s_mov_b64 exec, -1")
    a.label("L_no3")
    stamp(a, "stiss")
    if XL:
        if XL == 1:
            xw1_loads()
        a("s_mov_b32 s50, 0x807fffff")
        a("s_add_u32 m0, s42, 8192")
        a("v_mov_b32 v%d, 0" % SF)
        a("global_load_lds_dwordx4 v%d, %s" % (DO, sr(P_WM, 2)))
        a("s_add_u32 m0, s42, 16384")
        a("s_nop 0")
        a("global_load_lds_dwordx4 v%d, %s" % (WAD, sr(P_WU, 2)))
        a("s_add_u32 m0, s42, 24576")
        a("s_nop 0")
        a("global_load_lds_dwordx4 v%d, %s" % (DO, sr(P_WU, 2)))
    if PADS:
        a("s_branch L_page1")
        a.raw("@SEMI@")
        a.raw(".p2align 12")
        a.raw("@PAGE@")
        a.label("L_page1")
    TABV = V_D[0]
    PXF, PD, PB_ = V_U, V_B[1], V_U + 8

    def tab_loads():
        for p in range(4):
            a("buffer_load_dword v%d, v%d, %s, s47 offen offset:%d %s" % (TABV + p, TAD, sr(S_WS, 4), (4 << TBL) * p, SCT))

    def qr_out(D, off):
        for tau in range(2):
            for i in range(4):
                a("v_pk_mul_f32 %s, %s, %s" % (vr(D + 8 * tau + 2 * i, 2), vr(D + 8 * tau + 2 * i, 2), sr(S_LG, 2)))
            a("s_mov_b64 exec, %s" % sr(S_QM + 2 * tau, 2))
            for blk in range(2):
                a("ds_write_b128 v%d, %s offset:%d" % (QW, vr(D + 8 * tau + 4 * blk, 4), off + 16 * RSTR * tau + 16 * blk))
            a("s_mov_b64 exec, -1")

    def bar_c(n):
        a("s_cmp_lg_u32 s%d, 6" % S_W)
        a("s_waitcnt vmcnt(%d) lgkmcnt(0)" % n)
        stamp(a, "stack")
        a("s_cbranch_scc1 L_barC")
        a.label("L_fpoll")
        a("v_cmp_ne_u32 vcc, 1, v%d" % FLG)
        a("s_cbranch_vccnz L_fagain")
        a.label("L_barC")
        if PSB == 3:
            p_stores(14)
        a("s_barrier")
        a("s_cbranch_scc1 L_nopub")
        a("global_store_dwordx4 v%d, %s, %s %s" % (TP, vr(V_TAB, 4), sr(P_WS, 2), SCW))
        a.label("L_nopub")
        stamp(a, "barC")

    def p_stores(n):
        a("s_waitcnt lgkmcnt(%d)" % (n + 1))
        a("buffer_store_dwordx4 %s, %s, %s, 0 idxen offen %s" % (vr(PB_, 4), vr(PA, 2), sr(S_X, 4), SCS))
        a("s_waitcnt lgkmcnt(%d)" % n)
        a("buffer_store_dwordx4 %s, %s, %s, 0 idxen offen %s" % (vr(PB_ + 4, 4), vr(V_R, 2), sr(S_X, 4), SCS))
        stamp(a, "piss")

    if XL == 2:
        a("s_waitcnt vmcnt(6)")
        stamp(a, "preB2")
        a("s_barrier")
        stamp(a, "barB2")
    else:
        if not XL:
            a("v_mov_b32 v%d, 0" % SF)
            a("s_mov_b32 s50, 0x807fffff")
        bar_c(6 if XL else 0)
    if XL == 1:
        tab_loads()
        a("s_waitcnt vmcnt(5)")
        a("s_barrier")
        stamp(a, "barC2")
    a("ds_read_b128 %s, v%d" % (vr(PXF, 4), XP))
    a("ds_read_b128 %s, v%d" % (vr(PXF + 4, 4), XP + 1))
    for x in tr_frags(V_C[0], TA, 0) + tr_frags(V_C[1], TA2, 0)[:4]:
        a(x)
    if not XL:
        tab_loads()
    a("s_waitcnt lgkmcnt(4)")
    for x in tr_frags(V_C[1], TA2, 0)[4:]:
        a(x)
    if XL != 2:
        a("ds_read_b32 v%d, v%d offset:%d" % (SF, SF, F_SLOW))
    for tau in range(2):
        a("ds_read_b128 %s, v%d offset:%d" % (vr(XF + 8 * tau, 4), XB, 2048 * tau))
        a("ds_read_b128 %s, v%d offset:%d" % (vr(XF + 8 * tau + 4, 4), V_RC, 2048 * tau))
    for H in range(2):
        if H:
            a("s_waitcnt lgkmcnt(4)")
        for k in range(2):
            for blk in range(2):
                a(mf16(PD + 8 * H + 4 * blk, V_C[H] + 8 * blk + 4 * k, PXF + 4 * k, k == 0))
    if XL != 2:
        a("v_cmp_lt_u32_e64 s[44:45], 3, v%d" % SF)
    else:
        a("s_cmp_lg_u32 s%d, 6" % S_W)
        a("s_cbranch_scc1 L_nofld")
        a("global_load_dword v%d, v%d, %s %s" % (FLG, FA, sr(P_DBG, 2), SCT))
        a.label("L_nofld")
    a("v_mov_b32 v%d, 0" % (V_AE + 1))
    for H in range(2):
        for i in range(4):
            a("v_pk_mul_f32 %s, %s, %s" % (vr(PD + 8 * H + 2 * i, 2), vr(PD + 8 * H + 2 * i, 2), sr(S_LG, 2)))
        for i in range(4):
            a("v_cvt_pk_bf16_f32 v%d, v%d, v%d" % (PD + 8 * H + i, PD + 8 * H + 2 * i, PD + 8 * H + 2 * i + 1))
        a("ds_write_b128 v%d, %s" % (PW2 if H else PW, vr(PD + 8 * H, 4)))
    for i in range(2):
        a("ds_read_b128 %s, v%d offset:%d" % (vr(PB_ + 4 * i, 4), PR, 1024 * i))
    if XL == 2:
        a("ds_read_u16 v%d, v%d offset:%d" % (W3, V_T0 + 5, L_W3))
        a("ds_read_u16 v%d, v%d offset:%d" % (W3 + 1, V_T0 + 5, L_W3 + 64))
        if PSB == 1:
            p_stores(2)
        bar_c(2 if PSB == 1 else 0)
        if TORD:
            tab_loads()
        a("ds_read_b32 v%d, v%d offset:%d" % (SF, SF, F_SLOW))
        for x in tr_frags(W2F, TA, L1_W2 - L1_W1):
            a(x)
        if not TORD and QF != 1:
            tab_loads()
        if not PSB and not TORD:
            p_stores(14)
        a("s_waitcnt lgkmcnt(0)")
        a("v_cmp_lt_u32_e64 s[44:45], 3, v%d" % SF)
    else:
        for x in tr_frags(W2F, TA, L1_W2 - L1_W1):
            a(x)
        a("ds_read_u16 v%d, v%d offset:%d" % (W3, V_T0 + 5, L_W3))
        a("ds_read_u16 v%d, v%d offset:%d" % (W3 + 1, V_T0 + 5, L_W3 + 64))
        p_stores(10)
        a("s_waitcnt lgkmcnt(2)")
    for x in tr_frags(WXF, TA, L1_WX - L1_W1):
        a(x)
    for x in tile_mfmas(QD, W2F, XF):
        a(x)
    if XL == 2 and TORD and not PSB:
        p_stores(14)
    if QF:
        a("s_branch L_qr")
    else:
        a("s_waitcnt vmcnt(%d)" % (0 if XL == 2 and PSB else 2))
    def p_ready(n):
        a("v_mov_b32 v2, 1")
        a("v_mov_b32 v3, %d" % F_PCNT)
        a("s_lshl_b32 s3, s2, 4")
        a("s_mov_b64 exec, 1")
        a("s_waitcnt vmcnt(%d)" % n)
        a("ds_add_rtn_u32 v3, v3, v2")
        a("s_add_u32 s3, s3, %d" % (WS_PT - (7 << 28) + (1 << 32)))
        a("s_mov_b32 s51, %d" % L_SEND)
        a("s_waitcnt lgkmcnt(0)")
        a("v_lshl_add_u32 v3, v3, 28, s3")
        a("buffer_store_dword v2, v3, %s, 0 offen %s" % (sr(S_WS, 4), SCW))
        a("s_mov_b64 exec, -1")

    a.label("L_tcheck")
    a("v_max3_i32 v3, v%d, v%d, v%d" % (TABV, TABV + 1, TABV + 2))
    a("v_max_i32 v3, v3, v%d" % (TABV + 3))
    a("v_cmp_le_i32 vcc, 0, v3")
    a("s_or_b64 vcc, vcc, s[44:45]")
    a("s_cbranch_vccnz L_tfail")
    stamp(a, "tab")
    RC = V_N[0]
    RT = V_T[0]
    ADR = V_T[0] + 12
    TB2 = TABV + 4
    for p in range(4):
        a("v_add_u32 v%d, v%d, v%d" % (TB2 + p, TABV + p, UC))
    a("v_cmp_le_u32 vcc, 0x%x, v3" % ((9 << 23) | (1 << 31)))
    a("s_cbranch_vccnz L2_extra")
    a.label("L2_noextra")
    for p in range(4):
        a("v_and_b32 v%d, s50, v%d" % (TB2 + p, TB2 + p))
        a("buffer_load_dwordx4 %s, v%d, %s, 0 offen %s" % (vr(RC + 4 * p, 4), TB2 + p, sr(S_WS, 4), SC))
    if PSB == 2:
        p_stores(14)
    if PRE:
        a("v_mov_b32 v3, -1")
        a("buffer_store_dword v3, v3, %s, 0 offen" % sr(S_WS, 4))
    a("s_cmp_eq_u32 s%d, 1" % S_ST)
    a("s_cbranch_scc1 L_after")
    a("s_mov_b32 s%d, 2" % S_ST)
    a.label("L_qr")
    a("v_cmp_eq_u32 vcc, 0, v%d" % HH)
    a("v_mov_b32 v%d, 0" % (V_AE + 2))
    a("v_mov_b32 v%d, 0" % (V_AE + 5))
    a("v_mov_b32 v%d, 0" % (V_AE + 6))
    a("s_waitcnt lgkmcnt(0)")
    for x in tile_mfmas(RD, WXF, XF):
        a(x)
    qr_out(QD, 0)
    for X in range(2):
        a("v_lshlrev_b32 v2, 16, v%d" % (W3 + X))
        a("v_mul_f32 v2, s%d, v2" % S_LG)
        a("v_cvt_pk_bf16_f32 v3, v%d, v2" % (V_AE + 1))
        a("v_sub_f32 v2, v2, v3")
        a("v_cvt_pk_bf16_f32 v2, v%d, v2" % (V_AE + 1))
        a("v_cndmask_b32 v%d, v2, v3, vcc" % (V_AE + 4 * X))
        a("v_cndmask_b32 v%d, v2, v3, vcc" % (V_AE + 4 * X + 3))
    qr_out(RD, L_R - L_Q)
    for i in range(12):
        a("v_mov_b32 v%d, -1" % (RT + i))
    stamp(a, "qr")
    if QF:
        tab_loads()
    if PSB == 4:
        p_stores(14)
    if PRE:
        p_ready(4)
    a("s_cmp_lg_u32 s%d, 2" % S_ST)
    a("s_cbranch_scc1 L_tfail1")
    a.label("L_after")

    if PSB == 2:
        a("s_mov_b32 s51, %d" % L_SEND)
    elif not PRE:
        p_ready(4)
    stamp(a, "pack")
    a("v_mov_b32 v2, 4")

    def p1(rc, k):
        for i in range(3):
            a("v_lshlrev_b32_sdwa v%d, 2, v%d dst_sel:DWORD dst_unused:UNUSED_PAD src0_sel:DWORD src1_sel:BYTE_%d" % (ADR + k + i, rc + 3, i))
        for i in range(3):
            a("v_cmpx_ne_u32 vcc, 0, v%d" % (ADR + k + i))
            a("ds_add_rtn_u32 v%d, v%d, v2 offset:%d" % (RT + k + i, ADR + k + i, L_CNT))
        a("s_mov_b64 exec, -1")

    def p2(rc, k):
        for i in range(3):
            a("v_cmpx_gt_u32 vcc, s51, v%d" % (RT + k + i))
            a("ds_write_b32 v%d, v%d" % (RT + k + i, rc + i))
        a("s_mov_b64 exec, -1")

    a("s_cmp_lg_u32 s%d, 0" % S_EXTRA)
    a("s_cbranch_scc1 L2_xpl")
    a.label("L2_pl")
    a("s_waitcnt vmcnt(%d)" % (3 + NPF))
    stamp(a, "rec0")
    p1(RC, 0)
    a("s_waitcnt vmcnt(%d)" % (2 + NPF))
    p1(RC + 4, 3)
    a("s_waitcnt vmcnt(%d) lgkmcnt(0)" % (1 + NPF))
    p1(RC + 8, 6)
    p2(RC, 0)
    p2(RC + 4, 3)
    a("s_waitcnt vmcnt(%d)" % NPF)
    p1(RC + 12, 9)
    a("s_waitcnt lgkmcnt(0)")
    p2(RC + 8, 6)
    p2(RC + 12, 9)
    stamp(a, "placed")
    if PSB == 2:
        p_ready(0)

    a.label("L2_build")
    L4, RB0, NC0, NC1 = V_U, V_U + 1, V_U + 2, V_U + 3
    C0, C1, FL = V_U + 4, V_U + 5, V_U + 6
    P0 = V_U + 8
    O0 = V_U + 10
    E0, E1 = V_N[0], V_N[0] + 8
    a("v_lshlrev_b32 v%d, 2, v%d" % (L4, V_LANE))
    a("s_mov_b32 s3, %d" % SSTR)
    a("v_mov_b32 v%d, %d" % (RB0, L_SLOT - 4))
    a("v_mad_u32_u24 v%d, v%d, s3, v%d" % (RB0, V_LANE, RB0))
    a("v_lshlrev_b32 v%d, 25, v%d" % (NC0, V_LANE))
    a("v_add3_u32 v%d, v%d, v%d, 4" % (NC0, NC0, RB0))
    a("v_add_u32 v%d, 0x%x, v%d" % (NC1, (64 << 25) + 64 * SSTR, NC0))
    a("s_cmp_lt_u32 s%d, %d" % (S_B, N - 97 * 256))
    a("s_cselect_b32 s%d, 3, 1" % (S_HI + 1))
    a("s_mov_b32 s%d, -1" % S_HI)
    a("s_mov_b32 s%d, 0" % S_LI)
    a("s_mov_b32 s%d, 0" % S_SAFE)
    a("v_mov_b32 v%d, %d" % (O0, L_SLOT + 98 * SSTR))
    a("s_lshl_b32 s3, s%d, 6" % S_W)
    a("v_and_b32 v3, 60, v%d" % L4)
    a("v_add_u32 v%d, s3, v3" % (V_T0 + 2))
    a("v_mov_b32 v2, 0x%x" % (127 << 25))
    a("ds_write_b32 v%d, v2 offset:%d" % (V_T0 + 2, L_NL))
    a("v_mov_b32 v%d, 0" % FL)
    a("v_add_u32 v3, %d, v%d" % (64 * SSTR, RB0))
    a("s_mov_b32 s42, 0x100401")
    a("s_waitcnt lgkmcnt(0)")
    a("s_barrier")
    stamp(a, "barD")
    PFV = V_D[0]

    def pf_loads():
        for k in range(4):
            a("global_load_dword v%d, v%d, %s offset:%d %s" % (PFV + k, V_PF, sr(P_WS, 2), 1024 * k, SCT))

    pf_loads()
    if X_TEST & 2:
        for i in range(16):
            a("v_mov_b32 v%d, v%d" % (V_WA + i, V_ID + (i & 7)))
    a("ds_read_b32 v%d, v%d offset:%d" % (C0, L4, L_CNT + 4))
    a("ds_read_b32 v%d, v%d offset:%d" % (C1, L4, L_CNT + 4 + 256))
    a("ds_read_b32 v%d, v%d offset:%d" % (FL, FL, F_SLOW))
    a("ds_write_b32 v%d, v%d" % (V_T0 + 3, O0))
    a("s_waitcnt lgkmcnt(2)")
    a("v_sub_u32 v%d, v%d, v%d" % (C0, C0, RB0))
    a("v_sub_u32 v%d, v%d, v3" % (C1, C1))
    a("v_lshlrev_b32 v%d, 3, v%d" % (C0, C0))
    a("v_lshlrev_b32 v%d, 3, v%d" % (C1, C1))

    def lut_reads(off):
        a("ds_read_b128 %s, v%d offset:%d" % (vr(E0 + 4, 4), C0, off + 16))
        a("ds_read_b128 %s, v%d offset:%d" % (vr(E1 + 4, 4), C1, off + 16))
        a("ds_read_b128 %s, v%d offset:%d" % (vr(E0, 4), C0, off))
        a("ds_read_b128 %s, v%d offset:%d" % (vr(E1, 4), C1, off))

    lut_reads(L_LUT)
    a("v_max_u32 v2, v%d, v%d" % (C0, C1))
    a("v_cmp_lt_u32 vcc, %d, v2" % (32 * (DMAX + 1)))
    a("s_waitcnt lgkmcnt(4)")
    a("v_cmp_lt_u32_e64 s[40:41], 1, v%d" % FL)
    a("s_or_b64 vcc, vcc, s[40:41]")
    a("s_cbranch_vccnz L2_slow")
    a.label("L2_scan")
    a("s_waitcnt lgkmcnt(2)")
    a("v_add_u32 v%d, v%d, v%d" % (O0, E0 + 4, E1 + 4))
    a("v_add_u32 v%d, v%d, v%d" % (O0 + 1, E0 + 5, E1 + 5))
    a("v_mov_b32 v%d, v%d" % (P0, O0))
    a("v_mov_b32 v%d, v%d" % (P0 + 1, O0 + 1))
    a("s_waitcnt lgkmcnt(0)")
    dpp_scan(a, [P0, P0 + 1], fill=["v_add_u32 v%d, v%d, v%d" % (E0 + i, E0 + i, NC0) for i in range(4)] +
             ["v_add_u32 v%d, v%d, v%d" % (E1 + i, E1 + i, NC1) for i in range(4)])
    a("v_readlane_b32 s44, v%d, 63" % P0)
    a("v_readlane_b32 s45, v%d, 63" % (P0 + 1))
    a("v_sub_u32 v%d, v%d, v%d" % (P0, P0, O0))
    a("v_sub_u32 v%d, v%d, v%d" % (P0 + 1, P0 + 1, O0 + 1))
    a("s_mul_i32 s44, s44, s42")
    a("s_mul_i32 s45, s45, s42")
    a("s_bfe_u32 s46, s44, 0x%x" % ((10 << 16) | 20))
    a("s_bfe_u32 s47, s45, 0x%x" % ((10 << 16) | 20))
    a("s_lshl_b32 s44, s44, 10")
    a("s_lshl_b32 s45, s45, 10")
    a("s_add_u32 s47, s47, s46")
    a("s_mul_i32 s46, s46, s42")
    a("v_add_u32 v%d, s44, v%d" % (P0, P0))
    a("s_add_u32 s45, s45, s46")
    a("s_cmp_gt_u32 s47, 256")
    a("s_cbranch_scc1 L2_retry")
    a("v_add_u32 v%d, s45, v%d" % (P0 + 1, P0 + 1))
    a("v_lshrrev_b64 %s, v%d, %s" % (vr(O0, 2), E0 + 6, vr(P0, 2)))
    a("v_add_u32 v%d, v%d, v%d" % (P0, P0, E0 + 4))
    a("v_add_u32 v%d, v%d, v%d" % (P0 + 1, P0 + 1, E0 + 5))
    a("v_and_b32 v2, 0x1ff, v%d" % O0)
    a("v_lshrrev_b64 %s, v%d, %s" % (vr(O0, 2), E1 + 6, vr(P0, 2)))
    a("v_lshl_add_u32 v2, v2, 2, s%d" % S_XT)
    a("ds_write2_b32 v2, v%d, v%d offset0:2 offset1:3" % (E0 + 2, E0 + 3))
    a("v_and_b32 v3, 0x1ff, v%d" % O0)
    a("v_lshl_add_u32 v3, v3, 2, s%d" % S_XT)
    a("s_mov_b64 exec, %s" % sr(S_HI, 2))
    a("ds_write2_b32 v3, v%d, v%d offset0:2 offset1:3" % (E1 + 2, E1 + 3))
    a("ds_write2_b32 v3, v%d, v%d offset0:0 offset1:1" % (E1, E1 + 1))
    a("s_mov_b64 exec, -1")
    a("ds_write2_b32 v2, v%d, v%d offset0:0 offset1:1" % (E0, E0 + 1))
    a("s_lshl_b32 s3, s%d, 7" % S_BT)
    a("s_add_u32 s3, s3, s%d" % S_XT)
    a("v_lshrrev_b32 v2, 3, v%d" % V_LANE)
    a("v_lshl_add_u32 v2, v2, 2, s3")
    for i in range(4):
        a("ds_read_u16 v%d, v2 offset:%d" % (V_IA + i, 32 * i))
    a("ds_read_b32 v%d, v%d" % (V_W, V_T0 + 3))
    a("s_mov_b32 s%d, %d" % (S_X + 2, NP))
    a(dma_m0(0))
    a("s_mov_b32 s3, %d" % RSTR)
    a("v_lshlrev_b32 v3, 5, v%d" % HH)
    a("s_waitcnt lgkmcnt(1)")
    for x in idx_reads(0):
        a(x)
    a("s_waitcnt lgkmcnt(4)")
    a("v_and_b32 v%d, 0xffff, v%d" % (V_RA, V_W))
    a("v_bfe_u32 v%d, v%d, 16, 6" % (V_LEN, V_W))
    a("v_lshrrev_b32 v2, 25, v%d" % V_W)
    a("v_mad_u32_u24 v%d, v2, s3, v3" % V_QA)
    a("v_add_u32 v%d, %d, v%d" % (V_QA, L_Q, V_QA))
    a("s_waitcnt vmcnt(0)")
    a.label("L_pf_check")
    a("v_and_b32 v2, v%d, v%d" % (PFV, PFV + 1))
    a("v_and_b32 v2, v2, v%d" % (PFV + 2))
    a("v_and_b32 v2, v2, v%d" % (PFV + 3))
    a("v_cmp_ne_u32 vcc, 1, v2")
    a("s_cbranch_vccnz L_pf_again")
    a.label("L_pf_ok")
    stamp(a, "pf")
    d = dma_loads()
    for i in range(4):
        a("s_waitcnt lgkmcnt(%d)" % (3 - i))
        a(d[i])
    stamp(a, "dma0")
    for x in idx_reads(4):
        a(x)
    a("ds_read2_b32 %s, v%d offset0:0 offset1:1" % (vr(V_R, 2), V_RA))
    for x in row_reads(V_C, V_QA):
        a(x)
    KF = V_T0 + 4
    a("v_bfe_u32 v%d, v%d, 22, 3" % (KF, V_W))
    a("v_mov_b32 v%d, v%d" % (V_T0 + 5, V_LEN))
    a("v_cmp_ne_u32 vcc, 0, v%d" % KF)
    a("v_add_u32 v2, %d, v%d" % (L_R - L_Q, V_QA))
    a("v_add_u32 v%d, %d, v3" % (V_RC, L_ZERO))
    a("v_cndmask_b32 v%d, v%d, v2, vcc" % (V_RC, V_RC))
    a("v_mbcnt_lo_u32_b32 v2, vcc_lo, 0")
    a("s_lshl_b32 s40, s%d, 6" % S_W)
    a("v_lshl_add_u32 v2, v2, 2, s40")
    a("s_mov_b32 s41, 0xffc00000")
    a("v_and_or_b32 v%d, v%d, s41, v%d" % (V_NW, V_W, COL))
    a(dma_m0(1))
    a("s_waitcnt lgkmcnt(9)")
    for x in dma_loads():
        a(x)
    for x in idx_reads(8):
        a(x)
    a("s_mov_b32 exec_lo, vcc_lo")
    a("s_mov_b32 exec_hi, 0")
    a("ds_write_b32 v2, v%d offset:%d" % (V_NW, L_NL))
    a("s_mov_b64 exec, -1")
    a("v_and_b32 v2, 60, v%d" % V_LANE)
    a("v_add_u32 v2, s40, v2")
    a("ds_read_b32 v%d, v2 offset:%d" % (V_NW, L_NL))
    a("v_add_u32 v2, v%d, v%d" % (KF, COL))
    a("v_cmp_lt_u32 vcc, 32, v2")
    a("v_mad_u32_u24 v%d, v%d, s3, v3" % (V_YW, COL))
    a("v_add_u32 v%d, s%d, v%d" % (V_YW, S_XT, V_YW))
    a("s_cmp_lg_u64 vcc, 0")
    a("s_cselect_b32 s%d, 1, 0" % S_NEED)
    a("s_cmp_lg_u32 s%d, 7" % S_BT)
    a("s_cselect_b32 s%d, s%d, 0" % (S_NEED, S_NEED))
    dpp_scan(a, [V_T0 + 5], op="v_max_u32", fill=[
        "v_cmp_lt_u32_e64 %s, 0, v%d" % (sr(S_M0, 2), V_LEN),
        "v_cmp_lt_u32_e64 %s, 1, v%d" % (sr(S_M[1], 2), V_LEN),
        "v_mov_b32 v%d, 0" % V_S, "v_mov_b32 v%d, 0" % (V_S + 1)])
    a("s_nop 0")
    a("v_readlane_b32 s%d, v%d, 63" % (S_ML, V_T0 + 5))
    a("s_mov_b32 s%d, 1" % S_J)
    a("s_waitcnt vmcnt(4)")
    for x in b_reads(0):
        a(x)
    a("s_max_u32 s%d, s%d, 2" % (S_ML, S_ML))
    if PRI:
        a("s_sub_u32 s%d, s%d, %d" % (S_ST, S_ML, PRI))
        if PRW:
            a("s_lshr_b32 s3, s%d, %d" % (S_W, PRW - 1))
            a("s_sub_u32 s%d, s%d, s3" % (S_ST, S_ST))
        a("s_cmp_lt_u32 s%d, 4" % S_W)
        a("s_cselect_b32 s%d, s%d, -1" % (S_ST, S_ST))
        a("s_setprio 1")
    a("s_cmp_gt_u32 s%d, 2" % S_ML)
    a("s_cselect_b32 s%d, %d, 0" % (S_X + 2, NP))
    a(dma_m0(0))
    mf = mfma_chain(0, 0, V_N[0])
    a("s_waitcnt lgkmcnt(4)")
    a(mf[0])
    a("s_waitcnt lgkmcnt(0)")
    for x in mf[1:]:
        a(x)
    for x in dma_loads():
        a(x)
    stamp(a, "loop")
    a("s_nop 6")
    me(a, mfma_chain(1, 0, V_N[1]), exps(V_N[0]))
    a("s_waitcnt vmcnt(4)")
    for x in b_reads(1) + idx_reads(12) + pk_first(0):
        a(x)
    a("s_cmp_gt_u32 s%d, 3" % S_ML)
    a("s_cselect_b32 s%d, %d, 0" % (S_X + 2, NP))
    a(dma_m0(1))
    a("s_waitcnt lgkmcnt(0)")
    me(a, mfma_chain(0, 1, V_T[0]), exps(V_N[1]))
    for x in dma_loads():
        a(x)
    for x in pk_first(1):
        a(x)
    a("s_branch L2_loop")
    a.label("L_tfail")
    if PDEP:
        for p in range(4):
            a("v_cmp_le_i32 vcc, 0, v%d" % (TABV + p))
            a("s_mov_b64 exec, vcc")
            a("buffer_load_dword v%d, v%d, %s, s47 offen offset:%d %s" % (TABV + p, TAD, sr(S_WS, 4), (4 << TBL) * p, SCT))
            a("s_mov_b64 exec, -1")
    else:
        tab_loads()
    a("s_cmp_eq_u32 s%d, 0" % S_ST)
    a("s_cbranch_scc1 L_qr")
    a("s_sub_u32 s%d, s%d, 1" % (S_TO, S_TO))
    a("s_cbranch_scc1 L_timeout")
    a.label("L_tback")
    if PDEP > 1:
        a("s_sleep %d" % PSL)
    a("s_waitcnt vmcnt(%d)" % (4 * max(0, PDEP - 1)))
    a("s_branch L_tcheck")
    a.label("L_tfail1")
    a("s_mov_b32 s%d, 1" % S_ST)
    a("s_cmp_lg_u64 s[44:45], 0")
    a("s_cbranch_scc1 L2_build")
    a("s_branch %s" % ("L_padt" if PADS else "L_tback"))
    a.label("L_fagain")
    a("s_sleep 1")
    a("global_load_dword v%d, v%d, %s %s" % (FLG, FA, sr(P_DBG, 2), SCT))
    a("s_sub_u32 s%d, s%d, 1" % (S_TO, S_TO))
    a("s_waitcnt vmcnt(0)")
    a("s_cbranch_scc0 L_fpoll")
    a("v_mov_b32 v3, 6")
    a("v_mov_b32 v2, %d" % F_SLOW)
    a("ds_or_b32 v2, v3")
    a("s_waitcnt lgkmcnt(0)")
    a("s_branch L_barC")
    a.label("L_pf_again")
    a("s_sub_u32 s%d, s%d, 1" % (S_PCK, S_PCK))
    a("s_cselect_b32 s%d, 0, s%d" % (S_PCK, S_PCK))
    a("s_cbranch_scc1 L_pf_ok")
    a("s_sleep 1")
    pf_loads()
    a("s_waitcnt vmcnt(0)")
    a("s_branch L_pf_check")
    semi0 = len(a.l)
    a.label("L2_extra")
    a("s_mov_b32 s%d, 1" % S_EXTRA)
    a("v_cmp_le_u32 vcc, 0x%x, v3" % ((17 << 23) | (1 << 31)))
    a("s_cbranch_vccz L2_noflag")
    a("s_mov_b32 s%d, 3" % S_EXTRA)
    a.label("L2_noflag")
    for p in range(4):
        a("v_add_u32 v3, 0x%x, v%d" % ((128 - (8 << 23)) & 0xffffffff, TB2 + p))
        a("v_and_b32 v3, s50, v3")
        a("buffer_load_dwordx4 %s, v3, %s, 0 offen %s" % (vr(RC + 16 + 4 * p, 4), sr(S_WS, 4), SC))
    a("s_branch L2_noextra")
    a.label("L2_retry")
    a("s_add_u32 s%d, s%d, 1" % (S_LI, S_LI))
    a("s_cmp_lg_u32 s%d, 1" % S_LI)
    a("s_cbranch_scc1 L2_retry2")
    a.label("L2_retry1")
    lut_reads(L_LUT + 2048)
    a("s_branch L2_scan")
    if PADS:
        semi = a.l[semi0:]
        del a.l[semi0:]
        k = a.l.index("@SEMI@")
        a.l[k:k + 1] = semi
        a.raw(".p2align 12")
        a.raw("@PAGE@")
        a.label("L_padt")
        if PRE:
            a("s_waitcnt vmcnt(1)")
            a("s_branch L_tcheck")
        elif PSB == 4:
            a("s_waitcnt vmcnt(2)")
            a("s_branch L_tcheck")
        else:
            a("s_branch L_tback")
    a.raw(".p2align 6")
    a.label("L2_loop")
    for par in (1, 0):
        me(a, mfma_chain(1, par, V_T[1]), exps(V_T[0]))
        a("s_add_u32 s%d, s%d, 1" % (S_J, S_J))
        a("s_waitcnt vmcnt(4)")
        for x in b_reads(par + 1) + idx_reads(16 if par else 20):
            a(x)
        if par == 1:
            a("ds_read2_b32 %s, v%d offset0:2 offset1:3" % (vr(V_R, 2), V_RA))
        a("s_cmp_ge_u32 s%d, s%d" % (S_J, S_ML))
        a("s_mov_b64 exec, %s" % sr(S_M[par], 2))
        for x in pk_update(0):
            a(x)
        a("s_cbranch_scc1 L2_last")
        a("s_mov_b64 exec, -1")
        if PRI:
            a("s_cmp_lg_u32 s%d, s%d" % (S_J, S_ST))
            a("s_cbranch_scc1 L2_np%d" % par)
            a("s_setprio 0")
            a.label("L2_np%d" % par)
        a("s_add_u32 s%d, s%d, 2" % (S_T, S_J))
        a("s_cmp_lt_u32 s%d, s%d" % (S_T, S_ML))
        a("s_cselect_b32 s%d, %d, 0" % (S_X + 2, NP))
        a(dma_m0(par ^ 1))
        a("s_waitcnt lgkmcnt(0)")
        extra = ["v_cmp_lt_u32_e64 %s, s%d, v%d" % (sr(S_M[par ^ 1], 2), S_J, V_LEN)]
        if par == 0:
            extra += ["v_add_u32 v%d, 8, v%d" % (V_IA + i, V_IA + i) for i in range(4)] + ["v_add_u32 v%d, 8, v%d" % (V_RA, V_RA)]
        me(a, mfma_chain(0, par ^ 1, V_T[0]), exps(V_T[1]), extra)
        for x in dma_loads():
            a(x)
        a("s_mov_b64 exec, %s" % sr(S_M[par], 2))
        for x in pk_update(1):
            a(x)
        a("s_mov_b64 exec, -1")
    a("s_branch L2_loop")

    a.label("L2_last")
    if PRT:
        a("s_setprio %d" % (PRT - 1))
    a("s_mov_b64 %s, exec" % sr(S_T + 2, 2))
    a("s_mov_b64 exec, -1")
    a("s_waitcnt lgkmcnt(0)")
    stamp(a, "last")
    for x in row_reads(V_C, V_RC) + exps(V_T[1]) + wa_reads()[:7]:
        a(x)
    a("s_mov_b64 exec, %s" % sr(S_T + 2, 2))
    for x in pk_update(1):
        a(x)
    a("s_mov_b64 exec, -1")
    for x in wa_reads()[7:]:
        a(x)
    a.label("L2_final")
    PB = V_B[0]
    a("s_not_b64 exec, %s" % sr(S_M0, 2))
    a("s_cbranch_execz L2_nz")
    for i in range(16):
        a("v_mov_b32 v%d, 0" % (PB + i))
    a.label("L2_nz")
    a("s_mov_b64 exec, %s" % sr(S_M0, 2))

    def fin(X):
        n, d, t = V_N[X], V_D[X], V_T[X]
        r = ["v_rcp_f32 v%d, v%d" % (t + i, d + i) for i in range(16)]
        s = ["v_pk_fma_f32 %s, %s, %s, %s" % (vr(V_S, 2), vr(d + 4 * i, 2), vr(d + 4 * i + 2, 2), vr(V_S, 2)) for i in range(4)]
        m = ["v_pk_mul_f32 %s, %s, %s" % (vr(t + 2 * i, 2), vr(t + 2 * i, 2), vr(n + 2 * i, 2)) for i in range(8)]
        c = ["v_cvt_pk_bf16_f32 v%d, v%d, v%d" % (PB + 8 * X + i, t + 2 * i, t + 2 * i + 1) for i in range(8)]
        return r, [s[0], m[0], m[1], s[1], m[2], m[3], s[2], m[4], m[5], s[3], m[6], m[7]] + c

    def ymf(o, q):
        return "v_mfma_f32_32x32x16_bf16 %s, %s, %s, %s" % (vr(V_C[o], 16), vr(wa_reg(o, q), 4), vr(PB + 4 * q, 4), vr(V_C[o], 16))

    r, p = fin(0)
    for x in r + p:
        a(x)
    r, p = fin(1)
    a("s_waitcnt vmcnt(0) lgkmcnt(0)")
    a(r[0])
    phase(a, [ymf(0, 0), ymf(1, 0), ymf(0, 1), ymf(1, 1)], r[1:])
    for x in p:
        a(x)
    a("s_nop 1")
    for x in (ymf(0, 2), ymf(1, 2), ymf(0, 3), ymf(1, 3)):
        a(x)
    a("v_mov_b32 v2, 0x%08x" % f32(2.0 ** 120))
    a("v_add_f32 v3, v%d, v%d" % (V_S, V_S + 1))
    a("s_movk_i32 s40, 0x207")
    a("v_cmp_nlt_f32 vcc, v3, v2")
    a("s_mov_b64 exec, -1")
    YR, OA, KK = V_T0 + 2, V_T0 + 4, V_T0 + 5
    a("s_mov_b32 s3, %d" % RSTR)
    a("v_and_b32 v2, 3, v%d" % V_LANE)
    a("v_and_b32 v3, 0xff, v%d" % V_NW)
    a("v_lshl_add_u32 v%d, v2, 5, s%d" % (YR, S_XT))
    a("v_mad_u32_u24 v%d, v3, s3, v%d" % (YR, YR))
    a("v_lshrrev_b32 v3, 25, v%d" % V_NW)
    a("v_lshl_add_u32 v%d, v3, 8, s%d" % (OA, S_B))
    a("v_lshlrev_b32 v%d, 7, v%d" % (OA, OA))
    a("v_lshl_add_u32 v%d, v2, 4, v%d" % (OA, OA))
    a("v_bfe_u32 v%d, v%d, 22, 3" % (KK, V_NW))
    a("v_cmp_class_f32_e64 s[42:43], v%d, s40" % V_C[1])
    a("s_lshl_b32 s41, s%d, 2" % S_BT)
    a("s_and_b64 s[42:43], s[42:43], %s" % sr(S_M0, 2))
    a("s_or_b64 vcc, vcc, s[42:43]")
    a("s_cselect_b32 s42, 1, 0")
    a("s_andn2_b32 s42, s42, s%d" % S_SAFE)
    a("s_cbranch_scc1 L2_safe")
    for X in range(2):
        for q in range(4):
            a("ds_write_b128 v%d, %s offset:%d" % (V_YW, vr(V_C[X] + 4 * q, 4), row_off(X, q)))
    a("v_mov_b32 v2, s41")
    a("v_mov_b32 v3, 1")
    a("v_cmp_lt_u32_e64 s[44:45], 2, v%d" % KK)
    a("v_cmp_lt_u32_e64 s[46:47], 3, v%d" % KK)
    a("s_waitcnt lgkmcnt(0)")
    a("ds_write_b32 v2, v3 offset:%d" % L_FLAG)
    a("s_cmp_eq_u32 s%d, 0" % S_NEED)
    a("s_cbranch_scc1 L2_nowait")
    a.label("L2_poll")
    a("ds_read_b32 v3, v2 offset:%d" % (L_FLAG + 4))
    if YSL:
        a("s_sleep %d" % YSL)
    a("s_waitcnt lgkmcnt(0)")
    a("v_cmp_eq_u32 vcc, 0, v3")
    a("s_cbranch_vccnz L2_poll")
    a.label("L2_nowait")
    stamp(a, "ywait")
    Y = [V_N[0], V_N[1], V_D[0], V_D[1]]

    def yreads(i):
        for c in range(4):
            a("ds_read_b128 %s, v%d offset:%d" % (vr(Y[i] + 4 * c, 4), YR, RSTR * i + 128 * (c >> 1) + 16 * (c & 1)))

    def yadd(i):
        for c in range(8):
            a("v_pk_add_f32 %s, %s, %s" % (vr(Y[0] + 2 * c, 2), vr(Y[0] + 2 * c, 2), vr(Y[i] + 2 * c, 2)))

    yreads(0)
    yreads(1)
    yreads(2)
    a("s_mov_b32 s40, 0x%08x" % f32(-LN2))
    a("s_mov_b32 s41, 0x%08x" % f32(-LN2))
    a("s_cmp_eq_u64 s[46:47], 0")
    a("s_cbranch_scc1 L2_no4")
    yreads(3)
    a("s_waitcnt lgkmcnt(0)")
    a("s_mov_b64 exec, s[46:47]")
    yadd(3)
    a("s_mov_b64 exec, -1")
    a.label("L2_no4")
    a("s_waitcnt lgkmcnt(4)")
    yadd(1)
    a("s_waitcnt lgkmcnt(0)")
    a("s_mov_b64 exec, s[44:45]")
    yadd(2)
    a("s_mov_b64 exec, -1")
    a("s_cmp_eq_u32 s%d, 1" % S_MODE)
    a("s_cbranch_scc1 L2_writeback")
    U = V_U
    for i in range(16):
        a("v_exp_f32 v%d, v%d" % (U + i, Y[0] + i))
    for i in range(8):
        a("v_pk_add_f32 %s, %s, %s" % (vr(U + 2 * i, 2), vr(U + 2 * i, 2), sr(S_ONE, 2)))
    for i in range(16):
        a("v_rcp_f32 v%d, v%d" % (U + i, U + i))
    for i in range(8):
        a("v_pk_mul_f32 %s, %s, s[40:41]" % (vr(Y[0] + 2 * i, 2), vr(Y[0] + 2 * i, 2)))
    for i in range(8):
        a("v_pk_mul_f32 %s, %s, %s" % (vr(U + 2 * i, 2), vr(U + 2 * i, 2), vr(Y[0] + 2 * i, 2)))
    P = V_B[1]
    for i in range(4):
        a("v_cvt_pk_bf16_f32 v%d, v%d, v%d" % (P + i, U + 2 * i, U + 2 * i + 1))
    a("buffer_store_dwordx4 %s, v%d, %s, 0 offen %s" % (vr(P, 4), OA, sr(S_OUT, 4), SCO))
    for i in range(4, 8):
        a("v_cvt_pk_bf16_f32 v%d, v%d, v%d" % (P + i, U + 2 * i, U + 2 * i + 1))
    a("buffer_store_dwordx4 %s, v%d, %s, 0 offen offset:64 %s" % (vr(P + 4, 4), OA, sr(S_OUT, 4), SCO))
    stamp_out(a)
    a.label("L_end")
    a("s_endpgm")

    a.label("L2_xpl")
    a("s_waitcnt vmcnt(%d)" % (4 + NPF))
    for p in range(4):
        p1(RC + 16 + 4 * p, 3 * p)
    a("v_mov_b32 v3, s%d" % S_EXTRA)
    a("v_mov_b32 v%d, %d" % (V_U, F_SLOW))
    a("ds_or_b32 v%d, v3" % V_U)
    a("s_waitcnt lgkmcnt(0)")
    for p in range(4):
        p2(RC + 16 + 4 * p, 3 * p)
    a("s_branch L2_pl")
    a.label("L_timeout")
    a("v_mov_b32 v3, 6")
    a("v_mov_b32 v2, %d" % F_SLOW)
    a("ds_or_b32 v2, v3")
    if PSB == 2:
        DEBUG_, globals()["DEBUG"] = DEBUG, 0
        p_stores(14)
        globals()["DEBUG"] = DEBUG_
    if not PRE:
        p_ready(0)
    a("s_branch L2_build")

    a.label("L2_retry2")
    a("s_barrier")
    a("s_cmp_eq_u32 s%d, 2" % S_LI)
    a("s_cselect_b32 s3, %d, %d" % (LS[2], LS[3]))
    lut_build(a, 3, V_T[0], L_LUT + 2048)
    a("s_branch L2_retry1")

    a.label("L2_safe")
    a("s_mov_b32 s%d, 1" % S_SAFE)
    a("s_mov_b32 s%d, %d" % (S_X + 2, NP))
    a("s_nop 7")
    for x in row_reads(V_C, V_QA):
        a(x)
    a("v_and_b32 v2, 0xffff, v%d" % V_W)
    a("v_sub_u32 v2, v%d, v2" % V_RA)
    for i in range(4):
        a("v_sub_u32 v%d, v%d, v2" % (V_IA + i, V_IA + i))
    a("v_sub_u32 v%d, v%d, v2" % (V_RA, V_RA))
    for i in range(32):
        a("v_mov_b32 v%d, 0" % (V_N[0] + i))
        a("v_mov_b32 v%d, 1.0" % (V_D[0] + i))
    a("v_mov_b32 v%d, 0x%x" % (V_R + 1, PAD))
    a("s_mov_b32 s%d, 0" % S_J)
    a.label("L2_safe_loop")
    for x in idx_reads(0):
        a(x)
    a("ds_read_b32 v%d, v%d" % (V_R, V_RA))
    a("s_waitcnt lgkmcnt(0)")
    dma_plain(a, 0)
    a("v_cmp_lt_u32_e64 %s, s%d, v%d" % (sr(S_M[0], 2), S_J, V_LEN))
    for i in range(4):
        a("v_add_u32 v%d, 4, v%d" % (V_IA + i, V_IA + i))
    a("v_add_u32 v%d, 4, v%d" % (V_RA, V_RA))
    a("s_waitcnt vmcnt(0)")
    for x in b_reads(0):
        a(x)
    a("s_waitcnt lgkmcnt(0)")
    for x in mfma_chain(0, 0, V_T[0]) + mfma_chain(1, 0, V_T[1]):
        a(x)
    a("s_nop 7")
    a("s_nop 3")
    a("s_mov_b64 exec, %s" % sr(S_M[0], 2))
    for X in range(2):
        for x in exps(V_T[X]):
            a(x)
        for i in range(8):
            a("v_pk_add_f32 %s, %s, %s" % (vr(U + 2 * i, 2), vr(U + 2 * i, 2), sr(S_ONE, 2)))
        for i in range(16):
            a("v_rcp_f32 v%d, v%d" % (U + i, U + i))
        for i in range(8):
            a("v_pk_fma_f32 %s, %s, %s, %s" % (vr(V_N[X] + 2 * i, 2), vr(V_T[X] + 2 * i, 2), vr(U + 2 * i, 2), vr(V_N[X] + 2 * i, 2)))
    a("s_mov_b64 exec, -1")
    a("s_add_u32 s%d, s%d, 1" % (S_J, S_J))
    a("s_cmp_lt_u32 s%d, s%d" % (S_J, S_ML))
    a("s_cbranch_scc1 L2_safe_loop")
    for x in row_reads(V_C, V_RC):
        a(x)
    a("s_branch L2_final")

    a.label("L2_slow")
    a("s_mov_b32 s%d, 1" % S_MODE)
    a("s_mov_b32 s%d, 0" % S_POS)
    a("v_mov_b32 v%d, 0" % V_DONE)
    a("v_cmp_gt_u32 vcc, 4, v%d" % FL)
    a("s_waitcnt vmcnt(0) lgkmcnt(0)")
    a("s_cbranch_vccnz L2_slow_round")
    a("s_barrier")
    t = V_U
    a("v_and_b32 v2, 16, v%d" % V_LANE)
    a("v_lshlrev_b32 v2, 2, v2")
    a("v_xor_b32 v2, v2, v%d" % V_L16)
    a("s_lshl_b32 s3, s%d, 10" % S_W)
    a("v_add_u32 v2, s3, v2")
    a("s_add_u32 m0, s3, %d" % L1_W1)
    a("v_lshrrev_b32 v3, 4, v%d" % V_LANE)
    a("global_load_lds_dwordx4 v2, %s" % sr(P_WM, 2))
    a("v_bfe_u32 v2, v%d, 2, 2" % V_LANE)
    a("v_lshl_add_u32 v%d, v3, 3, v2" % t)
    a("v_lshlrev_b32 v%d, 7, v%d" % (t, t))
    a("v_lshrrev_b32 v2, 1, v2")
    a("v_lshl_or_b32 v%d, v2, 6, v%d" % (t, t))
    a("v_and_b32 v2, 3, v%d" % V_LANE)
    a("v_lshl_or_b32 v%d, v2, 4, v%d" % (t, t))
    a("v_xor_b32 v%d, 64, v%d" % (t + 1, t))
    a("v_add_u32 v%d, %d, v%d" % (t, L1_W1, t))
    a("v_add_u32 v%d, %d, v%d" % (t + 1, L1_W1, t + 1))
    a("v_and_b32 v2, 15, v%d" % V_LANE)
    a("s_lshl_b32 s3, s%d, 4" % S_W)
    a("v_add_u32 v%d, s3, v2" % (t + 2))
    a("v_lshlrev_b32 v%d, 4, v3" % (t + 4))
    a("v_add_u32 v%d, 3072, v%d" % (t + 7, t + 4))
    a("s_mov_b32 s%d, %d" % (S_X + 2, NP))
    a("s_waitcnt vmcnt(0)")
    a("s_barrier")
    for x in tr_frags(V_C[0], t, 0):
        a(x)
    a("s_waitcnt lgkmcnt(0)")
    for x in tr_frags(V_C[1], t + 1, 0):
        a(x)
    a("s_mov_b32 s3, %d" % ((N + 127) // 128))
    a("s_mov_b32 s%d, 0" % S_PCK)
    a.label("L_allp")
    a("v_min_u32 v2, %d, v%d" % (N - 1, t + 2))
    a("v_lshl_add_u32 v2, v2, 7, v%d" % (t + 4))
    a("global_load_dwordx4 %s, v2, %s" % (vr(V_B[0], 4), sr(P_X, 2)))
    a("global_load_dwordx4 %s, v2, %s offset:64" % (vr(V_B[0] + 4, 4), sr(P_X, 2)))
    a("v_and_b32 v2, 255, v%d" % (t + 2))
    a("v_lshrrev_b32 v%d, 8, v%d" % (t + 6, t + 2))
    a("v_mul_u32_u24 v2, %d, v2" % NLOC)
    a("v_add_u32 v%d, v2, v%d" % (t + 6, t + 6))
    a("s_waitcnt vmcnt(0) lgkmcnt(0)")
    for s in range(2):
        for H in range(2):
            for blk in range(2):
                a(mf16(V_T[0] + 8 * H + 4 * blk, V_C[H] + 8 * blk + 4 * s, V_B[0] + 4 * s, s == 0))
    a("s_nop 7")
    for i in range(8):
        a("v_pk_mul_f32 %s, %s, %s" % (vr(V_T[0] + 2 * i, 2), vr(V_T[0] + 2 * i, 2), sr(S_LG, 2)))
    for i in range(8):
        a("v_cvt_pk_bf16_f32 v%d, v%d, v%d" % (V_T[1] + i, V_T[0] + 2 * i, V_T[0] + 2 * i + 1))
    a("buffer_store_dwordx4 %s, %s, %s, 0 idxen offen %s" % (vr(V_T[1], 4), vr(t + 6, 2), sr(S_X, 4), SC))
    a("buffer_store_dwordx4 %s, %s, %s, 0 idxen offen offset:64 %s" % (vr(V_T[1] + 4, 4), vr(t + 6, 2), sr(S_X, 4), SC))
    a("v_add_u32 v%d, 128, v%d" % (t + 2, t + 2))
    a("s_sub_u32 s3, s3, 1")
    a("s_cmp_lg_u32 s3, 0")
    a("s_cbranch_scc1 L_allp")
    a("s_waitcnt vmcnt(0)")
    a("s_branch L2_slow_round")
    a.label("L2_writeback")
    a("v_cmp_ne_u32 vcc, 0, v%d" % KK)
    a("v_lshrrev_b32 v3, 25, v%d" % V_NW)
    a("v_and_b32 v2, 3, v%d" % V_LANE)
    a("v_lshlrev_b32 v2, 5, v2")
    a("v_mad_u32_u24 v2, v3, s3, v2")
    a("v_add_u32 v2, %d, v2" % L_R)
    a("s_mov_b64 exec, vcc")
    for c in range(4):
        a("ds_write_b128 v2, %s offset:%d" % (vr(Y[0] + 4 * c, 4), 128 * (c >> 1) + 16 * (c & 1)))
    a("s_mov_b64 exec, -1")
    a("s_waitcnt lgkmcnt(0)")
    a.label("L2_slow_round")
    a("s_barrier")
    lds_init(a, V_U)
    a("s_waitcnt lgkmcnt(0)")
    a("s_barrier")
    a.label("L2_slow_step")
    a("s_cmp_lt_u32 s%d, %d" % (S_POS, E))
    a("s_cbranch_scc1 L2_slow_go")
    a("s_mov_b32 s%d, 2" % S_MODE)
    a("s_branch L2_build")
    a.label("L2_slow_go")
    a("v_add_u32 v2, s%d, v0" % S_POS)
    a("v_cmp_gt_u32 vcc, %d, v2" % E)
    a("v_min_u32 v2, %d, v2" % (E - 1))
    a("v_lshlrev_b32 v3, 1, v2")
    a("v_lshlrev_b32 v2, 2, v2")
    a("global_load_dword v%d, v2, %s" % (t, sr(P_DST, 2)))
    a("global_load_dword v%d, v2, %s" % (t + 1, sr(P_SRC, 2)))
    a("global_load_ushort v%d, v3, %s" % (t + 2, sr(P_E, 2)))
    a("v_cmp_eq_u32_e64 s[40:41], 0, v%d" % V_DONE)
    a("s_and_b64 s[40:41], s[40:41], vcc")
    a("s_mov_b32 s3, %d" % SSTR)
    a("v_mov_b32 v%d, %d" % (t + 4, L_SLOT + 4 * DMAX))
    a("v_mov_b32 v2, 4")
    a("s_waitcnt vmcnt(0)")
    a("v_and_b32 v3, 255, v%d" % t)
    a("v_cmp_eq_u32 vcc, s%d, v3" % S_B)
    a("v_lshrrev_b32 v3, 8, v%d" % t)
    a("v_mad_u32_u24 v%d, v3, s3, v%d" % (t + 4, t + 4))
    a("v_lshlrev_b32 v3, 2, v3")
    a("v_and_b32 v%d, 255, v%d" % (t + 5, t + 1))
    a("v_lshrrev_b32 v%d, 8, v%d" % (t + 1, t + 1))
    a("v_mul_u32_u24 v%d, %d, v%d" % (t + 5, NLOC, t + 5))
    a("v_add_u32 v%d, v%d, v%d" % (t + 1, t + 1, t + 5))
    a("v_lshl_or_b32 v%d, v%d, 16, v%d" % (t + 1, t + 2, t + 1))
    a("s_and_b64 exec, vcc, s[40:41]")
    a("ds_add_rtn_u32 v%d, v3, v2 offset:%d" % (t + 3, L_CNT + 4))
    a("s_waitcnt lgkmcnt(0)")
    a("v_cmp_lt_u32 vcc, v%d, v%d" % (t + 3, t + 4))
    a("s_andn2_b64 s[40:41], exec, vcc")
    a("s_mov_b64 exec, vcc")
    a("ds_write_b32 v%d, v%d" % (t + 3, t + 1))
    a("v_mov_b32 v%d, 1" % V_DONE)
    a("s_mov_b64 exec, s[40:41]")
    a("v_mov_b32 v%d, %d" % (t + 5, F_PEND))
    a("ds_write_b32 v%d, v2" % (t + 5))
    a("s_mov_b64 exec, -1")
    a("s_waitcnt lgkmcnt(0)")
    a("s_barrier")
    a("s_mov_b64 exec, s[40:41]")
    a("ds_min_u32 v3, v%d offset:%d" % (t + 4, L_CNT + 4))
    a("s_mov_b64 exec, -1")
    a("v_mov_b32 v%d, %d" % (t + 5, F_PEND))
    a("ds_read_b32 v%d, v%d" % (t + 5, t + 5))
    a("s_waitcnt lgkmcnt(0)")
    a("v_cmp_ne_u32 vcc, 0, v%d" % (t + 5))
    a("s_cbranch_vccnz L2_build")
    a("s_barrier")
    a("s_add_u32 s%d, s%d, 512" % (S_POS, S_POS))
    a("v_mov_b32 v%d, 0" % V_DONE)
    a("s_branch L2_slow_step")


def kd(name, vgpr, sgpr):
    return """.amdhsa_kernel %s
  .amdhsa_next_free_vgpr %d
  .amdhsa_next_free_sgpr %d
  .amdhsa_accum_offset %d
  .amdhsa_group_segment_fixed_size 0
  .amdhsa_kernarg_size 72
  .amdhsa_user_sgpr_count 2
  .amdhsa_user_sgpr_kernarg_segment_ptr 1
  .amdhsa_system_sgpr_workgroup_id_x 1
  .amdhsa_float_denorm_mode_32 3
.end_amdhsa_kernel
""" % (name, vgpr, sgpr, (vgpr + 3) // 4 * 4)


HEADER = """; Kernarg layout for this problem (72 bytes, ptrs only, base s[0:1]):
; Generated by dev/gen3.py (hand-written generator).
"""


def addresses(lines):
    import subprocess, tempfile
    k = lines.index(".text")
    e = [i for i, x in enumerate(lines) if x.startswith(".section")][0]
    t = []
    for i, x in enumerate(lines):
        if k < i < e:
            t.append("Z_%d:" % i)
        t.append("" if x == "@PAGE@" else x)
    missing = ["L_pad%d" % p for p in range(len(PADA)) if ("L_pad%d:" % p) not in lines]
    t = t[:t.index(lines[e])] + [m + ":" for m in missing] + t[t.index(lines[e]):]
    with tempfile.TemporaryDirectory() as d:
        open(d + "/a.s", "w").write("\n".join(t) + "\n")
        subprocess.check_call(["clang", "-x", "assembler", "-target", "amdgcn-amd-amdhsa", "-mcpu=gfx950", "-c", d + "/a.s", "-o", d + "/a.o"])
        o = subprocess.check_output(["llvm-objdump", "-t", d + "/a.o"]).decode()
    ad = {}
    for l in o.split("\n"):
        f = l.split()
        if f and f[-1].startswith("Z_"):
            ad[int(f[-1][2:])] = int(f[0], 16)
    return ad


def place_pads(a):
    for p, target in enumerate(PADA):
        ad = addresses(a.l)
        i = min(i for i in ad if ad[i] >= target - 4 and (a.l[i].startswith("    ") or a.l[i] == "@PAGE@"))
        if a.l[i].startswith("    s_branch"):
            i += 1
        if a.l[i] == "@PAGE@":
            a.l[i:i + 1] = ["L_pad%d:" % p, "    s_branch L_back7"]
        elif a.l[i - 1].startswith("    s_branch"):
            a.l[i:i] = ["L_pad%d:" % p, "    s_branch L_back7"]
        else:
            a.l[i:i] = ["    s_branch L_over%d" % p, "L_pad%d:" % p, "    s_branch L_back7", "L_over%d:" % p]
    a.l = [x for x in a.l if x != "@PAGE@"]


def main():
    a = Asm()
    a.raw(HEADER.rstrip())
    a.raw("; @launch grid=(%d,1,1) block=(512,1,1) lds=%d" % (NB, LDS_SIZE))
    a.raw('.amdgcn_target "amdgcn-amd-amdhsa--gfx950"')
    a.raw(".text")
    gen(a)
    a.raw('.section .rodata,"a"')
    a.raw(".p2align 6")
    a.raw(kd(KNAME, 256, 96))
    out = sys.argv[1] if len(sys.argv) > 1 else "standalone__mpnn_edge_mlp__graph.s"
    if PADS:
        place_pads(a)
    txt = a.text()
    if DEBUG:
        txt = txt.replace("; Generated by", "; STAMPS " + " ".join(STAMP_NAMES) + "\n; Generated by")
    open(out, "w").write(txt)
    print("wrote", out, "LDS", LDS_SIZE)


if __name__ == "__main__":
    main()
```

```python
import struct, sys, os


def env(name, d):
    return int(os.environ.get(name, str(d)), 0)


DEBUG = env('DEBUG', 0)
X_TIMEOUT = env('X_TIMEOUT', 0)
POLLS = X_TIMEOUT if X_TIMEOUT else 20000
NPF = 2 if env('PSB', 0) == 2 else 1
PADS = env('PADS', 1)
PADA = [int(x, 0) for x in os.environ.get('PADA', '0x600 0xa00 0x1000 0x1400 0x1800 0x1c00 0x2000 0x2700').split()]
SLEEP = env('SLEEP', 1)
X_NOPST = env('X_NOPST', 0)
X_TEST = env('X_TEST', 0)
SDEL = env('SDEL', 18)
SPOS = env('SPOS', 0)
CDEL = env('CDEL', 0)
WSL = env('WSL', 0)
TOUCH = env('TOUCH', 0)
SMF = env('SMF', 1)
XL = env('XL', 2)
CPAD = env('CPAD', 1)
XPOS = env('XPOS', 0)
PSB = env('PSB', 0)
FPOS = env('FPOS', 1)
W7B = env('W7B', 1)
B8E = env('B8E', 1)
WR = env('WR', 8)
WQ = env('WQ', 0)
NCLR = 32
LD_IN = os.environ.get('LD_IN', '')
SC = os.environ.get('SC', 'sc1')
SCP = os.environ.get('SCP', 'sc1')
SCO = os.environ.get('SCO', 'sc1')
SCS = os.environ.get('SCS', 'sc1')
TORD = env('TORD', 0)
PRE = env('PRE', 1)
PDEP = env('PDEP', 2)
PSL = env('PSL', 8)
QF = env('QF', 1)
PRW = env('PRW', 0)
YSL = env('YSL', 0)
LOOPST = env('LOOPST', 0)
BSL = env('BSL', 0)
APR = env('APR', 0)
PRI = env('PRI', 2)
PRT = env('PRT', 0)
TBL = env('TBL', 5)
SCT = os.environ.get('SCT', 'sc1')
SCW = os.environ.get('SCW', 'sc1')
SCG = os.environ.get('SCG', 'sc1')

N = 25000
E = 800000
NB = 256
NLOC = 98
NP = NB * NLOC
CU = 1216
DMAX = 62

WS_REC = 0
WS_TAB = 0x500000
WS_PT = 0x540000
WS_P = 0x580000
WS_SIZE = 0x580000
WS_DBG = 0xA00000
LS = tuple(int(x) for x in os.environ.get('LS', '31 32 36 64').split())
assert NB * CU * 16 <= WS_TAB

LOG2E = 1.4426950408889634
LN2 = 0.6931471805599453


def f32(x):
    return struct.unpack("<I", struct.pack("<f", x))[0]


class Asm:
    def __init__(self):
        self.l = []
        self.auto = 0
        self.n = 0

    def __call__(self, s):
        for x in s.split("\n"):
            x = x.strip()
            if x:
                self.l.append("    " + x)
                if self.auto:
                    self.n += 1
                    if self.n % self.auto == 0:
                        k, self.auto = self.auto, 0
                        stamp(self, "a%d" % self.n, True)
                        self.auto = k

    def label(self, s):
        self.l.append(s + ":")

    def raw(self, s):
        self.l.append(s)

    def text(self):
        return "\n".join(self.l) + "\n"


def vr(a, n):
    return "v[%d:%d]" % (a, a + n - 1)


def sr(a, n):
    return "s[%d:%d]" % (a, a + n - 1)


DPP_STEPS = ["row_shr:1 row_mask:0xf", "row_shr:2 row_mask:0xf", "row_shr:4 row_mask:0xf", "row_shr:8 row_mask:0xf",
             "row_bcast:15 row_mask:0xa", "row_bcast:31 row_mask:0xc"]


def dpp_scan(a, regs, op="v_add_u32", fill=()):
    fill = list(fill)
    for st in DPP_STEPS:
        n = 3 - len(regs)
        while n > 0 and fill:
            a(fill.pop(0))
            n -= 1
        if n > 0:
            a("s_nop %d" % (n - 1))
        for v in regs:
            a("%s_dpp v%d, v%d, v%d %s bank_mask:0xf" % (op, v, v, v, st))
    for x in fill:
        a(x)


RSTR = 272
SSTR = 260
L_CNT = 0
L_FLAG = 544
L_ZERO = 608
L_ZEND = 880
L_W3 = 896
L_NL = 1136
L_LUT = 2048
L_SLOT = L_LUT + 4096
L_SEND = L_SLOT + (99 * SSTR + 160 + 15) // 16 * 16
L_XT = (L_SEND + 255) // 256 * 256
XSTR = 32 * RSTR
L_WA = L_XT + 8 * XSTR
L_Q = L_WA + 8192
L_R = (L_Q + NLOC * RSTR + 127) // 128 * 128
LDS_SIZE = L_R + NLOC * RSTR
L1_CNT = L_XT
L1_START = L1_CNT + 1024
L1_STAGE = L1_START + 1024
L1_X = L1_STAGE + CU * 16
L1_WX = L_WA - 8192
L1_W2 = L1_WX - 8192
L1_W1 = L1_W2 - 8192
L1_P = L1_STAGE
assert L1_X + 16384 <= L1_W1 and L1_W1 % 128 == 0 and L1_P % 128 == 0 and L1_P + 16384 <= LDS_SIZE
assert (L1_X - L1_CNT) == 3 * 448 * 16
assert L1_X < 65536 and L1_X % 128 == 0
assert L_NL + 512 <= L_LUT
assert L_SEND < 65536 - 256
assert LDS_SIZE <= 163840, LDS_SIZE
PAD = 0x7F00
F_SLOW = L_FLAG + 40
F_PEND = L_FLAG + 44
F_PCNT = L_FLAG + 48

V_LANE = 1
V_BAD = 4
V_IA = 8
V_RA = 12
V_LEN = 13
V_S = 14
V_IDX = 16
V_R = 24
V_YW = 26
V_RC = 27
V_QA = 28
V_NW = 29
V_L16 = 30
V_W = 31
V_T0 = 32
V_PF = 38
V_DONE = 39
V_AE = 40
V_ID = 48
V_WA = 56
V_TRA = 72
V_ST = 74
V_TAB = 76
V_C = (80, 96)
V_T = (112, 128)
V_N = (144, 160)
V_D = (176, 192)
V_U = 208
V_B = (224, 240)

S_X = 4
S_WS = 8
S_OUT = 12
S_B = 16
S_W = 17
S_BT = 18
S_XT = 19
S_ML = 20
S_J = 21
S_ONE = 22
S_M = (24, 26)
S_M0 = 28
S_MODE = 30
S_SAFE = 31
S_HI = 32
S_NEED = 34
S_LI = 35
S_EXTRA = 36
S_XT1 = 37
S_POS = 38
S_TO = 39
S_T = 40
S_EM = 56
S_LG = 58
S_QM = 60
S_PCK = 82
S_ST = 83
P_X, P_E, P_SRC, P_DST, P_WM, P_WU, P_OUT, P_DBG, P_WS = 64, 66, 68, 70, 72, 74, 76, 78, 80


def mfma_chain(X, j, dst):
    B = V_B[j & 1]
    out = ["v_mfma_f32_32x32x8_bf16 %s, %s, %s, %s" % (
        vr(dst, 16), vr(V_AE + 4 * X + 2 * (j & 1), 2), vr(V_R, 2), vr(V_C[X], 16))]
    if X_TEST & 2:
        for k in range(4):
            out.append("v_mfma_f32_32x32x16_bf16 %s, %s, %s, %s" % (
                vr(dst, 16), vr(V_ID + 4 * k + 8 * X, 4), vr(B + 4 * k, 4), vr(dst, 16)))
        return out
    if X_TEST & 4:
        return out
    if SMF:
        out.append("v_smfmac_f32_32x32x32_bf16 %s, %s, %s, v%d" % (vr(dst, 16), vr(V_ID, 4), vr(B + 8 * X, 8), V_ID + 4))
        return out
    for k in range(2):
        out.append("v_mfma_f32_32x32x16_bf16 %s, %s, %s, %s" % (
            vr(dst, 16), vr(V_ID + 4 * k, 4), vr(B + 8 * X + 4 * k, 4), vr(dst, 16)))
    return out


def exps(src):
    return ["v_exp_f32 v%d, v%d" % (V_U + i, src + i) for i in range(16)]


def pk_first(X):
    return ["v_pk_add_f32 %s, %s, %s" % (vr(V_D[X] + 2 * i, 2), vr(V_U + 2 * i, 2), sr(S_ONE, 2)) for i in range(8)]


def pk_update(X):
    n, d, u, t = V_N[X], V_D[X], V_U, V_T[X]
    A = ["v_pk_fma_f32 %s, %s, %s, %s" % (vr(n + 2 * i, 2), vr(n + 2 * i, 2), vr(u + 2 * i, 2), vr(n + 2 * i, 2)) for i in range(8)]
    B = ["v_pk_fma_f32 %s, %s, %s, %s" % (vr(n + 2 * i, 2), vr(t + 2 * i, 2), vr(d + 2 * i, 2), vr(n + 2 * i, 2)) for i in range(8)]
    C = ["v_pk_fma_f32 %s, %s, %s, %s" % (vr(d + 2 * i, 2), vr(d + 2 * i, 2), vr(u + 2 * i, 2), vr(d + 2 * i, 2)) for i in range(8)]
    return A + B + C


def phase(a, mf, ex):
    mf = list(mf)
    for i, e in enumerate(ex):
        if i % 3 == 0 and mf:
            a(mf.pop(0))
        a(e)
    assert not mf


def b_reads(tile):
    return ["ds_read_b128 %s, v%d offset:%d" % (vr(V_B[tile & 1] + 4 * k, 4), V_BAD + k, 4096 * (tile & 1)) for k in range(4)]


def idx_reads(off):
    return ["ds_read_u16 v%d, v%d offset:%d" % (V_IDX + 2 * i, V_IA + i, off) for i in range(4)]


def dma_m0(slot):
    return "s_mov_b32 m0, s%d" % (S_XT1 if slot else S_XT)


def dma_loads():
    return ["buffer_load_dwordx4 %s, %s, 0 idxen offen offset:%d %s lds" % (vr(V_IDX + 2 * i, 2), sr(S_X, 4), 1024 * i, SCG) for i in range(4)]


def dma_plain(a, slot):
    a(dma_m0(slot))
    a("s_nop 0")
    for x in dma_loads():
        a(x)


def row_off(X, q):
    return 128 * X + 64 * (q >> 1) + 16 * (q & 1)


def row_reads(dst, addr):
    return ["ds_read_b128 %s, v%d offset:%d" % (vr(dst[X] + 4 * q, 4), addr, row_off(X, q)) for X in range(2) for q in range(4)]


def wa_reg(o, q):
    return (V_WA if o == 0 else V_B[1]) + 4 * q


def wa_reads():
    return ["ds_read_b64_tr_b16 %s, v%d offset:%d" % (vr(wa_reg(o, q) + 2 * i, 2), V_TRA + o, 2048 * q + 512 * i)
            for q in range(4) for o in range(2) for i in range(2)]


NSTAMP = [0]
STAMP_NAMES = []


def stamp(a, name, auto=False):
    if DEBUG == 2 and not auto and name not in ("start", "barW", "barA", "barB", "end"):
        return
    if name in os.environ.get("NOST", "issued iss2 dst stiss piss rec0 placed dma0 ywait xiss preA preB preB2").split():
        return
    if DEBUG:
        au, a.auto = a.auto, 0
        k = len(STAMP_NAMES)
        STAMP_NAMES.append(name)
        cyc = name in ("start", "loop", "last", "end")
        if cyc:
            a("s_memtime s[88:89]")
        a("s_memrealtime s[90:91]")
        a("s_waitcnt lgkmcnt(0)")
        if cyc:
            a("v_writelane_b32 v%d, s88, %d" % (V_ST, k))
        a("v_writelane_b32 v%d, s90, %d" % (V_ST, 32 + k))
        a.auto = au


def stamp_out(a):
    if DEBUG:
        a("s_mov_b64 exec, -1")
        a("s_waitcnt vmcnt(0)")
        stamp(a, "end")
        a("v_lshlrev_b32 v2, 2, v0")
        a("s_lshl_b32 s3, s2, 11")
        a("s_add_u32 s3, s3, %d" % WS_DBG)
        a("v_add_u32 v2, s3, v2")
        a("global_store_dword v2, v%d, %s" % (V_ST, sr(P_WS, 2)))
        if LOOPST:
            a("v_add_u32 v2, 0x80000, v2")
            a("global_store_dword v2, v%d, %s" % (V_ST + 1, sr(P_WS, 2)))


def lds_init(a, t):
    a("v_mov_b32 v%d, 0x%x" % (t, PAD))
    a("v_mov_b32 v%d, 0x%x" % (t + 1, PAD))
    a("v_mov_b32 v%d, 0x%x" % (t + 2, PAD))
    a("v_mov_b32 v%d, 0x%x" % (t + 3, PAD))
    a("v_lshlrev_b32 v%d, 4, v0" % (t + 4))
    n = (L_SEND - L_SLOT) // 16
    for i in range(n // 512):
        a("ds_write_b128 v%d, %s offset:%d" % (t + 4, vr(t, 4), L_SLOT + 8192 * i))
    a("v_cmp_gt_u32 vcc, %d, v0" % (n % 512))
    a("v_lshlrev_b32 v%d, 2, v0" % (t + 5))
    a("s_mov_b32 s%d, %d" % (S_T, SSTR))
    a("v_mov_b32 v%d, %d" % (t + 6, L_SLOT - SSTR))
    a("s_mov_b64 exec, vcc")
    a("ds_write_b128 v%d, %s offset:%d" % (t + 4, vr(t, 4), L_SLOT + 8192 * (n // 512)))
    a("s_mov_b64 exec, -1")
    a("v_mad_u32_u24 v%d, v0, s%d, v%d" % (t + 6, S_T, t + 6))
    a("s_cmp_lt_u32 s%d, %d" % (S_B, N - 97 * 256))
    a("s_addc_u32 s%d, %d, 0" % (S_T, NLOC - 1))
    a("v_cmp_lt_u32 vcc, s%d, v0" % S_T)
    a("v_subrev_u32 v%d, 4, v%d" % (t + 7, t + 6))
    a("v_mov_b32 v%d, %d" % (t + 4, L_FLAG // 4))
    a("v_cndmask_b32 v%d, v%d, v%d, vcc" % (t + 6, t + 6, t + 7))
    a("v_cmp_gt_u32 vcc, v%d, v0" % (t + 4))
    a("v_mov_b32 v%d, %d" % (t + 4, L_ZEND // 4))
    a("v_mov_b32 v%d, 0" % (t + 7))
    a("v_cndmask_b32 v%d, v%d, v%d, vcc" % (t + 6, t + 7, t + 6))
    a("v_cmp_gt_u32 vcc, v%d, v0" % (t + 4))
    a("s_mov_b64 exec, vcc")
    a("ds_write_b32 v%d, v%d" % (t + 5, t + 6))
    a("s_mov_b64 exec, -1")


def lut_build(a, sL, t, off, sbase=None):
    s1 = sL
    sL, s2, sm = S_T + 8, S_T + 9, S_T + 10
    d, k, m, ln, acc, x, y = t, t + 1, t + 2, t + 3, t + 4, t + 5, t + 6
    k64 = t + 8
    o = t + 12
    a("s_add_u32 s%d, s%d, 1" % (sL, s1))
    a("s_lshr_b32 s%d, s%d, 1" % (sL, sL))
    a("s_mul_i32 s%d, s%d, 3" % (s2, sL))
    a("v_subrev_u32 v%d, 1, v%d" % (d, V_LANE))
    a("v_max_i32 v%d, 0, v%d" % (d, d))
    a("v_cmp_lt_u32 vcc, s%d, v%d" % (s1, d))
    a("v_cmp_lt_u32_e64 %s, s%d, v%d" % (sr(sm, 2), s2, d))
    a("v_mov_b32 v%d, 2" % k)
    a("v_mov_b32 v%d, 32768" % m)
    a("v_mov_b32 v%d, 21846" % ln)
    a("v_cndmask_b32_e64 v%d, v%d, 3, vcc" % (k, k))
    a("v_cndmask_b32 v%d, v%d, v%d, vcc" % (m, m, ln))
    a("v_mov_b32 v%d, 16384" % ln)
    a("v_cndmask_b32_e64 v%d, v%d, 4, %s" % (k, k, sr(sm, 2)))
    a("v_cndmask_b32_e64 v%d, v%d, v%d, %s" % (m, m, ln, sr(sm, 2)))
    a("v_add3_u32 v%d, v%d, v%d, -1" % (ln, d, k))
    a("v_mul_u32_u24 v%d, v%d, v%d" % (ln, ln, m))
    a("v_lshrrev_b32 v%d, 16, v%d" % (ln, ln))
    a("v_mov_b32 v%d, 0" % acc)
    for i in range(4):
        a("v_min_u32 v%d, v%d, v%d" % (x, acc, d))
        a("v_sub_u32 v%d, v%d, v%d" % (y, d, x))
        a("v_min_u32 v%d, v%d, v%d" % (y, y, ln))
        a("v_lshlrev_b32 v%d, 2, v%d" % (x, x))
        a("v_lshl_or_b32 v%d, v%d, 16, v%d" % (o + i, y, x))
        a("v_add_u32 v%d, v%d, v%d" % (acc, acc, ln))
    a("v_lshl_or_b32 v%d, v%d, 22, v%d" % (o, k, o))
    a("v_sub_u32 v%d, s%d, v%d" % (acc, sL, ln))
    a("v_min_u32 v%d, 5, v%d" % (acc, acc))
    a("v_mul_u32_u24 v%d, 10, v%d" % (o + 6, acc))
    a("v_cmp_le_u32 vcc, 3, v%d" % acc)
    a("v_add_u32 v%d, 2, v%d" % (x, o + 6))
    a("v_mov_b32 v%d, v%d" % (k64, k))
    a("v_mov_b32 v%d, 0" % (k64 + 1))
    a("v_cndmask_b32 v%d, v%d, v%d, vcc" % (o + 6, o + 6, x))
    a("v_cmp_ne_u32 vcc, 0, v%d" % V_LANE)
    a("v_lshlrev_b64 %s, v%d, %s" % (vr(o + 4, 2), o + 6, vr(k64, 2)))
    a("v_mov_b32 v%d, 0" % (o + 7))
    a("v_cndmask_b32 v%d, v%d, v%d, vcc" % (o + 4, k64 + 1, o + 4))
    a("v_cndmask_b32 v%d, v%d, v%d, vcc" % (o + 5, k64 + 1, o + 5))
    if sbase is None:
        a("v_lshlrev_b32 v%d, 5, v%d" % (x, V_LANE))
    else:
        a("v_lshl_add_u32 v%d, v%d, 5, s%d" % (x, V_LANE, sbase))
    a("ds_write_b128 v%d, %s offset:%d" % (x, vr(o, 4), off))
    a("ds_write_b128 v%d, %s offset:%d" % (x, vr(o + 4, 4), off + 16))


PAT = os.environ.get('PAT', "MeeeeMeeeMeeeMeeeMeee" if X_TEST & 2 else "MeeeeMeeeMeeeeeeeee")


def me(a, mf, ex, extra=(), pat=PAT):
    mf = list(mf)
    ex = list(ex)
    for c in pat:
        if c == "M":
            if mf:
                a(mf.pop(0))
        else:
            a(ex.pop(0))
    assert not mf and not ex
    for x in extra:
        a(x)


def mf16(d, A, B, first):
    return "v_mfma_f32_16x16x32_bf16 %s, %s, %s, %s" % (vr(d, 4), vr(A, 4), vr(B, 4), "0" if first else vr(d, 4))


def tr_frags(dst, addr, off):
    return ["ds_read_b64_tr_b16 %s, v%d offset:%d" % (vr(dst + 8 * blk + 4 * s + 2 * i, 2), addr, off + 4096 * s + 512 * i + 8 * blk)
            for blk in range(2) for s in range(2) for i in range(2)]


def tile_mfmas(d, A, B):
    out = []
    for s in range(2):
        for tau in range(2):
            for blk in range(2):
                out.append(mf16(d + 8 * tau + 4 * blk, A + 8 * blk + 4 * s, B + 8 * tau + 4 * s, s == 0))
    return out


KNAME = "standalone__mpnn_edge_mlp__graph_kernel"


def gen(a):
    COL, HH = V_T0, V_T0 + 1
    a.raw(".globl %s\n.p2align 12\n.type %s,@function" % (KNAME, KNAME))
    a.label(KNAME)
    a("s_cmp_ge_u32 s2, %d" % NB)
    a("s_cbranch_scc1 L_end")
    a("s_load_dwordx16 s[64:79], s[0:1], 0")
    a("s_load_dwordx2 s[80:81], s[0:1], 64")
    if DEBUG:
        a("v_mov_b32 v%d, 0" % V_ST)
        a("v_mov_b32 v%d, 0" % (V_ST + 1))
        stamp(a, "start")
        if DEBUG == 2:
            a.auto = env('AUTO', 24)
    DST, SRC, EV = V_N[0], V_N[0] + 8, V_N[1]
    AD, RK, O1, O2 = V_N[1] + 8, V_D[0], V_D[0] + 8, V_D[1]
    W3 = V_D[1] + 8
    DO, EO = V_D[1] + 10, V_N[1] + 4
    XA, WAD = V_D[1] + 12, V_D[1] + 14
    T16 = V_D[1] + 15
    WUD = V_N[1] + 6
    ZR = V_T[1]
    a("v_lshrrev_b32 v2, 6, v0")
    a("s_mul_i32 s40, s2, 3125")
    a("v_readfirstlane_b32 s%d, v2" % S_W)
    a("s_lshr_b32 s41, s40, 3")
    a("s_add_u32 s40, s40, 3125")
    a("s_lshr_b32 s40, s40, 3")
    a("s_sub_u32 s40, s40, s41")
    if PADS:
        a("s_cmp_eq_u32 s%d, 7" % S_W)
        a("s_cbranch_scc1 L_touch")
        a.label("L_back7")
    a("v_lshlrev_b32 v%d, 4, v0" % T16)
    a("s_lshl_b32 s41, s41, 5")
    a("v_add_u32 v%d, s41, v%d" % (DO, T16))
    a("s_lshl_b32 s3, s40, 4")
    a("v_add_u32 v%d, s3, v%d" % (DO + 1, DO))
    a("v_cmp_gt_u32_e64 %s, s40, v0" % sr(S_EM, 2))
    for i in range(4):
        a("v_mov_b32 v%d, 0" % (ZR + i))
    a("v_lshrrev_b32 v%d, 1, v%d" % (EO, DO))
    a("v_lshrrev_b32 v%d, 1, v%d" % (EO + 1, DO + 1))
    a("v_and_b32 v%d, 63, v0" % V_LANE)
    a("v_lshlrev_b32 v%d, 4, v%d" % (V_L16, V_LANE))
    a("s_cmp_eq_u32 s%d, 7" % S_W)
    a("s_waitcnt lgkmcnt(0)")
    a("s_cbranch_scc1 L_clr")
    a("s_mov_b64 exec, %s" % sr(S_EM, 2))
    a("global_load_dwordx4 %s, v%d, %s %s" % (vr(DST, 4), DO, sr(P_DST, 2), LD_IN))
    a("global_load_dwordx4 %s, v%d, %s %s" % (vr(DST + 4, 4), DO + 1, sr(P_DST, 2), LD_IN))
    a("s_mov_b64 exec, -1")
    stamp(a, "issued")
    for i in range(3):
        a("ds_write_b128 v%d, %s offset:%d" % (T16, vr(ZR, 4), L1_CNT + 7168 * i))
    def se_loads():
        a("s_mov_b64 exec, %s" % sr(S_EM, 2))
        a("global_load_dwordx4 %s, v%d, %s %s" % (vr(SRC, 4), DO, sr(P_SRC, 2), LD_IN))
        a("global_load_dwordx4 %s, v%d, %s %s" % (vr(SRC + 4, 4), DO + 1, sr(P_SRC, 2), LD_IN))
        a("global_load_dwordx2 %s, v%d, %s %s" % (vr(EV, 2), EO, sr(P_E, 2), LD_IN))
        a("global_load_dwordx2 %s, v%d, %s %s" % (vr(EV + 2, 2), EO + 1, sr(P_E, 2), LD_IN))
        a("s_mov_b64 exec, -1")

    if SPOS == -1:
        se_loads()
    if SDEL:
        a("s_sleep %d" % SDEL)
    if SPOS == 0:
        se_loads()
    stamp(a, "iss2")
    a("s_branch L_setup")
    if PADS:
        a.label("L_touch")
        if not CPAD:
            a("s_cmp_lt_u32 s2, %d" % NCLR)
            a("s_cbranch_scc1 L_back7")

        def tree(lo, n, bit):
            if n == 1:
                a("s_branch L_pad%d" % (lo % len(PADA)))
                return
            a("s_bitcmp1_b32 s2, %d" % bit)
            if n == 2:
                a("s_cbranch_scc1 L_pad%d" % ((lo + 1) % len(PADA)))
                tree(lo, 1, 0)
                return
            a("s_cbranch_scc1 L_tr%d_%d" % (lo + n // 2, n // 2))
            tree(lo, n // 2, bit + 1)
            a.label("L_tr%d_%d" % (lo + n // 2, n // 2))
            tree(lo + n // 2, n // 2, bit + 1)

        tree(0, 8 if len(PADA) <= 8 else 16, 3)
    a.label("L_clr")
    if TOUCH & 1:
        a("v_lshlrev_b32 v2, 18, v%d" % V_LANE)
        a("s_mov_b64 exec, 0x1fff")
        a("global_load_dword v%d, v2, %s" % (V_TAB, sr(P_OUT, 2)))
        a("s_mov_b64 exec, 1")
        a("global_load_dword v%d, v2, %s" % (V_TAB + 1, sr(P_DBG, 2)))
        a("s_mov_b32 exec_lo, -1")
        a("s_mov_b32 exec_hi, 15")
        a("global_load_dword v%d, v2, %s" % (V_TAB + 2, sr(P_WS, 2)))
        a("s_mov_b64 exec, -1")
    a("s_cmp_ge_u32 s2, %d" % NCLR)
    a("s_cbranch_scc1 %s" % ("L_b0" if W7B else "L_setup"))
    if CDEL:
        a("s_sleep %d" % CDEL)
    a("s_lshl_b32 s3, s2, 13")
    a("s_add_u32 s3, s3, %d" % (WS_TAB + 4096))
    a("v_add_u32 v2, s3, v%d" % V_L16)
    a("s_lshl_b32 s3, s2, 7")
    a("s_add_u32 s3, s3, %d" % WS_PT)
    a("v_add_u32 v3, s3, v%d" % V_L16)
    for i in range(8):
        a("global_store_dwordx4 v2, %s, %s offset:%d %s" % (vr(ZR, 4), sr(P_WS, 2), 1024 * i - 4096, SC))
    a("s_mov_b64 exec, 0xff")
    a("global_store_dwordx4 v3, %s, %s %s" % (vr(ZR, 4), sr(P_WS, 2), SC))
    a("s_mov_b64 exec, -1")
    if W7B:
        a.label("L_b0")
        a("s_barrier")
    a.label("L_setup")
    a("s_and_b32 s%d, s2, 7" % S_B)
    a("s_lshl_b32 s%d, s%d, 5" % (S_B, S_B))
    a("s_lshr_b32 s3, s2, 3")
    a("s_add_u32 s%d, s%d, s3" % (S_B, S_B))
    a("s_lshl_b32 s43, s%d, 11" % S_W)
    a("v_and_b32 v2, 7, v%d" % V_LANE)
    a("v_lshrrev_b32 v3, 4, v%d" % V_LANE)
    a("v_xor_b32 v3, v2, v3")
    a("v_lshlrev_b32 v%d, 4, v3" % (V_IDX + 7))
    a("v_xor_b32 v%d, 64, v%d" % (V_IDX + 5, V_IDX + 7))
    a("v_and_b32 v%d, 31, v%d" % (COL, V_LANE))
    a("v_lshrrev_b32 v%d, 5, v%d" % (HH, V_LANE))
    a("v_and_b32 v2, 19, v%d" % COL)
    a("v_bfe_u32 v3, v%d, 2, 1" % COL)
    a("v_lshl_or_b32 v2, v3, 3, v2")
    a("v_bfe_u32 v3, v%d, 3, 1" % COL)
    a("v_lshl_or_b32 v%d, v3, 2, v2" % (V_T0 + 2))
    a("v_lshlrev_b32 v%d, 1, v%d" % (V_T0 + 5, V_T0 + 2))
    a("s_mov_b32 s%d, s%d" % (S_WS, P_WS))
    a("s_mov_b32 s%d, s%d" % (S_WS + 1, P_WS + 1))
    a("s_mov_b32 s%d, %d" % (S_WS + 2, WS_SIZE))
    a("s_mov_b32 s%d, 0x00020000" % (S_WS + 3))
    a("s_add_u32 s%d, s%d, %d" % (S_X, P_WS, WS_P - 3072))
    a("s_addc_u32 s%d, s%d, 0" % (S_X + 1, P_WS + 1))
    a("s_and_b32 s%d, s%d, 0xffff" % (S_X + 1, S_X + 1))
    a("s_or_b32 s%d, s%d, 0x%x" % (S_X + 1, S_X + 1, 128 << 16))
    a("s_mov_b32 s%d, %d" % (S_X + 2, NP))
    a("s_mov_b32 s%d, 0x00020000" % (S_X + 3))
    a("s_mov_b32 s%d, s%d" % (S_OUT, P_OUT))
    a("s_mov_b32 s%d, s%d" % (S_OUT + 1, P_OUT + 1))
    a("s_mov_b32 s%d, %d" % (S_OUT + 2, N * 128))
    a("s_mov_b32 s%d, 0x00020000" % (S_OUT + 3))
    a("s_mov_b32 s%d, 0x%08x" % (S_LG, f32(-LOG2E)))
    a("s_mov_b32 s%d, 0x%08x" % (S_LG + 1, f32(-LOG2E)))
    XB, TA, QW = V_RA, V_LEN, V_YW
    PW, PR, PA = V_QA, V_NW, V_S
    TA2, PW2, XP = V_WA, V_WA + 1, V_WA + 2
    a("s_and_b32 s48, s%d, 3" % S_W)
    a("s_lshr_b32 s49, s%d, 2" % S_W)
    a("v_and_b32 v2, 15, v%d" % V_LANE)
    a("v_lshrrev_b32 v3, 4, v%d" % V_LANE)
    a("v_lshrrev_b32 v%d, 1, v2" % XB)
    a("v_xor_b32 v%d, v%d, v3" % (XB, XB))
    a("v_lshlrev_b32 v%d, 4, v%d" % (XB, XB))
    a("v_lshl_add_u32 v%d, v2, 7, v%d" % (XB, XB))
    a("s_add_u32 s3, s43, %d" % L1_X)
    a("v_add_u32 v%d, s3, v%d" % (XP, XB))
    a("v_xor_b32 v%d, 64, v%d" % (XP + 1, XP))
    a("s_lshl_b32 s3, s48, 12")
    a("s_add_u32 s3, s3, %d" % L1_X)
    a("v_add_u32 v%d, s3, v%d" % (XB, XB))
    a("v_xor_b32 v%d, 64, v%d" % (V_RC, XB))
    a("s_lshl_b32 s46, s49, 2")
    a("v_or_b32 v%d, s46, v3" % PW)
    a("v_xor_b32 v%d, v%d, v2" % (PW, PW))
    a("v_and_b32 v%d, 7, v%d" % (PW, PW))
    a("v_lshlrev_b32 v%d, 4, v%d" % (PW, PW))
    a("v_lshl_add_u32 v%d, v2, 7, v%d" % (PW, PW))
    a("s_add_u32 s45, s43, %d" % L1_P)
    a("v_add_u32 v%d, s45, v%d" % (PW, PW))
    a("v_xor_b32 v%d, 64, v%d" % (PW2, PW))
    a("s_lshl_b32 s3, s48, 5")
    a("v_add_u32 v2, s3, v2")
    a("v_cmp_gt_u32 vcc, %d, v2" % NLOC)
    a("s_lshl_b32 s3, s49, 7")
    a("s_add_u32 s3, s3, %d" % L_Q)
    a("v_lshl_add_u32 v%d, v3, 5, s3" % QW)
    a("s_mov_b64 %s, vcc" % sr(S_QM, 2))
    a("v_cmp_gt_u32 vcc, %d, v2" % (NLOC - 16))
    a("s_mov_b32 s3, %d" % RSTR)
    a("v_mad_u32_u24 v%d, v2, s3, v%d" % (QW, QW))
    a("s_mov_b64 %s, vcc" % sr(S_QM + 2, 2))
    a("v_bfe_u32 v2, v%d, 2, 2" % V_LANE)
    a("v_lshl_add_u32 v3, v3, 3, v2")
    a("v_lshrrev_b32 v2, 1, v2")
    a("v_xor_b32 v%d, s49, v2" % TA)
    a("v_lshlrev_b32 v%d, 6, v%d" % (TA, TA))
    a("v_lshl_add_u32 v%d, v3, 7, v%d" % (TA, TA))
    a("v_and_b32 v3, 3, v%d" % V_LANE)
    a("v_lshl_add_u32 v%d, v3, 4, v%d" % (TA, TA))
    a("v_add_u32 v%d, %d, v%d" % (TA, L1_W1, TA))
    a("v_xor_b32 v%d, 64, v%d" % (TA2, TA))
    a("v_lshrrev_b32 v2, 3, v%d" % V_LANE)
    a("s_lshl_b32 s3, s%d, 4" % S_W)
    a("v_add_u32 v3, s3, v2")
    a("s_mul_i32 s3, s%d, %d" % (S_B, NLOC))
    a("v_cmp_gt_u32 vcc, %d, v3" % NLOC)
    a("v_add_u32 v%d, s3, v3" % PA)
    a("s_cmp_lt_u32 s%d, 6" % S_W)
    a("s_cselect_b32 s3, 8, 0x10000")
    a("v_add_u32 v%d, s3, v%d" % (V_R, PA))
    a("v_cndmask_b32 v%d, -1, v%d, vcc" % (PA, PA))
    a("v_and_b32 v3, 0x70, v%d" % T16)
    a("v_add_u32 v%d, 3072, v3" % (PA + 1))
    a("v_mov_b32 v%d, v%d" % (V_R + 1, PA + 1))
    a("v_lshlrev_b32 v2, 4, v2")
    a("v_xor_b32 v%d, v2, v%d" % (PR, V_L16))
    a("v_add_u32 v%d, s45, v%d" % (PR, PR))
    if SPOS == 1:
        se_loads()
    lds_init(a, V_U)
    a("s_mov_b32 s%d, 0" % S_MODE)
    a("s_sub_u32 s3, 11, s%d" % S_W)
    a("s_cmp_lt_u32 s%d, 4" % S_W)
    a("s_cselect_b32 s%d, s%d, s3" % (S_BT, S_W))
    a("s_mul_i32 s%d, s%d, %d" % (S_XT, S_BT, XSTR))
    a("s_add_u32 s%d, s%d, %d" % (S_XT, S_XT, L_XT))
    a("s_add_u32 s%d, s%d, 4096" % (S_XT1, S_XT))
    a("s_mov_b32 s%d, 1.0" % S_ONE)
    a("s_mov_b32 s%d, 1.0" % (S_ONE + 1))
    a("s_mov_b32 s%d, %d" % (S_TO, POLLS))
    a("v_add_u32 v%d, 3072, v%d" % (V_IDX + 1, V_IDX + 7))
    a("v_add_u32 v%d, 2048, v%d" % (V_IDX + 3, V_IDX + 5))
    a("v_add_u32 v%d, 1024, v%d" % (V_IDX + 5, V_IDX + 7))
    a("v_xor_b32 v%d, 64, v%d" % (V_IDX + 7, V_IDX + 7))
    a("v_bfe_u32 v2, v%d, 1, 3" % COL)
    a("v_xor_b32 v2, v2, v%d" % HH)
    a("v_lshlrev_b32 v2, 4, v2")
    a("v_lshl_add_u32 v3, v%d, 7, s%d" % (COL, S_XT))
    for k in range(4):
        a("v_xor_b32 v%d, %d, v2" % (V_BAD + k, 32 * k))
        a("v_add_u32 v%d, v3, v%d" % (V_BAD + k, V_BAD + k))
    if SMF:
        a("v_lshrrev_b32 v2, 4, v%d" % COL)
        a("v_xor_b32 v2, v2, v%d" % HH)
        a("v_bfe_u32 v3, v%d, 2, 2" % (V_T0 + 2))
        a("v_lshl_or_b32 v2, v2, 2, v3")
        a("v_and_b32 v3, 3, v%d" % COL)
        a("v_mov_b32 v%d, 0x5555" % (V_T0 + 4))
        a("v_mul_u32_u24 v%d, v3, v%d" % (V_ID + 4, V_T0 + 4))
        a("v_mov_b32 v3, 0x3f80")
        for i in range(2):
            a("v_cmp_eq_u32 vcc, %d, v2" % (2 * i))
            a("v_cmp_eq_u32_e64 s[48:49], %d, v2" % (2 * i + 1))
            a("s_nop 0")
            a("v_cndmask_b32 v%d, 0, v3, vcc" % (V_ID + 2 * i))
            a("v_cndmask_b32_e64 v%d, 0, v3, s[48:49]" % (V_ID + 2 * i + 1))
    else:
        a("v_bfe_u32 v2, v%d, 3, 1" % (V_T0 + 2))
        a("v_xor_b32 v2, v2, v%d" % HH)
        a("v_bfe_u32 v3, v%d, 1, 2" % (V_T0 + 2))
        a("v_lshl_or_b32 v2, v2, 4, v3")
        a("v_lshrrev_b32 v3, 4, v%d" % COL)
        a("v_lshl_or_b32 v2, v3, 2, v2")
        a("v_and_b32 v3, 1, v%d" % COL)
        a("v_lshlrev_b32 v3, 4, v3")
        a("v_mov_b32 v%d, 0x3f80" % (V_T0 + 4))
        a("v_lshlrev_b32 v3, v3, v%d" % (V_T0 + 4))
        for i in range(4):
            a("v_cmp_eq_u32 vcc, %d, v2" % (2 * i))
            a("v_cmp_eq_u32_e64 s[48:49], %d, v2" % (2 * i + 1))
            a("s_nop 0")
            a("v_cndmask_b32 v%d, 0, v3, vcc" % (V_ID + 2 * i))
            a("v_cndmask_b32_e64 v%d, 0, v3, s[48:49]" % (V_ID + 2 * i + 1))
    a("v_bfe_u32 v2, v%d, 2, 2" % V_LANE)
    a("v_lshl_add_u32 v3, v%d, 3, v2" % HH)
    a("v_lshlrev_b32 v3, 7, v3")
    a("v_lshrrev_b32 v2, 1, v2")
    a("v_lshl_or_b32 v3, v2, 6, v3")
    a("v_bfe_u32 v2, v%d, 4, 1" % V_LANE)
    a("v_lshl_or_b32 v3, v2, 5, v3")
    a("v_and_b32 v2, 1, v%d" % V_LANE)
    a("v_lshl_or_b32 v3, v2, 4, v3")
    a("v_bfe_u32 v2, v%d, 1, 1" % V_LANE)
    a("v_lshl_or_b32 v3, v2, 3, v3")
    a("v_xor_b32 v2, 64, v3")
    a("v_add_u32 v%d, %d, v3" % (V_TRA, L_WA))
    a("v_add_u32 v%d, %d, v2" % (V_TRA + 1, L_WA))
    a("s_lshl_b32 s3, s%d, 7" % S_BT)
    a("s_add_u32 s3, s3, s%d" % S_XT)
    a("v_lshl_add_u32 v%d, v%d, 2, s3" % (V_T0 + 3, COL))
    if XL:
        a("v_lshrrev_b32 v2, 3, v%d" % V_LANE)
        if X_TEST & 64:
            a("s_mul_i32 s3, s%d, %d" % (S_B, NLOC))
            a("s_lshl_b32 s42, s%d, 4" % S_W)
            a("s_add_u32 s3, s3, s42")
            a("v_add_u32 v2, s3, v2")
            a("v_add_u32 v3, 8, v2")
        else:
            a("s_lshl_b32 s3, s%d, 12" % S_W)
            a("s_add_u32 s3, s3, s%d" % S_B)
            a("v_lshl_add_u32 v2, v2, 8, s3")
            a("v_add_u32 v3, 2048, v2")
        a("v_min_u32 v2, %d, v2" % (N - 1))
        a("v_min_u32 v3, %d, v3" % (N - 1))
        a("v_lshl_add_u32 v%d, v2, 7, v%d" % (XA, V_IDX + 7))
        a("v_lshl_add_u32 v%d, v3, 7, v%d" % (XA + 1, V_IDX + 7))
        a("v_xor_b32 v%d, 64, v%d" % (XA, XA))
        a("v_subrev_u32 v%d, 1024, v%d" % (XA + 1, XA + 1))
        a("v_and_b32 v2, 16, v%d" % V_LANE)
        a("v_lshlrev_b32 v2, 2, v2")
        a("v_xor_b32 v%d, v2, v%d" % (WAD, T16))
        a("s_lshr_b32 s42, s43, 1")
        a("s_add_u32 s42, s42, %d" % L1_W1)
    def xw1_loads():
        a("s_mov_b32 m0, s42")
        a("v_add_u32 v%d, 8192, v%d" % (DO, WAD))
        a("global_load_lds_dwordx4 v%d, %s" % (WAD, sr(P_WM, 2)))
        a("s_add_u32 m0, s43, %d" % L1_X)
        a("s_nop 0")
        a("global_load_lds_dwordx4 v%d, %s" % (XA, sr(P_X, 2)))
        a("global_load_lds_dwordx4 v%d, %s offset:1024" % (XA + 1, sr(P_X, 2)))

    TAD, UC, TP = V_IA, V_IA + 1, V_IA + 2
    a("v_lshrrev_b32 v2, 3, v0")
    a("v_lshlrev_b32 v%d, %d, v2" % (TAD, TBL + 4))
    a("v_and_b32 v2, 7, v0")
    a("v_mov_b32 v3, 0x%x" % ((16 - (1 << 23)) & 0xffffffff))
    a("v_mul_lo_u32 v2, v2, v3")
    a("v_subrev_u32 v%d, 0x%x, v2" % (UC, (1 << 23) + (1 << 31)))
    a("s_lshl_b32 s3, s2, %d" % (TBL + 2))
    a("s_add_u32 s3, s3, %d" % WS_TAB)
    if TBL == 8:
        a("v_add_u32 v%d, s3, v%d" % (TP, V_L16))
    elif TBL == 2:
        a("v_lshl_add_u32 v%d, v%d, 12, s3" % (TP, V_LANE))
    else:
        a("v_lshrrev_b32 v2, %d, v%d" % (TBL - 2, V_LANE))
        a("v_lshl_add_u32 v%d, v2, %d, s3" % (TP, TBL + 10))
        a("v_and_b32 v2, %d, v%d" % ((4 << TBL) - 1, V_L16))
        a("v_add_u32 v%d, v2, v%d" % (TP, TP))
    a("s_lshr_b32 s47, s%d, %d" % (S_B, TBL))
    a("s_lshl_b32 s47, s47, %d" % (TBL + 8))
    a("s_and_b32 s3, s%d, %d" % (S_B, (1 << TBL) - 1))
    a("s_add_u32 s47, s47, s3")
    a("s_lshl_b32 s47, s47, 2")
    a("s_add_u32 s47, s47, %d" % WS_TAB)
    a("s_mov_b32 s%d, 0" % S_EXTRA)
    a("s_mul_i32 s52, s2, %d" % (CU * 16))
    a("s_or_b32 s53, s52, 0x80000000")
    a("s_mov_b32 s51, 21846")
    a("s_mov_b32 s50, %d" % (4 if X_TEST & 1 else NLOC))
    FLG, FA, SF = V_T[0], V_T[0] + 1, V_T[0] + 2
    a("v_lshlrev_b32 v%d, 2, v%d" % (FA, V_LANE))
    a("s_mov_b32 s%d, %d" % (S_PCK, 1 << 22))
    a("s_mov_b32 s%d, 0" % S_ST)
    a("v_add_u32 v%d, %d, v%d" % (V_PF, WS_PT, V_L16))
    a("s_cmp_eq_u32 s%d, 7" % S_W)
    if SPOS == 2:
        se_loads()
    stamp(a, "setup")
    a.auto = 0
    a("v_mov_b32 v2, 1")
    a("s_waitcnt lgkmcnt(0)")
    a("s_barrier")
    stamp(a, "bar0")
    a("s_cbranch_scc1 L_w7f")
    if SPOS == 3:
        se_loads()
    a("s_mov_b64 exec, %s" % sr(S_EM, 2))
    for i in range(8):
        if i % 4 == 0:
            a("s_waitcnt vmcnt(%d)" % (5 - i // 4))
            if i == 0:
                stamp(a, "dst")
        a("v_lshlrev_b32_sdwa v%d, 2, v%d dst_sel:DWORD dst_unused:UNUSED_PAD src0_sel:DWORD src1_sel:BYTE_0" % (AD + i, DST + i))
        a("ds_add_rtn_u32 v%d, v%d, v2 offset:%d" % (RK + i, AD + i, L1_CNT))
    for i in range(8):
        a("v_lshrrev_b32 v%d, 8, v%d" % (DST + i, DST + i))
        a("v_add_u32 v%d, 1, v%d" % (DST + i, DST + i))
    for i in range(4):
        a("s_waitcnt lgkmcnt(%d)" % (7 - i))
        a("v_mul_u32_u24 v%d, s51, v%d" % (O1 + i, RK + i))
        a("v_lshrrev_b32 v%d, 16, v%d" % (O1 + i, O1 + i))
        a("v_mad_u32_u24 v%d, v%d, 13, v%d" % (O2 + i, O1 + i, RK + i))
        a("v_add_lshl_u32 v%d, v%d, v%d, 2" % (O1 + i, O1 + i, RK + i))
    a("s_mov_b64 exec, -1")
    if XL == 2 and XPOS == 1:
        xw1_loads()
    a("s_cmp_eq_u32 s%d, 6" % S_W)
    a("s_waitcnt lgkmcnt(0)")
    stamp(a, "preA")
    a("s_barrier")
    stamp(a, "barA")
    CN = V_U
    SC_ = V_U + 4
    STV = V_U + 8
    W2F, WXF = V_C[1], V_C[0]
    QD, RD = V_B[1], V_T[1]
    XF = V_B[0]
    a("ds_read_b128 %s, v%d offset:%d" % (vr(CN, 4), V_L16, L1_CNT))
    if XL == 2 and XPOS == 0:
        xw1_loads()
        a("s_cmp_eq_u32 s%d, 6" % S_W)
    for i in range(4, 8):
        a("v_mul_u32_u24 v%d, s51, v%d" % (O1 + i, RK + i))
        a("v_lshrrev_b32 v%d, 16, v%d" % (O1 + i, O1 + i))
    a("s_waitcnt lgkmcnt(0)")
    for i in range(4):
        a("v_add_u32 v%d, 2, v%d" % (CN + i, CN + i))
        a("v_mul_u32_u24 v%d, s51, v%d" % (CN + i, CN + i))
        a("v_lshrrev_b32 v%d, 16, v%d" % (CN + i, CN + i))
    a("v_add_u32 v%d, v%d, v%d" % (SC_, CN, CN + 1))
    a("v_add_u32 v%d, v%d, v%d" % (SC_ + 1, SC_, CN + 2))
    a("v_add_u32 v%d, v%d, v%d" % (SC_ + 2, SC_ + 1, CN + 3))
    a("v_mov_b32 v%d, v%d" % (SC_ + 3, SC_ + 2))
    dpp_scan(a, [SC_ + 3], fill=["v_mad_u32_u24 v%d, v%d, 13, v%d" % (O2 + i, O1 + i, RK + i) for i in range(4, 8)] +
             ["v_add_lshl_u32 v%d, v%d, v%d, 2" % (O1 + i, O1 + i, RK + i) for i in range(4, 8)] +
             ["v_min_u32 v%d, 255, v%d" % (V_TAB + i, CN + i) for i in range(4)])
    a("v_sub_u32 v%d, v%d, v%d" % (STV, SC_ + 3, SC_ + 2))
    a("v_add_lshl_u32 v%d, v%d, v%d, 4" % (STV + 1, STV, CN))
    a("v_add_lshl_u32 v%d, v%d, v%d, 4" % (STV + 2, STV, SC_))
    a("v_add_lshl_u32 v%d, v%d, v%d, 4" % (STV + 3, STV, SC_ + 1))
    a("v_lshlrev_b32 v%d, 4, v%d" % (STV, STV))
    a("v_readlane_b32 s54, v%d, 63" % (SC_ + 3))
    a("ds_write_b128 v%d, %s offset:%d" % (V_L16, vr(STV, 4), L1_START))
    a("s_mov_b64 exec, %s" % sr(S_EM, 2))
    for i in range(8):
        a("ds_read_b32 v%d, v%d offset:%d" % (RK + i, AD + i, L1_START))
    if B8E:
        for i in range(8):
            a("s_waitcnt lgkmcnt(7)")
            a("v_add_u32 v%d, v%d, v%d" % (O2 + i, O2 + i, RK + i))
            a("v_add_u32 v%d, v%d, v%d" % (O1 + i, O1 + i, RK + i))
            a("ds_write_b8 v%d, v%d offset:%d" % (O2 + i, DST + i, L1_STAGE + 12))
        NX = 3 if XL == 2 and XPOS < 2 else 0
        RE = V_T[1]
        for hh in range(2):
            a("s_waitcnt vmcnt(%d)" % (NX + 3 - hh))
            for k in range(4 * hh, 4 * hh + 4):
                a("v_mul_u32_u24_sdwa v%d, v%d, s50 dst_sel:DWORD dst_unused:UNUSED_PAD src0_sel:BYTE_0 src1_sel:DWORD" % (AD + k, SRC + k))
        for hh in range(2):
            a("s_waitcnt vmcnt(%d)" % (NX + 1 - hh))
            if hh:
                stamp(a, "src")
            for i in range(4 * hh, 4 * hh + 4, 2):
                a("v_lshlrev_b32 v%d, 16, v%d" % (RE + i // 2, EV + i // 2))
            for i in range(4 * hh, 4 * hh + 4, 2):
                a("v_add_u32_sdwa v%d, v%d, v%d dst_sel:WORD_0 dst_unused:UNUSED_PRESERVE src0_sel:DWORD src1_sel:BYTE_1" % (RE + i // 2, AD + i, SRC + i))
                a("v_add_u32_sdwa v%d, v%d, v%d dst_sel:WORD_0 dst_unused:UNUSED_PRESERVE src0_sel:DWORD src1_sel:BYTE_1" % (EV + i // 2, AD + i + 1, SRC + i + 1))
            for i in range(4 * hh, 4 * hh + 4):
                a("ds_write_b32 v%d, v%d offset:%d" % (O1 + i, (EV if i & 1 else RE) + i // 2, L1_STAGE))
    else:
        a("s_waitcnt vmcnt(%d)" % (3 if XL == 2 else 0))
        stamp(a, "src")
        for k in range(8):
            a("v_mul_u32_u24_sdwa v%d, v%d, s50 dst_sel:DWORD dst_unused:UNUSED_PAD src0_sel:BYTE_0 src1_sel:DWORD" % (AD + k, SRC + k))
        RE = V_T[1]
        for i in range(0, 8, 2):
            a("v_lshlrev_b32 v%d, 16, v%d" % (RE + i // 2, EV + i // 2))
        for i in range(0, 8, 2):
            a("v_add_u32_sdwa v%d, v%d, v%d dst_sel:WORD_0 dst_unused:UNUSED_PRESERVE src0_sel:DWORD src1_sel:BYTE_1" % (RE + i // 2, AD + i, SRC + i))
            a("v_add_u32_sdwa v%d, v%d, v%d dst_sel:WORD_0 dst_unused:UNUSED_PRESERVE src0_sel:DWORD src1_sel:BYTE_1" % (EV + i // 2, AD + i + 1, SRC + i + 1))
        for i in range(8):
            a("s_waitcnt lgkmcnt(%d)" % (7 + i))
            a("v_add_u32 v%d, v%d, v%d" % (O2 + i, O2 + i, RK + i))
            a("v_add_u32 v%d, v%d, v%d" % (O1 + i, O1 + i, RK + i))
            a("ds_write_b8 v%d, v%d offset:%d" % (O2 + i, DST + i, L1_STAGE + 12))
            a("ds_write_b32 v%d, v%d offset:%d" % (O1 + i, (EV if i & 1 else RE) + i // 2, L1_STAGE))
    a("s_mov_b64 exec, -1")
    if XL == 2 and XPOS == 2:
        xw1_loads()
        a("s_cmp_eq_u32 s%d, 6" % S_W)
    a("s_cbranch_scc0 L_w7i")
    for i in range(4):
        a("v_lshl_add_u32 v%d, v%d, 23, s53" % (V_TAB + i, V_TAB + i))
        a("v_add_u32 v%d, v%d, v%d" % (V_TAB + i, V_TAB + i, STV + i))
    if XL != 2:
        a("global_load_dword v%d, v%d, %s %s" % (FLG, FA, sr(P_DBG, 2), SCT))
    a("s_branch L_w7i")
    a.label("L_w7f")
    if XL:
        a("v_add_u32 v%d, 16384, v%d" % (W3, V_L16))
        a("s_mov_b32 m0, %d" % L_W3)
        a("s_mov_b64 exec, 0xff")
        a("global_load_lds_dwordx4 v%d, %s" % (W3, sr(P_WM, 2)))
        a("s_mov_b64 exec, -1")
        a("s_mov_b32 s3, %d" % LS[0])
        a("s_mov_b32 s54, %d" % L_LUT)
        a("s_lshl_b32 s44, s2, %d" % (8 - NCLR.bit_length() + 1))
        a("v_mov_b32 v%d, s44" % W3)
        a("v_mov_b32 v2, 1")
        a("v_mov_b32 v3, 1")
        if XL == 2:
            xw1_loads()
        a("s_cmp_ge_u32 s2, %d" % NCLR)
        if FPOS and not W7B:
            a("s_barrier")
        a("s_cbranch_scc1 L_nofl")
        a("s_mov_b64 exec, 1")
        a("s_waitcnt vmcnt(%d)" % (4 if XL == 2 else 1))
        stamp(a, "clr")
        a("global_store_dwordx2 v%d, v[2:3], %s %s" % (W3, sr(P_DBG, 2), SCW))
        a("s_mov_b64 exec, -1")
        a.label("L_nofl")
        if not FPOS and not W7B:
            a("s_barrier")
        a.label("L_lut")
        lut_build(a, 3, V_C[0], 0, 54)
        a("s_add_u32 s54, s54, 2048")
        a("s_add_u32 s3, s3, %d" % (LS[1] - LS[0]))
        a("s_cmp_eq_u32 s3, %d" % LS[1])
        a("s_cbranch_scc1 L_lut")
    else:
        a("v_lshrrev_b32 v%d, 3, v%d" % (WAD, V_LANE))
        a("v_lshl_add_u32 v%d, v%d, 8, s%d" % (WAD, WAD, S_B))
        a("v_lshl_add_u32 v%d, v%d, 7, v%d" % (XA + 1, WAD, V_IDX + 7))
        a("v_xor_b32 v%d, 64, v%d" % (XA, XA + 1))
        a("v_add_u32 v%d, %d, v%d" % (XA + 1, 2048 * 128 - 1024, XA + 1))
        a("s_mov_b32 m0, %d" % L1_X)
        a("s_mov_b64 s[44:45], %s" % sr(P_X, 2))
        a("v_add_u32 v%d, %d, v%d" % (WAD, 96 * 256, WAD))
        a("v_min_u32 v%d, %d, v%d" % (WAD, N - 1, WAD))
        a("v_lshl_add_u32 v%d, v%d, 7, v%d" % (W3 + 1, WAD, V_IDX + 7))
        a("v_xor_b32 v%d, 64, v%d" % (W3 + 1, W3 + 1))
        a.label("L_xld")
        a("global_load_lds_dwordx4 v%d, s[44:45]" % XA)
        a("global_load_lds_dwordx4 v%d, s[44:45] offset:1024" % (XA + 1))
        a("s_add_u32 m0, m0, 2048")
        a("s_add_u32 s44, s44, %d" % (4096 * 128))
        a("s_addc_u32 s45, s45, 0")
        a("s_cmp_lg_u32 m0, %d" % (L1_X + 2048 * 6))
        a("s_cbranch_scc1 L_xld")
        a("global_load_lds_dwordx4 v%d, %s" % (W3 + 1, sr(P_X, 2)))
        a("v_and_b32 v2, 16, v%d" % V_LANE)
        a("v_lshlrev_b32 v2, 2, v2")
        a("v_xor_b32 v%d, v2, v%d" % (WAD, V_L16))
        a("v_add_u32 v%d, 16384, v%d" % (W3, V_L16))
        a("s_mov_b32 s3, %d" % LS[0])
        a("s_mov_b32 s54, %d" % L_LUT)
        stamp(a, "xiss")
        a("s_barrier")
        a.label("L_lut")
        lut_build(a, 3, V_C[0], 0, 54)
        a("s_add_u32 s54, s54, 2048")
        a("s_add_u32 s3, s3, %d" % (LS[1] - LS[0]))
        a("s_cmp_eq_u32 s3, %d" % LS[1])
        a("s_cbranch_scc1 L_lut")
        a("s_cmp_ge_u32 s2, %d" % NCLR)
        a("s_cbranch_scc1 L_noflag")
        a("s_lshl_b32 s3, s2, %d" % (8 - NCLR.bit_length() + 1))
        a("v_mov_b32 v%d, s3" % XA)
        a("v_mov_b32 v2, 1")
        a("v_mov_b32 v3, 1")
        a("s_mov_b64 exec, 1")
        a("s_waitcnt vmcnt(13)")
        stamp(a, "clr")
        a("global_store_dwordx2 v%d, v[2:3], %s %s" % (XA, sr(P_DBG, 2), SC))
        a.label("L_noflag")
        a("s_mov_b32 m0, %d" % L_W3)
        a("s_mov_b64 exec, 0xff")
        a("global_load_lds_dwordx4 v%d, %s" % (W3, sr(P_WM, 2)))
        a("s_mov_b64 exec, -1")
        a("s_mov_b32 m0, %d" % L1_W1)
        a("s_mov_b64 s[44:45], %s" % sr(P_WM, 2))
        a.label("L_wld")
        for i in range(4):
            a("global_load_lds_dwordx4 v%d, s[44:45] offset:%d" % (WAD, 1024 * i))
        a("s_add_u32 m0, m0, 4096")
        a("s_add_u32 s44, s44, 4096")
        a("s_addc_u32 s45, s45, 0")
        a("s_cmp_eq_u32 m0, %d" % L1_WX)
        a("s_cselect_b64 s[44:45], %s, s[44:45]" % sr(P_WU, 2))
        a("s_cmp_lg_u32 m0, %d" % (L_WA + 8192))
        a("s_cbranch_scc1 L_wld")
        stamp(a, "wiss")
    a("s_mov_b32 s54, 0")
    a.label("L_w7i")
    a("v_add_u32 v2, 1024, v0")
    a("v_cmp_gt_u32 vcc, s54, v2")
    a("s_add_u32 s53, s52, 8192")
    a("s_add_u32 s54, s52, 16384")
    a("s_waitcnt lgkmcnt(0)")
    stamp(a, "preB")
    a("s_barrier")
    stamp(a, "barB")
    CP = V_N[0]
    for i in range(3):
        a("ds_read_b128 %s, v%d offset:%d" % (vr(CP + 4 * i, 4), T16, L1_STAGE + 8192 * i))
    a("s_waitcnt lgkmcnt(2)")
    a("buffer_store_dwordx4 %s, v%d, %s, s52 offen %s" % (vr(CP, 4), T16, sr(S_WS, 4), SCS))
    a("s_waitcnt lgkmcnt(1)")
    a("buffer_store_dwordx4 %s, v%d, %s, s53 offen %s" % (vr(CP + 4, 4), T16, sr(S_WS, 4), SCS))
    if XL != 2:
        a("s_cbranch_vccz L_no3")
    a("s_waitcnt lgkmcnt(0)")
    a("s_mov_b64 exec, vcc")
    a("buffer_store_dwordx4 %s, v%d, %s, s54 offen %s" % (vr(CP + 8, 4), T16, sr(S_WS, 4), SCS))
    a("s_mov_b64 exec, -1")
    a.label("L_no3")
    stamp(a, "stiss")
    if XL:
        if XL == 1:
            xw1_loads()
        a("s_mov_b32 s50, 0x807fffff")
        a("s_add_u32 m0, s42, 8192")
        a("v_mov_b32 v%d, 0" % SF)
        a("global_load_lds_dwordx4 v%d, %s" % (DO, sr(P_WM, 2)))
        a("s_add_u32 m0, s42, 16384")
        a("s_nop 0")
        a("global_load_lds_dwordx4 v%d, %s" % (WAD, sr(P_WU, 2)))
        a("s_add_u32 m0, s42, 24576")
        a("s_nop 0")
        a("global_load_lds_dwordx4 v%d, %s" % (DO, sr(P_WU, 2)))
    if PADS:
        a("s_branch L_page1")
        a.raw("@SEMI@")
        a.raw(".p2align 12")
        a.raw("@PAGE@")
        a.label("L_page1")
    TABV = V_D[0]
    PXF, PD, PB_ = V_U, V_B[1], V_U + 8

    def tab_loads():
        for p in range(4):
            a("buffer_load_dword v%d, v%d, %s, s47 offen offset:%d %s" % (TABV + p, TAD, sr(S_WS, 4), (4 << TBL) * p, SCT))

    def qr_out(D, off):
        for tau in range(2):
            for i in range(4):
                a("v_pk_mul_f32 %s, %s, %s" % (vr(D + 8 * tau + 2 * i, 2), vr(D + 8 * tau + 2 * i, 2), sr(S_LG, 2)))
            a("s_mov_b64 exec, %s" % sr(S_QM + 2 * tau, 2))
            for blk in range(2):
                a("ds_write_b128 v%d, %s offset:%d" % (QW, vr(D + 8 * tau + 4 * blk, 4), off + 16 * RSTR * tau + 16 * blk))
            a("s_mov_b64 exec, -1")

    def bar_c(n):
        a("s_cmp_lg_u32 s%d, 6" % S_W)
        a("s_waitcnt vmcnt(%d) lgkmcnt(0)" % n)
        stamp(a, "stack")
        a("s_cbranch_scc1 L_barC")
        a.label("L_fpoll")
        a("v_cmp_ne_u32 vcc, 1, v%d" % FLG)
        a("s_cbranch_vccnz L_fagain")
        a.label("L_barC")
        if PSB == 3:
            p_stores(14)
        a("s_barrier")
        a("s_cbranch_scc1 L_nopub")
        a("global_store_dwordx4 v%d, %s, %s %s" % (TP, vr(V_TAB, 4), sr(P_WS, 2), SCW))
        a.label("L_nopub")
        stamp(a, "barC")

    def p_stores(n):
        a("s_waitcnt lgkmcnt(%d)" % (n + 1))
        a("buffer_store_dwordx4 %s, %s, %s, 0 idxen offen %s" % (vr(PB_, 4), vr(PA, 2), sr(S_X, 4), SCS))
        a("s_waitcnt lgkmcnt(%d)" % n)
        a("buffer_store_dwordx4 %s, %s, %s, 0 idxen offen %s" % (vr(PB_ + 4, 4), vr(V_R, 2), sr(S_X, 4), SCS))
        stamp(a, "piss")

    if XL == 2:
        a("s_waitcnt vmcnt(6)")
        stamp(a, "preB2")
        a("s_barrier")
        stamp(a, "barB2")
    else:
        if not XL:
            a("v_mov_b32 v%d, 0" % SF)
            a("s_mov_b32 s50, 0x807fffff")
        bar_c(6 if XL else 0)
    if XL == 1:
        tab_loads()
        a("s_waitcnt vmcnt(5)")
        a("s_barrier")
        stamp(a, "barC2")
    a("ds_read_b128 %s, v%d" % (vr(PXF, 4), XP))
    a("ds_read_b128 %s, v%d" % (vr(PXF + 4, 4), XP + 1))
    for x in tr_frags(V_C[0], TA, 0) + tr_frags(V_C[1], TA2, 0)[:4]:
        a(x)
    if not XL:
        tab_loads()
    a("s_waitcnt lgkmcnt(4)")
    for x in tr_frags(V_C[1], TA2, 0)[4:]:
        a(x)
    if XL != 2:
        a("ds_read_b32 v%d, v%d offset:%d" % (SF, SF, F_SLOW))
    for tau in range(2):
        a("ds_read_b128 %s, v%d offset:%d" % (vr(XF + 8 * tau, 4), XB, 2048 * tau))
        a("ds_read_b128 %s, v%d offset:%d" % (vr(XF + 8 * tau + 4, 4), V_RC, 2048 * tau))
    for H in range(2):
        if H:
            a("s_waitcnt lgkmcnt(4)")
        for k in range(2):
            for blk in range(2):
                a(mf16(PD + 8 * H + 4 * blk, V_C[H] + 8 * blk + 4 * k, PXF + 4 * k, k == 0))
    if XL != 2:
        a("v_cmp_lt_u32_e64 s[44:45], 3, v%d" % SF)
    else:
        a("s_cmp_lg_u32 s%d, 6" % S_W)
        a("s_cbranch_scc1 L_nofld")
        a("global_load_dword v%d, v%d, %s %s" % (FLG, FA, sr(P_DBG, 2), SCT))
        a.label("L_nofld")
    a("v_mov_b32 v%d, 0" % (V_AE + 1))
    for H in range(2):
        for i in range(4):
            a("v_pk_mul_f32 %s, %s, %s" % (vr(PD + 8 * H + 2 * i, 2), vr(PD + 8 * H + 2 * i, 2), sr(S_LG, 2)))
        for i in range(4):
            a("v_cvt_pk_bf16_f32 v%d, v%d, v%d" % (PD + 8 * H + i, PD + 8 * H + 2 * i, PD + 8 * H + 2 * i + 1))
        a("ds_write_b128 v%d, %s" % (PW2 if H else PW, vr(PD + 8 * H, 4)))
    for i in range(2):
        a("ds_read_b128 %s, v%d offset:%d" % (vr(PB_ + 4 * i, 4), PR, 1024 * i))
    if XL == 2:
        a("ds_read_u16 v%d, v%d offset:%d" % (W3, V_T0 + 5, L_W3))
        a("ds_read_u16 v%d, v%d offset:%d" % (W3 + 1, V_T0 + 5, L_W3 + 64))
        if PSB == 1:
            p_stores(2)
        bar_c(2 if PSB == 1 else 0)
        if TORD:
            tab_loads()
        a("ds_read_b32 v%d, v%d offset:%d" % (SF, SF, F_SLOW))
        for x in tr_frags(W2F, TA, L1_W2 - L1_W1):
            a(x)
        if not TORD and QF != 1:
            tab_loads()
        if not PSB and not TORD:
            p_stores(14)
        a("s_waitcnt lgkmcnt(0)")
        a("v_cmp_lt_u32_e64 s[44:45], 3, v%d" % SF)
    else:
        for x in tr_frags(W2F, TA, L1_W2 - L1_W1):
            a(x)
        a("ds_read_u16 v%d, v%d offset:%d" % (W3, V_T0 + 5, L_W3))
        a("ds_read_u16 v%d, v%d offset:%d" % (W3 + 1, V_T0 + 5, L_W3 + 64))
        p_stores(10)
        a("s_waitcnt lgkmcnt(2)")
    for x in tr_frags(WXF, TA, L1_WX - L1_W1):
        a(x)
    for x in tile_mfmas(QD, W2F, XF):
        a(x)
    if XL == 2 and TORD and not PSB:
        p_stores(14)
    if QF:
        a("s_branch L_qr")
    else:
        a("s_waitcnt vmcnt(%d)" % (0 if XL == 2 and PSB else 2))
    def p_ready(n):
        a("v_mov_b32 v2, 1")
        a("v_mov_b32 v3, %d" % F_PCNT)
        a("s_lshl_b32 s3, s2, 4")
        a("s_mov_b64 exec, 1")
        a("s_waitcnt vmcnt(%d)" % n)
        a("ds_add_rtn_u32 v3, v3, v2")
        a("s_add_u32 s3, s3, %d" % (WS_PT - (7 << 28) + (1 << 32)))
        a("s_mov_b32 s51, %d" % L_SEND)
        a("s_waitcnt lgkmcnt(0)")
        a("v_lshl_add_u32 v3, v3, 28, s3")
        a("buffer_store_dword v2, v3, %s, 0 offen %s" % (sr(S_WS, 4), SCW))
        a("s_mov_b64 exec, -1")

    a.label("L_tcheck")
    a("v_max3_i32 v3, v%d, v%d, v%d" % (TABV, TABV + 1, TABV + 2))
    a("v_max_i32 v3, v3, v%d" % (TABV + 3))
    a("v_cmp_le_i32 vcc, 0, v3")
    a("s_or_b64 vcc, vcc, s[44:45]")
    a("s_cbranch_vccnz L_tfail")
    stamp(a, "tab")
    RC = V_N[0]
    RT = V_T[0]
    ADR = V_T[0] + 12
    TB2 = TABV + 4
    for p in range(4):
        a("v_add_u32 v%d, v%d, v%d" % (TB2 + p, TABV + p, UC))
    a("v_cmp_le_u32 vcc, 0x%x, v3" % ((9 << 23) | (1 << 31)))
    a("s_cbranch_vccnz L2_extra")
    a.label("L2_noextra")
    for p in range(4):
        a("v_and_b32 v%d, s50, v%d" % (TB2 + p, TB2 + p))
        a("buffer_load_dwordx4 %s, v%d, %s, 0 offen %s" % (vr(RC + 4 * p, 4), TB2 + p, sr(S_WS, 4), SC))
    if PSB == 2:
        p_stores(14)
    if PRE:
        a("v_mov_b32 v3, -1")
        a("buffer_store_dword v3, v3, %s, 0 offen" % sr(S_WS, 4))
    a("s_cmp_eq_u32 s%d, 1" % S_ST)
    a("s_cbranch_scc1 L_after")
    a("s_mov_b32 s%d, 2" % S_ST)
    a.label("L_qr")
    a("v_cmp_eq_u32 vcc, 0, v%d" % HH)
    a("v_mov_b32 v%d, 0" % (V_AE + 2))
    a("v_mov_b32 v%d, 0" % (V_AE + 5))
    a("v_mov_b32 v%d, 0" % (V_AE + 6))
    a("s_waitcnt lgkmcnt(0)")
    for x in tile_mfmas(RD, WXF, XF):
        a(x)
    qr_out(QD, 0)
    for X in range(2):
        a("v_lshlrev_b32 v2, 16, v%d" % (W3 + X))
        a("v_mul_f32 v2, s%d, v2" % S_LG)
        a("v_cvt_pk_bf16_f32 v3, v%d, v2" % (V_AE + 1))
        a("v_sub_f32 v2, v2, v3")
        a("v_cvt_pk_bf16_f32 v2, v%d, v2" % (V_AE + 1))
        a("v_cndmask_b32 v%d, v2, v3, vcc" % (V_AE + 4 * X))
        a("v_cndmask_b32 v%d, v2, v3, vcc" % (V_AE + 4 * X + 3))
    qr_out(RD, L_R - L_Q)
    for i in range(12):
        a("v_mov_b32 v%d, -1" % (RT + i))
    stamp(a, "qr")
    if QF:
        tab_loads()
    if PSB == 4:
        p_stores(14)
    if PRE:
        p_ready(4)
    a("s_cmp_lg_u32 s%d, 2" % S_ST)
    a("s_cbranch_scc1 L_tfail1")
    a.label("L_after")

    if PSB == 2:
        a("s_mov_b32 s51, %d" % L_SEND)
    elif not PRE:
        p_ready(4)
    stamp(a, "pack")
    a("v_mov_b32 v2, 4")

    def p1(rc, k):
        for i in range(3):
            a("v_lshlrev_b32_sdwa v%d, 2, v%d dst_sel:DWORD dst_unused:UNUSED_PAD src0_sel:DWORD src1_sel:BYTE_%d" % (ADR + k + i, rc + 3, i))
        for i in range(3):
            a("v_cmpx_ne_u32 vcc, 0, v%d" % (ADR + k + i))
            a("ds_add_rtn_u32 v%d, v%d, v2 offset:%d" % (RT + k + i, ADR + k + i, L_CNT))
        a("s_mov_b64 exec, -1")

    def p2(rc, k):
        for i in range(3):
            a("v_cmpx_gt_u32 vcc, s51, v%d" % (RT + k + i))
            a("ds_write_b32 v%d, v%d" % (RT + k + i, rc + i))
        a("s_mov_b64 exec, -1")

    a("s_cmp_lg_u32 s%d, 0" % S_EXTRA)
    a("s_cbranch_scc1 L2_xpl")
    a.label("L2_pl")
    a("s_waitcnt vmcnt(%d)" % (3 + NPF))
    stamp(a, "rec0")
    p1(RC, 0)
    a("s_waitcnt vmcnt(%d)" % (2 + NPF))
    p1(RC + 4, 3)
    a("s_waitcnt vmcnt(%d) lgkmcnt(0)" % (1 + NPF))
    p1(RC + 8, 6)
    p2(RC, 0)
    p2(RC + 4, 3)
    a("s_waitcnt vmcnt(%d)" % NPF)
    p1(RC + 12, 9)
    a("s_waitcnt lgkmcnt(0)")
    p2(RC + 8, 6)
    p2(RC + 12, 9)
    stamp(a, "placed")
    if PSB == 2:
        p_ready(0)

    a.label("L2_build")
    L4, RB0, NC0, NC1 = V_U, V_U + 1, V_U + 2, V_U + 3
    C0, C1, FL = V_U + 4, V_U + 5, V_U + 6
    P0 = V_U + 8
    O0 = V_U + 10
    E0, E1 = V_N[0], V_N[0] + 8
    a("v_lshlrev_b32 v%d, 2, v%d" % (L4, V_LANE))
    a("s_mov_b32 s3, %d" % SSTR)
    a("v_mov_b32 v%d, %d" % (RB0, L_SLOT - 4))
    a("v_mad_u32_u24 v%d, v%d, s3, v%d" % (RB0, V_LANE, RB0))
    a("v_lshlrev_b32 v%d, 25, v%d" % (NC0, V_LANE))
    a("v_add3_u32 v%d, v%d, v%d, 4" % (NC0, NC0, RB0))
    a("v_add_u32 v%d, 0x%x, v%d" % (NC1, (64 << 25) + 64 * SSTR, NC0))
    a("s_cmp_lt_u32 s%d, %d" % (S_B, N - 97 * 256))
    a("s_cselect_b32 s%d, 3, 1" % (S_HI + 1))
    a("s_mov_b32 s%d, -1" % S_HI)
    a("s_mov_b32 s%d, 0" % S_LI)
    a("s_mov_b32 s%d, 0" % S_SAFE)
    a("v_mov_b32 v%d, %d" % (O0, L_SLOT + 98 * SSTR))
    a("s_lshl_b32 s3, s%d, 6" % S_W)
    a("v_and_b32 v3, 60, v%d" % L4)
    a("v_add_u32 v%d, s3, v3" % (V_T0 + 2))
    a("v_mov_b32 v2, 0x%x" % (127 << 25))
    a("ds_write_b32 v%d, v2 offset:%d" % (V_T0 + 2, L_NL))
    a("v_mov_b32 v%d, 0" % FL)
    a("v_add_u32 v3, %d, v%d" % (64 * SSTR, RB0))
    a("s_mov_b32 s42, 0x100401")
    a("s_waitcnt lgkmcnt(0)")
    if APR:
        a("s_cmp_ge_u32 s%d, 4" % S_W)
        a("s_cbranch_scc1 L_noapr")
        a("s_setprio 1")
        a.label("L_noapr")
    a("s_barrier")
    stamp(a, "barD")
    PFV = V_D[0]

    def pf_loads():
        for k in range(4):
            a("global_load_dword v%d, v%d, %s offset:%d %s" % (PFV + k, V_PF, sr(P_WS, 2), 1024 * k, SCT))

    pf_loads()
    if X_TEST & 2:
        for i in range(16):
            a("v_mov_b32 v%d, v%d" % (V_WA + i, V_ID + (i & 7)))
    a("ds_read_b32 v%d, v%d offset:%d" % (C0, L4, L_CNT + 4))
    a("ds_read_b32 v%d, v%d offset:%d" % (C1, L4, L_CNT + 4 + 256))
    a("ds_read_b32 v%d, v%d offset:%d" % (FL, FL, F_SLOW))
    a("ds_write_b32 v%d, v%d" % (V_T0 + 3, O0))
    a("s_waitcnt lgkmcnt(2)")
    a("v_sub_u32 v%d, v%d, v%d" % (C0, C0, RB0))
    a("v_sub_u32 v%d, v%d, v3" % (C1, C1))
    a("v_lshlrev_b32 v%d, 3, v%d" % (C0, C0))
    a("v_lshlrev_b32 v%d, 3, v%d" % (C1, C1))

    def lut_reads(off):
        a("ds_read_b128 %s, v%d offset:%d" % (vr(E0 + 4, 4), C0, off + 16))
        a("ds_read_b128 %s, v%d offset:%d" % (vr(E1 + 4, 4), C1, off + 16))
        a("ds_read_b128 %s, v%d offset:%d" % (vr(E0, 4), C0, off))
        a("ds_read_b128 %s, v%d offset:%d" % (vr(E1, 4), C1, off))

    lut_reads(L_LUT)
    a("v_max_u32 v2, v%d, v%d" % (C0, C1))
    a("v_cmp_lt_u32 vcc, %d, v2" % (32 * (DMAX + 1)))
    a("s_waitcnt lgkmcnt(4)")
    a("v_cmp_lt_u32_e64 s[40:41], 1, v%d" % FL)
    a("s_or_b64 vcc, vcc, s[40:41]")
    a("s_cbranch_vccnz L2_slow")
    a.label("L2_scan")
    a("s_waitcnt lgkmcnt(2)")
    a("v_add_u32 v%d, v%d, v%d" % (O0, E0 + 4, E1 + 4))
    a("v_add_u32 v%d, v%d, v%d" % (O0 + 1, E0 + 5, E1 + 5))
    a("v_mov_b32 v%d, v%d" % (P0, O0))
    a("v_mov_b32 v%d, v%d" % (P0 + 1, O0 + 1))
    a("s_waitcnt lgkmcnt(0)")
    dpp_scan(a, [P0, P0 + 1], fill=["v_add_u32 v%d, v%d, v%d" % (E0 + i, E0 + i, NC0) for i in range(4)] +
             ["v_add_u32 v%d, v%d, v%d" % (E1 + i, E1 + i, NC1) for i in range(4)])
    a("v_readlane_b32 s44, v%d, 63" % P0)
    a("v_readlane_b32 s45, v%d, 63" % (P0 + 1))
    a("v_sub_u32 v%d, v%d, v%d" % (P0, P0, O0))
    a("v_sub_u32 v%d, v%d, v%d" % (P0 + 1, P0 + 1, O0 + 1))
    a("s_mul_i32 s44, s44, s42")
    a("s_mul_i32 s45, s45, s42")
    a("s_bfe_u32 s46, s44, 0x%x" % ((10 << 16) | 20))
    a("s_bfe_u32 s47, s45, 0x%x" % ((10 << 16) | 20))
    a("s_lshl_b32 s44, s44, 10")
    a("s_lshl_b32 s45, s45, 10")
    a("s_add_u32 s47, s47, s46")
    a("s_mul_i32 s46, s46, s42")
    a("v_add_u32 v%d, s44, v%d" % (P0, P0))
    a("s_add_u32 s45, s45, s46")
    a("s_cmp_gt_u32 s47, 256")
    a("s_cbranch_scc1 L2_retry")
    a("v_add_u32 v%d, s45, v%d" % (P0 + 1, P0 + 1))
    a("v_lshrrev_b64 %s, v%d, %s" % (vr(O0, 2), E0 + 6, vr(P0, 2)))
    a("v_add_u32 v%d, v%d, v%d" % (P0, P0, E0 + 4))
    a("v_add_u32 v%d, v%d, v%d" % (P0 + 1, P0 + 1, E0 + 5))
    a("v_and_b32 v2, 0x1ff, v%d" % O0)
    a("v_lshrrev_b64 %s, v%d, %s" % (vr(O0, 2), E1 + 6, vr(P0, 2)))
    a("v_lshl_add_u32 v2, v2, 2, s%d" % S_XT)
    a("ds_write2_b32 v2, v%d, v%d offset0:2 offset1:3" % (E0 + 2, E0 + 3))
    a("v_and_b32 v3, 0x1ff, v%d" % O0)
    a("v_lshl_add_u32 v3, v3, 2, s%d" % S_XT)
    a("s_mov_b64 exec, %s" % sr(S_HI, 2))
    a("ds_write2_b32 v3, v%d, v%d offset0:2 offset1:3" % (E1 + 2, E1 + 3))
    a("ds_write2_b32 v3, v%d, v%d offset0:0 offset1:1" % (E1, E1 + 1))
    a("s_mov_b64 exec, -1")
    a("ds_write2_b32 v2, v%d, v%d offset0:0 offset1:1" % (E0, E0 + 1))
    a("s_lshl_b32 s3, s%d, 7" % S_BT)
    a("s_add_u32 s3, s3, s%d" % S_XT)
    a("v_lshrrev_b32 v2, 3, v%d" % V_LANE)
    a("v_lshl_add_u32 v2, v2, 2, s3")
    for i in range(4):
        a("ds_read_u16 v%d, v2 offset:%d" % (V_IA + i, 32 * i))
    a("ds_read_b32 v%d, v%d" % (V_W, V_T0 + 3))
    a("s_mov_b32 s%d, %d" % (S_X + 2, NP))
    a(dma_m0(0))
    a("s_mov_b32 s3, %d" % RSTR)
    a("v_lshlrev_b32 v3, 5, v%d" % HH)
    a("s_waitcnt lgkmcnt(1)")
    for x in idx_reads(0):
        a(x)
    a("s_waitcnt lgkmcnt(4)")
    a("v_and_b32 v%d, 0xffff, v%d" % (V_RA, V_W))
    a("v_bfe_u32 v%d, v%d, 16, 6" % (V_LEN, V_W))
    a("v_lshrrev_b32 v2, 25, v%d" % V_W)
    a("v_mad_u32_u24 v%d, v2, s3, v3" % V_QA)
    a("v_add_u32 v%d, %d, v%d" % (V_QA, L_Q, V_QA))
    a("s_waitcnt vmcnt(0)")
    a.label("L_pf_check")
    a("v_and_b32 v2, v%d, v%d" % (PFV, PFV + 1))
    a("v_and_b32 v2, v2, v%d" % (PFV + 2))
    a("v_and_b32 v2, v2, v%d" % (PFV + 3))
    a("v_cmp_ne_u32 vcc, 1, v2")
    a("s_cbranch_vccnz L_pf_again")
    a.label("L_pf_ok")
    stamp(a, "pf")
    if BSL:
        a("s_cmp_lt_u32 s%d, 4" % S_W)
        a("s_cbranch_scc1 L_nobsl")
        a("s_sleep %d" % BSL)
        a.label("L_nobsl")
    d = dma_loads()
    for i in range(4):
        a("s_waitcnt lgkmcnt(%d)" % (3 - i))
        a(d[i])
    stamp(a, "dma0")
    for x in idx_reads(4):
        a(x)
    a("ds_read2_b32 %s, v%d offset0:0 offset1:1" % (vr(V_R, 2), V_RA))
    for x in row_reads(V_C, V_QA):
        a(x)
    KF = V_T0 + 4
    a("v_bfe_u32 v%d, v%d, 22, 3" % (KF, V_W))
    a("v_mov_b32 v%d, v%d" % (V_T0 + 5, V_LEN))
    a("v_cmp_ne_u32 vcc, 0, v%d" % KF)
    a("v_add_u32 v2, %d, v%d" % (L_R - L_Q, V_QA))
    a("v_add_u32 v%d, %d, v3" % (V_RC, L_ZERO))
    a("v_cndmask_b32 v%d, v%d, v2, vcc" % (V_RC, V_RC))
    a("v_mbcnt_lo_u32_b32 v2, vcc_lo, 0")
    a("s_lshl_b32 s40, s%d, 6" % S_W)
    a("v_lshl_add_u32 v2, v2, 2, s40")
    a("s_mov_b32 s41, 0xffc00000")
    a("v_and_or_b32 v%d, v%d, s41, v%d" % (V_NW, V_W, COL))
    a(dma_m0(1))
    a("s_waitcnt lgkmcnt(9)")
    for x in dma_loads():
        a(x)
    for x in idx_reads(8):
        a(x)
    a("s_mov_b32 exec_lo, vcc_lo")
    a("s_mov_b32 exec_hi, 0")
    a("ds_write_b32 v2, v%d offset:%d" % (V_NW, L_NL))
    a("s_mov_b64 exec, -1")
    a("v_and_b32 v2, 60, v%d" % V_LANE)
    a("v_add_u32 v2, s40, v2")
    a("ds_read_b32 v%d, v2 offset:%d" % (V_NW, L_NL))
    a("v_add_u32 v2, v%d, v%d" % (KF, COL))
    a("v_cmp_lt_u32 vcc, 32, v2")
    a("v_mad_u32_u24 v%d, v%d, s3, v3" % (V_YW, COL))
    a("v_add_u32 v%d, s%d, v%d" % (V_YW, S_XT, V_YW))
    a("s_cmp_lg_u64 vcc, 0")
    a("s_cselect_b32 s%d, 1, 0" % S_NEED)
    a("s_cmp_lg_u32 s%d, 7" % S_BT)
    a("s_cselect_b32 s%d, s%d, 0" % (S_NEED, S_NEED))
    dpp_scan(a, [V_T0 + 5], op="v_max_u32", fill=[
        "v_cmp_lt_u32_e64 %s, 0, v%d" % (sr(S_M0, 2), V_LEN),
        "v_cmp_lt_u32_e64 %s, 1, v%d" % (sr(S_M[1], 2), V_LEN),
        "v_mov_b32 v%d, 0" % V_S, "v_mov_b32 v%d, 0" % (V_S + 1)])
    a("s_nop 0")
    a("v_readlane_b32 s%d, v%d, 63" % (S_ML, V_T0 + 5))
    a("s_mov_b32 s%d, 1" % S_J)
    a("s_waitcnt vmcnt(4)")
    for x in b_reads(0):
        a(x)
    a("s_max_u32 s%d, s%d, 2" % (S_ML, S_ML))
    if PRI:
        a("s_sub_u32 s%d, s%d, %d" % (S_ST, S_ML, PRI))
        if PRW:
            a("s_lshr_b32 s3, s%d, %d" % (S_W, PRW - 1))
            a("s_sub_u32 s%d, s%d, s3" % (S_ST, S_ST))
        a("s_cmp_lt_u32 s%d, 4" % S_W)
        a("s_cselect_b32 s%d, s%d, -1" % (S_ST, S_ST))
        a("s_setprio 1")
    a("s_cmp_gt_u32 s%d, 2" % S_ML)
    a("s_cselect_b32 s%d, %d, 0" % (S_X + 2, NP))
    a(dma_m0(0))
    mf = mfma_chain(0, 0, V_N[0])
    a("s_waitcnt lgkmcnt(4)")
    a(mf[0])
    a("s_waitcnt lgkmcnt(0)")
    for x in mf[1:]:
        a(x)
    for x in dma_loads():
        a(x)
    stamp(a, "loop")
    a("s_nop 6")
    me(a, mfma_chain(1, 0, V_N[1]), exps(V_N[0]))
    a("s_waitcnt vmcnt(4)")
    for x in b_reads(1) + idx_reads(12) + pk_first(0):
        a(x)
    a("s_cmp_gt_u32 s%d, 3" % S_ML)
    a("s_cselect_b32 s%d, %d, 0" % (S_X + 2, NP))
    a(dma_m0(1))
    a("s_waitcnt lgkmcnt(0)")
    me(a, mfma_chain(0, 1, V_T[0]), exps(V_N[1]))
    for x in dma_loads():
        a(x)
    for x in pk_first(1):
        a(x)
    a("s_branch L2_loop")
    a.label("L_tfail")
    if PDEP:
        for p in range(4):
            a("v_cmp_le_i32 vcc, 0, v%d" % (TABV + p))
            a("s_mov_b64 exec, vcc")
            a("buffer_load_dword v%d, v%d, %s, s47 offen offset:%d %s" % (TABV + p, TAD, sr(S_WS, 4), (4 << TBL) * p, SCT))
            a("s_mov_b64 exec, -1")
    else:
        tab_loads()
    a("s_cmp_eq_u32 s%d, 0" % S_ST)
    a("s_cbranch_scc1 L_qr")
    a("s_sub_u32 s%d, s%d, 1" % (S_TO, S_TO))
    a("s_cbranch_scc1 L_timeout")
    a.label("L_tback")
    if PDEP > 1:
        a("s_sleep %d" % PSL)
    a("s_waitcnt vmcnt(%d)" % (4 * max(0, PDEP - 1)))
    a("s_branch L_tcheck")
    a.label("L_tfail1")
    a("s_mov_b32 s%d, 1" % S_ST)
    a("s_cmp_lg_u64 s[44:45], 0")
    a("s_cbranch_scc1 L2_build")
    a("s_branch %s" % ("L_padt" if PADS else "L_tback"))
    a.label("L_fagain")
    a("s_sleep 1")
    a("global_load_dword v%d, v%d, %s %s" % (FLG, FA, sr(P_DBG, 2), SCT))
    a("s_sub_u32 s%d, s%d, 1" % (S_TO, S_TO))
    a("s_waitcnt vmcnt(0)")
    a("s_cbranch_scc0 L_fpoll")
    a("v_mov_b32 v3, 6")
    a("v_mov_b32 v2, %d" % F_SLOW)
    a("ds_or_b32 v2, v3")
    a("s_waitcnt lgkmcnt(0)")
    a("s_branch L_barC")
    a.label("L_pf_again")
    a("s_sub_u32 s%d, s%d, 1" % (S_PCK, S_PCK))
    a("s_cselect_b32 s%d, 0, s%d" % (S_PCK, S_PCK))
    a("s_cbranch_scc1 L_pf_ok")
    a("s_sleep 1")
    pf_loads()
    a("s_waitcnt vmcnt(0)")
    a("s_branch L_pf_check")
    semi0 = len(a.l)
    a.label("L2_extra")
    a("s_mov_b32 s%d, 1" % S_EXTRA)
    a("v_cmp_le_u32 vcc, 0x%x, v3" % ((17 << 23) | (1 << 31)))
    a("s_cbranch_vccz L2_noflag")
    a("s_mov_b32 s%d, 3" % S_EXTRA)
    a.label("L2_noflag")
    for p in range(4):
        a("v_add_u32 v3, 0x%x, v%d" % ((128 - (8 << 23)) & 0xffffffff, TB2 + p))
        a("v_and_b32 v3, s50, v3")
        a("buffer_load_dwordx4 %s, v3, %s, 0 offen %s" % (vr(RC + 16 + 4 * p, 4), sr(S_WS, 4), SC))
    a("s_branch L2_noextra")
    a.label("L2_retry")
    a("s_add_u32 s%d, s%d, 1" % (S_LI, S_LI))
    a("s_cmp_lg_u32 s%d, 1" % S_LI)
    a("s_cbranch_scc1 L2_retry2")
    a.label("L2_retry1")
    lut_reads(L_LUT + 2048)
    a("s_branch L2_scan")
    if PADS:
        semi = a.l[semi0:]
        del a.l[semi0:]
        k = a.l.index("@SEMI@")
        a.l[k:k + 1] = semi
        a.raw(".p2align 12")
        a.raw("@PAGE@")
        a.label("L_padt")
        if PRE:
            a("s_waitcnt vmcnt(1)")
            a("s_branch L_tcheck")
        elif PSB == 4:
            a("s_waitcnt vmcnt(2)")
            a("s_branch L_tcheck")
        else:
            a("s_branch L_tback")
    a.raw(".p2align 6")
    a.label("L2_loop")
    for par in (1, 0):
        me(a, mfma_chain(1, par, V_T[1]), exps(V_T[0]))
        a("s_add_u32 s%d, s%d, 1" % (S_J, S_J))
        a("s_waitcnt vmcnt(4)")
        for x in ([] if X_TEST & 8 else b_reads(par + 1)) + idx_reads(16 if par else 20):
            a(x)
        if par == 1:
            a("ds_read2_b32 %s, v%d offset0:2 offset1:3" % (vr(V_R, 2), V_RA))
        a("s_cmp_ge_u32 s%d, s%d" % (S_J, S_ML))
        a("s_mov_b64 exec, %s" % sr(S_M[par], 2))
        for x in pk_update(0):
            a(x)
        a("s_cbranch_scc1 L2_last")
        a("s_mov_b64 exec, -1")
        if PRI:
            a("s_cmp_lg_u32 s%d, s%d" % (S_J, S_ST))
            a("s_cbranch_scc1 L2_np%d" % par)
            a("s_setprio 0")
            a.label("L2_np%d" % par)
        a("s_add_u32 s%d, s%d, 2" % (S_T, S_J))
        a("s_cmp_lt_u32 s%d, s%d" % (S_T, S_ML))
        a("s_cselect_b32 s%d, %d, 0" % (S_X + 2, NP))
        a(dma_m0(par ^ 1))
        if LOOPST:
            a("s_memrealtime s[90:91]")
            a("s_memtime s[88:89]")
            a("s_add_u32 s92, s%d, 32" % S_J)
        a("s_waitcnt lgkmcnt(0)")
        if LOOPST:
            a("s_lshl_b64 exec, 1, s%d" % S_J)
            a("v_mov_b32 v%d, s90" % (V_ST + 1))
            a("s_lshl_b64 exec, exec, 32")
            a("v_mov_b32 v%d, s88" % (V_ST + 1))
            a("s_mov_b64 exec, -1")
        extra = ["v_cmp_lt_u32_e64 %s, s%d, v%d" % (sr(S_M[par ^ 1], 2), S_J, V_LEN)]
        if par == 0:
            extra += ["v_add_u32 v%d, 8, v%d" % (V_IA + i, V_IA + i) for i in range(4)] + ["v_add_u32 v%d, 8, v%d" % (V_RA, V_RA)]
        me(a, mfma_chain(0, par ^ 1, V_T[0]), exps(V_T[1]), extra)
        for x in ([] if X_TEST & 16 else dma_loads()):
            a(x)
        a("s_mov_b64 exec, %s" % sr(S_M[par], 2))
        for x in pk_update(1):
            a(x)
        a("s_mov_b64 exec, -1")
    a("s_branch L2_loop")

    a.label("L2_last")
    if PRT:
        a("s_setprio %d" % (PRT - 1))
    a("s_mov_b64 %s, exec" % sr(S_T + 2, 2))
    a("s_mov_b64 exec, -1")
    a("s_waitcnt lgkmcnt(0)")
    stamp(a, "last")
    for x in row_reads(V_C, V_RC) + exps(V_T[1]) + wa_reads()[:7]:
        a(x)
    a("s_mov_b64 exec, %s" % sr(S_T + 2, 2))
    for x in pk_update(1):
        a(x)
    a("s_mov_b64 exec, -1")
    for x in wa_reads()[7:]:
        a(x)
    a.label("L2_final")
    PB = V_B[0]
    a("s_not_b64 exec, %s" % sr(S_M0, 2))
    a("s_cbranch_execz L2_nz")
    for i in range(16):
        a("v_mov_b32 v%d, 0" % (PB + i))
    a.label("L2_nz")
    a("s_mov_b64 exec, %s" % sr(S_M0, 2))

    def fin(X):
        n, d, t = V_N[X], V_D[X], V_T[X]
        r = ["v_rcp_f32 v%d, v%d" % (t + i, d + i) for i in range(16)]
        s = ["v_pk_fma_f32 %s, %s, %s, %s" % (vr(V_S, 2), vr(d + 4 * i, 2), vr(d + 4 * i + 2, 2), vr(V_S, 2)) for i in range(4)]
        m = ["v_pk_mul_f32 %s, %s, %s" % (vr(t + 2 * i, 2), vr(t + 2 * i, 2), vr(n + 2 * i, 2)) for i in range(8)]
        c = ["v_cvt_pk_bf16_f32 v%d, v%d, v%d" % (PB + 8 * X + i, t + 2 * i, t + 2 * i + 1) for i in range(8)]
        return r, [s[0], m[0], m[1], s[1], m[2], m[3], s[2], m[4], m[5], s[3], m[6], m[7]] + c

    def ymf(o, q):
        return "v_mfma_f32_32x32x16_bf16 %s, %s, %s, %s" % (vr(V_C[o], 16), vr(wa_reg(o, q), 4), vr(PB + 4 * q, 4), vr(V_C[o], 16))

    r, p = fin(0)
    for x in r + p:
        a(x)
    r, p = fin(1)
    a("s_waitcnt vmcnt(0) lgkmcnt(0)")
    a(r[0])
    phase(a, [ymf(0, 0), ymf(1, 0), ymf(0, 1), ymf(1, 1)], r[1:])
    for x in p:
        a(x)
    a("s_nop 1")
    for x in (ymf(0, 2), ymf(1, 2), ymf(0, 3), ymf(1, 3)):
        a(x)
    a("v_mov_b32 v2, 0x%08x" % f32(2.0 ** 120))
    a("v_add_f32 v3, v%d, v%d" % (V_S, V_S + 1))
    a("s_movk_i32 s40, 0x207")
    a("v_cmp_nlt_f32 vcc, v3, v2")
    a("s_mov_b64 exec, -1")
    YR, OA, KK = V_T0 + 2, V_T0 + 4, V_T0 + 5
    a("s_mov_b32 s3, %d" % RSTR)
    a("v_and_b32 v2, 3, v%d" % V_LANE)
    a("v_and_b32 v3, 0xff, v%d" % V_NW)
    a("v_lshl_add_u32 v%d, v2, 5, s%d" % (YR, S_XT))
    a("v_mad_u32_u24 v%d, v3, s3, v%d" % (YR, YR))
    a("v_lshrrev_b32 v3, 25, v%d" % V_NW)
    if X_TEST & 32:
        a("s_mul_i32 s42, s%d, %d" % (S_B, NLOC))
        a("v_add_u32 v%d, s42, v3" % OA)
    else:
        a("v_lshl_add_u32 v%d, v3, 8, s%d" % (OA, S_B))
    a("v_lshlrev_b32 v%d, 7, v%d" % (OA, OA))
    a("v_lshl_add_u32 v%d, v2, 4, v%d" % (OA, OA))
    a("v_bfe_u32 v%d, v%d, 22, 3" % (KK, V_NW))
    a("v_cmp_class_f32_e64 s[42:43], v%d, s40" % V_C[1])
    a("s_lshl_b32 s41, s%d, 2" % S_BT)
    a("s_and_b64 s[42:43], s[42:43], %s" % sr(S_M0, 2))
    a("s_or_b64 vcc, vcc, s[42:43]")
    a("s_cselect_b32 s42, 1, 0")
    a("s_andn2_b32 s42, s42, s%d" % S_SAFE)
    a("s_cbranch_scc1 L2_safe")
    for X in range(2):
        for q in range(4):
            a("ds_write_b128 v%d, %s offset:%d" % (V_YW, vr(V_C[X] + 4 * q, 4), row_off(X, q)))
    a("v_mov_b32 v2, s41")
    a("v_mov_b32 v3, 1")
    a("v_cmp_lt_u32_e64 s[44:45], 2, v%d" % KK)
    a("v_cmp_lt_u32_e64 s[46:47], 3, v%d" % KK)
    a("s_waitcnt lgkmcnt(0)")
    a("ds_write_b32 v2, v3 offset:%d" % L_FLAG)
    a("s_cmp_eq_u32 s%d, 0" % S_NEED)
    a("s_cbranch_scc1 L2_nowait")
    a.label("L2_poll")
    a("ds_read_b32 v3, v2 offset:%d" % (L_FLAG + 4))
    if YSL:
        a("s_sleep %d" % YSL)
    a("s_waitcnt lgkmcnt(0)")
    a("v_cmp_eq_u32 vcc, 0, v3")
    a("s_cbranch_vccnz L2_poll")
    a.label("L2_nowait")
    stamp(a, "ywait")
    Y = [V_N[0], V_N[1], V_D[0], V_D[1]]

    def yreads(i):
        for c in range(4):
            a("ds_read_b128 %s, v%d offset:%d" % (vr(Y[i] + 4 * c, 4), YR, RSTR * i + 128 * (c >> 1) + 16 * (c & 1)))

    def yadd(i):
        for c in range(8):
            a("v_pk_add_f32 %s, %s, %s" % (vr(Y[0] + 2 * c, 2), vr(Y[0] + 2 * c, 2), vr(Y[i] + 2 * c, 2)))

    yreads(0)
    yreads(1)
    yreads(2)
    a("s_cmp_eq_u64 s[46:47], 0")
    a("s_cbranch_scc1 L2_no4")
    yreads(3)
    a("s_waitcnt lgkmcnt(0)")
    a("s_mov_b64 exec, s[46:47]")
    yadd(3)
    a("s_mov_b64 exec, -1")
    a.label("L2_no4")
    a("s_waitcnt lgkmcnt(4)")
    yadd(1)
    a("s_waitcnt lgkmcnt(0)")
    a("s_mov_b64 exec, s[44:45]")
    yadd(2)
    a("s_mov_b64 exec, -1")
    a("s_cmp_eq_u32 s%d, 1" % S_MODE)
    a("s_cbranch_scc1 L2_writeback")
    U = V_U
    for i in range(16):
        a("v_exp_f32 v%d, v%d" % (U + i, Y[0] + i))
    for i in range(8):
        a("v_pk_fma_f32 %s, %s, %s, %s" % (vr(U + 2 * i, 2), vr(U + 2 * i, 2), sr(S_LG, 2), sr(S_LG, 2)))
    for i in range(16):
        a("v_rcp_f32 v%d, v%d" % (U + i, U + i))
    for i in range(8):
        a("v_pk_mul_f32 %s, %s, %s" % (vr(U + 2 * i, 2), vr(U + 2 * i, 2), vr(Y[0] + 2 * i, 2)))
    P = V_B[1]
    for i in range(4):
        a("v_cvt_pk_bf16_f32 v%d, v%d, v%d" % (P + i, U + 2 * i, U + 2 * i + 1))
    a("buffer_store_dwordx4 %s, v%d, %s, 0 offen %s" % (vr(P, 4), OA, sr(S_OUT, 4), SCO))
    for i in range(4, 8):
        a("v_cvt_pk_bf16_f32 v%d, v%d, v%d" % (P + i, U + 2 * i, U + 2 * i + 1))
    a("buffer_store_dwordx4 %s, v%d, %s, 0 offen offset:64 %s" % (vr(P + 4, 4), OA, sr(S_OUT, 4), SCO))
    stamp_out(a)
    a.label("L_end")
    a("s_endpgm")

    a.label("L2_xpl")
    a("s_waitcnt vmcnt(%d)" % (4 + NPF))
    for p in range(4):
        p1(RC + 16 + 4 * p, 3 * p)
    a("v_mov_b32 v3, s%d" % S_EXTRA)
    a("v_mov_b32 v%d, %d" % (V_U, F_SLOW))
    a("ds_or_b32 v%d, v3" % V_U)
    a("s_waitcnt lgkmcnt(0)")
    for p in range(4):
        p2(RC + 16 + 4 * p, 3 * p)
    a("s_branch L2_pl")
    a.label("L_timeout")
    a("v_mov_b32 v3, 6")
    a("v_mov_b32 v2, %d" % F_SLOW)
    a("ds_or_b32 v2, v3")
    if PSB == 2:
        DEBUG_, globals()["DEBUG"] = DEBUG, 0
        p_stores(14)
        globals()["DEBUG"] = DEBUG_
    if not PRE:
        p_ready(0)
    a("s_branch L2_build")

    a.label("L2_retry2")
    a("s_barrier")
    a("s_cmp_eq_u32 s%d, 2" % S_LI)
    a("s_cselect_b32 s3, %d, %d" % (LS[2], LS[3]))
    lut_build(a, 3, V_T[0], L_LUT + 2048)
    a("s_branch L2_retry1")

    a.label("L2_safe")
    a("s_mov_b32 s%d, 1" % S_SAFE)
    a("s_mov_b32 s%d, %d" % (S_X + 2, NP))
    a("s_nop 7")
    for x in row_reads(V_C, V_QA):
        a(x)
    a("v_and_b32 v2, 0xffff, v%d" % V_W)
    a("v_sub_u32 v2, v%d, v2" % V_RA)
    for i in range(4):
        a("v_sub_u32 v%d, v%d, v2" % (V_IA + i, V_IA + i))
    a("v_sub_u32 v%d, v%d, v2" % (V_RA, V_RA))
    for i in range(32):
        a("v_mov_b32 v%d, 0" % (V_N[0] + i))
        a("v_mov_b32 v%d, 1.0" % (V_D[0] + i))
    a("v_mov_b32 v%d, 0x%x" % (V_R + 1, PAD))
    a("s_mov_b32 s%d, 0" % S_J)
    a.label("L2_safe_loop")
    for x in idx_reads(0):
        a(x)
    a("ds_read_b32 v%d, v%d" % (V_R, V_RA))
    a("s_waitcnt lgkmcnt(0)")
    dma_plain(a, 0)
    a("v_cmp_lt_u32_e64 %s, s%d, v%d" % (sr(S_M[0], 2), S_J, V_LEN))
    for i in range(4):
        a("v_add_u32 v%d, 4, v%d" % (V_IA + i, V_IA + i))
    a("v_add_u32 v%d, 4, v%d" % (V_RA, V_RA))
    a("s_waitcnt vmcnt(0)")
    for x in b_reads(0):
        a(x)
    a("s_waitcnt lgkmcnt(0)")
    for x in mfma_chain(0, 0, V_T[0]) + mfma_chain(1, 0, V_T[1]):
        a(x)
    a("s_nop 7")
    a("s_nop 3")
    a("s_mov_b64 exec, %s" % sr(S_M[0], 2))
    for X in range(2):
        for x in exps(V_T[X]):
            a(x)
        for i in range(8):
            a("v_pk_add_f32 %s, %s, %s" % (vr(U + 2 * i, 2), vr(U + 2 * i, 2), sr(S_ONE, 2)))
        for i in range(16):
            a("v_rcp_f32 v%d, v%d" % (U + i, U + i))
        for i in range(8):
            a("v_pk_fma_f32 %s, %s, %s, %s" % (vr(V_N[X] + 2 * i, 2), vr(V_T[X] + 2 * i, 2), vr(U + 2 * i, 2), vr(V_N[X] + 2 * i, 2)))
    a("s_mov_b64 exec, -1")
    a("s_add_u32 s%d, s%d, 1" % (S_J, S_J))
    a("s_cmp_lt_u32 s%d, s%d" % (S_J, S_ML))
    a("s_cbranch_scc1 L2_safe_loop")
    for x in row_reads(V_C, V_RC):
        a(x)
    a("s_branch L2_final")

    a.label("L2_slow")
    a("s_mov_b32 s%d, 1" % S_MODE)
    a("s_mov_b32 s%d, 0" % S_POS)
    a("v_mov_b32 v%d, 0" % V_DONE)
    a("v_cmp_gt_u32 vcc, 4, v%d" % FL)
    a("s_waitcnt vmcnt(0) lgkmcnt(0)")
    a("s_cbranch_vccnz L2_slow_round")
    a("s_barrier")
    t = V_U
    a("v_and_b32 v2, 16, v%d" % V_LANE)
    a("v_lshlrev_b32 v2, 2, v2")
    a("v_xor_b32 v2, v2, v%d" % V_L16)
    a("s_lshl_b32 s3, s%d, 10" % S_W)
    a("v_add_u32 v2, s3, v2")
    a("s_add_u32 m0, s3, %d" % L1_W1)
    a("v_lshrrev_b32 v3, 4, v%d" % V_LANE)
    a("global_load_lds_dwordx4 v2, %s" % sr(P_WM, 2))
    a("v_bfe_u32 v2, v%d, 2, 2" % V_LANE)
    a("v_lshl_add_u32 v%d, v3, 3, v2" % t)
    a("v_lshlrev_b32 v%d, 7, v%d" % (t, t))
    a("v_lshrrev_b32 v2, 1, v2")
    a("v_lshl_or_b32 v%d, v2, 6, v%d" % (t, t))
    a("v_and_b32 v2, 3, v%d" % V_LANE)
    a("v_lshl_or_b32 v%d, v2, 4, v%d" % (t, t))
    a("v_xor_b32 v%d, 64, v%d" % (t + 1, t))
    a("v_add_u32 v%d, %d, v%d" % (t, L1_W1, t))
    a("v_add_u32 v%d, %d, v%d" % (t + 1, L1_W1, t + 1))
    a("v_and_b32 v2, 15, v%d" % V_LANE)
    a("s_lshl_b32 s3, s%d, 4" % S_W)
    a("v_add_u32 v%d, s3, v2" % (t + 2))
    a("v_lshlrev_b32 v%d, 4, v3" % (t + 4))
    a("v_add_u32 v%d, 3072, v%d" % (t + 7, t + 4))
    a("s_mov_b32 s%d, %d" % (S_X + 2, NP))
    a("s_waitcnt vmcnt(0)")
    a("s_barrier")
    for x in tr_frags(V_C[0], t, 0):
        a(x)
    a("s_waitcnt lgkmcnt(0)")
    for x in tr_frags(V_C[1], t + 1, 0):
        a(x)
    a("s_mov_b32 s3, %d" % ((N + 127) // 128))
    a("s_mov_b32 s%d, 0" % S_PCK)
    a.label("L_allp")
    a("v_min_u32 v2, %d, v%d" % (N - 1, t + 2))
    a("v_lshl_add_u32 v2, v2, 7, v%d" % (t + 4))
    a("global_load_dwordx4 %s, v2, %s" % (vr(V_B[0], 4), sr(P_X, 2)))
    a("global_load_dwordx4 %s, v2, %s offset:64" % (vr(V_B[0] + 4, 4), sr(P_X, 2)))
    a("v_and_b32 v2, 255, v%d" % (t + 2))
    a("v_lshrrev_b32 v%d, 8, v%d" % (t + 6, t + 2))
    a("v_mul_u32_u24 v2, %d, v2" % NLOC)
    a("v_add_u32 v%d, v2, v%d" % (t + 6, t + 6))
    a("s_waitcnt vmcnt(0) lgkmcnt(0)")
    for s in range(2):
        for H in range(2):
            for blk in range(2):
                a(mf16(V_T[0] + 8 * H + 4 * blk, V_C[H] + 8 * blk + 4 * s, V_B[0] + 4 * s, s == 0))
    a("s_nop 7")
    for i in range(8):
        a("v_pk_mul_f32 %s, %s, %s" % (vr(V_T[0] + 2 * i, 2), vr(V_T[0] + 2 * i, 2), sr(S_LG, 2)))
    for i in range(8):
        a("v_cvt_pk_bf16_f32 v%d, v%d, v%d" % (V_T[1] + i, V_T[0] + 2 * i, V_T[0] + 2 * i + 1))
    a("buffer_store_dwordx4 %s, %s, %s, 0 idxen offen %s" % (vr(V_T[1], 4), vr(t + 6, 2), sr(S_X, 4), SC))
    a("buffer_store_dwordx4 %s, %s, %s, 0 idxen offen offset:64 %s" % (vr(V_T[1] + 4, 4), vr(t + 6, 2), sr(S_X, 4), SC))
    a("v_add_u32 v%d, 128, v%d" % (t + 2, t + 2))
    a("s_sub_u32 s3, s3, 1")
    a("s_cmp_lg_u32 s3, 0")
    a("s_cbranch_scc1 L_allp")
    a("s_waitcnt vmcnt(0)")
    a("s_branch L2_slow_round")
    a.label("L2_writeback")
    a("v_cmp_ne_u32 vcc, 0, v%d" % KK)
    a("v_lshrrev_b32 v3, 25, v%d" % V_NW)
    a("v_and_b32 v2, 3, v%d" % V_LANE)
    a("v_lshlrev_b32 v2, 5, v2")
    a("v_mad_u32_u24 v2, v3, s3, v2")
    a("v_add_u32 v2, %d, v2" % L_R)
    a("s_mov_b64 exec, vcc")
    for c in range(4):
        a("ds_write_b128 v2, %s offset:%d" % (vr(Y[0] + 4 * c, 4), 128 * (c >> 1) + 16 * (c & 1)))
    a("s_mov_b64 exec, -1")
    a("s_waitcnt lgkmcnt(0)")
    a.label("L2_slow_round")
    a("s_barrier")
    lds_init(a, V_U)
    a("s_waitcnt lgkmcnt(0)")
    a("s_barrier")
    a.label("L2_slow_step")
    a("s_cmp_lt_u32 s%d, %d" % (S_POS, E))
    a("s_cbranch_scc1 L2_slow_go")
    a("s_mov_b32 s%d, 2" % S_MODE)
    a("s_branch L2_build")
    a.label("L2_slow_go")
    a("v_add_u32 v2, s%d, v0" % S_POS)
    a("v_cmp_gt_u32 vcc, %d, v2" % E)
    a("v_min_u32 v2, %d, v2" % (E - 1))
    a("v_lshlrev_b32 v3, 1, v2")
    a("v_lshlrev_b32 v2, 2, v2")
    a("global_load_dword v%d, v2, %s" % (t, sr(P_DST, 2)))
    a("global_load_dword v%d, v2, %s" % (t + 1, sr(P_SRC, 2)))
    a("global_load_ushort v%d, v3, %s" % (t + 2, sr(P_E, 2)))
    a("v_cmp_eq_u32_e64 s[40:41], 0, v%d" % V_DONE)
    a("s_and_b64 s[40:41], s[40:41], vcc")
    a("s_mov_b32 s3, %d" % SSTR)
    a("v_mov_b32 v%d, %d" % (t + 4, L_SLOT + 4 * DMAX))
    a("v_mov_b32 v2, 4")
    a("s_waitcnt vmcnt(0)")
    a("v_and_b32 v3, 255, v%d" % t)
    a("v_cmp_eq_u32 vcc, s%d, v3" % S_B)
    a("v_lshrrev_b32 v3, 8, v%d" % t)
    a("v_mad_u32_u24 v%d, v3, s3, v%d" % (t + 4, t + 4))
    a("v_lshlrev_b32 v3, 2, v3")
    a("v_and_b32 v%d, 255, v%d" % (t + 5, t + 1))
    a("v_lshrrev_b32 v%d, 8, v%d" % (t + 1, t + 1))
    a("v_mul_u32_u24 v%d, %d, v%d" % (t + 5, NLOC, t + 5))
    a("v_add_u32 v%d, v%d, v%d" % (t + 1, t + 1, t + 5))
    a("v_lshl_or_b32 v%d, v%d, 16, v%d" % (t + 1, t + 2, t + 1))
    a("s_and_b64 exec, vcc, s[40:41]")
    a("ds_add_rtn_u32 v%d, v3, v2 offset:%d" % (t + 3, L_CNT + 4))
    a("s_waitcnt lgkmcnt(0)")
    a("v_cmp_lt_u32 vcc, v%d, v%d" % (t + 3, t + 4))
    a("s_andn2_b64 s[40:41], exec, vcc")
    a("s_mov_b64 exec, vcc")
    a("ds_write_b32 v%d, v%d" % (t + 3, t + 1))
    a("v_mov_b32 v%d, 1" % V_DONE)
    a("s_mov_b64 exec, s[40:41]")
    a("v_mov_b32 v%d, %d" % (t + 5, F_PEND))
    a("ds_write_b32 v%d, v2" % (t + 5))
    a("s_mov_b64 exec, -1")
    a("s_waitcnt lgkmcnt(0)")
    a("s_barrier")
    a("s_mov_b64 exec, s[40:41]")
    a("ds_min_u32 v3, v%d offset:%d" % (t + 4, L_CNT + 4))
    a("s_mov_b64 exec, -1")
    a("v_mov_b32 v%d, %d" % (t + 5, F_PEND))
    a("ds_read_b32 v%d, v%d" % (t + 5, t + 5))
    a("s_waitcnt lgkmcnt(0)")
    a("v_cmp_ne_u32 vcc, 0, v%d" % (t + 5))
    a("s_cbranch_vccnz L2_build")
    a("s_barrier")
    a("s_add_u32 s%d, s%d, 512" % (S_POS, S_POS))
    a("v_mov_b32 v%d, 0" % V_DONE)
    a("s_branch L2_slow_step")


def kd(name, vgpr, sgpr):
    return """.amdhsa_kernel %s
  .amdhsa_next_free_vgpr %d
  .amdhsa_next_free_sgpr %d
  .amdhsa_accum_offset %d
  .amdhsa_group_segment_fixed_size 0
  .amdhsa_kernarg_size 72
  .amdhsa_user_sgpr_count 2
  .amdhsa_user_sgpr_kernarg_segment_ptr 1
  .amdhsa_system_sgpr_workgroup_id_x 1
  .amdhsa_float_denorm_mode_32 3
.end_amdhsa_kernel
""" % (name, vgpr, sgpr, (vgpr + 3) // 4 * 4)


HEADER = """; Kernarg layout for this problem (72 bytes, ptrs only, base s[0:1]):
; Generated by dev/gen3.py (hand-written generator).
"""


def addresses(lines):
    import subprocess, tempfile
    k = lines.index(".text")
    e = [i for i, x in enumerate(lines) if x.startswith(".section")][0]
    t = []
    for i, x in enumerate(lines):
        if k < i < e:
            t.append("Z_%d:" % i)
        t.append("" if x == "@PAGE@" else x)
    missing = ["L_pad%d" % p for p in range(len(PADA)) if ("L_pad%d:" % p) not in lines]
    t = t[:t.index(lines[e])] + [m + ":" for m in missing] + t[t.index(lines[e]):]
    with tempfile.TemporaryDirectory() as d:
        open(d + "/a.s", "w").write("\n".join(t) + "\n")
        subprocess.check_call(["clang", "-x", "assembler", "-target", "amdgcn-amd-amdhsa", "-mcpu=gfx950", "-c", d + "/a.s", "-o", d + "/a.o"])
        o = subprocess.check_output(["llvm-objdump", "-t", d + "/a.o"]).decode()
    ad = {}
    for l in o.split("\n"):
        f = l.split()
        if f and f[-1].startswith("Z_"):
            ad[int(f[-1][2:])] = int(f[0], 16)
    return ad


def place_pads(a):
    for p, target in enumerate(PADA):
        ad = addresses(a.l)
        i = min(i for i in ad if ad[i] >= target - 4 and (a.l[i].startswith("    ") or a.l[i] == "@PAGE@"))
        if a.l[i].startswith("    s_branch"):
            i += 1
        if a.l[i] == "@PAGE@":
            a.l[i:i + 1] = ["L_pad%d:" % p, "    s_branch L_back7"]
        elif a.l[i - 1].startswith("    s_branch"):
            a.l[i:i] = ["L_pad%d:" % p, "    s_branch L_back7"]
        else:
            a.l[i:i] = ["    s_branch L_over%d" % p, "L_pad%d:" % p, "    s_branch L_back7", "L_over%d:" % p]
    a.l = [x for x in a.l if x != "@PAGE@"]


def main():
    a = Asm()
    a.raw(HEADER.rstrip())
    a.raw("; @launch grid=(%d,1,1) block=(512,1,1) lds=%d" % (NB, LDS_SIZE))
    a.raw('.amdgcn_target "amdgcn-amd-amdhsa--gfx950"')
    a.raw(".text")
    gen(a)
    a.raw('.section .rodata,"a"')
    a.raw(".p2align 6")
    a.raw(kd(KNAME, 256, 96))
    out = sys.argv[1] if len(sys.argv) > 1 else "standalone__mpnn_edge_mlp__graph.s"
    if PADS:
        place_pads(a)
    txt = a.text()
    if DEBUG:
        txt = txt.replace("; Generated by", "; STAMPS " + " ".join(STAMP_NAMES) + "\n; Generated by")
    open(out, "w").write(txt)
    print("wrote", out, "LDS", LDS_SIZE)


if __name__ == "__main__":
    main()
```

```python
import struct, sys, os


def env(name, d):
    return int(os.environ.get(name, str(d)), 0)


DEBUG = env('DEBUG', 0)
X_TIMEOUT = env('X_TIMEOUT', 0)
POLLS = X_TIMEOUT if X_TIMEOUT else 20000
NPF = 2 if env('PSB', 0) == 2 or env('SV', 0) == 2 else 1
PADS = env('PADS', 1)
PADA = [int(x, 0) for x in os.environ.get('PADA', '0x600 0xa00 0x1000 0x1400 0x1800 0x1c00 0x2000 0x2700').split()]
SLEEP = env('SLEEP', 1)
X_NOPST = env('X_NOPST', 0)
X_TEST = env('X_TEST', 0)
SDEL = env('SDEL', 18)
SPOS = env('SPOS', 0)
CDEL = env('CDEL', 0)
WSL = env('WSL', 0)
TOUCH = env('TOUCH', 0)
SMF = env('SMF', 1)
SV = env('SV', 0)
POI = env('POI', 0)
RDEL = env('RDEL', 0)
RSL = env('RSL', 0)
S_PD = 84
S_CI = 85
HD = env('HD', 0)
HPF = env('HPF', 1)
HD2 = env('HD2', 1)
OT = env('OT', 0)
OTP = os.environ.get('OTP', '')
PFE = env('PFE', 0)
HPW = env('HPW', 0)
HPN = env('HPN', 2)
HU = env('HU', 0)
XE = env('XE', 0)
S_XE = 86
SDE = env('SDE', 0)
XDE = env('XDE', 0)
WBL = env('WBL', 0)
SCR = os.environ.get('SCR', '' if WBL else os.environ.get('SCS', 'sc1'))
PUB3 = env('PUB3', 1)
BARE = env('BARE', 1)
PTL = env('PTL', 0)
NC2 = env('NC2', 8)
FSL = env('FSL', 4)
FLT = env('FLT', 1)
CLM = {4: '0xfc', 8: '0xf4', 16: '0xe4', 32: '0xc4'}[NC2]
XL = env('XL', 2)
CPAD = env('CPAD', 1)
XPOS = env('XPOS', 0)
PSB = env('PSB', 0)
FPOS = env('FPOS', 1)
W7B = env('W7B', 1)
B8E = env('B8E', 1)
WR = env('WR', 8)
WQ = env('WQ', 0)
NCLR = 32
LD_IN = os.environ.get('LD_IN', '')
SC = os.environ.get('SC', 'sc1')
SCP = os.environ.get('SCP', 'sc1')
SCO = os.environ.get('SCO', 'sc1')
SCS = os.environ.get('SCS', 'sc1')
TORD = env('TORD', 0)
PRE = env('PRE', 1)
PDEP = env('PDEP', 2)
PSL = env('PSL', 4)
QF = env('QF', 1)
PRW = env('PRW', 0)
YSL = env('YSL', 0)
LOOPST = env('LOOPST', 0)
BSL = env('BSL', 0)
APR = env('APR', 0)
PRI = env('PRI', 2)
PRT = env('PRT', 0)
TBL = env('TBL', 5)
SCT = os.environ.get('SCT', 'sc1')
SCW = os.environ.get('SCW', 'sc1')
SCG = os.environ.get('SCG', 'sc1')

N = 25000
E = 800000
NB = 256
NLOC = 98
NP = NB * NLOC
CU = 1216
RSZ = 20480 if SV == 2 else CU * 16
DMAX = 62

WS_REC = 0
WS_TAB = 0x500000
WS_PT = 0x540000
WS_P = 0x580000
WS_SIZE = 0x580000
WS_DBG = 0xA00000
LS = tuple(int(x) for x in os.environ.get('LS', '31 32 36 64').split())
assert NB * RSZ <= WS_TAB

LOG2E = 1.4426950408889634
LN2 = 0.6931471805599453


def f32(x):
    return struct.unpack("<I", struct.pack("<f", x))[0]


class Asm:
    def __init__(self):
        self.l = []
        self.auto = 0
        self.n = 0

    def __call__(self, s):
        for x in s.split("\n"):
            x = x.strip()
            if x:
                self.l.append("    " + x)
                if self.auto:
                    self.n += 1
                    if self.n % self.auto == 0:
                        k, self.auto = self.auto, 0
                        stamp(self, "a%d" % self.n, True)
                        self.auto = k

    def label(self, s):
        self.l.append(s + ":")

    def raw(self, s):
        self.l.append(s)

    def text(self):
        return "\n".join(self.l) + "\n"


def vr(a, n):
    return "v[%d:%d]" % (a, a + n - 1)


def sr(a, n):
    return "s[%d:%d]" % (a, a + n - 1)


DPP_STEPS = ["row_shr:1 row_mask:0xf", "row_shr:2 row_mask:0xf", "row_shr:4 row_mask:0xf", "row_shr:8 row_mask:0xf",
             "row_bcast:15 row_mask:0xa", "row_bcast:31 row_mask:0xc"]


def dpp_scan(a, regs, op="v_add_u32", fill=()):
    fill = list(fill)
    for st in DPP_STEPS:
        n = 3 - len(regs)
        while n > 0 and fill:
            a(fill.pop(0))
            n -= 1
        if n > 0:
            a("s_nop %d" % (n - 1))
        for v in regs:
            a("%s_dpp v%d, v%d, v%d %s bank_mask:0xf" % (op, v, v, v, st))
    for x in fill:
        a(x)


RSTR = 272
SSTR = 260
L_CNT = 0
L_FLAG = 544
L_ZERO = 608
L_ZEND = 880
L_W3 = 896
L_NL = 1136
L_LUT = 2048
L_SLOT = L_LUT + 4096
L_SEND = L_SLOT + (99 * SSTR + 160 + 15) // 16 * 16
L_XT = (L_SEND + 255) // 256 * 256
XSTR = 32 * RSTR
L_WA = L_XT + 8 * XSTR
L_Q = L_WA + 8192
L_R = (L_Q + NLOC * RSTR + 127) // 128 * 128
LDS_SIZE = L_R + NLOC * RSTR
L1_CNT = L_XT
L1_START = L1_CNT + 1024
L1_STAGE = L1_START + 1024
L1_X = L1_STAGE + CU * 16
L1_WX = L_WA - 8192
L1_W2 = L1_WX - 8192
L1_W1 = L1_W2 - 8192
L1_P = L1_STAGE
assert L1_X + 16384 <= L1_W1 and L1_W1 % 128 == 0 and L1_P % 128 == 0 and L1_P + 16384 <= LDS_SIZE
assert (L1_X - L1_CNT) == 3 * 448 * 16
assert L1_X < 65536 and L1_X % 128 == 0
assert L_NL + 512 <= L_LUT
assert L_SEND < 65536 - 256
assert LDS_SIZE <= 163840, LDS_SIZE
PAD = 0x7F00
F_SLOW = L_FLAG + 40
F_PEND = L_FLAG + 44
F_PCNT = L_FLAG + 48

V_LANE = 1
V_BAD = 4
V_IA = 8
V_RA = 12
V_LEN = 13
V_S = 14
V_IDX = 16
V_R = 24
V_YW = 26
V_RC = 27
V_QA = 28
V_NW = 29
V_L16 = 30
V_W = 31
V_T0 = 32
V_PF = 38
V_DONE = 39
V_AE = 40
V_ID = 48
V_WA = 56
V_TRA = 72
V_ST = 74
V_TAB = 76
V_HD = 76
V_HO = 53
V_HA = 54
V_HX = 55
V_C = (80, 96)
V_T = (112, 128)
V_N = (144, 160)
V_D = (176, 192)
V_U = 208
V_B = (224, 240)

S_X = 4
S_WS = 8
S_OUT = 12
S_B = 16
S_W = 17
S_BT = 18
S_XT = 19
S_ML = 20
S_J = 21
S_ONE = 22
S_M = (24, 26)
S_M0 = 28
S_MODE = 30
S_SAFE = 31
S_HI = 32
S_NEED = 34
S_LI = 35
S_EXTRA = 36
S_XT1 = 37
S_POS = 38
S_TO = 39
S_T = 40
S_EM = 56
S_LG = 58
S_QM = 60
S_PCK = 82
S_ST = 83
P_X, P_E, P_SRC, P_DST, P_WM, P_WU, P_OUT, P_DBG, P_WS = 64, 66, 68, 70, 72, 74, 76, 78, 80


def mfma_chain(X, j, dst):
    B = V_B[j & 1]
    out = ["v_mfma_f32_32x32x8_bf16 %s, %s, %s, %s" % (
        vr(dst, 16), vr(V_AE + 4 * X + 2 * (j & 1), 2), vr(V_R, 2), vr(V_C[X], 16))]
    if X_TEST & 2:
        for k in range(4):
            out.append("v_mfma_f32_32x32x16_bf16 %s, %s, %s, %s" % (
                vr(dst, 16), vr(V_ID + 4 * k + 8 * X, 4), vr(B + 4 * k, 4), vr(dst, 16)))
        return out
    if X_TEST & 4:
        return out
    if SMF:
        out.append("v_smfmac_f32_32x32x32_bf16 %s, %s, %s, v%d" % (vr(dst, 16), vr(V_ID, 4), vr(B + 8 * X, 8), V_ID + 4))
        return out
    for k in range(2):
        out.append("v_mfma_f32_32x32x16_bf16 %s, %s, %s, %s" % (
            vr(dst, 16), vr(V_ID + 4 * k, 4), vr(B + 8 * X + 4 * k, 4), vr(dst, 16)))
    return out


def exps(src):
    return ["v_exp_f32 v%d, v%d" % (V_U + i, src + i) for i in range(16)]


def pk_first(X):
    return ["v_pk_add_f32 %s, %s, %s" % (vr(V_D[X] + 2 * i, 2), vr(V_U + 2 * i, 2), sr(S_ONE, 2)) for i in range(8)]


def pk_update(X):
    n, d, u, t = V_N[X], V_D[X], V_U, V_T[X]
    A = ["v_pk_fma_f32 %s, %s, %s, %s" % (vr(n + 2 * i, 2), vr(n + 2 * i, 2), vr(u + 2 * i, 2), vr(n + 2 * i, 2)) for i in range(8)]
    B = ["v_pk_fma_f32 %s, %s, %s, %s" % (vr(n + 2 * i, 2), vr(t + 2 * i, 2), vr(d + 2 * i, 2), vr(n + 2 * i, 2)) for i in range(8)]
    C = ["v_pk_fma_f32 %s, %s, %s, %s" % (vr(d + 2 * i, 2), vr(d + 2 * i, 2), vr(u + 2 * i, 2), vr(d + 2 * i, 2)) for i in range(8)]
    return A + B + C


def phase(a, mf, ex):
    mf = list(mf)
    for i, e in enumerate(ex):
        if i % 3 == 0 and mf:
            a(mf.pop(0))
        a(e)
    assert not mf


def b_reads(tile):
    return ["ds_read_b128 %s, v%d offset:%d" % (vr(V_B[tile & 1] + 4 * k, 4), V_BAD + k, 4096 * (tile & 1)) for k in range(4)]


def idx_reads(off, base=None):
    return ["ds_read_u16 v%d, v%d offset:%d" % (V_IDX + 2 * i, (V_IA if base is None else base) + i, off) for i in range(4)]


def dma_m0(slot):
    return "s_mov_b32 m0, s%d" % (S_XT1 if slot else S_XT)


def dma_loads():
    return ["buffer_load_dwordx4 %s, %s, 0 idxen offen offset:%d %s lds" % (vr(V_IDX + 2 * i, 2), sr(S_X, 4), 1024 * i, SCG) for i in range(4)]


def dma_plain(a, slot):
    a(dma_m0(slot))
    a("s_nop 0")
    for x in dma_loads():
        a(x)


def row_off(X, q):
    return 128 * X + 64 * (q >> 1) + 16 * (q & 1)


def row_reads(dst, addr):
    return ["ds_read_b128 %s, v%d offset:%d" % (vr(dst[X] + 4 * q, 4), addr, row_off(X, q)) for X in range(2) for q in range(4)]


def wa_reg(o, q):
    return (V_WA if o == 0 else V_B[1]) + 4 * q


def wa_reads():
    return ["ds_read_b64_tr_b16 %s, v%d offset:%d" % (vr(wa_reg(o, q) + 2 * i, 2), V_TRA + o, 2048 * q + 512 * i)
            for q in range(4) for o in range(2) for i in range(2)]


NSTAMP = [0]
STAMP_NAMES = []


def stamp(a, name, auto=False):
    if DEBUG == 2 and not auto and name not in ("start", "barW", "barA", "barB", "end"):
        return
    if name in os.environ.get("NOST", "issued iss2 dst stiss piss rec0 placed dma0 ywait xiss preA preB preB2").split():
        return
    if DEBUG:
        au, a.auto = a.auto, 0
        k = len(STAMP_NAMES)
        STAMP_NAMES.append(name)
        cyc = name in ("start", "loop", "last", "end")
        if cyc:
            a("s_memtime s[88:89]")
        a("s_memrealtime s[90:91]")
        a("s_waitcnt lgkmcnt(0)")
        if cyc:
            a("v_writelane_b32 v%d, s88, %d" % (V_ST, k))
        a("v_writelane_b32 v%d, s90, %d" % (V_ST, 32 + k))
        a.auto = au


def stamp_out(a):
    if DEBUG:
        a("s_mov_b64 exec, -1")
        a("s_waitcnt vmcnt(0)")
        stamp(a, "end")
        a("v_lshlrev_b32 v2, 2, v0")
        a("s_lshl_b32 s3, s2, 11")
        a("s_add_u32 s3, s3, %d" % WS_DBG)
        a("v_add_u32 v2, s3, v2")
        a("global_store_dword v2, v%d, %s" % (V_ST, sr(P_WS, 2)))
        if LOOPST:
            a("v_add_u32 v2, 0x80000, v2")
            a("global_store_dword v2, v%d, %s" % (V_ST + 1, sr(P_WS, 2)))


def lds_init(a, t):
    a("v_mov_b32 v%d, 0x%x" % (t, PAD))
    a("v_mov_b32 v%d, 0x%x" % (t + 1, PAD))
    a("v_mov_b32 v%d, 0x%x" % (t + 2, PAD))
    a("v_mov_b32 v%d, 0x%x" % (t + 3, PAD))
    a("v_lshlrev_b32 v%d, 4, v0" % (t + 4))
    n = (L_SEND - L_SLOT) // 16
    for i in range(n // 512):
        a("ds_write_b128 v%d, %s offset:%d" % (t + 4, vr(t, 4), L_SLOT + 8192 * i))
    a("v_cmp_gt_u32 vcc, %d, v0" % (n % 512))
    a("v_lshlrev_b32 v%d, 2, v0" % (t + 5))
    a("s_mov_b32 s%d, %d" % (S_T, SSTR))
    a("v_mov_b32 v%d, %d" % (t + 6, L_SLOT - SSTR))
    a("s_mov_b64 exec, vcc")
    a("ds_write_b128 v%d, %s offset:%d" % (t + 4, vr(t, 4), L_SLOT + 8192 * (n // 512)))
    a("s_mov_b64 exec, -1")
    a("v_mad_u32_u24 v%d, v0, s%d, v%d" % (t + 6, S_T, t + 6))
    a("s_cmp_lt_u32 s%d, %d" % (S_B, N - 97 * 256))
    a("s_addc_u32 s%d, %d, 0" % (S_T, NLOC - 1))
    a("v_cmp_lt_u32 vcc, s%d, v0" % S_T)
    a("v_subrev_u32 v%d, 4, v%d" % (t + 7, t + 6))
    a("v_mov_b32 v%d, %d" % (t + 4, L_FLAG // 4))
    a("v_cndmask_b32 v%d, v%d, v%d, vcc" % (t + 6, t + 6, t + 7))
    a("v_cmp_gt_u32 vcc, v%d, v0" % (t + 4))
    a("v_mov_b32 v%d, %d" % (t + 4, L_ZEND // 4))
    a("v_mov_b32 v%d, 0" % (t + 7))
    a("v_cndmask_b32 v%d, v%d, v%d, vcc" % (t + 6, t + 7, t + 6))
    a("v_cmp_gt_u32 vcc, v%d, v0" % (t + 4))
    a("s_mov_b64 exec, vcc")
    a("ds_write_b32 v%d, v%d" % (t + 5, t + 6))
    a("s_mov_b64 exec, -1")


def lut_build(a, sL, t, off, sbase=None):
    s1 = sL
    sL, s2, sm = S_T + 8, S_T + 9, S_T + 10
    d, k, m, ln, acc, x, y = t, t + 1, t + 2, t + 3, t + 4, t + 5, t + 6
    k64 = t + 8
    o = t + 12
    a("s_add_u32 s%d, s%d, 1" % (sL, s1))
    a("s_lshr_b32 s%d, s%d, 1" % (sL, sL))
    a("s_mul_i32 s%d, s%d, 3" % (s2, sL))
    a("v_subrev_u32 v%d, 1, v%d" % (d, V_LANE))
    a("v_max_i32 v%d, 0, v%d" % (d, d))
    a("v_cmp_lt_u32 vcc, s%d, v%d" % (s1, d))
    a("v_cmp_lt_u32_e64 %s, s%d, v%d" % (sr(sm, 2), s2, d))
    a("v_mov_b32 v%d, 2" % k)
    a("v_mov_b32 v%d, 32768" % m)
    a("v_mov_b32 v%d, 21846" % ln)
    a("v_cndmask_b32_e64 v%d, v%d, 3, vcc" % (k, k))
    a("v_cndmask_b32 v%d, v%d, v%d, vcc" % (m, m, ln))
    a("v_mov_b32 v%d, 16384" % ln)
    a("v_cndmask_b32_e64 v%d, v%d, 4, %s" % (k, k, sr(sm, 2)))
    a("v_cndmask_b32_e64 v%d, v%d, v%d, %s" % (m, m, ln, sr(sm, 2)))
    a("v_add3_u32 v%d, v%d, v%d, -1" % (ln, d, k))
    a("v_mul_u32_u24 v%d, v%d, v%d" % (ln, ln, m))
    a("v_lshrrev_b32 v%d, 16, v%d" % (ln, ln))
    a("v_mov_b32 v%d, 0" % acc)
    for i in range(4):
        a("v_min_u32 v%d, v%d, v%d" % (x, acc, d))
        a("v_sub_u32 v%d, v%d, v%d" % (y, d, x))
        a("v_min_u32 v%d, v%d, v%d" % (y, y, ln))
        if HD:
            a("v_add3_u32 v%d, v%d, v%d, %d" % (x, x, k, 3 - i))
        if HD2:
            a("v_add3_u32 v%d, v%d, v%d, %d" % (x, x, k, -1 - 2 * i))
            a("v_max_i32 v%d, 0, v%d" % (x, x))
            a("v_lshl_or_b32 v%d, v%d, 25, %d" % (x, x, 4 * i))
        else:
            a("v_lshlrev_b32 v%d, 2, v%d" % (x, x))
        a("v_lshl_or_b32 v%d, v%d, 16, v%d" % (o + i, y, x))
        a("v_add_u32 v%d, v%d, v%d" % (acc, acc, ln))
    a("v_lshl_or_b32 v%d, v%d, 22, v%d" % (o, k, o))
    a("v_sub_u32 v%d, s%d, v%d" % (acc, sL, ln))
    a("v_min_u32 v%d, 5, v%d" % (acc, acc))
    a("v_mul_u32_u24 v%d, 10, v%d" % (o + 6, acc))
    a("v_cmp_le_u32 vcc, 3, v%d" % acc)
    a("v_add_u32 v%d, 2, v%d" % (x, o + 6))
    a("v_mov_b32 v%d, v%d" % (k64, k))
    a("v_mov_b32 v%d, 0" % (k64 + 1))
    a("v_cndmask_b32 v%d, v%d, v%d, vcc" % (o + 6, o + 6, x))
    a("v_cmp_ne_u32 vcc, 0, v%d" % V_LANE)
    a("v_lshlrev_b64 %s, v%d, %s" % (vr(o + 4, 2), o + 6, vr(k64, 2)))
    a("v_mov_b32 v%d, 0" % (o + 7))
    a("v_cndmask_b32 v%d, v%d, v%d, vcc" % (o + 4, k64 + 1, o + 4))
    a("v_cndmask_b32 v%d, v%d, v%d, vcc" % (o + 5, k64 + 1, o + 5))
    if sbase is None:
        a("v_lshlrev_b32 v%d, 5, v%d" % (x, V_LANE))
    else:
        a("v_lshl_add_u32 v%d, v%d, 5, s%d" % (x, V_LANE, sbase))
    a("ds_write_b128 v%d, %s offset:%d" % (x, vr(o, 4), off))
    a("ds_write_b128 v%d, %s offset:%d" % (x, vr(o + 4, 4), off + 16))


PAT = os.environ.get('PAT', "MeeeeMeeeMeeeMeeeMeee" if X_TEST & 2 else "MeeeeMeeeMeeeeeeeee")


def me(a, mf, ex, extra=(), pat=PAT):
    mf = list(mf)
    ex = list(ex)
    for c in pat:
        if c == "M":
            if mf:
                a(mf.pop(0))
        else:
            a(ex.pop(0))
    assert not mf and not ex
    for x in extra:
        a(x)


def mf16(d, A, B, first):
    return "v_mfma_f32_16x16x32_bf16 %s, %s, %s, %s" % (vr(d, 4), vr(A, 4), vr(B, 4), "0" if first else vr(d, 4))


def tr_frags(dst, addr, off):
    return ["ds_read_b64_tr_b16 %s, v%d offset:%d" % (vr(dst + 8 * blk + 4 * s + 2 * i, 2), addr, off + 4096 * s + 512 * i + 8 * blk)
            for blk in range(2) for s in range(2) for i in range(2)]


def tile_mfmas(d, A, B):
    out = []
    for s in range(2):
        for tau in range(2):
            for blk in range(2):
                out.append(mf16(d + 8 * tau + 4 * blk, A + 8 * blk + 4 * s, B + 8 * tau + 4 * s, s == 0))
    return out


KNAME = "standalone__mpnn_edge_mlp__graph_kernel"


def gen(a):
    COL, HH = V_T0, V_T0 + 1
    a.raw(".globl %s\n.p2align 12\n.type %s,@function" % (KNAME, KNAME))
    a.label(KNAME)
    a("s_cmp_ge_u32 s2, %d" % NB)
    a("s_cbranch_scc1 L_end")
    a("s_load_dwordx16 s[64:79], s[0:1], 0")
    a("s_load_dwordx2 s[80:81], s[0:1], 64")
    if DEBUG:
        a("v_mov_b32 v%d, 0" % V_ST)
        a("v_mov_b32 v%d, 0" % (V_ST + 1))
        stamp(a, "start")
        if DEBUG == 2:
            a.auto = env('AUTO', 24)
    DST, SRC, EV = V_N[0], V_N[0] + 8, V_N[1]
    AD, RK, O1, O2 = V_N[1] + 8, V_D[0], V_D[0] + 8, V_D[1]
    W3 = V_D[1] + 8
    DO, EO = V_D[1] + 10, V_N[1] + 4
    XA, WAD = V_D[1] + 12, V_D[1] + 14
    T16 = V_D[1] + 15
    WUD = V_N[1] + 6
    ZR = V_T[1]
    a("v_lshrrev_b32 v2, 6, v0")
    a("s_mul_i32 s40, s2, 3125")
    a("v_readfirstlane_b32 s%d, v2" % S_W)
    a("s_lshr_b32 s41, s40, 3")
    a("s_add_u32 s40, s40, 3125")
    a("s_lshr_b32 s40, s40, 3")
    a("s_sub_u32 s40, s40, s41")
    if PADS:
        a("s_cmp_eq_u32 s%d, 7" % S_W)
        a("s_cbranch_scc1 L_touch")
        a.label("L_back7")
    a("v_lshlrev_b32 v%d, 4, v0" % T16)
    a("s_lshl_b32 s41, s41, 5")
    a("v_add_u32 v%d, s41, v%d" % (DO, T16))
    a("s_lshl_b32 s3, s40, 4")
    a("v_add_u32 v%d, s3, v%d" % (DO + 1, DO))
    a("v_cmp_gt_u32_e64 %s, s40, v0" % sr(S_EM, 2))
    for i in range(4):
        a("v_mov_b32 v%d, 0" % (ZR + i))
    a("v_lshrrev_b32 v%d, 1, v%d" % (EO, DO))
    a("v_lshrrev_b32 v%d, 1, v%d" % (EO + 1, DO + 1))
    a("v_and_b32 v%d, 63, v0" % V_LANE)
    a("v_lshlrev_b32 v%d, 4, v%d" % (V_L16, V_LANE))
    a("s_cmp_eq_u32 s%d, 7" % S_W)
    a("s_waitcnt lgkmcnt(0)")
    a("s_cbranch_scc1 L_clr")
    a("s_mov_b64 exec, %s" % sr(S_EM, 2))
    a("global_load_dwordx4 %s, v%d, %s %s" % (vr(DST, 4), DO, sr(P_DST, 2), LD_IN))
    a("global_load_dwordx4 %s, v%d, %s %s" % (vr(DST + 4, 4), DO + 1, sr(P_DST, 2), LD_IN))
    a("s_mov_b64 exec, -1")
    stamp(a, "issued")
    for i in range(3):
        a("ds_write_b128 v%d, %s offset:%d" % (T16, vr(ZR, 4), L1_CNT + 7168 * i))
    def se_loads():
        a("s_mov_b64 exec, %s" % sr(S_EM, 2))
        a("global_load_dwordx4 %s, v%d, %s %s" % (vr(SRC, 4), DO, sr(P_SRC, 2), LD_IN))
        a("global_load_dwordx4 %s, v%d, %s %s" % (vr(SRC + 4, 4), DO + 1, sr(P_SRC, 2), LD_IN))
        a("global_load_dwordx2 %s, v%d, %s %s" % (vr(EV, 2), EO, sr(P_E, 2), LD_IN))
        a("global_load_dwordx2 %s, v%d, %s %s" % (vr(EV + 2, 2), EO + 1, sr(P_E, 2), LD_IN))
        a("s_mov_b64 exec, -1")

    if SPOS == -1:
        se_loads()
    if SDEL:
        a("s_sleep %d" % SDEL)
    if SDE:
        a("s_bitcmp1_b32 s2, 2")
        a("s_cbranch_scc1 L_sde")
        a("s_sleep %d" % SDE)
        a.label("L_sde")
    if SPOS == 0:
        se_loads()
    stamp(a, "iss2")
    a("s_branch L_setup")
    if PADS:
        a.label("L_touch")
        if not CPAD and SV == 2:
            a("s_and_b32 s3, s2, %s" % CLM)
            a("s_cbranch_scc0 L_back7")
        elif not CPAD:
            a("s_cmp_lt_u32 s2, %d" % NCLR)
            a("s_cbranch_scc1 L_back7")

        def tree(lo, n, bit):
            if n == 1:
                a("s_branch L_pad%d" % (lo % len(PADA)))
                return
            a("s_bitcmp1_b32 s2, %d" % bit)
            if n == 2:
                a("s_cbranch_scc1 L_pad%d" % ((lo + 1) % len(PADA)))
                tree(lo, 1, 0)
                return
            a("s_cbranch_scc1 L_tr%d_%d" % (lo + n // 2, n // 2))
            tree(lo, n // 2, bit + 1)
            a.label("L_tr%d_%d" % (lo + n // 2, n // 2))
            tree(lo + n // 2, n // 2, bit + 1)

        tree(0, 8 if len(PADA) <= 8 else 16, 3)
    a.label("L_clr")
    if TOUCH & 2:
        a("s_bfe_u32 s3, s2, 0x10003")
        a("s_lshl_b32 s3, s3, 13")
        a("v_lshl_add_u32 v2, v%d, 7, s3" % V_LANE)
        a("global_load_dword v%d, v2, %s" % (V_TAB, sr(P_WU, 2)))
        a("global_load_dword v%d, v2, %s" % (V_TAB + 1, sr(P_WM, 2)))
    if TOUCH & 4:
        a("v_mul_u32_u24 v2, %d, v%d" % (N * 128 // 64, V_LANE))
        a("global_load_dword v%d, v2, %s" % (V_TAB + 2, sr(P_X, 2)))
    if TOUCH & 1:
        a("v_lshlrev_b32 v2, 18, v%d" % V_LANE)
        a("s_mov_b64 exec, 0x1fff")
        a("global_load_dword v%d, v2, %s" % (V_TAB, sr(P_OUT, 2)))
        a("s_mov_b64 exec, 1")
        a("global_load_dword v%d, v2, %s" % (V_TAB + 1, sr(P_DBG, 2)))
        a("s_mov_b32 exec_lo, -1")
        a("s_mov_b32 exec_hi, 15")
        a("global_load_dword v%d, v2, %s" % (V_TAB + 2, sr(P_WS, 2)))
        a("s_mov_b64 exec, -1")
    CI = 2
    if SV == 2:
        CI = S_CI
        a("s_lshr_b32 s3, s2, 1")
        a("s_and_b32 s3, s3, 0x1c")
        a("s_and_b32 s%d, s2, 3" % CI)
        a("s_or_b32 s%d, s%d, s3" % (CI, CI))
        a("s_and_b32 s3, s2, %s" % CLM)
        a("s_cbranch_scc1 L_clr2")
    elif SV:
        a("s_cmp_ge_u32 s2, %d" % NCLR)
        a("s_cbranch_scc1 L_clr2")
    else:
        a("s_cmp_ge_u32 s2, %d" % NCLR)
        a("s_cbranch_scc1 %s" % ("L_b0" if W7B else "L_setup"))
    if CDEL:
        a("s_sleep %d" % CDEL)
    if SV == 2:
        a("s_mul_i32 s3, s%d, %d" % (CI, 0x40000 // NC2))
        a("s_add_u32 s3, s3, %d" % (WS_TAB + 2048))
        a("v_add_u32 v2, s3, v%d" % V_L16)
        a("s_mov_b32 s3, %d" % (64 // NC2 - 1))
        a.label("L_clr1")
        for i in range(4):
            a("global_store_dwordx4 v2, %s, %s offset:%d %s" % (vr(ZR, 4), sr(P_WS, 2), 1024 * i - 2048, SC))
        a("v_add_u32 v2, 4096, v2")
        a("s_sub_u32 s3, s3, 1")
        a("s_cbranch_scc0 L_clr1")
    else:
        a("s_lshl_b32 s3, s%d, 13" % CI)
        a("s_add_u32 s3, s3, %d" % (WS_TAB + 4096))
        a("v_add_u32 v2, s3, v%d" % V_L16)
        a("s_lshl_b32 s3, s%d, %d" % (CI, 10 if PTL else 7))
        a("s_add_u32 s3, s3, %d" % WS_PT)
        a("v_add_u32 v3, s3, v%d" % V_L16)
        for i in range(8):
            a("global_store_dwordx4 v2, %s, %s offset:%d %s" % (vr(ZR, 4), sr(P_WS, 2), 1024 * i - 4096, SC))
        if not PTL:
            a("s_mov_b64 exec, 0xff")
        a("global_store_dwordx4 v3, %s, %s %s" % (vr(ZR, 4), sr(P_WS, 2), SC))
        a("s_mov_b64 exec, -1")
    if SV:
        a.label("L_clr2")
        if RDEL:
            a("s_sleep %d" % RDEL)
        a("s_mul_i32 s3, s2, %d" % RSZ)
        a("v_add_u32 v2, s3, v%d" % V_L16)
        a("s_mov_b32 s3, %d" % (RSZ // 2048 - 1))
        a.label("L_clr3")
        a("global_store_dwordx4 v2, %s, %s %s" % (vr(ZR, 4), sr(P_WS, 2), SC))
        a("global_store_dwordx4 v2, %s, %s offset:1024 %s" % (vr(ZR, 4), sr(P_WS, 2), SC))
        a("v_add_u32 v2, 2048, v2")
        a("s_sub_u32 s3, s3, 1")
        a("s_cbranch_scc0 L_clr3")
    if W7B:
        a.label("L_b0")
        a("s_barrier")
    a.label("L_setup")
    a("s_and_b32 s%d, s2, 7" % S_B)
    a("s_lshl_b32 s%d, s%d, 5" % (S_B, S_B))
    a("s_lshr_b32 s3, s2, 3")
    a("s_add_u32 s%d, s%d, s3" % (S_B, S_B))
    a("s_lshl_b32 s43, s%d, 11" % S_W)
    a("v_and_b32 v2, 7, v%d" % V_LANE)
    a("v_lshrrev_b32 v3, 4, v%d" % V_LANE)
    a("v_xor_b32 v3, v2, v3")
    a("v_lshlrev_b32 v%d, 4, v3" % (V_IDX + 7))
    a("v_xor_b32 v%d, 64, v%d" % (V_IDX + 5, V_IDX + 7))
    a("v_and_b32 v%d, 31, v%d" % (COL, V_LANE))
    a("v_lshrrev_b32 v%d, 5, v%d" % (HH, V_LANE))
    a("v_and_b32 v2, 19, v%d" % COL)
    a("v_bfe_u32 v3, v%d, 2, 1" % COL)
    a("v_lshl_or_b32 v2, v3, 3, v2")
    a("v_bfe_u32 v3, v%d, 3, 1" % COL)
    a("v_lshl_or_b32 v%d, v3, 2, v2" % (V_T0 + 2))
    a("v_lshlrev_b32 v%d, 1, v%d" % (V_T0 + 5, V_T0 + 2))
    a("s_mov_b32 s%d, s%d" % (S_WS, P_WS))
    a("s_mov_b32 s%d, s%d" % (S_WS + 1, P_WS + 1))
    a("s_mov_b32 s%d, %d" % (S_WS + 2, WS_SIZE))
    a("s_mov_b32 s%d, 0x00020000" % (S_WS + 3))
    a("s_add_u32 s%d, s%d, %d" % (S_X, P_WS, WS_P - 3072))
    a("s_addc_u32 s%d, s%d, 0" % (S_X + 1, P_WS + 1))
    a("s_and_b32 s%d, s%d, 0xffff" % (S_X + 1, S_X + 1))
    a("s_or_b32 s%d, s%d, 0x%x" % (S_X + 1, S_X + 1, 128 << 16))
    a("s_mov_b32 s%d, %d" % (S_X + 2, NP))
    a("s_mov_b32 s%d, 0x00020000" % (S_X + 3))
    a("s_mov_b32 s%d, s%d" % (S_OUT, P_OUT))
    a("s_mov_b32 s%d, s%d" % (S_OUT + 1, P_OUT + 1))
    a("s_mov_b32 s%d, %d" % (S_OUT + 2, N * 128))
    a("s_mov_b32 s%d, 0x00020000" % (S_OUT + 3))
    a("s_mov_b32 s%d, 0x%08x" % (S_LG, f32(-LOG2E)))
    a("s_mov_b32 s%d, 0x%08x" % (S_LG + 1, f32(-LOG2E)))
    XB, TA, QW = V_RA, V_LEN, V_YW
    PW, PR, PA = V_QA, V_NW, V_S
    TA2, PW2, XP = V_WA, V_WA + 1, V_WA + 2
    a("s_and_b32 s48, s%d, 3" % S_W)
    a("s_lshr_b32 s49, s%d, 2" % S_W)
    a("v_and_b32 v2, 15, v%d" % V_LANE)
    a("v_lshrrev_b32 v3, 4, v%d" % V_LANE)
    a("v_lshrrev_b32 v%d, 1, v2" % XB)
    a("v_xor_b32 v%d, v%d, v3" % (XB, XB))
    a("v_lshlrev_b32 v%d, 4, v%d" % (XB, XB))
    a("v_lshl_add_u32 v%d, v2, 7, v%d" % (XB, XB))
    a("s_add_u32 s3, s43, %d" % L1_X)
    a("v_add_u32 v%d, s3, v%d" % (XP, XB))
    a("v_xor_b32 v%d, 64, v%d" % (XP + 1, XP))
    a("s_lshl_b32 s3, s48, 12")
    a("s_add_u32 s3, s3, %d" % L1_X)
    a("v_add_u32 v%d, s3, v%d" % (XB, XB))
    a("v_xor_b32 v%d, 64, v%d" % (V_RC, XB))
    a("s_lshl_b32 s46, s49, 2")
    a("v_or_b32 v%d, s46, v3" % PW)
    a("v_xor_b32 v%d, v%d, v2" % (PW, PW))
    a("v_and_b32 v%d, 7, v%d" % (PW, PW))
    a("v_lshlrev_b32 v%d, 4, v%d" % (PW, PW))
    a("v_lshl_add_u32 v%d, v2, 7, v%d" % (PW, PW))
    a("s_add_u32 s45, s43, %d" % L1_P)
    a("v_add_u32 v%d, s45, v%d" % (PW, PW))
    a("v_xor_b32 v%d, 64, v%d" % (PW2, PW))
    a("s_lshl_b32 s3, s48, 5")
    a("v_add_u32 v2, s3, v2")
    a("v_cmp_gt_u32 vcc, %d, v2" % NLOC)
    a("s_lshl_b32 s3, s49, 7")
    a("s_add_u32 s3, s3, %d" % L_Q)
    a("v_lshl_add_u32 v%d, v3, 5, s3" % QW)
    a("s_mov_b64 %s, vcc" % sr(S_QM, 2))
    a("v_cmp_gt_u32 vcc, %d, v2" % (NLOC - 16))
    a("s_mov_b32 s3, %d" % RSTR)
    a("v_mad_u32_u24 v%d, v2, s3, v%d" % (QW, QW))
    a("s_mov_b64 %s, vcc" % sr(S_QM + 2, 2))
    a("v_bfe_u32 v2, v%d, 2, 2" % V_LANE)
    a("v_lshl_add_u32 v3, v3, 3, v2")
    a("v_lshrrev_b32 v2, 1, v2")
    a("v_xor_b32 v%d, s49, v2" % TA)
    a("v_lshlrev_b32 v%d, 6, v%d" % (TA, TA))
    a("v_lshl_add_u32 v%d, v3, 7, v%d" % (TA, TA))
    a("v_and_b32 v3, 3, v%d" % V_LANE)
    a("v_lshl_add_u32 v%d, v3, 4, v%d" % (TA, TA))
    a("v_add_u32 v%d, %d, v%d" % (TA, L1_W1, TA))
    a("v_xor_b32 v%d, 64, v%d" % (TA2, TA))
    a("v_lshrrev_b32 v2, 3, v%d" % V_LANE)
    a("s_lshl_b32 s3, s%d, 4" % S_W)
    a("v_add_u32 v3, s3, v2")
    a("s_mul_i32 s3, s%d, %d" % (S_B, NLOC))
    a("v_cmp_gt_u32 vcc, %d, v3" % NLOC)
    a("v_add_u32 v%d, s3, v3" % PA)
    a("s_cmp_lt_u32 s%d, 6" % S_W)
    a("s_cselect_b32 s3, 8, 0x10000")
    a("v_add_u32 v%d, s3, v%d" % (V_R, PA))
    a("v_cndmask_b32 v%d, -1, v%d, vcc" % (PA, PA))
    a("v_and_b32 v3, 0x70, v%d" % T16)
    a("v_add_u32 v%d, 3072, v3" % (PA + 1))
    a("v_mov_b32 v%d, v%d" % (V_R + 1, PA + 1))
    a("v_lshlrev_b32 v2, 4, v2")
    a("v_xor_b32 v%d, v2, v%d" % (PR, V_L16))
    a("v_add_u32 v%d, s45, v%d" % (PR, PR))
    if SPOS == 1:
        se_loads()
    lds_init(a, V_U)
    a("s_mov_b32 s%d, 0" % S_MODE)
    a("s_sub_u32 s3, 11, s%d" % S_W)
    a("s_cmp_lt_u32 s%d, 4" % S_W)
    a("s_cselect_b32 s%d, s%d, s3" % (S_BT, S_W))
    a("s_mul_i32 s%d, s%d, %d" % (S_XT, S_BT, XSTR))
    a("s_add_u32 s%d, s%d, %d" % (S_XT, S_XT, L_XT))
    a("s_add_u32 s%d, s%d, 4096" % (S_XT1, S_XT))
    a("s_mov_b32 s%d, 1.0" % S_ONE)
    a("s_mov_b32 s%d, 1.0" % (S_ONE + 1))
    a("s_mov_b32 s%d, %d" % (S_TO, POLLS))
    a("v_add_u32 v%d, 3072, v%d" % (V_IDX + 1, V_IDX + 7))
    a("v_add_u32 v%d, 2048, v%d" % (V_IDX + 3, V_IDX + 5))
    a("v_add_u32 v%d, 1024, v%d" % (V_IDX + 5, V_IDX + 7))
    a("v_xor_b32 v%d, 64, v%d" % (V_IDX + 7, V_IDX + 7))
    a("v_bfe_u32 v2, v%d, 1, 3" % COL)
    a("v_xor_b32 v2, v2, v%d" % HH)
    a("v_lshlrev_b32 v2, 4, v2")
    a("v_lshl_add_u32 v3, v%d, 7, s%d" % (COL, S_XT))
    for k in range(4):
        a("v_xor_b32 v%d, %d, v2" % (V_BAD + k, 32 * k))
        a("v_add_u32 v%d, v3, v%d" % (V_BAD + k, V_BAD + k))
    if SMF:
        a("v_lshrrev_b32 v2, 4, v%d" % COL)
        a("v_xor_b32 v2, v2, v%d" % HH)
        a("v_bfe_u32 v3, v%d, 2, 2" % (V_T0 + 2))
        a("v_lshl_or_b32 v2, v2, 2, v3")
        a("v_and_b32 v3, 3, v%d" % COL)
        a("v_mov_b32 v%d, 0x5555" % (V_T0 + 4))
        a("v_mul_u32_u24 v%d, v3, v%d" % (V_ID + 4, V_T0 + 4))
        a("v_mov_b32 v3, 0x3f80")
        for i in range(2):
            a("v_cmp_eq_u32 vcc, %d, v2" % (2 * i))
            a("v_cmp_eq_u32_e64 s[48:49], %d, v2" % (2 * i + 1))
            a("s_nop 0")
            a("v_cndmask_b32 v%d, 0, v3, vcc" % (V_ID + 2 * i))
            a("v_cndmask_b32_e64 v%d, 0, v3, s[48:49]" % (V_ID + 2 * i + 1))
    else:
        a("v_bfe_u32 v2, v%d, 3, 1" % (V_T0 + 2))
        a("v_xor_b32 v2, v2, v%d" % HH)
        a("v_bfe_u32 v3, v%d, 1, 2" % (V_T0 + 2))
        a("v_lshl_or_b32 v2, v2, 4, v3")
        a("v_lshrrev_b32 v3, 4, v%d" % COL)
        a("v_lshl_or_b32 v2, v3, 2, v2")
        a("v_and_b32 v3, 1, v%d" % COL)
        a("v_lshlrev_b32 v3, 4, v3")
        a("v_mov_b32 v%d, 0x3f80" % (V_T0 + 4))
        a("v_lshlrev_b32 v3, v3, v%d" % (V_T0 + 4))
        for i in range(4):
            a("v_cmp_eq_u32 vcc, %d, v2" % (2 * i))
            a("v_cmp_eq_u32_e64 s[48:49], %d, v2" % (2 * i + 1))
            a("s_nop 0")
            a("v_cndmask_b32 v%d, 0, v3, vcc" % (V_ID + 2 * i))
            a("v_cndmask_b32_e64 v%d, 0, v3, s[48:49]" % (V_ID + 2 * i + 1))
    a("v_bfe_u32 v2, v%d, 2, 2" % V_LANE)
    a("v_lshl_add_u32 v3, v%d, 3, v2" % HH)
    a("v_lshlrev_b32 v3, 7, v3")
    a("v_lshrrev_b32 v2, 1, v2")
    a("v_lshl_or_b32 v3, v2, 6, v3")
    a("v_bfe_u32 v2, v%d, 4, 1" % V_LANE)
    a("v_lshl_or_b32 v3, v2, 5, v3")
    a("v_and_b32 v2, 1, v%d" % V_LANE)
    a("v_lshl_or_b32 v3, v2, 4, v3")
    a("v_bfe_u32 v2, v%d, 1, 1" % V_LANE)
    a("v_lshl_or_b32 v3, v2, 3, v3")
    a("v_xor_b32 v2, 64, v3")
    a("v_add_u32 v%d, %d, v3" % (V_TRA, L_WA))
    a("v_add_u32 v%d, %d, v2" % (V_TRA + 1, L_WA))
    a("s_lshl_b32 s3, s%d, %d" % (S_BT, 7 + HD))
    a("s_add_u32 s3, s3, s%d" % S_XT)
    a("v_lshl_add_u32 v%d, v%d, %d, s3" % (V_T0 + 3, COL, 2 + HD))
    if (HD or HD2) and HPW:
        a("v_and_b32 v2, 255, v0")
        a("v_min_u32 v3, 98, v2")
        a("v_mul_u32_u24 v%d, %d, v3" % (V_HO, SSTR))
        a("v_lshrrev_b32 v2, 1, v2")
        a("v_min_u32 v2, 98, v2")
        a("v_mul_u32_u24 v2, %d, v2" % SSTR)
        a("v_and_b32 v3, 1, v0")
        a("v_lshl_add_u32 v%d, v3, 2, v2" % V_HA)
    elif HD or HD2:
        a("v_lshrrev_b32 v2, 2, v0")
        a("v_min_u32 v2, 98, v2")
        a("v_mul_u32_u24 v2, %d, v2" % SSTR)
        a("v_and_b32 v3, 3, v0")
        a("v_min_u32 v3, 2, v3")
        a("v_lshl_add_u32 v%d, v3, 2, v2" % V_HA)
    if XL:
        a("v_lshrrev_b32 v2, 3, v%d" % V_LANE)
        if X_TEST & 64:
            a("s_mul_i32 s3, s%d, %d" % (S_B, NLOC))
            a("s_lshl_b32 s42, s%d, 4" % S_W)
            a("s_add_u32 s3, s3, s42")
            a("v_add_u32 v2, s3, v2")
            a("v_add_u32 v3, 8, v2")
        else:
            a("s_lshl_b32 s3, s%d, 12" % S_W)
            a("s_add_u32 s3, s3, s%d" % S_B)
            a("v_lshl_add_u32 v2, v2, 8, s3")
            a("v_add_u32 v3, 2048, v2")
        a("v_min_u32 v2, %d, v2" % (N - 1))
        a("v_min_u32 v3, %d, v3" % (N - 1))
        a("v_lshl_add_u32 v%d, v2, 7, v%d" % (XA, V_IDX + 7))
        a("v_lshl_add_u32 v%d, v3, 7, v%d" % (XA + 1, V_IDX + 7))
        a("v_xor_b32 v%d, 64, v%d" % (XA, XA))
        a("v_subrev_u32 v%d, 1024, v%d" % (XA + 1, XA + 1))
        a("v_and_b32 v2, 16, v%d" % V_LANE)
        a("v_lshlrev_b32 v2, 2, v2")
        a("v_xor_b32 v%d, v2, v%d" % (WAD, T16))
        a("s_lshr_b32 s42, s43, 1")
        a("s_add_u32 s42, s42, %d" % L1_W1)
    def xw1_loads(first=False):
        if XE:
            a("%s exec, %s" % ("s_mov_b64" if first else "s_not_b64", sr(S_XE, 2)))
        xw1_loads0()
        if XE:
            a("s_mov_b64 exec, -1")

    def xw1_loads0():
        a("s_mov_b32 m0, s42")
        a("v_add_u32 v%d, 8192, v%d" % (DO, WAD))
        a("global_load_lds_dwordx4 v%d, %s" % (WAD, sr(P_WM, 2)))
        a("s_add_u32 m0, s43, %d" % L1_X)
        a("s_nop 0")
        a("global_load_lds_dwordx4 v%d, %s" % (XA, sr(P_X, 2)))
        a("global_load_lds_dwordx4 v%d, %s offset:1024" % (XA + 1, sr(P_X, 2)))

    if XE:
        if XE == 1:
            a("s_bitcmp1_b32 s2, 2")
        else:
            a("s_cmp_eq_u32 s2, s2")
        a("s_cselect_b64 %s, -1, 0" % sr(S_XE, 2))
        xw1_loads(True)
    TAD, UC, TP = V_IA, V_IA + 1, V_IA + 2
    a("v_lshrrev_b32 v2, 3, v0")
    a("v_lshlrev_b32 v%d, %d, v2" % (TAD, TBL + 4))
    a("v_and_b32 v2, 7, v0")
    a("v_mov_b32 v3, 0x%x" % ((16 - (1 << 23)) & 0xffffffff))
    a("v_mul_lo_u32 v2, v2, v3")
    a("v_subrev_u32 v%d, 0x%x, v2" % (UC, (1 << 23) + (1 << 31)))
    a("s_lshl_b32 s3, s2, %d" % (TBL + 2))
    a("s_add_u32 s3, s3, %d" % WS_TAB)
    if TBL == 8:
        a("v_add_u32 v%d, s3, v%d" % (TP, V_L16))
    elif TBL == 2:
        a("v_lshl_add_u32 v%d, v%d, 12, s3" % (TP, V_LANE))
    else:
        a("v_lshrrev_b32 v2, %d, v%d" % (TBL - 2, V_LANE))
        a("v_lshl_add_u32 v%d, v2, %d, s3" % (TP, TBL + 10))
        a("v_and_b32 v2, %d, v%d" % ((4 << TBL) - 1, V_L16))
        a("v_add_u32 v%d, v2, v%d" % (TP, TP))
    a("s_lshr_b32 s47, s%d, %d" % (S_B, TBL))
    a("s_lshl_b32 s47, s47, %d" % (TBL + 8))
    a("s_and_b32 s3, s%d, %d" % (S_B, (1 << TBL) - 1))
    a("s_add_u32 s47, s47, s3")
    a("s_lshl_b32 s47, s47, 2")
    a("s_add_u32 s47, s47, %d" % WS_TAB)
    a("s_mov_b32 s%d, 0" % S_EXTRA)
    a("s_mul_i32 s52, s2, %d" % RSZ)
    a("s_or_b32 s53, s52, 0x80000000")
    a("s_mov_b32 s51, 21846")
    a("s_mov_b32 s50, %d" % (4 if X_TEST & 1 else NLOC))
    FLG, FA, SF = V_T[0], V_T[0] + 1, V_T[0] + 2
    if SV == 2:
        a("v_and_b32 v%d, %d, v%d" % (FA, NC2 - 1, V_LANE))
        a("v_lshlrev_b32 v%d, %d, v%d" % (FA, 9 - NC2.bit_length(), FA))
    else:
        a("v_lshlrev_b32 v%d, 2, v%d" % (FA, V_LANE))
    a("s_mov_b32 s%d, %d" % (S_PCK, 1 << 22))
    a("s_mov_b32 s%d, 0" % S_ST)
    if SV == 2:
        a("s_mul_i32 s3, s%d, %d" % (S_W, 32 * RSZ))
        a("v_mul_u32_u24 v%d, %d, v%d" % (V_PF, RSZ, COL))
        a("s_add_u32 s3, s3, %d" % (RSZ - 128))
        a("v_add_u32 v%d, s3, v%d" % (V_PF, V_PF))
    elif PTL:
        a("s_lshl_b32 s3, s%d, 12" % S_W)
        a("s_add_u32 s3, s3, %d" % WS_PT)
        a("v_lshl_add_u32 v%d, v%d, 7, s3" % (V_PF, COL))
    else:
        a("v_add_u32 v%d, %d, v%d" % (V_PF, WS_PT, V_L16))
    a("s_cmp_eq_u32 s%d, 7" % S_W)
    if SPOS == 2:
        se_loads()
    stamp(a, "setup")
    a.auto = 0
    a("v_mov_b32 v2, 1")
    a("s_waitcnt lgkmcnt(0)")
    a("s_barrier")
    stamp(a, "bar0")
    a("s_cbranch_scc1 L_w7f")
    if SPOS == 3:
        se_loads()
    a("s_mov_b64 exec, %s" % sr(S_EM, 2))
    for i in range(8):
        if i % 4 == 0:
            a("s_waitcnt vmcnt(%d)" % (5 - i // 4 + (3 if XE else 0)))
            if i == 0:
                stamp(a, "dst")
        a("v_lshlrev_b32_sdwa v%d, 2, v%d dst_sel:DWORD dst_unused:UNUSED_PAD src0_sel:DWORD src1_sel:BYTE_0" % (AD + i, DST + i))
        a("ds_add_rtn_u32 v%d, v%d, v2 offset:%d" % (RK + i, AD + i, L1_CNT))
    for i in range(8):
        a("v_lshrrev_b32 v%d, 8, v%d" % (DST + i, DST + i))
        a("v_add_u32 v%d, 1, v%d" % (DST + i, DST + i))
    for i in range(4):
        a("s_waitcnt lgkmcnt(%d)" % (7 - i))
        a("v_mul_u32_u24 v%d, s51, v%d" % (O1 + i, RK + i))
        a("v_lshrrev_b32 v%d, 16, v%d" % (O1 + i, O1 + i))
        a("v_mad_u32_u24 v%d, v%d, 13, v%d" % (O2 + i, O1 + i, RK + i))
        a("v_add_lshl_u32 v%d, v%d, v%d, 2" % (O1 + i, O1 + i, RK + i))
    a("s_mov_b64 exec, -1")
    if XL == 2 and XPOS == 1:
        xw1_loads()
    a("s_cmp_eq_u32 s%d, %d" % (S_W, 7 if SV == 2 else 6))
    a("s_waitcnt lgkmcnt(0)")
    stamp(a, "preA")
    a("s_barrier")
    stamp(a, "barA")
    CN = V_U
    SC_ = V_U + 4
    STV = V_U + 8
    W2F, WXF = V_C[1], V_C[0]
    QD, RD = V_B[1], V_T[1]
    XF = V_B[0]
    if XDE:
        a("s_bitcmp1_b32 s2, 2")
        a("s_cbranch_scc1 L_xde")
        a("s_sleep %d" % XDE)
        a.label("L_xde")
    a("ds_read_b128 %s, v%d offset:%d" % (vr(CN, 4), V_L16, L1_CNT))
    if XL == 2 and XPOS == 0:
        xw1_loads()
        a("s_cmp_eq_u32 s%d, %d" % (S_W, 7 if SV == 2 else 6))
    if SV == 2:
        a.label("L_A2")
    for i in range(4, 8):
        a("v_mul_u32_u24 v%d, s51, v%d" % (O1 + i, RK + i))
        a("v_lshrrev_b32 v%d, 16, v%d" % (O1 + i, O1 + i))
    a("s_waitcnt lgkmcnt(0)")
    for i in range(4):
        a("v_add_u32 v%d, 2, v%d" % (CN + i, CN + i))
        a("v_mul_u32_u24 v%d, s51, v%d" % (CN + i, CN + i))
        a("v_lshrrev_b32 v%d, 16, v%d" % (CN + i, CN + i))
    a("v_add_u32 v%d, v%d, v%d" % (SC_, CN, CN + 1))
    a("v_add_u32 v%d, v%d, v%d" % (SC_ + 1, SC_, CN + 2))
    a("v_add_u32 v%d, v%d, v%d" % (SC_ + 2, SC_ + 1, CN + 3))
    a("v_mov_b32 v%d, v%d" % (SC_ + 3, SC_ + 2))
    dpp_scan(a, [SC_ + 3], fill=["v_mad_u32_u24 v%d, v%d, 13, v%d" % (O2 + i, O1 + i, RK + i) for i in range(4, 8)] +
             ["v_add_lshl_u32 v%d, v%d, v%d, 2" % (O1 + i, O1 + i, RK + i) for i in range(4, 8)] +
             ["v_min_u32 v%d, 255, v%d" % (V_TAB + i, CN + i) for i in range(4)])
    a("v_sub_u32 v%d, v%d, v%d" % (STV, SC_ + 3, SC_ + 2))
    a("v_add_lshl_u32 v%d, v%d, v%d, 4" % (STV + 1, STV, CN))
    a("v_add_lshl_u32 v%d, v%d, v%d, 4" % (STV + 2, STV, SC_))
    a("v_add_lshl_u32 v%d, v%d, v%d, 4" % (STV + 3, STV, SC_ + 1))
    a("v_lshlrev_b32 v%d, 4, v%d" % (STV, STV))
    if SV == 2:
        a("s_cbranch_scc1 L_w7g")
    a("v_readlane_b32 s54, v%d, 63" % (SC_ + 3))
    a("ds_write_b128 v%d, %s offset:%d" % (V_L16, vr(STV, 4), L1_START))
    a("s_mov_b64 exec, %s" % sr(S_EM, 2))
    for i in range(8):
        a("ds_read_b32 v%d, v%d offset:%d" % (RK + i, AD + i, L1_START))
    if B8E:
        for i in range(8):
            a("s_waitcnt lgkmcnt(7)")
            a("v_add_u32 v%d, v%d, v%d" % (O2 + i, O2 + i, RK + i))
            a("v_add_u32 v%d, v%d, v%d" % (O1 + i, O1 + i, RK + i))
            a("ds_write_b8 v%d, v%d offset:%d" % (O2 + i, DST + i, L1_STAGE + 12))
        NX = 3 if XL == 2 and XPOS < 2 else 0
        if XE:
            NX += 3
        RE = V_T[1]
        for hh in range(2):
            a("s_waitcnt vmcnt(%d)" % (NX + 3 - hh))
            for k in range(4 * hh, 4 * hh + 4):
                a("v_mul_u32_u24_sdwa v%d, v%d, s50 dst_sel:DWORD dst_unused:UNUSED_PAD src0_sel:BYTE_0 src1_sel:DWORD" % (AD + k, SRC + k))
        for hh in range(2):
            a("s_waitcnt vmcnt(%d)" % (NX + 1 - hh))
            if hh:
                stamp(a, "src")
            for i in range(4 * hh, 4 * hh + 4, 2):
                a("v_lshlrev_b32 v%d, 16, v%d" % (RE + i // 2, EV + i // 2))
            for i in range(4 * hh, 4 * hh + 4, 2):
                a("v_add_u32_sdwa v%d, v%d, v%d dst_sel:WORD_0 dst_unused:UNUSED_PRESERVE src0_sel:DWORD src1_sel:BYTE_1" % (RE + i // 2, AD + i, SRC + i))
                a("v_add_u32_sdwa v%d, v%d, v%d dst_sel:WORD_0 dst_unused:UNUSED_PRESERVE src0_sel:DWORD src1_sel:BYTE_1" % (EV + i // 2, AD + i + 1, SRC + i + 1))
            for i in range(4 * hh, 4 * hh + 4):
                a("ds_write_b32 v%d, v%d offset:%d" % (O1 + i, (EV if i & 1 else RE) + i // 2, L1_STAGE))
    else:
        a("s_waitcnt vmcnt(%d)" % (3 if XL == 2 else 0))
        stamp(a, "src")
        for k in range(8):
            a("v_mul_u32_u24_sdwa v%d, v%d, s50 dst_sel:DWORD dst_unused:UNUSED_PAD src0_sel:BYTE_0 src1_sel:DWORD" % (AD + k, SRC + k))
        RE = V_T[1]
        for i in range(0, 8, 2):
            a("v_lshlrev_b32 v%d, 16, v%d" % (RE + i // 2, EV + i // 2))
        for i in range(0, 8, 2):
            a("v_add_u32_sdwa v%d, v%d, v%d dst_sel:WORD_0 dst_unused:UNUSED_PRESERVE src0_sel:DWORD src1_sel:BYTE_1" % (RE + i // 2, AD + i, SRC + i))
            a("v_add_u32_sdwa v%d, v%d, v%d dst_sel:WORD_0 dst_unused:UNUSED_PRESERVE src0_sel:DWORD src1_sel:BYTE_1" % (EV + i // 2, AD + i + 1, SRC + i + 1))
        for i in range(8):
            a("s_waitcnt lgkmcnt(%d)" % (7 + i))
            a("v_add_u32 v%d, v%d, v%d" % (O2 + i, O2 + i, RK + i))
            a("v_add_u32 v%d, v%d, v%d" % (O1 + i, O1 + i, RK + i))
            a("ds_write_b8 v%d, v%d offset:%d" % (O2 + i, DST + i, L1_STAGE + 12))
            a("ds_write_b32 v%d, v%d offset:%d" % (O1 + i, (EV if i & 1 else RE) + i // 2, L1_STAGE))
    a("s_mov_b64 exec, -1")
    if XL == 2 and XPOS == 2:
        xw1_loads()
        a("s_cmp_eq_u32 s%d, 6" % S_W)
    def w_loads():
        a("s_add_u32 m0, s42, 8192")
        a("v_mov_b32 v%d, 0" % SF)
        a("global_load_lds_dwordx4 v%d, %s" % (DO, sr(P_WM, 2)))
        a("s_add_u32 m0, s42, 16384")
        a("s_nop 0")
        a("global_load_lds_dwordx4 v%d, %s" % (WAD, sr(P_WU, 2)))
        a("s_add_u32 m0, s42, 24576")
        a("s_nop 0")
        a("global_load_lds_dwordx4 v%d, %s" % (DO, sr(P_WU, 2)))

    if SV == 2:
        w_loads()
    else:
        a("s_cbranch_scc0 L_w7i")
        for i in range(4):
            a("v_lshl_add_u32 v%d, v%d, 23, s53" % (V_TAB + i, V_TAB + i))
            a("v_add_u32 v%d, v%d, v%d" % (V_TAB + i, V_TAB + i, STV + i))
    if XL != 2:
        a("global_load_dword v%d, v%d, %s %s" % (FLG, FA, sr(P_DBG, 2), SCT))
    a("s_branch L_w7i")
    a.label("L_w7f")
    if SV == 2:
        a("ds_read_b128 %s, v%d offset:%d" % (vr(CN, 4), V_L16, L1_CNT))
        a("s_lshl_b32 s44, s%d, %d" % (CI, 9 - NC2.bit_length()))
        a("v_mov_b32 v%d, s44" % W3)
        a("s_and_b32 s3, s2, %s" % CLM)
        a("s_cbranch_scc1 L_A2")
        a("s_mov_b64 exec, 1")
        a("s_waitcnt vmcnt(%d)" % (RSZ // 1024))
        stamp(a, "clr")
        a("global_store_dword v%d, v2, %s %s" % (W3, sr(P_DBG, 2), SCW))
        a("s_mov_b64 exec, -1")
        a("s_cmp_eq_u32 s3, 0")
        a("s_branch L_A2")
        a.label("L_fagain")
        a("s_sleep %d" % FSL)
        if not FLT or PUB3:
            a("global_load_dword v%d, v%d, %s %s" % (FLG, FA, sr(P_DBG, 2), SCT))
        a("s_sub_u32 s%d, s%d, 1" % (S_TO, S_TO))
        if PUB3:
            a("s_waitcnt vmcnt(0)")
        a("s_cbranch_scc0 L_fpoll")
        a("s_branch L_nofl")
        a.label("L_w7g")
        a("v_add_u32 v%d, 16384, v%d" % (W3, V_L16))
        a("s_mov_b32 m0, %d" % L_W3)
        a("s_mov_b64 exec, 0xff")
        a("global_load_lds_dwordx4 v%d, %s" % (W3, sr(P_WM, 2)))
        a("s_mov_b64 exec, -1")
        a("s_mov_b32 m0, s42")
        a("v_add_u32 v%d, 8192, v%d" % (DO, WAD))
        a("global_load_lds_dwordx4 v%d, %s" % (WAD, sr(P_WM, 2)))
        w_loads()
        if not FLT:
            a("global_load_dword v%d, v%d, %s %s" % (FLG, FA, sr(P_DBG, 2), SCT))
        for i in range(4):
            a("v_lshl_add_u32 v%d, v%d, 23, s53" % (V_TAB + i, V_TAB + i))
            a("v_add_u32 v%d, v%d, v%d" % (V_TAB + i, V_TAB + i, STV + i))
        a("s_mov_b32 s3, %d" % LS[0])
        a("s_mov_b32 s54, %d" % L_LUT)
        a.label("L_lut")
        lut_build(a, 3, V_C[0], 0, 54)
        a("s_add_u32 s54, s54, 2048")
        a("s_add_u32 s3, s3, %d" % (LS[1] - LS[0]))
        a("s_cmp_eq_u32 s3, %d" % LS[1])
        a("s_cbranch_scc1 L_lut")
        if PUB3:
            a("s_waitcnt vmcnt(0)")
            stamp(a, "own")
            a("global_load_dword v%d, v%d, %s %s" % (FLG, FA, sr(P_DBG, 2), SCT))
        else:
            a.label("L_fpoll")
            if FLT:
                a("global_load_dword v%d, v%d, %s %s" % (FLG, FA, sr(P_DBG, 2), SCT))
            a("s_waitcnt vmcnt(0)")
            a("v_cmp_ne_u32 vcc, 1, v%d" % FLG)
            a("s_cbranch_vccnz L_fagain")
            a("global_store_dwordx4 v%d, %s, %s %s" % (TP, vr(V_TAB, 4), sr(P_WS, 2), SCW))
            stamp(a, "pub")
            a.label("L_nopub")
    elif XL:
        a("v_add_u32 v%d, 16384, v%d" % (W3, V_L16))
        a("s_mov_b32 m0, %d" % L_W3)
        a("s_mov_b64 exec, 0xff")
        a("global_load_lds_dwordx4 v%d, %s" % (W3, sr(P_WM, 2)))
        a("s_mov_b64 exec, -1")
        a("s_mov_b32 s3, %d" % LS[0])
        a("s_mov_b32 s54, %d" % L_LUT)
        a("s_lshl_b32 s44, s2, %d" % (8 - NCLR.bit_length() + 1))
        a("v_mov_b32 v%d, s44" % W3)
        a("v_mov_b32 v2, 1")
        a("v_mov_b32 v3, 1")
        if XL == 2:
            xw1_loads()
        a("s_cmp_ge_u32 s2, %d" % NCLR)
        if FPOS and not W7B:
            a("s_barrier")
        a("s_cbranch_scc1 L_nofl")
        a("s_mov_b64 exec, 1")
        a("s_waitcnt vmcnt(%d)" % ((7 if XE else 4) if XL == 2 else 1))
        stamp(a, "clr")
        a("global_store_dwordx2 v%d, v[2:3], %s %s" % (W3, sr(P_DBG, 2), SCW))
        a("s_mov_b64 exec, -1")
        a.label("L_nofl")
        if not FPOS and not W7B:
            a("s_barrier")
        a.label("L_lut")
        lut_build(a, 3, V_C[0], 0, 54)
        a("s_add_u32 s54, s54, 2048")
        a("s_add_u32 s3, s3, %d" % (LS[1] - LS[0]))
        a("s_cmp_eq_u32 s3, %d" % LS[1])
        a("s_cbranch_scc1 L_lut")
    else:
        a("v_lshrrev_b32 v%d, 3, v%d" % (WAD, V_LANE))
        a("v_lshl_add_u32 v%d, v%d, 8, s%d" % (WAD, WAD, S_B))
        a("v_lshl_add_u32 v%d, v%d, 7, v%d" % (XA + 1, WAD, V_IDX + 7))
        a("v_xor_b32 v%d, 64, v%d" % (XA, XA + 1))
        a("v_add_u32 v%d, %d, v%d" % (XA + 1, 2048 * 128 - 1024, XA + 1))
        a("s_mov_b32 m0, %d" % L1_X)
        a("s_mov_b64 s[44:45], %s" % sr(P_X, 2))
        a("v_add_u32 v%d, %d, v%d" % (WAD, 96 * 256, WAD))
        a("v_min_u32 v%d, %d, v%d" % (WAD, N - 1, WAD))
        a("v_lshl_add_u32 v%d, v%d, 7, v%d" % (W3 + 1, WAD, V_IDX + 7))
        a("v_xor_b32 v%d, 64, v%d" % (W3 + 1, W3 + 1))
        a.label("L_xld")
        a("global_load_lds_dwordx4 v%d, s[44:45]" % XA)
        a("global_load_lds_dwordx4 v%d, s[44:45] offset:1024" % (XA + 1))
        a("s_add_u32 m0, m0, 2048")
        a("s_add_u32 s44, s44, %d" % (4096 * 128))
        a("s_addc_u32 s45, s45, 0")
        a("s_cmp_lg_u32 m0, %d" % (L1_X + 2048 * 6))
        a("s_cbranch_scc1 L_xld")
        a("global_load_lds_dwordx4 v%d, %s" % (W3 + 1, sr(P_X, 2)))
        a("v_and_b32 v2, 16, v%d" % V_LANE)
        a("v_lshlrev_b32 v2, 2, v2")
        a("v_xor_b32 v%d, v2, v%d" % (WAD, V_L16))
        a("v_add_u32 v%d, 16384, v%d" % (W3, V_L16))
        a("s_mov_b32 s3, %d" % LS[0])
        a("s_mov_b32 s54, %d" % L_LUT)
        stamp(a, "xiss")
        a("s_barrier")
        a.label("L_lut")
        lut_build(a, 3, V_C[0], 0, 54)
        a("s_add_u32 s54, s54, 2048")
        a("s_add_u32 s3, s3, %d" % (LS[1] - LS[0]))
        a("s_cmp_eq_u32 s3, %d" % LS[1])
        a("s_cbranch_scc1 L_lut")
        a("s_cmp_ge_u32 s2, %d" % NCLR)
        a("s_cbranch_scc1 L_noflag")
        a("s_lshl_b32 s3, s2, %d" % (8 - NCLR.bit_length() + 1))
        a("v_mov_b32 v%d, s3" % XA)
        a("v_mov_b32 v2, 1")
        a("v_mov_b32 v3, 1")
        a("s_mov_b64 exec, 1")
        a("s_waitcnt vmcnt(13)")
        stamp(a, "clr")
        a("global_store_dwordx2 v%d, v[2:3], %s %s" % (XA, sr(P_DBG, 2), SC))
        a.label("L_noflag")
        a("s_mov_b32 m0, %d" % L_W3)
        a("s_mov_b64 exec, 0xff")
        a("global_load_lds_dwordx4 v%d, %s" % (W3, sr(P_WM, 2)))
        a("s_mov_b64 exec, -1")
        a("s_mov_b32 m0, %d" % L1_W1)
        a("s_mov_b64 s[44:45], %s" % sr(P_WM, 2))
        a.label("L_wld")
        for i in range(4):
            a("global_load_lds_dwordx4 v%d, s[44:45] offset:%d" % (WAD, 1024 * i))
        a("s_add_u32 m0, m0, 4096")
        a("s_add_u32 s44, s44, 4096")
        a("s_addc_u32 s45, s45, 0")
        a("s_cmp_eq_u32 m0, %d" % L1_WX)
        a("s_cselect_b64 s[44:45], %s, s[44:45]" % sr(P_WU, 2))
        a("s_cmp_lg_u32 m0, %d" % (L_WA + 8192))
        a("s_cbranch_scc1 L_wld")
        stamp(a, "wiss")
    a("s_mov_b32 s54, 0")
    a.label("L_w7i")
    a("v_add_u32 v2, 1024, v0")
    a("v_cmp_gt_u32 vcc, s54, v2")
    a("s_add_u32 s53, s52, 8192")
    a("s_add_u32 s54, s52, 16384")
    a("s_waitcnt lgkmcnt(0)")
    stamp(a, "preB")
    a("s_barrier")
    stamp(a, "barB")
    CP = V_N[0]
    TABV = V_D[0]

    def tab_loads():
        for p in range(4):
            a("buffer_load_dword v%d, v%d, %s, s47 offen offset:%d %s" % (TABV + p, TAD, sr(S_WS, 4), (4 << TBL) * p, SCT))

    for i in range(3):
        a("ds_read_b128 %s, v%d offset:%d" % (vr(CP + 4 * i, 4), T16, L1_STAGE + 8192 * i))
    if SV == 2:
        tab_loads()
    a("s_waitcnt lgkmcnt(2)")
    a("buffer_store_dwordx4 %s, v%d, %s, s52 offen %s" % (vr(CP, 4), T16, sr(S_WS, 4), SCR))
    a("s_waitcnt lgkmcnt(1)")
    a("buffer_store_dwordx4 %s, v%d, %s, s53 offen %s" % (vr(CP + 4, 4), T16, sr(S_WS, 4), SCR))
    if XL != 2:
        a("s_cbranch_vccz L_no3")
    if SV == 2:
        a("s_mov_b32 s50, 0x807fffff")
        a("s_mov_b32 s51, %d" % L_SEND)
        a("s_mov_b32 s%d, 1" % S_PD)
        a("s_cmp_eq_u32 s%d, 7" % S_W)
    a("s_waitcnt lgkmcnt(0)")
    if SV == 2 and PUB3:
        a("s_cbranch_scc1 L_w7p")
    a("s_mov_b64 exec, vcc")
    a("buffer_store_dwordx4 %s, v%d, %s, s54 offen %s" % (vr(CP + 8, 4), T16, sr(S_WS, 4), SCR))
    a("s_mov_b64 exec, -1")
    a.label("L_no3")
    stamp(a, "stiss")
    if XL:
        if XL == 1:
            xw1_loads()
        if SV == 2:
            if not PUB3:
                a("s_cbranch_scc1 L_page1")
            a("s_waitcnt vmcnt(7)")
        else:
            a("s_mov_b32 s50, 0x807fffff")
            w_loads()
    if PADS:
        a("s_branch L_page1")
        if SV == 2 and PUB3:
            a.label("L_w7p")
            a("s_waitcnt vmcnt(6)")
            a.label("L_fpoll")
            a("v_cmp_ne_u32 vcc, 1, v%d" % FLG)
            a("s_cbranch_vccnz L_fagain")
            a("global_store_dwordx4 v%d, %s, %s %s" % (TP, vr(V_TAB, 4), sr(P_WS, 2), SCW))
            stamp(a, "pub")
            a("s_branch L_page1")
        a.raw("@SEMI@")
        a.raw(".p2align 12")
        a.raw("@PAGE@")
        a.label("L_page1")
    PXF, PD, PB_ = V_U, V_B[1], V_U + 8

    def qr_out(D, off):
        for tau in range(2):
            for i in range(4):
                a("v_pk_mul_f32 %s, %s, %s" % (vr(D + 8 * tau + 2 * i, 2), vr(D + 8 * tau + 2 * i, 2), sr(S_LG, 2)))
            a("s_mov_b64 exec, %s" % sr(S_QM + 2 * tau, 2))
            for blk in range(2):
                a("ds_write_b128 v%d, %s offset:%d" % (QW, vr(D + 8 * tau + 4 * blk, 4), off + 16 * RSTR * tau + 16 * blk))
            a("s_mov_b64 exec, -1")

    def bar_c(n):
        a("s_cmp_lg_u32 s%d, 6" % S_W)
        a("s_waitcnt vmcnt(%d) lgkmcnt(0)" % n)
        stamp(a, "stack")
        a("s_cbranch_scc1 L_barC")
        a.label("L_fpoll")
        a("v_cmp_ne_u32 vcc, 1, v%d" % FLG)
        a("s_cbranch_vccnz L_fagain")
        a.label("L_barC")
        if PSB == 3:
            p_stores(14)
        a("s_barrier")
        a("s_cbranch_scc1 L_nopub")
        a("global_store_dwordx4 v%d, %s, %s %s" % (TP, vr(V_TAB, 4), sr(P_WS, 2), SCW))
        a.label("L_nopub")
        stamp(a, "barC")

    def p_stores(n):
        a("s_waitcnt lgkmcnt(%d)" % (n + 1))
        a("buffer_store_dwordx4 %s, %s, %s, 0 idxen offen %s" % (vr(PB_, 4), vr(PA, 2), sr(S_X, 4), SCS))
        a("s_waitcnt lgkmcnt(%d)" % n)
        a("buffer_store_dwordx4 %s, %s, %s, 0 idxen offen %s" % (vr(PB_ + 4, 4), vr(V_R, 2), sr(S_X, 4), SCS))
        stamp(a, "piss")

    if XL == 2:
        if SV != 2:
            a("s_waitcnt vmcnt(%d)" % (3 if WBL else 6))
        stamp(a, "preB2")
        a("s_barrier")
        if WBL:
            a("s_cmp_lg_u32 s%d, 6" % S_W)
            a("s_cbranch_scc1 L_nowb")
            a("buffer_wbl2 sc1")
            a.label("L_nowb")
        stamp(a, "barB2")
    else:
        if not XL:
            a("v_mov_b32 v%d, 0" % SF)
            a("s_mov_b32 s50, 0x807fffff")
        bar_c(6 if XL else 0)
    if XL == 1:
        tab_loads()
        a("s_waitcnt vmcnt(5)")
        a("s_barrier")
        stamp(a, "barC2")
    a("ds_read_b128 %s, v%d" % (vr(PXF, 4), XP))
    a("ds_read_b128 %s, v%d" % (vr(PXF + 4, 4), XP + 1))
    for x in tr_frags(V_C[0], TA, 0) + tr_frags(V_C[1], TA2, 0)[:4]:
        a(x)
    if not XL:
        tab_loads()
    a("s_waitcnt lgkmcnt(4)")
    for x in tr_frags(V_C[1], TA2, 0)[4:]:
        a(x)
    if XL != 2 or SV == 2:
        a("ds_read_b32 v%d, v%d offset:%d" % (SF, SF, F_SLOW))
    for tau in range(2):
        a("ds_read_b128 %s, v%d offset:%d" % (vr(XF + 8 * tau, 4), XB, 2048 * tau))
        a("ds_read_b128 %s, v%d offset:%d" % (vr(XF + 8 * tau + 4, 4), V_RC, 2048 * tau))
    for H in range(2):
        if H:
            a("s_waitcnt lgkmcnt(4)")
        for k in range(2):
            for blk in range(2):
                a(mf16(PD + 8 * H + 4 * blk, V_C[H] + 8 * blk + 4 * k, PXF + 4 * k, k == 0))
    if XL != 2 or SV == 2:
        a("v_cmp_lt_u32_e64 s[44:45], 3, v%d" % SF)
    else:
        a("s_cmp_lg_u32 s%d, 6" % S_W)
        a("s_cbranch_scc1 L_nofld")
        a("global_load_dword v%d, v%d, %s %s" % (FLG, FA, sr(P_DBG, 2), SCT))
        a.label("L_nofld")
    a("v_mov_b32 v%d, 0" % (V_AE + 1))
    for H in range(2):
        for i in range(4):
            a("v_pk_mul_f32 %s, %s, %s" % (vr(PD + 8 * H + 2 * i, 2), vr(PD + 8 * H + 2 * i, 2), sr(S_LG, 2)))
        for i in range(4):
            a("v_cvt_pk_bf16_f32 v%d, v%d, v%d" % (PD + 8 * H + i, PD + 8 * H + 2 * i, PD + 8 * H + 2 * i + 1))
        a("ds_write_b128 v%d, %s" % (PW2 if H else PW, vr(PD + 8 * H, 4)))
    for i in range(2):
        a("ds_read_b128 %s, v%d offset:%d" % (vr(PB_ + 4 * i, 4), PR, 1024 * i))
    if SV == 2:
        a("ds_read_u16 v%d, v%d offset:%d" % (W3, V_T0 + 5, L_W3))
        a("ds_read_u16 v%d, v%d offset:%d" % (W3 + 1, V_T0 + 5, L_W3 + 64))
        for x in tr_frags(W2F, TA, L1_W2 - L1_W1):
            a(x)
        a("s_waitcnt vmcnt(3)")
    elif XL == 2:
        a("ds_read_u16 v%d, v%d offset:%d" % (W3, V_T0 + 5, L_W3))
        a("ds_read_u16 v%d, v%d offset:%d" % (W3 + 1, V_T0 + 5, L_W3 + 64))
        if PSB == 1:
            p_stores(2)
        bar_c(2 if PSB == 1 else 0)
        if TORD:
            tab_loads()
        a("ds_read_b32 v%d, v%d offset:%d" % (SF, SF, F_SLOW))
        for x in tr_frags(W2F, TA, L1_W2 - L1_W1):
            a(x)
        if not TORD and QF != 1:
            tab_loads()
        if not PSB and not TORD:
            p_stores(14)
        a("s_waitcnt lgkmcnt(0)")
        a("v_cmp_lt_u32_e64 s[44:45], 3, v%d" % SF)
    else:
        for x in tr_frags(W2F, TA, L1_W2 - L1_W1):
            a(x)
        a("ds_read_u16 v%d, v%d offset:%d" % (W3, V_T0 + 5, L_W3))
        a("ds_read_u16 v%d, v%d offset:%d" % (W3 + 1, V_T0 + 5, L_W3 + 64))
        p_stores(10)
        a("s_waitcnt lgkmcnt(2)")
    def q_part():
        for x in tr_frags(WXF, TA, L1_WX - L1_W1):
            a(x)
        for x in tile_mfmas(QD, W2F, XF):
            a(x)

    if SV != 2:
        q_part()
    if XL == 2 and TORD and not PSB:
        p_stores(14)
    if SV == 2:
        pass
    elif QF:
        a("s_branch L_qr")
    else:
        a("s_waitcnt vmcnt(%d)" % (0 if XL == 2 and PSB else 2))
    def p_ready(n):
        a("v_mov_b32 v2, 1")
        a("v_mov_b32 v3, %d" % F_PCNT)
        a("s_mul_i32 s3, s2, %d" % RSZ if SV == 2 else "s_lshl_b32 s3, s2, %d" % (7 if PTL else 4))
        a("s_mov_b64 exec, 1")
        if n is not None:
            a("s_waitcnt vmcnt(%d)" % n)
        a("ds_add_rtn_u32 v3, v3, v2")
        a("s_add_u32 s3, s3, %d" % ((RSZ - 128 if SV == 2 else WS_PT) - (7 << 28) + (1 << 32)))
        if n is None:
            a("s_cmp_eq_u32 s%d, 2" % S_PD)
        a("s_mov_b32 s%d, %d" % ((S_PD, 0) if SV == 2 else (51, L_SEND)))
        a("s_waitcnt lgkmcnt(0)")
        a("v_lshl_add_u32 v3, v3, 28, s3")
        a("buffer_store_dword v2, v3, %s, 0 offen %s" % (sr(S_WS, 4), SCW))
        a("s_mov_b64 exec, -1")

    a.label("L_tcheck")
    a("v_max3_i32 v3, v%d, v%d, v%d" % (TABV, TABV + 1, TABV + 2))
    a("v_max_i32 v3, v3, v%d" % (TABV + 3))
    a("v_cmp_le_i32 vcc, 0, v3")
    a("s_or_b64 vcc, vcc, s[44:45]")
    a("s_cbranch_vccnz L_tfail")
    stamp(a, "tab")
    RC = V_N[0]
    RT = V_T[0]
    ADR = V_T[0] + 12
    TB2 = TABV + 4
    for p in range(4):
        a("v_add_u32 v%d, v%d, v%d" % (TB2 + p, TABV + p, UC))
    a("v_cmp_le_u32 vcc, 0x%x, v3" % ((9 << 23) | (1 << 31)))
    a("s_cbranch_vccnz L2_extra")
    a.label("L2_noextra")
    for p in range(4):
        a("v_and_b32 v%d, s50, v%d" % (TB2 + p, TB2 + p))
        a("buffer_load_dwordx4 %s, v%d, %s, 0 offen %s" % (vr(RC + 4 * p, 4), TB2 + p, sr(S_WS, 4), SC))
    if PSB == 2:
        p_stores(14)
    if PRE and SV != 2:
        a("v_mov_b32 v3, -1")
        a("buffer_store_dword v3, v3, %s, 0 offen" % sr(S_WS, 4))
    a("s_cmp_eq_u32 s%d, 1" % S_ST)
    a("s_cbranch_scc1 %s" % ("L_rdy" if SV == 2 else "L_after"))
    a("s_mov_b32 s%d, 2" % S_ST)
    a.label("L_qr")
    if SV == 2:
        p_stores(10)
        a("s_waitcnt lgkmcnt(0)")
        q_part()
    a("v_cmp_eq_u32 vcc, 0, v%d" % HH)
    a("v_mov_b32 v%d, 0" % (V_AE + 2))
    a("v_mov_b32 v%d, 0" % (V_AE + 5))
    a("v_mov_b32 v%d, 0" % (V_AE + 6))
    a("s_waitcnt lgkmcnt(0)")
    for x in tile_mfmas(RD, WXF, XF):
        a(x)
    qr_out(QD, 0)
    for X in range(2):
        a("v_lshlrev_b32 v2, 16, v%d" % (W3 + X))
        a("v_mul_f32 v2, s%d, v2" % S_LG)
        a("v_cvt_pk_bf16_f32 v3, v%d, v2" % (V_AE + 1))
        a("v_sub_f32 v2, v2, v3")
        a("v_cvt_pk_bf16_f32 v2, v%d, v2" % (V_AE + 1))
        a("v_cndmask_b32 v%d, v2, v3, vcc" % (V_AE + 4 * X))
        a("v_cndmask_b32 v%d, v2, v3, vcc" % (V_AE + 4 * X + 3))
    qr_out(RD, L_R - L_Q)
    def rt_reset():
        for i in range(6):
            a("v_mov_b64 %s, -1" % vr(RT + 2 * i, 2))

    rt_reset()
    stamp(a, "qr")
    if QF and SV != 2:
        tab_loads()
    if PSB == 4:
        p_stores(14)
    if PRE and SV != 2:
        p_ready(4)
    a("s_cmp_lg_u32 s%d, 2" % S_ST)
    if SV == 2:
        a("s_mov_b32 s%d, 1" % S_ST)
    a("s_cbranch_scc1 L_tfail1")
    a.label("L_after")

    if PSB == 2:
        a("s_mov_b32 s51, %d" % L_SEND)
    elif not PRE:
        p_ready(4)
    stamp(a, "pack")
    a("v_mov_b32 v2, 4")

    def p1(rc, k):
        for i in range(3):
            a("v_lshlrev_b32_sdwa v%d, 2, v%d dst_sel:DWORD dst_unused:UNUSED_PAD src0_sel:DWORD src1_sel:BYTE_%d" % (ADR + k + i, rc + 3, i))
        for i in range(3):
            a("v_cmpx_ne_u32 vcc, 0, v%d" % (ADR + k + i))
            a("ds_add_rtn_u32 v%d, v%d, v2 offset:%d" % (RT + k + i, ADR + k + i, L_CNT))
            if SV == 2 and i == 0:
                a("v_mov_b32 v%d, -1" % (TB2 + (rc - RC) // 4))
        a("s_mov_b64 exec, -1")

    def p2(rc, k):
        for i in range(3):
            a("v_cmpx_gt_u32 vcc, s51, v%d" % (RT + k + i))
            a("ds_write_b32 v%d, v%d" % (RT + k + i, rc + i))
        a("s_mov_b64 exec, -1")

    a("s_cmp_lg_u32 s%d, 0" % S_EXTRA)
    a("s_cbranch_scc1 L2_xpl")
    a.label("L2_pl")
    a("s_waitcnt vmcnt(%d)" % (3 + NPF))
    stamp(a, "rec0")
    def mark(ad, rc):
        pass

    def missing(ad):
        a("v_max3_i32 v3, v%d, v%d, v%d" % (ad, ad + 1, ad + 2))
        a("v_max_i32 v3, v3, v%d" % (ad + 3))

    def h_req():
        D = V_WA + 8
        if PFE:
            for k in range(4):
                a("global_load_dword v%d, v%d, %s offset:%d %s" % (V_D[0] + 8 + k, V_PF, sr(P_WS, 2), 1024 * k, SCT))
        for h in range(HPN):
            a("buffer_load_dword v%d, v%d, %s, 0 idxen offset:%d %s" % (D, V_HX, sr(S_X, 4), 3072 + 64 * h, SCG))

    def h_rd():
        a("ds_read_u16 v%d, v%d offset:%d" % (V_HX, V_HA, L_SLOT))

    H = HPF if HD2 else 0
    p1(RC, 0)
    a("s_waitcnt vmcnt(%d)" % (2 + NPF))
    p1(RC + 4, 3)
    if H == 4:
        a("s_waitcnt lgkmcnt(0)")
        p2(RC, 0)
        p2(RC + 4, 3)
        h_rd()
        a("s_waitcnt vmcnt(%d)" % (1 + NPF))
        p1(RC + 8, 6)
        a("s_waitcnt lgkmcnt(3)")
        h_req()
        a("s_waitcnt vmcnt(%d)" % (NPF + HPN))
    else:
        a("s_waitcnt vmcnt(%d) lgkmcnt(0)" % (1 + NPF))
        p1(RC + 8, 6)
        p2(RC, 0)
        p2(RC + 4, 3)
        if H in (1, 3):
            h_rd()
        a("s_waitcnt vmcnt(%d)" % NPF)
    p1(RC + 12, 9)
    if SV == 2:
        missing(TB2)
        a("v_cmp_le_i32_e64 s[40:41], 0, v3")
    a("s_waitcnt lgkmcnt(0)")
    if H == 1:
        h_req()
    p2(RC + 8, 6)
    p2(RC + 12, 9)
    if H == 3:
        h_req()
    if SV == 2:
        a("s_or_b32 s40, s40, s%d" % S_EXTRA)
        a("s_or_b32 s40, s40, s41")
        a("s_cbranch_scc1 L_miss")
    stamp(a, "placed")
    if PSB == 2:
        p_ready(0)

    a.label("L2_build")
    if SV == 2:
        a("s_cmp_eq_u32 s%d, 0" % S_PD)
        a("s_cbranch_scc1 L2_build1")
        a("s_waitcnt vmcnt(0)")
        a.label("L_prdy")
        p_ready(None)
        a("s_cbranch_scc1 L_after")
        a.label("L2_build1")
    L4, RB0, NC0, NC1 = V_U, V_U + 1, V_U + 2, V_U + 3
    C0, C1, FL = V_U + 4, V_U + 5, V_U + 6
    P0 = V_U + 8
    O0 = V_U + 10
    E0, E1 = V_N[0], V_N[0] + 8
    a("v_lshlrev_b32 v%d, 2, v%d" % (L4, V_LANE))
    a("s_mov_b32 s3, %d" % SSTR)
    a("v_mov_b32 v%d, %d" % (RB0, L_SLOT - 4))
    a("v_mad_u32_u24 v%d, v%d, s3, v%d" % (RB0, V_LANE, RB0))
    if HD2:
        a("v_add_u32 v%d, 4, v%d" % (NC0, RB0))
        a("v_add_u32 v%d, 0x%x, v%d" % (NC1, 64 * SSTR, NC0))
    else:
        a("v_lshlrev_b32 v%d, 25, v%d" % (NC0, V_LANE))
        a("v_add3_u32 v%d, v%d, v%d, %d" % (NC0, NC0, RB0, -12 if HD else 4))
        a("v_add_u32 v%d, 0x%x, v%d" % (NC1, (64 << 25) + 64 * SSTR, NC0))
    a("s_cmp_lt_u32 s%d, %d" % (S_B, N - 97 * 256))
    a("s_cselect_b32 s%d, 3, 1" % (S_HI + 1))
    a("s_mov_b32 s%d, -1" % S_HI)
    a("s_mov_b32 s%d, 0" % S_LI)
    a("s_mov_b32 s%d, 0" % S_SAFE)
    a("v_mov_b32 v%d, %d" % (O0, L_SLOT + 98 * SSTR))
    if HD:
        a("v_mov_b32 v%d, v%d" % (O0 + 1, O0))
    a("s_lshl_b32 s3, s%d, 6" % S_W)
    a("v_and_b32 v3, 60, v%d" % L4)
    a("v_add_u32 v%d, s3, v3" % (V_T0 + 2))
    a("v_mov_b32 v2, 0x%x" % (127 << 25))
    a("ds_write_b32 v%d, v2 offset:%d" % (V_T0 + 2, L_NL))
    a("v_mov_b32 v%d, 0" % FL)
    a("v_add_u32 v3, %d, v%d" % (64 * SSTR, RB0))
    T0, T1 = (V_N[1], V_N[1] + 8) if HD else (E0, E1)
    if HD:
        for i in range(4):
            a("v_add_u32 v%d, %d, v%d" % (T0 + 2 * i + 1, 4 + 4 * i, RB0))
            a("v_add_u32 v%d, %d, v3" % (T1 + 2 * i + 1, 4 + 4 * i))
    a("s_mov_b32 s42, 0x100401")
    a("s_waitcnt lgkmcnt(0)")
    if APR:
        a("s_cmp_ge_u32 s%d, 4" % S_W)
        a("s_cbranch_scc1 L_noapr")
        a("s_setprio 1")
        a.label("L_noapr")
    a("s_barrier")
    stamp(a, "barD")
    PFV = V_D[0]

    def pf_loads():
        for k in range(1 if SV == 2 or PTL else 4):
            a("global_load_dword v%d, v%d, %s offset:%d %s" % (PFV + k, V_PF, sr(P_WS, 2), 1024 * k, SCT))

    pf_loads()
    if X_TEST & 2:
        for i in range(16):
            a("v_mov_b32 v%d, v%d" % (V_WA + i, V_ID + (i & 7)))
    a("ds_read_b32 v%d, v%d offset:%d" % (C0, L4, L_CNT + 4))
    a("ds_read_b32 v%d, v%d offset:%d" % (C1, L4, L_CNT + 4 + 256))
    a("ds_read_b32 v%d, v%d offset:%d" % (FL, FL, F_SLOW))
    if HD:
        a("ds_write_b64 v%d, %s" % (V_T0 + 3, vr(O0, 2)))
    else:
        a("ds_write_b32 v%d, v%d" % (V_T0 + 3, O0))
    a("s_waitcnt lgkmcnt(2)")
    a("v_sub_u32 v%d, v%d, v%d" % (C0, C0, RB0))
    a("v_sub_u32 v%d, v%d, v3" % (C1, C1))
    a("v_lshlrev_b32 v%d, 3, v%d" % (C0, C0))
    a("v_lshlrev_b32 v%d, 3, v%d" % (C1, C1))

    def lut_reads(off):
        a("ds_read_b128 %s, v%d offset:%d" % (vr(E0 + 4, 4), C0, off + 16))
        a("ds_read_b128 %s, v%d offset:%d" % (vr(E1 + 4, 4), C1, off + 16))
        a("ds_read_b128 %s, v%d offset:%d" % (vr(E0, 4), C0, off))
        a("ds_read_b128 %s, v%d offset:%d" % (vr(E1, 4), C1, off))

    lut_reads(L_LUT)
    a("v_max_u32 v2, v%d, v%d" % (C0, C1))
    a("v_cmp_lt_u32 vcc, %d, v2" % (32 * (DMAX + 1)))
    a("s_waitcnt lgkmcnt(4)")
    a("v_cmp_lt_u32_e64 s[40:41], 1, v%d" % FL)
    a("s_or_b64 vcc, vcc, s[40:41]")
    a("s_cbranch_vccnz L2_slow")
    a.label("L2_scan")
    a("s_waitcnt lgkmcnt(2)")
    a("v_add_u32 v%d, v%d, v%d" % (O0, E0 + 4, E1 + 4))
    a("v_add_u32 v%d, v%d, v%d" % (O0 + 1, E0 + 5, E1 + 5))
    a("v_mov_b32 v%d, v%d" % (P0, O0))
    a("v_mov_b32 v%d, v%d" % (P0 + 1, O0 + 1))
    a("s_waitcnt lgkmcnt(0)")
    dpp_scan(a, [P0, P0 + 1], fill=["v_add_u32 v%d, v%d, v%d" % (T0 + (1 + HD) * i, E0 + i, NC0) for i in range(4)] +
             ["v_add_u32 v%d, v%d, v%d" % (T1 + (1 + HD) * i, E1 + i, NC1) for i in range(4)])
    a("v_readlane_b32 s44, v%d, 63" % P0)
    a("v_readlane_b32 s45, v%d, 63" % (P0 + 1))
    a("v_sub_u32 v%d, v%d, v%d" % (P0, P0, O0))
    a("v_sub_u32 v%d, v%d, v%d" % (P0 + 1, P0 + 1, O0 + 1))
    a("s_mul_i32 s44, s44, s42")
    a("s_mul_i32 s45, s45, s42")
    a("s_bfe_u32 s46, s44, 0x%x" % ((10 << 16) | 20))
    a("s_bfe_u32 s47, s45, 0x%x" % ((10 << 16) | 20))
    a("s_lshl_b32 s44, s44, 10")
    a("s_lshl_b32 s45, s45, 10")
    a("s_add_u32 s47, s47, s46")
    a("s_mul_i32 s46, s46, s42")
    a("v_add_u32 v%d, s44, v%d" % (P0, P0))
    a("s_add_u32 s45, s45, s46")
    a("s_cmp_gt_u32 s47, 256")
    a("s_cbranch_scc1 L2_retry")
    a("v_add_u32 v%d, s45, v%d" % (P0 + 1, P0 + 1))
    a("v_lshrrev_b64 %s, v%d, %s" % (vr(O0, 2), E0 + 6, vr(P0, 2)))
    a("v_add_u32 v%d, v%d, v%d" % (P0, P0, E0 + 4))
    a("v_add_u32 v%d, v%d, v%d" % (P0 + 1, P0 + 1, E0 + 5))
    a("v_and_b32 v2, 0x1ff, v%d" % O0)
    a("v_lshrrev_b64 %s, v%d, %s" % (vr(O0, 2), E1 + 6, vr(P0, 2)))
    def tw(ad, t, i):
        if HD:
            a("ds_write2_b64 v%d, %s, %s offset0:%d offset1:%d" % (ad, vr(t + 2 * i, 2), vr(t + 2 * i + 2, 2), i, i + 1))
        else:
            a("ds_write2_b32 v%d, v%d, v%d offset0:%d offset1:%d" % (ad, t + i, t + i + 1, i, i + 1))

    a("v_lshl_add_u32 v2, v2, %d, s%d" % (2 + HD, S_XT))
    tw(2, T0, 2)
    a("v_and_b32 v3, 0x1ff, v%d" % O0)
    a("v_lshl_add_u32 v3, v3, %d, s%d" % (2 + HD, S_XT))
    a("s_mov_b64 exec, %s" % sr(S_HI, 2))
    tw(3, T1, 2)
    tw(3, T1, 0)
    a("s_mov_b64 exec, -1")
    tw(2, T0, 0)
    a("s_lshl_b32 s3, s%d, %d" % (S_BT, 7 + HD))
    a("s_add_u32 s3, s3, s%d" % S_XT)
    a("v_lshrrev_b32 v2, 3, v%d" % V_LANE)
    a("v_lshl_add_u32 v2, v2, %d, s3" % (2 + HD))
    if HD:
        for i in range(4):
            a("ds_read_u16 v%d, v2 offset:%d" % (V_HD + i, 64 * i + 4))
        a("ds_read_b32 v%d, v%d" % (V_W, V_T0 + 3))
        a("ds_read_u16 v%d, v%d offset:4" % (V_HO, V_T0 + 3))
        for i in range(4):
            a("ds_read_u16 v%d, v2 offset:%d" % (V_IA + i, 64 * i))
    else:
        for i in range(4):
            a("ds_read_%s v%d, v2 offset:%d" % ("b32" if HD2 else "u16", V_IA + i, 32 * i))
        a("ds_read_b32 v%d, v%d" % (V_W, V_T0 + 3))
    a("s_mov_b32 s%d, %d" % (S_X + 2, NP))
    a(dma_m0(0))
    a("s_mov_b32 s3, %d" % RSTR)
    a("v_lshlrev_b32 v3, 5, v%d" % HH)
    if HD2:
        a("s_mov_b32 s40, 0xffff")
        for i, x in enumerate(idx_reads(0, V_HD)):
            a("s_waitcnt lgkmcnt(4)")
            a("v_and_b32 v%d, s40, v%d" % (V_HD + i, V_IA + i))
            a(x)
        for i in range(4):
            a("v_lshrrev_b32 v%d, 25, v%d" % (V_IA + i, V_IA + i))
            a("v_lshl_add_u32 v%d, v%d, 2, v%d" % (V_IA + i, V_IA + i, V_HD + i))
        a("s_waitcnt lgkmcnt(4)")
        a("v_and_b32 v%d, s40, v%d" % (V_HO, V_W))
        a("v_lshrrev_b32 v2, 25, v%d" % V_W)
        a("v_lshl_add_u32 v%d, v2, 2, v%d" % (V_RA, V_HO))
        a("v_subrev_u32 v2, %d, v%d" % (L_SLOT - 64, V_HO))
        a("v_mul_u32_u24 v2, %d, v2" % 16132)
        a("v_bfe_u32 v%d, v%d, 16, 6" % (V_LEN, V_W))
        a("v_lshrrev_b32 v2, 22, v2")
        a("v_and_b32 v%d, 0x01c00000, v%d" % (V_W, V_W))
        a("v_lshl_or_b32 v%d, v2, 25, v%d" % (V_W, V_W))
        a("v_or_b32 v%d, v%d, v%d" % (V_W, V_W, V_RA))
        for n in range(99):
            for j in range(4):
                assert ((n * SSTR + 4 * j + 64) * 16132) >> 22 == n
    else:
        a("s_waitcnt lgkmcnt(%d)" % (6 if HD else 1))
        for x in idx_reads(0, V_HD if HD else V_IA):
            a(x)
        a("s_waitcnt lgkmcnt(%d)" % (9 if HD else 4))
        a("v_and_b32 v%d, 0xffff, v%d" % (V_RA, V_W))
        a("v_bfe_u32 v%d, v%d, 16, 6" % (V_LEN, V_W))
        a("v_lshrrev_b32 v2, 25, v%d" % V_W)
    a("v_mad_u32_u24 v%d, v2, s3, v3" % V_QA)
    a("v_add_u32 v%d, %d, v%d" % (V_QA, L_Q, V_QA))
    if PFE:
        a("s_waitcnt vmcnt(%d)" % (HPN + 4))
        a("v_and_b32 v2, v%d, v%d" % (PFV + 8, PFV + 9))
        a("v_and_b32 v2, v2, v%d" % (PFV + 10))
        a("v_and_b32 v2, v2, v%d" % (PFV + 11))
        a("v_cmp_ne_u32 vcc, 1, v2")
        a("s_cbranch_vccz L_pf_ok")
    a("s_waitcnt vmcnt(0)")
    a.label("L_pf_check")
    if SV == 2 or PTL:
        a("v_cmp_ne_u32 vcc, 1, v%d" % PFV)
    else:
        a("v_and_b32 v2, v%d, v%d" % (PFV, PFV + 1))
        a("v_and_b32 v2, v2, v%d" % (PFV + 2))
        a("v_and_b32 v2, v2, v%d" % (PFV + 3))
        a("v_cmp_ne_u32 vcc, 1, v2")
    a("s_cbranch_vccnz L_pf_again")
    a.label("L_pf_ok")
    if SV == 2 or PTL:
        stamp(a, "preE")
        a("s_barrier")
    stamp(a, "pf")
    if BSL:
        a("s_cmp_lt_u32 s%d, 4" % S_W)
        a("s_cbranch_scc1 L_nobsl")
        a("s_sleep %d" % BSL)
        a.label("L_nobsl")
    d = dma_loads()
    for i in range(4):
        a("s_waitcnt lgkmcnt(%d)" % (3 - i))
        if X_TEST & 128:
            a("v_and_b32 v%d, 63, v%d" % (V_IDX + 2 * i, V_IDX + 2 * i))
        a(d[i])
    stamp(a, "dma0")
    for x in idx_reads(4):
        a(x)
    if HD or HD2:
        a("ds_read_b32 v%d, v%d" % (V_R, V_HO))
        a("ds_read_b32 v%d, v%d offset:4" % (V_R + 1, V_RA))
    else:
        a("ds_read2_b32 %s, v%d offset0:0 offset1:1" % (vr(V_R, 2), V_RA))
    for x in row_reads(V_C, V_QA):
        a(x)
    KF = V_T0 + 4
    a("v_bfe_u32 v%d, v%d, 22, 3" % (KF, V_W))
    a("v_mov_b32 v%d, v%d" % (V_T0 + 5, V_LEN))
    a("v_cmp_ne_u32 vcc, 0, v%d" % KF)
    a("v_add_u32 v2, %d, v%d" % (L_R - L_Q, V_QA))
    a("v_add_u32 v%d, %d, v3" % (V_RC, L_ZERO))
    a("v_cndmask_b32 v%d, v%d, v2, vcc" % (V_RC, V_RC))
    a("v_mbcnt_lo_u32_b32 v2, vcc_lo, 0")
    a("s_lshl_b32 s40, s%d, 6" % S_W)
    a("v_lshl_add_u32 v2, v2, 2, s40")
    a("s_mov_b32 s41, 0xffc00000")
    a("v_and_or_b32 v%d, v%d, s41, v%d" % (V_NW, V_W, COL))
    a(dma_m0(1))
    a("s_waitcnt lgkmcnt(%d)" % (9 + HD + HD2))
    if X_TEST & 256:
        for i in range(4):
            a("v_and_b32 v%d, 63, v%d" % (V_IDX + 2 * i, V_IDX + 2 * i))
    for x in dma_loads():
        a(x)
    for x in idx_reads(8):
        a(x)
    a("s_mov_b32 exec_lo, vcc_lo")
    a("s_mov_b32 exec_hi, 0")
    a("ds_write_b32 v2, v%d offset:%d" % (V_NW, L_NL))
    a("s_mov_b64 exec, -1")
    a("v_and_b32 v2, 60, v%d" % V_LANE)
    a("v_add_u32 v2, s40, v2")
    a("ds_read_b32 v%d, v2 offset:%d" % (V_NW, L_NL))
    a("v_add_u32 v2, v%d, v%d" % (KF, COL))
    a("v_cmp_lt_u32 vcc, 32, v2")
    a("v_mad_u32_u24 v%d, v%d, s3, v3" % (V_YW, COL))
    a("v_add_u32 v%d, s%d, v%d" % (V_YW, S_XT, V_YW))
    a("s_cmp_lg_u64 vcc, 0")
    a("s_cselect_b32 s%d, 1, 0" % S_NEED)
    a("s_cmp_lg_u32 s%d, 7" % S_BT)
    a("s_cselect_b32 s%d, s%d, 0" % (S_NEED, S_NEED))
    dpp_scan(a, [V_T0 + 5], op="v_max_u32", fill=[
        "v_cmp_lt_u32_e64 %s, 0, v%d" % (sr(S_M0, 2), V_LEN),
        "v_cmp_lt_u32_e64 %s, 1, v%d" % (sr(S_M[1], 2), V_LEN),
        "v_mov_b32 v%d, 0" % V_S, "v_mov_b32 v%d, 0" % (V_S + 1)])
    a("s_nop 0")
    a("v_readlane_b32 s%d, v%d, 63" % (S_ML, V_T0 + 5))
    a("s_mov_b32 s%d, 1" % S_J)
    a("s_waitcnt vmcnt(4)")
    for x in b_reads(0):
        a(x)
    a("s_max_u32 s%d, s%d, 2" % (S_ML, S_ML))
    if PRI:
        a("s_sub_u32 s%d, s%d, %d" % (S_ST, S_ML, PRI))
        if PRW:
            a("s_lshr_b32 s3, s%d, %d" % (S_W, PRW - 1))
            a("s_sub_u32 s%d, s%d, s3" % (S_ST, S_ST))
        a("s_cmp_lt_u32 s%d, 4" % S_W)
        a("s_cselect_b32 s%d, s%d, -1" % (S_ST, S_ST))
        a("s_setprio 1")
    a("s_cmp_gt_u32 s%d, 2" % S_ML)
    a("s_cselect_b32 s%d, %d, 0" % (S_X + 2, NP))
    a(dma_m0(0))
    mf = mfma_chain(0, 0, V_N[0])
    a("s_waitcnt lgkmcnt(4)")
    a(mf[0])
    a("s_waitcnt lgkmcnt(0)")
    for x in mf[1:]:
        a(x)
    for x in dma_loads():
        a(x)
    stamp(a, "loop")
    a("s_nop 6")
    me(a, mfma_chain(1, 0, V_N[1]), exps(V_N[0]))
    a("s_waitcnt vmcnt(4)")
    for x in b_reads(1) + idx_reads(12) + pk_first(0):
        a(x)
    a("s_cmp_gt_u32 s%d, 3" % S_ML)
    a("s_cselect_b32 s%d, %d, 0" % (S_X + 2, NP))
    a(dma_m0(1))
    a("s_waitcnt lgkmcnt(0)")
    me(a, mfma_chain(0, 1, V_T[0]), exps(V_N[1]))
    for x in dma_loads():
        a(x)
    for x in pk_first(1):
        a(x)
    a("s_branch L2_loop")
    a.label("L_tfail")
    if PDEP:
        for p in range(4):
            a("v_cmp_le_i32 vcc, 0, v%d" % (TABV + p))
            a("s_mov_b64 exec, vcc")
            a("buffer_load_dword v%d, v%d, %s, s47 offen offset:%d %s" % (TABV + p, TAD, sr(S_WS, 4), (4 << TBL) * p, SCT))
            a("s_mov_b64 exec, -1")
    else:
        tab_loads()
    a("s_cmp_eq_u32 s%d, 0" % S_ST)
    a("s_cbranch_scc1 L_qr")
    a("s_sub_u32 s%d, s%d, 1" % (S_TO, S_TO))
    a("s_cbranch_scc1 L_timeout")
    if SV == 2:
        a("s_cmp_lg_u32 s%d, 0" % S_PD)
        a("s_cbranch_scc1 L_rdyt")
        a("s_waitcnt vmcnt(0)")
        a("s_branch L_tcheck")
        a.label("L_tfail1")
        a("s_cmp_lg_u64 s[44:45], 0")
        a("s_cbranch_scc1 L2_build")
        a("s_branch L_padt")
        a.label("L_miss")
        rt_reset()
        a("s_sub_u32 s%d, s%d, 1" % (S_TO, S_TO))
        a("s_cbranch_scc1 L_timeout")
        if RSL:
            a("s_sleep %d" % RSL)
        a("s_cmp_lg_u32 s%d, 0" % S_EXTRA)
        a("s_cbranch_scc1 L2_xld")
        a("s_branch L2_noextra")
        a.label("L_rdy")
        a("v_mov_b32 v3, -1")
        a("buffer_store_dword v3, v3, %s, 0 offen" % sr(S_WS, 4))
        a("s_cmp_lg_u32 s%d, 0" % S_PD)
        a("s_cbranch_scc1 L_rdy5")
        a("buffer_store_dword v3, v3, %s, 0 offen" % sr(S_WS, 4))
        a("s_branch L_after")
        a.label("L_rdy5")
        a("s_mov_b32 s%d, 2" % S_PD)
        a("s_waitcnt vmcnt(5)")
        a("s_branch L_prdy")
    else:
        a.label("L_tback")
        if PDEP > 1:
            a("s_sleep %d" % PSL)
        a("s_waitcnt vmcnt(%d)" % (4 * max(0, PDEP - 1)))
        a("s_branch L_tcheck")
        a.label("L_tfail1")
        a("s_mov_b32 s%d, 1" % S_ST)
        a("s_cmp_lg_u64 s[44:45], 0")
        a("s_cbranch_scc1 L2_build")
        a("s_branch %s" % ("L_padt" if PADS else "L_tback"))
    a.label("L_pf_again")
    a("s_sub_u32 s%d, s%d, 1" % (S_PCK, S_PCK))
    a("s_cselect_b32 s%d, 0, s%d" % (S_PCK, S_PCK))
    a("s_cbranch_scc1 L_pf_ok")
    a("s_sleep 1")
    pf_loads()
    a("s_waitcnt vmcnt(0)")
    a("s_branch L_pf_check")
    if SV == 2:
        a.label("L2_retry")
        a("s_add_u32 s%d, s%d, 1" % (S_LI, S_LI))
        a("s_cmp_lg_u32 s%d, 1" % S_LI)
        a("s_cbranch_scc1 L2_retry2")
        a.label("L2_retry1")
        lut_reads(L_LUT + 2048)
        a("s_branch L2_scan")
    semi0 = len(a.l)
    if SV != 2:
        a.label("L_fagain")
        a("s_sleep 1")
        a("global_load_dword v%d, v%d, %s %s" % (FLG, FA, sr(P_DBG, 2), SCT))
        a("s_sub_u32 s%d, s%d, 1" % (S_TO, S_TO))
        a("s_waitcnt vmcnt(0)")
        a("s_cbranch_scc0 L_fpoll")
        a("v_mov_b32 v3, 6")
        a("v_mov_b32 v2, %d" % F_SLOW)
        a("ds_or_b32 v2, v3")
        a("s_waitcnt lgkmcnt(0)")
        a("s_branch L_barC")
    a.label("L2_extra")
    a("s_mov_b32 s%d, 1" % S_EXTRA)
    a("v_cmp_le_u32 vcc, 0x%x, v3" % ((17 << 23) | (1 << 31)))
    a("s_cbranch_vccz L2_noflag")
    a("s_mov_b32 s%d, 3" % S_EXTRA)
    a.label("L2_noflag")
    XB2 = TB2 + 4
    if SV == 2:
        for p in range(4):
            a("v_add_u32 v%d, 0x%x, v%d" % (XB2 + p, (128 - (8 << 23)) & 0xffffffff, TB2 + p))
        a.label("L2_xld")
        for p in range(4):
            a("v_and_b32 v%d, s50, v%d" % (XB2 + p, XB2 + p))
            a("buffer_load_dwordx4 %s, v%d, %s, 0 offen %s" % (vr(RC + 16 + 4 * p, 4), XB2 + p, sr(S_WS, 4), SC))
    else:
        for p in range(4):
            a("v_add_u32 v3, 0x%x, v%d" % ((128 - (8 << 23)) & 0xffffffff, TB2 + p))
            a("v_and_b32 v3, s50, v3")
            a("buffer_load_dwordx4 %s, v3, %s, 0 offen %s" % (vr(RC + 16 + 4 * p, 4), sr(S_WS, 4), SC))
    a("s_branch L2_noextra")
    a.label("L_semi_end")
    if SV != 2:
        a.label("L2_retry")
        a("s_add_u32 s%d, s%d, 1" % (S_LI, S_LI))
        a("s_cmp_lg_u32 s%d, 1" % S_LI)
        a("s_cbranch_scc1 L2_retry2")
        a.label("L2_retry1")
        lut_reads(L_LUT + 2048)
        a("s_branch L2_scan")
    if PADS:
        semi = a.l[semi0:]
        del a.l[semi0:]
        k = a.l.index("@SEMI@")
        a.l[k:k + 1] = semi
        a.raw(".p2align 12")
        a.raw("@PAGE@")
        a.label("L_padt")
        if SV == 2:
            a("s_waitcnt vmcnt(2)")
            a("s_branch L_tcheck")
        elif PRE:
            a("s_waitcnt vmcnt(1)")
            a("s_branch L_tcheck")
        elif PSB == 4:
            a("s_waitcnt vmcnt(2)")
            a("s_branch L_tcheck")
        else:
            a("s_branch L_tback")
    a.raw(".p2align 6")
    a.label("L2_loop")
    for par in (1, 0):
        me(a, mfma_chain(1, par, V_T[1]), exps(V_T[0]))
        a("s_add_u32 s%d, s%d, 1" % (S_J, S_J))
        a("s_waitcnt vmcnt(4)")
        for x in ([] if X_TEST & 8 else b_reads(par + 1)) + idx_reads(16 if par else 20):
            a(x)
        if par == 1:
            a("ds_read2_b32 %s, v%d offset0:2 offset1:3" % (vr(V_R, 2), V_RA))
        a("s_cmp_ge_u32 s%d, s%d" % (S_J, S_ML))
        a("s_mov_b64 exec, %s" % sr(S_M[par], 2))
        for x in pk_update(0):
            a(x)
        a("s_cbranch_scc1 L2_last")
        a("s_mov_b64 exec, -1")
        if PRI:
            a("s_cmp_lg_u32 s%d, s%d" % (S_J, S_ST))
            a("s_cbranch_scc1 L2_np%d" % par)
            a("s_setprio 0")
            a.label("L2_np%d" % par)
        a("s_add_u32 s%d, s%d, 2" % (S_T, S_J))
        a("s_cmp_lt_u32 s%d, s%d" % (S_T, S_ML))
        a("s_cselect_b32 s%d, %d, 0" % (S_X + 2, NP))
        a(dma_m0(par ^ 1))
        if LOOPST:
            a("s_memrealtime s[90:91]")
            a("s_memtime s[88:89]")
            a("s_add_u32 s92, s%d, 32" % S_J)
        a("s_waitcnt lgkmcnt(0)")
        if LOOPST:
            a("s_lshl_b64 exec, 1, s%d" % S_J)
            a("v_mov_b32 v%d, s90" % (V_ST + 1))
            a("s_lshl_b64 exec, exec, 32")
            a("v_mov_b32 v%d, s88" % (V_ST + 1))
            a("s_mov_b64 exec, -1")
        extra = ["v_cmp_lt_u32_e64 %s, s%d, v%d" % (sr(S_M[par ^ 1], 2), S_J, V_LEN)]
        if par == 0:
            extra += ["v_add_u32 v%d, 8, v%d" % (V_IA + i, V_IA + i) for i in range(4)] + ["v_add_u32 v%d, 8, v%d" % (V_RA, V_RA)]
        me(a, mfma_chain(0, par ^ 1, V_T[0]), exps(V_T[1]), extra)
        for x in ([] if X_TEST & 16 else dma_loads()):
            a(x)
        a("s_mov_b64 exec, %s" % sr(S_M[par], 2))
        for x in pk_update(1):
            a(x)
        a("s_mov_b64 exec, -1")
    a("s_branch L2_loop")

    a.label("L2_last")
    if PRT:
        a("s_setprio %d" % (PRT - 1))
    a("s_mov_b64 %s, exec" % sr(S_T + 2, 2))
    a("s_mov_b64 exec, -1")
    a("s_waitcnt lgkmcnt(0)")
    stamp(a, "last")
    if OT:
        a("v_lshrrev_b32 v3, 25, v%d" % V_NW)
        a("v_lshl_add_u32 v3, v3, 8, s%d" % S_B)
        a("v_lshlrev_b32 v3, 7, v3")
        a("buffer_load_dword v%d, v3, %s, 0 offen %s" % (V_HX, sr(S_OUT, 4), OTP))
    for x in row_reads(V_C, V_RC) + exps(V_T[1]) + wa_reads()[:7]:
        a(x)
    a("s_mov_b64 exec, %s" % sr(S_T + 2, 2))
    for x in pk_update(1):
        a(x)
    a("s_mov_b64 exec, -1")
    for x in wa_reads()[7:]:
        a(x)
    a.label("L2_final")
    PB = V_B[0]
    a("s_not_b64 exec, %s" % sr(S_M0, 2))
    a("s_cbranch_execz L2_nz")
    for i in range(16):
        a("v_mov_b32 v%d, 0" % (PB + i))
    a.label("L2_nz")
    a("s_mov_b64 exec, %s" % sr(S_M0, 2))

    def fin(X):
        n, d, t = V_N[X], V_D[X], V_T[X]
        r = ["v_rcp_f32 v%d, v%d" % (t + i, d + i) for i in range(16)]
        s = ["v_pk_fma_f32 %s, %s, %s, %s" % (vr(V_S, 2), vr(d + 4 * i, 2), vr(d + 4 * i + 2, 2), vr(V_S, 2)) for i in range(4)]
        m = ["v_pk_mul_f32 %s, %s, %s" % (vr(t + 2 * i, 2), vr(t + 2 * i, 2), vr(n + 2 * i, 2)) for i in range(8)]
        c = ["v_cvt_pk_bf16_f32 v%d, v%d, v%d" % (PB + 8 * X + i, t + 2 * i, t + 2 * i + 1) for i in range(8)]
        return r, [s[0], m[0], m[1], s[1], m[2], m[3], s[2], m[4], m[5], s[3], m[6], m[7]] + c

    def ymf(o, q):
        return "v_mfma_f32_32x32x16_bf16 %s, %s, %s, %s" % (vr(V_C[o], 16), vr(wa_reg(o, q), 4), vr(PB + 4 * q, 4), vr(V_C[o], 16))

    r, p = fin(0)
    for x in r + p:
        a(x)
    r, p = fin(1)
    a("s_waitcnt vmcnt(%d) lgkmcnt(0)" % (1 if OT else 0))
    a(r[0])
    phase(a, [ymf(0, 0), ymf(1, 0), ymf(0, 1), ymf(1, 1)], r[1:])
    for x in p:
        a(x)
    a("s_nop 1")
    for x in (ymf(0, 2), ymf(1, 2), ymf(0, 3), ymf(1, 3)):
        a(x)
    a("v_mov_b32 v2, 0x%08x" % f32(2.0 ** 120))
    a("v_add_f32 v3, v%d, v%d" % (V_S, V_S + 1))
    a("s_movk_i32 s40, 0x207")
    a("v_cmp_nlt_f32 vcc, v3, v2")
    a("s_mov_b64 exec, -1")
    YR, OA, KK = V_T0 + 2, V_T0 + 4, V_T0 + 5
    a("s_mov_b32 s3, %d" % RSTR)
    a("v_and_b32 v2, 3, v%d" % V_LANE)
    a("v_and_b32 v3, 0xff, v%d" % V_NW)
    a("v_lshl_add_u32 v%d, v2, 5, s%d" % (YR, S_XT))
    a("v_mad_u32_u24 v%d, v3, s3, v%d" % (YR, YR))
    a("v_lshrrev_b32 v3, 25, v%d" % V_NW)
    if X_TEST & 32:
        a("s_mul_i32 s42, s%d, %d" % (S_B, NLOC))
        a("v_add_u32 v%d, s42, v3" % OA)
    else:
        a("v_lshl_add_u32 v%d, v3, 8, s%d" % (OA, S_B))
    a("v_lshlrev_b32 v%d, 7, v%d" % (OA, OA))
    a("v_lshl_add_u32 v%d, v2, 4, v%d" % (OA, OA))
    a("v_bfe_u32 v%d, v%d, 22, 3" % (KK, V_NW))
    a("v_cmp_class_f32_e64 s[42:43], v%d, s40" % V_C[1])
    a("s_lshl_b32 s41, s%d, 2" % S_BT)
    a("s_and_b64 s[42:43], s[42:43], %s" % sr(S_M0, 2))
    a("s_or_b64 vcc, vcc, s[42:43]")
    a("s_cselect_b32 s42, 1, 0")
    a("s_andn2_b32 s42, s42, s%d" % S_SAFE)
    a("s_cbranch_scc1 L2_safe")
    for X in range(2):
        for q in range(4):
            a("ds_write_b128 v%d, %s offset:%d" % (V_YW, vr(V_C[X] + 4 * q, 4), row_off(X, q)))
    a("v_mov_b32 v2, s41")
    a("v_mov_b32 v3, 1")
    a("v_cmp_lt_u32_e64 s[44:45], 2, v%d" % KK)
    a("v_cmp_lt_u32_e64 s[46:47], 3, v%d" % KK)
    a("s_waitcnt lgkmcnt(0)")
    a("ds_write_b32 v2, v3 offset:%d" % L_FLAG)
    a("s_cmp_eq_u32 s%d, 0" % S_NEED)
    a("s_cbranch_scc1 L2_nowait")
    a.label("L2_poll")
    a("ds_read_b32 v3, v2 offset:%d" % (L_FLAG + 4))
    if YSL:
        a("s_sleep %d" % YSL)
    a("s_waitcnt lgkmcnt(0)")
    a("v_cmp_eq_u32 vcc, 0, v3")
    a("s_cbranch_vccnz L2_poll")
    a.label("L2_nowait")
    stamp(a, "ywait")
    Y = [V_N[0], V_N[1], V_D[0], V_D[1]]

    def yreads(i):
        for c in range(4):
            a("ds_read_b128 %s, v%d offset:%d" % (vr(Y[i] + 4 * c, 4), YR, RSTR * i + 128 * (c >> 1) + 16 * (c & 1)))

    def yadd(i):
        for c in range(8):
            a("v_pk_add_f32 %s, %s, %s" % (vr(Y[0] + 2 * c, 2), vr(Y[0] + 2 * c, 2), vr(Y[i] + 2 * c, 2)))

    yreads(0)
    yreads(1)
    yreads(2)
    a("s_cmp_eq_u64 s[46:47], 0")
    a("s_cbranch_scc1 L2_no4")
    yreads(3)
    a("s_waitcnt lgkmcnt(0)")
    a("s_mov_b64 exec, s[46:47]")
    yadd(3)
    a("s_mov_b64 exec, -1")
    a.label("L2_no4")
    a("s_waitcnt lgkmcnt(4)")
    yadd(1)
    a("s_waitcnt lgkmcnt(0)")
    a("s_mov_b64 exec, s[44:45]")
    yadd(2)
    a("s_mov_b64 exec, -1")
    a("s_cmp_eq_u32 s%d, 1" % S_MODE)
    a("s_cbranch_scc1 L2_writeback")
    U = V_U
    for i in range(16):
        a("v_exp_f32 v%d, v%d" % (U + i, Y[0] + i))
    for i in range(8):
        a("v_pk_fma_f32 %s, %s, %s, %s" % (vr(U + 2 * i, 2), vr(U + 2 * i, 2), sr(S_LG, 2), sr(S_LG, 2)))
    for i in range(16):
        a("v_rcp_f32 v%d, v%d" % (U + i, U + i))
    for i in range(8):
        a("v_pk_mul_f32 %s, %s, %s" % (vr(U + 2 * i, 2), vr(U + 2 * i, 2), vr(Y[0] + 2 * i, 2)))
    P = V_B[1]
    for i in range(4):
        a("v_cvt_pk_bf16_f32 v%d, v%d, v%d" % (P + i, U + 2 * i, U + 2 * i + 1))
    a("buffer_store_dwordx4 %s, v%d, %s, 0 offen %s" % (vr(P, 4), OA, sr(S_OUT, 4), SCO))
    for i in range(4, 8):
        a("v_cvt_pk_bf16_f32 v%d, v%d, v%d" % (P + i, U + 2 * i, U + 2 * i + 1))
    a("buffer_store_dwordx4 %s, v%d, %s, 0 offen offset:64 %s" % (vr(P + 4, 4), OA, sr(S_OUT, 4), SCO))
    stamp_out(a)
    a.label("L_end")
    a("s_endpgm")

    a.label("L2_xpl")
    a("s_waitcnt vmcnt(%d)" % (4 + NPF))
    for p in range(4):
        p1(RC + 16 + 4 * p, 3 * p)
    a("v_mov_b32 v3, s%d" % S_EXTRA)
    a("v_mov_b32 v%d, %d" % (V_U, F_SLOW))
    a("ds_or_b32 v%d, v3" % V_U)
    a("s_waitcnt lgkmcnt(0)")
    for p in range(4):
        p2(RC + 16 + 4 * p, 3 * p)
    if SV == 2:
        for p in range(4):
            mark(XB2 + p, RC + 16 + 4 * p)
        rt_reset()
        missing(XB2)
        a("v_cmp_le_i32 vcc, 0, v3")
        a("s_cmp_lg_u64 vcc, 0")
        a("s_cselect_b32 s%d, 1, 0" % S_EXTRA)
    a("s_branch L2_pl")
    if SV == 2:
        a.label("L_nofl")
        a("v_mov_b32 v3, 6")
        a("v_mov_b32 v2, %d" % F_SLOW)
        a("ds_or_b32 v2, v3")
        a("s_waitcnt vmcnt(0) lgkmcnt(0)")
        a("s_branch %s" % ("L_page1" if PUB3 else "L_nopub"))
        a.label("L_rdyt")
        p_ready(4)
        a("s_waitcnt vmcnt(1)")
        a("s_branch L_tcheck")
    a.label("L_timeout")
    a("v_mov_b32 v3, 6")
    a("v_mov_b32 v2, %d" % F_SLOW)
    a("ds_or_b32 v2, v3")
    if PSB == 2:
        DEBUG_, globals()["DEBUG"] = DEBUG, 0
        p_stores(14)
        globals()["DEBUG"] = DEBUG_
    if not PRE:
        p_ready(0)
    a("s_branch L2_build")

    a.label("L2_retry2")
    a("s_barrier")
    a("s_cmp_eq_u32 s%d, 2" % S_LI)
    a("s_cselect_b32 s3, %d, %d" % (LS[2], LS[3]))
    lut_build(a, 3, V_T[0], L_LUT + 2048)
    a("s_branch L2_retry1")

    a.label("L2_safe")
    a("s_mov_b32 s%d, 1" % S_SAFE)
    a("s_mov_b32 s%d, %d" % (S_X + 2, NP))
    a("s_nop 7")
    for x in row_reads(V_C, V_QA):
        a(x)
    a("v_and_b32 v2, 0xffff, v%d" % V_W)
    a("v_sub_u32 v2, v%d, v2" % V_RA)
    for i in range(4):
        a("v_sub_u32 v%d, v%d, v2" % (V_IA + i, V_IA + i))
    a("v_sub_u32 v%d, v%d, v2" % (V_RA, V_RA))
    for i in range(32):
        a("v_mov_b32 v%d, 0" % (V_N[0] + i))
        a("v_mov_b32 v%d, 1.0" % (V_D[0] + i))
    a("v_mov_b32 v%d, 0x%x" % (V_R + 1, PAD))
    a("s_mov_b32 s%d, 0" % S_J)
    if HD or HD2:
        for x in idx_reads(0, V_HD):
            a(x)
        a("ds_read_b32 v%d, v%d" % (V_R, V_HO))
        a("s_branch L2_safe_in")
    a.label("L2_safe_loop")
    for x in idx_reads(0):
        a(x)
    a("ds_read_b32 v%d, v%d" % (V_R, V_RA))
    a.label("L2_safe_in")
    a("s_waitcnt lgkmcnt(0)")
    dma_plain(a, 0)
    a("v_cmp_lt_u32_e64 %s, s%d, v%d" % (sr(S_M[0], 2), S_J, V_LEN))
    for i in range(4):
        a("v_add_u32 v%d, 4, v%d" % (V_IA + i, V_IA + i))
    a("v_add_u32 v%d, 4, v%d" % (V_RA, V_RA))
    a("s_waitcnt vmcnt(0)")
    for x in b_reads(0):
        a(x)
    a("s_waitcnt lgkmcnt(0)")
    for x in mfma_chain(0, 0, V_T[0]) + mfma_chain(1, 0, V_T[1]):
        a(x)
    a("s_nop 7")
    a("s_nop 3")
    a("s_mov_b64 exec, %s" % sr(S_M[0], 2))
    for X in range(2):
        for x in exps(V_T[X]):
            a(x)
        for i in range(8):
            a("v_pk_add_f32 %s, %s, %s" % (vr(U + 2 * i, 2), vr(U + 2 * i, 2), sr(S_ONE, 2)))
        for i in range(16):
            a("v_rcp_f32 v%d, v%d" % (U + i, U + i))
        for i in range(8):
            a("v_pk_fma_f32 %s, %s, %s, %s" % (vr(V_N[X] + 2 * i, 2), vr(V_T[X] + 2 * i, 2), vr(U + 2 * i, 2), vr(V_N[X] + 2 * i, 2)))
    a("s_mov_b64 exec, -1")
    a("s_add_u32 s%d, s%d, 1" % (S_J, S_J))
    a("s_cmp_lt_u32 s%d, s%d" % (S_J, S_ML))
    a("s_cbranch_scc1 L2_safe_loop")
    for x in row_reads(V_C, V_RC):
        a(x)
    a("s_branch L2_final")

    a.label("L2_slow")
    a("s_mov_b32 s%d, 1" % S_MODE)
    a("s_mov_b32 s%d, 0" % S_POS)
    a("v_mov_b32 v%d, 0" % V_DONE)
    a("v_cmp_gt_u32 vcc, 4, v%d" % FL)
    a("s_waitcnt vmcnt(0) lgkmcnt(0)")
    a("s_cbranch_vccnz L2_slow_round")
    a("s_barrier")
    t = V_U
    a("v_and_b32 v2, 16, v%d" % V_LANE)
    a("v_lshlrev_b32 v2, 2, v2")
    a("v_xor_b32 v2, v2, v%d" % V_L16)
    a("s_lshl_b32 s3, s%d, 10" % S_W)
    a("v_add_u32 v2, s3, v2")
    a("s_add_u32 m0, s3, %d" % L1_W1)
    a("v_lshrrev_b32 v3, 4, v%d" % V_LANE)
    a("global_load_lds_dwordx4 v2, %s" % sr(P_WM, 2))
    a("v_bfe_u32 v2, v%d, 2, 2" % V_LANE)
    a("v_lshl_add_u32 v%d, v3, 3, v2" % t)
    a("v_lshlrev_b32 v%d, 7, v%d" % (t, t))
    a("v_lshrrev_b32 v2, 1, v2")
    a("v_lshl_or_b32 v%d, v2, 6, v%d" % (t, t))
    a("v_and_b32 v2, 3, v%d" % V_LANE)
    a("v_lshl_or_b32 v%d, v2, 4, v%d" % (t, t))
    a("v_xor_b32 v%d, 64, v%d" % (t + 1, t))
    a("v_add_u32 v%d, %d, v%d" % (t, L1_W1, t))
    a("v_add_u32 v%d, %d, v%d" % (t + 1, L1_W1, t + 1))
    a("v_and_b32 v2, 15, v%d" % V_LANE)
    a("s_lshl_b32 s3, s%d, 4" % S_W)
    a("v_add_u32 v%d, s3, v2" % (t + 2))
    a("v_lshlrev_b32 v%d, 4, v3" % (t + 4))
    a("v_add_u32 v%d, 3072, v%d" % (t + 7, t + 4))
    a("s_mov_b32 s%d, %d" % (S_X + 2, NP))
    a("s_waitcnt vmcnt(0)")
    a("s_barrier")
    for x in tr_frags(V_C[0], t, 0):
        a(x)
    a("s_waitcnt lgkmcnt(0)")
    for x in tr_frags(V_C[1], t + 1, 0):
        a(x)
    a("s_mov_b32 s3, %d" % ((N + 127) // 128))
    a("s_mov_b32 s%d, 0" % S_PCK)
    a.label("L_allp")
    a("v_min_u32 v2, %d, v%d" % (N - 1, t + 2))
    a("v_lshl_add_u32 v2, v2, 7, v%d" % (t + 4))
    a("global_load_dwordx4 %s, v2, %s" % (vr(V_B[0], 4), sr(P_X, 2)))
    a("global_load_dwordx4 %s, v2, %s offset:64" % (vr(V_B[0] + 4, 4), sr(P_X, 2)))
    a("v_and_b32 v2, 255, v%d" % (t + 2))
    a("v_lshrrev_b32 v%d, 8, v%d" % (t + 6, t + 2))
    a("v_mul_u32_u24 v2, %d, v2" % NLOC)
    a("v_add_u32 v%d, v2, v%d" % (t + 6, t + 6))
    a("s_waitcnt vmcnt(0) lgkmcnt(0)")
    for s in range(2):
        for H in range(2):
            for blk in range(2):
                a(mf16(V_T[0] + 8 * H + 4 * blk, V_C[H] + 8 * blk + 4 * s, V_B[0] + 4 * s, s == 0))
    a("s_nop 7")
    for i in range(8):
        a("v_pk_mul_f32 %s, %s, %s" % (vr(V_T[0] + 2 * i, 2), vr(V_T[0] + 2 * i, 2), sr(S_LG, 2)))
    for i in range(8):
        a("v_cvt_pk_bf16_f32 v%d, v%d, v%d" % (V_T[1] + i, V_T[0] + 2 * i, V_T[0] + 2 * i + 1))
    a("buffer_store_dwordx4 %s, %s, %s, 0 idxen offen %s" % (vr(V_T[1], 4), vr(t + 6, 2), sr(S_X, 4), SC))
    a("buffer_store_dwordx4 %s, %s, %s, 0 idxen offen offset:64 %s" % (vr(V_T[1] + 4, 4), vr(t + 6, 2), sr(S_X, 4), SC))
    a("v_add_u32 v%d, 128, v%d" % (t + 2, t + 2))
    a("s_sub_u32 s3, s3, 1")
    a("s_cmp_lg_u32 s3, 0")
    a("s_cbranch_scc1 L_allp")
    a("s_waitcnt vmcnt(0)")
    a("s_branch L2_slow_round")
    a.label("L2_writeback")
    a("v_cmp_ne_u32 vcc, 0, v%d" % KK)
    a("v_lshrrev_b32 v3, 25, v%d" % V_NW)
    a("v_and_b32 v2, 3, v%d" % V_LANE)
    a("v_lshlrev_b32 v2, 5, v2")
    a("v_mad_u32_u24 v2, v3, s3, v2")
    a("v_add_u32 v2, %d, v2" % L_R)
    a("s_mov_b64 exec, vcc")
    for c in range(4):
        a("ds_write_b128 v2, %s offset:%d" % (vr(Y[0] + 4 * c, 4), 128 * (c >> 1) + 16 * (c & 1)))
    a("s_mov_b64 exec, -1")
    a("s_waitcnt lgkmcnt(0)")
    a.label("L2_slow_round")
    a("s_barrier")
    lds_init(a, V_U)
    a("s_waitcnt lgkmcnt(0)")
    a("s_barrier")
    a.label("L2_slow_step")
    a("s_cmp_lt_u32 s%d, %d" % (S_POS, E))
    a("s_cbranch_scc1 L2_slow_go")
    a("s_mov_b32 s%d, 2" % S_MODE)
    a("s_branch L2_build")
    a.label("L2_slow_go")
    a("v_add_u32 v2, s%d, v0" % S_POS)
    a("v_cmp_gt_u32 vcc, %d, v2" % E)
    a("v_min_u32 v2, %d, v2" % (E - 1))
    a("v_lshlrev_b32 v3, 1, v2")
    a("v_lshlrev_b32 v2, 2, v2")
    a("global_load_dword v%d, v2, %s" % (t, sr(P_DST, 2)))
    a("global_load_dword v%d, v2, %s" % (t + 1, sr(P_SRC, 2)))
    a("global_load_ushort v%d, v3, %s" % (t + 2, sr(P_E, 2)))
    a("v_cmp_eq_u32_e64 s[40:41], 0, v%d" % V_DONE)
    a("s_and_b64 s[40:41], s[40:41], vcc")
    a("s_mov_b32 s3, %d" % SSTR)
    a("v_mov_b32 v%d, %d" % (t + 4, L_SLOT + 4 * DMAX))
    a("v_mov_b32 v2, 4")
    a("s_waitcnt vmcnt(0)")
    a("v_and_b32 v3, 255, v%d" % t)
    a("v_cmp_eq_u32 vcc, s%d, v3" % S_B)
    a("v_lshrrev_b32 v3, 8, v%d" % t)
    a("v_mad_u32_u24 v%d, v3, s3, v%d" % (t + 4, t + 4))
    a("v_lshlrev_b32 v3, 2, v3")
    a("v_and_b32 v%d, 255, v%d" % (t + 5, t + 1))
    a("v_lshrrev_b32 v%d, 8, v%d" % (t + 1, t + 1))
    a("v_mul_u32_u24 v%d, %d, v%d" % (t + 5, NLOC, t + 5))
    a("v_add_u32 v%d, v%d, v%d" % (t + 1, t + 1, t + 5))
    a("v_lshl_or_b32 v%d, v%d, 16, v%d" % (t + 1, t + 2, t + 1))
    a("s_and_b64 exec, vcc, s[40:41]")
    a("ds_add_rtn_u32 v%d, v3, v2 offset:%d" % (t + 3, L_CNT + 4))
    a("s_waitcnt lgkmcnt(0)")
    a("v_cmp_lt_u32 vcc, v%d, v%d" % (t + 3, t + 4))
    a("s_andn2_b64 s[40:41], exec, vcc")
    a("s_mov_b64 exec, vcc")
    a("ds_write_b32 v%d, v%d" % (t + 3, t + 1))
    a("v_mov_b32 v%d, 1" % V_DONE)
    a("s_mov_b64 exec, s[40:41]")
    a("v_mov_b32 v%d, %d" % (t + 5, F_PEND))
    a("ds_write_b32 v%d, v2" % (t + 5))
    a("s_mov_b64 exec, -1")
    a("s_waitcnt lgkmcnt(0)")
    a("s_barrier")
    a("s_mov_b64 exec, s[40:41]")
    a("ds_min_u32 v3, v%d offset:%d" % (t + 4, L_CNT + 4))
    a("s_mov_b64 exec, -1")
    a("v_mov_b32 v%d, %d" % (t + 5, F_PEND))
    a("ds_read_b32 v%d, v%d" % (t + 5, t + 5))
    a("s_waitcnt lgkmcnt(0)")
    a("v_cmp_ne_u32 vcc, 0, v%d" % (t + 5))
    a("s_cbranch_vccnz L2_build")
    a("s_barrier")
    a("s_add_u32 s%d, s%d, 512" % (S_POS, S_POS))
    a("v_mov_b32 v%d, 0" % V_DONE)
    a("s_branch L2_slow_step")


def kd(name, vgpr, sgpr):
    return """.amdhsa_kernel %s
  .amdhsa_next_free_vgpr %d
  .amdhsa_next_free_sgpr %d
  .amdhsa_accum_offset %d
  .amdhsa_group_segment_fixed_size 0
  .amdhsa_kernarg_size 72
  .amdhsa_user_sgpr_count 2
  .amdhsa_user_sgpr_kernarg_segment_ptr 1
  .amdhsa_system_sgpr_workgroup_id_x 1
  .amdhsa_float_denorm_mode_32 3
.end_amdhsa_kernel
""" % (name, vgpr, sgpr, (vgpr + 3) // 4 * 4)


HEADER = """; Kernarg layout for this problem (72 bytes, ptrs only, base s[0:1]):
; Generated by dev/gen3.py (hand-written generator).
"""


def addresses(lines):
    import subprocess, tempfile
    k = lines.index(".text")
    e = [i for i, x in enumerate(lines) if x.startswith(".section")][0]
    t = []
    for i, x in enumerate(lines):
        if k < i < e:
            t.append("Z_%d:" % i)
        t.append("" if x == "@PAGE@" else x)
    missing = ["L_pad%d" % p for p in range(len(PADA)) if ("L_pad%d:" % p) not in lines]
    t = t[:t.index(lines[e])] + [m + ":" for m in missing] + t[t.index(lines[e]):]
    with tempfile.TemporaryDirectory() as d:
        open(d + "/a.s", "w").write("\n".join(t) + "\n")
        subprocess.check_call(["clang", "-x", "assembler", "-target", "amdgcn-amd-amdhsa", "-mcpu=gfx950", "-c", d + "/a.s", "-o", d + "/a.o"])
        o = subprocess.check_output(["llvm-objdump", "-t", d + "/a.o"]).decode()
    ad = {}
    for l in o.split("\n"):
        f = l.split()
        if f and f[-1].startswith("Z_"):
            ad[int(f[-1][2:])] = int(f[0], 16)
    return ad


def place_pads(a):
    for p, target in enumerate(PADA):
        ad = addresses(a.l)
        i = min(i for i in ad if ad[i] >= target - 4 and (a.l[i].startswith("    ") or a.l[i] == "@PAGE@"))
        if a.l[i].startswith("    s_branch"):
            i += 1
        if a.l[i] == "@PAGE@":
            a.l[i:i + 1] = ["L_pad%d:" % p, "    s_branch L_back7"]
        elif a.l[i - 1].startswith("    s_branch"):
            a.l[i:i] = ["L_pad%d:" % p, "    s_branch L_back7"]
        else:
            a.l[i:i] = ["    s_branch L_over%d" % p, "L_pad%d:" % p, "    s_branch L_back7", "L_over%d:" % p]
    a.l = [x for x in a.l if x != "@PAGE@"]


def main():
    a = Asm()
    a.raw(HEADER.rstrip())
    a.raw("; @launch grid=(%d,1,1) block=(512,1,1) lds=%d" % (NB, LDS_SIZE))
    a.raw('.amdgcn_target "amdgcn-amd-amdhsa--gfx950"')
    a.raw(".text")
    gen(a)
    a.raw('.section .rodata,"a"')
    a.raw(".p2align 6")
    a.raw(kd(KNAME, 256, 96))
    out = sys.argv[1] if len(sys.argv) > 1 else "standalone__mpnn_edge_mlp__graph.s"
    if PADS:
        place_pads(a)
    txt = a.text()
    if DEBUG:
        txt = txt.replace("; Generated by", "; STAMPS " + " ".join(STAMP_NAMES) + "\n; Generated by")
    open(out, "w").write(txt)
    print("wrote", out, "LDS", LDS_SIZE)


if __name__ == "__main__":
    main()
```

```python
import struct, sys, os


def env(name, d):
    return int(os.environ.get(name, str(d)), 0)


DEBUG = env('DEBUG', 0)
X_TIMEOUT = env('X_TIMEOUT', 0)
POLLS = X_TIMEOUT if X_TIMEOUT else 20000
NPF = 2 if env('PSB', 0) == 2 or env('SV', 0) == 2 else 1
PADS = env('PADS', 1)
PADA = [int(x, 0) for x in os.environ.get('PADA', '0x600 0xa00 0x1000 0x1400 0x1800 0x1c00 0x2000 0x2700').split()]
SLEEP = env('SLEEP', 1)
X_NOPST = env('X_NOPST', 0)
X_TEST = env('X_TEST', 0)
SDEL = env('SDEL', 18)
SPOS = env('SPOS', 0)
CDEL = env('CDEL', 8)
WSL = env('WSL', 0)
TOUCH = env('TOUCH', 0)
SMF = env('SMF', 1)
SV = env('SV', 0)
POI = env('POI', 0)
RDEL = env('RDEL', 0)
RSL = env('RSL', 0)
S_PD = 84
S_CI = 85
HD = env('HD', 0)
HPF = env('HPF', 1)
HD2 = env('HD2', 1)
RMV = env('RMV', 0)
X5 = env('X5', 1)
PSH = env('PSH', 1)
TSL = env('TSL', 0)
TSX = env('TSX', 0)
TW = env('TW', 0)
TWS = env('TWS', 17408)
OT = env('OT', 0)
OTP = os.environ.get('OTP', '')
PFE = env('PFE', 0)
HPW = env('HPW', 0)
HPN = env('HPN', 2)
HU = env('HU', 0)
XE = env('XE', 0)
S_XE = 86
SDE = env('SDE', 0)
XDE = env('XDE', 0)
WBL = env('WBL', 0)
SCR = os.environ.get('SCR', '' if WBL else os.environ.get('SCS', 'sc1'))
PUB3 = env('PUB3', 1)
BARE = env('BARE', 1)
PTL = env('PTL', 0)
NC2 = env('NC2', 8)
FSL = env('FSL', 4)
FLT = env('FLT', 1)
CLM = {4: '0xfc', 8: '0xf4', 16: '0xe4', 32: '0xc4'}[NC2]
XL = env('XL', 2)
CPAD = env('CPAD', 1)
XPOS = env('XPOS', 0)
PSB = env('PSB', 0)
FPOS = env('FPOS', 1)
W7B = env('W7B', 1)
B8E = env('B8E', 1)
WR = env('WR', 8)
WQ = env('WQ', 0)
NCLR = 32
LD_IN = os.environ.get('LD_IN', '')
SC = os.environ.get('SC', 'sc1')
SCP = os.environ.get('SCP', 'sc1')
SCO = os.environ.get('SCO', 'sc1')
SCS = os.environ.get('SCS', 'sc1')
TORD = env('TORD', 0)
PRE = env('PRE', 1)
PDEP = env('PDEP', 2)
PSL = env('PSL', 4)
QF = env('QF', 1)
PRW = env('PRW', 0)
YSL = env('YSL', 0)
LOOPST = env('LOOPST', 0)
BSL = env('BSL', 0)
APR = env('APR', 0)
PRI = env('PRI', 2)
PRT = env('PRT', 0)
TBL = env('TBL', 5)
SCT = os.environ.get('SCT', 'sc1')
SCW = os.environ.get('SCW', 'sc1')
SCG = os.environ.get('SCG', 'sc1')

N = 25000
E = 800000
NB = 256
NLOC = 98
NP = NB * NLOC
CU = 1216
RSZ = 20480 if SV == 2 else CU * 16
DMAX = 62

WS_REC = 0
WS_TAB = 0x500000
WS_PT = 0x540000
WS_P = 0x580000
WS_SIZE = 0x580000
WS_DBG = 0xA00000
LS = tuple(int(x) for x in os.environ.get('LS', '31 32 36 64').split())
assert NB * RSZ <= WS_TAB

LOG2E = 1.4426950408889634
LN2 = 0.6931471805599453


def f32(x):
    return struct.unpack("<I", struct.pack("<f", x))[0]


class Asm:
    def __init__(self):
        self.l = []
        self.auto = 0
        self.n = 0

    def __call__(self, s):
        for x in s.split("\n"):
            x = x.strip()
            if x:
                self.l.append("    " + x)
                if self.auto:
                    self.n += 1
                    if self.n % self.auto == 0:
                        k, self.auto = self.auto, 0
                        stamp(self, "a%d" % self.n, True)
                        self.auto = k

    def label(self, s):
        self.l.append(s + ":")

    def raw(self, s):
        self.l.append(s)

    def text(self):
        return "\n".join(self.l) + "\n"


def vr(a, n):
    return "v[%d:%d]" % (a, a + n - 1)


def sr(a, n):
    return "s[%d:%d]" % (a, a + n - 1)


DPP_STEPS = ["row_shr:1 row_mask:0xf", "row_shr:2 row_mask:0xf", "row_shr:4 row_mask:0xf", "row_shr:8 row_mask:0xf",
             "row_bcast:15 row_mask:0xa", "row_bcast:31 row_mask:0xc"]


def dpp_scan(a, regs, op="v_add_u32", fill=()):
    fill = list(fill)
    for st in DPP_STEPS:
        n = 3 - len(regs)
        while n > 0 and fill:
            a(fill.pop(0))
            n -= 1
        if n > 0:
            a("s_nop %d" % (n - 1))
        for v in regs:
            a("%s_dpp v%d, v%d, v%d %s bank_mask:0xf" % (op, v, v, v, st))
    for x in fill:
        a(x)


RSTR = 272
SSTR = 260
L_CNT = 0
L_FLAG = 544
L_ZERO = 608
L_ZEND = 880
L_W3 = 896
L_NL = 1136
L_LUT = 2048
L_SLOT = L_LUT + 4096
L_SEND = L_SLOT + (99 * SSTR + 160 + 15) // 16 * 16
L_XT = (L_SEND + 255) // 256 * 256
XSTR = 32 * RSTR
L_WA = L_XT + 8 * XSTR
L_Q = L_WA + 8192
L_R = (L_Q + NLOC * RSTR + 127) // 128 * 128
LDS_SIZE = L_R + NLOC * RSTR
L1_CNT = L_XT
L1_START = L1_CNT + 1024
L1_STAGE = L1_START + 1024
L1_X = L1_STAGE + CU * 16
L1_WX = L_WA - 8192
L1_W2 = L1_WX - 8192
L1_W1 = L1_W2 - 8192
L1_P = L1_STAGE
assert L1_X + 16384 <= L1_W1 and L1_W1 % 128 == 0 and L1_P % 128 == 0 and L1_P + 16384 <= LDS_SIZE
assert (L1_X - L1_CNT) == 3 * 448 * 16
assert L1_X < 65536 and L1_X % 128 == 0
assert L_NL + 512 <= L_LUT
assert L_SEND < 65536 - 256
assert LDS_SIZE <= 163840, LDS_SIZE
PAD = 0x7F00
F_SLOW = L_FLAG + 40
F_PEND = L_FLAG + 44
F_PCNT = L_FLAG + 48

V_LANE = 1
V_BAD = 4
V_IA = 8
V_RA = 12
V_LEN = 13
V_S = 14
V_IDX = 16
V_R = 24
V_YW = 26
V_RC = 27
V_QA = 28
V_NW = 29
V_L16 = 30
V_W = 31
V_T0 = 32
V_PF = 38
V_DONE = 39
V_AE = 40
V_ID = 48
V_WA = 56
V_TRA = 72
V_ST = 74
V_TAB = 76
V_HD = 76
V_HO = 53
V_HA = 54
V_HX = 55
V_C = (80, 96)
V_T = (112, 128)
V_N = (144, 160)
V_D = (176, 192)
V_U = 208
V_B = (224, 240)

S_X = 4
S_WS = 8
S_OUT = 12
S_B = 16
S_W = 17
S_BT = 18
S_XT = 19
S_ML = 20
S_J = 21
S_ONE = 22
S_M = (24, 26)
S_M0 = 28
S_MODE = 30
S_SAFE = 31
S_HI = 32
S_NEED = 34
S_LI = 35
S_EXTRA = 36
S_XT1 = 37
S_POS = 38
S_TO = 39
S_T = 40
S_EM = 56
S_LG = 58
S_QM = 60
S_PCK = 82
S_ST = 83
P_X, P_E, P_SRC, P_DST, P_WM, P_WU, P_OUT, P_DBG, P_WS = 64, 66, 68, 70, 72, 74, 76, 78, 80


def mfma_chain(X, j, dst):
    B = V_B[j & 1]
    out = ["v_mfma_f32_32x32x8_bf16 %s, %s, %s, %s" % (
        vr(dst, 16), vr(V_AE + 4 * X + 2 * (j & 1), 2), vr(V_R, 2), vr(V_C[X], 16))]
    if X_TEST & 2:
        for k in range(4):
            out.append("v_mfma_f32_32x32x16_bf16 %s, %s, %s, %s" % (
                vr(dst, 16), vr(V_ID + 4 * k + 8 * X, 4), vr(B + 4 * k, 4), vr(dst, 16)))
        return out
    if X_TEST & 4:
        return out
    if SMF:
        out.append("v_smfmac_f32_32x32x32_bf16 %s, %s, %s, v%d" % (vr(dst, 16), vr(V_ID, 4), vr(B + 8 * X, 8), V_ID + 4))
        return out
    for k in range(2):
        out.append("v_mfma_f32_32x32x16_bf16 %s, %s, %s, %s" % (
            vr(dst, 16), vr(V_ID + 4 * k, 4), vr(B + 8 * X + 4 * k, 4), vr(dst, 16)))
    return out


def exps(src):
    return ["v_exp_f32 v%d, v%d" % (V_U + i, src + i) for i in range(16)]


def pk_first(X):
    return ["v_pk_add_f32 %s, %s, %s" % (vr(V_D[X] + 2 * i, 2), vr(V_U + 2 * i, 2), sr(S_ONE, 2)) for i in range(8)]


def pk_update(X):
    n, d, u, t = V_N[X], V_D[X], V_U, V_T[X]
    A = ["v_pk_fma_f32 %s, %s, %s, %s" % (vr(n + 2 * i, 2), vr(n + 2 * i, 2), vr(u + 2 * i, 2), vr(n + 2 * i, 2)) for i in range(8)]
    B = ["v_pk_fma_f32 %s, %s, %s, %s" % (vr(n + 2 * i, 2), vr(t + 2 * i, 2), vr(d + 2 * i, 2), vr(n + 2 * i, 2)) for i in range(8)]
    C = ["v_pk_fma_f32 %s, %s, %s, %s" % (vr(d + 2 * i, 2), vr(d + 2 * i, 2), vr(u + 2 * i, 2), vr(d + 2 * i, 2)) for i in range(8)]
    return A + B + C


def phase(a, mf, ex):
    mf = list(mf)
    for i, e in enumerate(ex):
        if i % 3 == 0 and mf:
            a(mf.pop(0))
        a(e)
    assert not mf


def b_reads(tile):
    return ["ds_read_b128 %s, v%d offset:%d" % (vr(V_B[tile & 1] + 4 * k, 4), V_BAD + k, 4096 * (tile & 1)) for k in range(4)]


def idx_reads(off, base=None):
    return ["ds_read_u16 v%d, v%d offset:%d" % (V_IDX + 2 * i, (V_IA if base is None else base) + i, off) for i in range(4)]


def dma_m0(slot):
    return "s_mov_b32 m0, s%d" % (S_XT1 if slot else S_XT)


def dma_loads():
    return ["buffer_load_dwordx4 %s, %s, 0 idxen offen offset:%d %s lds" % (vr(V_IDX + 2 * i, 2), sr(S_X, 4), 1024 * i, SCG) for i in range(4)]


def dma_plain(a, slot):
    a(dma_m0(slot))
    a("s_nop 0")
    for x in dma_loads():
        a(x)


def row_off(X, q):
    return 128 * X + 64 * (q >> 1) + 16 * (q & 1)


def row_reads(dst, addr):
    return ["ds_read_b128 %s, v%d offset:%d" % (vr(dst[X] + 4 * q, 4), addr, row_off(X, q)) for X in range(2) for q in range(4)]


def wa_reg(o, q):
    return (V_WA if o == 0 else V_B[1]) + 4 * q


def wa_reads():
    return ["ds_read_b64_tr_b16 %s, v%d offset:%d" % (vr(wa_reg(o, q) + 2 * i, 2), V_TRA + o, 2048 * q + 512 * i)
            for q in range(4) for o in range(2) for i in range(2)]


NSTAMP = [0]
STAMP_NAMES = []


def stamp(a, name, auto=False):
    if DEBUG == 2 and not auto and name not in ("start", "barW", "barA", "barB", "end"):
        return
    if name in os.environ.get("NOST", "issued iss2 dst stiss piss rec0 placed dma0 ywait xiss preA preB preB2").split():
        return
    if DEBUG:
        au, a.auto = a.auto, 0
        k = len(STAMP_NAMES)
        STAMP_NAMES.append(name)
        cyc = name in ("start", "loop", "last", "end")
        if cyc:
            a("s_memtime s[88:89]")
        a("s_memrealtime s[90:91]")
        a("s_waitcnt lgkmcnt(0)")
        if cyc:
            a("v_writelane_b32 v%d, s88, %d" % (V_ST, k))
        a("v_writelane_b32 v%d, s90, %d" % (V_ST, 32 + k))
        a.auto = au


def stamp_out(a):
    if DEBUG:
        a("s_mov_b64 exec, -1")
        a("s_waitcnt vmcnt(0)")
        stamp(a, "end")
        a("v_lshlrev_b32 v2, 2, v0")
        a("s_lshl_b32 s3, s2, 11")
        a("s_add_u32 s3, s3, %d" % WS_DBG)
        a("v_add_u32 v2, s3, v2")
        a("global_store_dword v2, v%d, %s" % (V_ST, sr(P_WS, 2)))
        if LOOPST:
            a("v_add_u32 v2, 0x80000, v2")
            a("global_store_dword v2, v%d, %s" % (V_ST + 1, sr(P_WS, 2)))


def lds_init(a, t):
    a("v_mov_b32 v%d, 0x%x" % (t, PAD))
    a("v_mov_b32 v%d, 0x%x" % (t + 1, PAD))
    a("v_mov_b32 v%d, 0x%x" % (t + 2, PAD))
    a("v_mov_b32 v%d, 0x%x" % (t + 3, PAD))
    a("v_lshlrev_b32 v%d, 4, v0" % (t + 4))
    n = (L_SEND - L_SLOT) // 16
    for i in range(n // 512):
        a("ds_write_b128 v%d, %s offset:%d" % (t + 4, vr(t, 4), L_SLOT + 8192 * i))
    a("v_cmp_gt_u32 vcc, %d, v0" % (n % 512))
    a("v_lshlrev_b32 v%d, 2, v0" % (t + 5))
    a("s_mov_b32 s%d, %d" % (S_T, SSTR))
    a("v_mov_b32 v%d, %d" % (t + 6, L_SLOT - SSTR))
    a("s_mov_b64 exec, vcc")
    a("ds_write_b128 v%d, %s offset:%d" % (t + 4, vr(t, 4), L_SLOT + 8192 * (n // 512)))
    a("s_mov_b64 exec, -1")
    a("v_mad_u32_u24 v%d, v0, s%d, v%d" % (t + 6, S_T, t + 6))
    a("s_cmp_lt_u32 s%d, %d" % (S_B, N - 97 * 256))
    a("s_addc_u32 s%d, %d, 0" % (S_T, NLOC - 1))
    a("v_cmp_lt_u32 vcc, s%d, v0" % S_T)
    a("v_subrev_u32 v%d, 4, v%d" % (t + 7, t + 6))
    a("v_mov_b32 v%d, %d" % (t + 4, L_FLAG // 4))
    a("v_cndmask_b32 v%d, v%d, v%d, vcc" % (t + 6, t + 6, t + 7))
    a("v_cmp_gt_u32 vcc, v%d, v0" % (t + 4))
    a("v_mov_b32 v%d, %d" % (t + 4, L_ZEND // 4))
    a("v_mov_b32 v%d, 0" % (t + 7))
    a("v_cndmask_b32 v%d, v%d, v%d, vcc" % (t + 6, t + 7, t + 6))
    a("v_cmp_gt_u32 vcc, v%d, v0" % (t + 4))
    a("s_mov_b64 exec, vcc")
    a("ds_write_b32 v%d, v%d" % (t + 5, t + 6))
    a("s_mov_b64 exec, -1")


def lut_build(a, sL, t, off, sbase=None):
    s1 = sL
    sL, s2, sm = S_T + 8, S_T + 9, S_T + 10
    d, k, m, ln, acc, x, y = t, t + 1, t + 2, t + 3, t + 4, t + 5, t + 6
    k64 = t + 8
    o = t + 12
    a("s_add_u32 s%d, s%d, 1" % (sL, s1))
    a("s_lshr_b32 s%d, s%d, 1" % (sL, sL))
    a("s_mul_i32 s%d, s%d, 3" % (s2, sL))
    a("v_subrev_u32 v%d, 1, v%d" % (d, V_LANE))
    a("v_max_i32 v%d, 0, v%d" % (d, d))
    a("v_cmp_lt_u32 vcc, s%d, v%d" % (s1, d))
    a("v_cmp_lt_u32_e64 %s, s%d, v%d" % (sr(sm, 2), s2, d))
    a("v_mov_b32 v%d, 2" % k)
    a("v_mov_b32 v%d, 32768" % m)
    a("v_mov_b32 v%d, 21846" % ln)
    a("v_cndmask_b32_e64 v%d, v%d, 3, vcc" % (k, k))
    a("v_cndmask_b32 v%d, v%d, v%d, vcc" % (m, m, ln))
    a("v_mov_b32 v%d, 16384" % ln)
    a("v_cndmask_b32_e64 v%d, v%d, 4, %s" % (k, k, sr(sm, 2)))
    a("v_cndmask_b32_e64 v%d, v%d, v%d, %s" % (m, m, ln, sr(sm, 2)))
    a("v_add3_u32 v%d, v%d, v%d, -1" % (ln, d, k))
    a("v_mul_u32_u24 v%d, v%d, v%d" % (ln, ln, m))
    a("v_lshrrev_b32 v%d, 16, v%d" % (ln, ln))
    a("v_mov_b32 v%d, 0" % acc)
    for i in range(4):
        a("v_min_u32 v%d, v%d, v%d" % (x, acc, d))
        a("v_sub_u32 v%d, v%d, v%d" % (y, d, x))
        a("v_min_u32 v%d, v%d, v%d" % (y, y, ln))
        if HD:
            a("v_add3_u32 v%d, v%d, v%d, %d" % (x, x, k, 3 - i))
        if HD2:
            a("v_add3_u32 v%d, v%d, v%d, %d" % (x, x, k, -1 - 2 * i))
            a("v_max_i32 v%d, 0, v%d" % (x, x))
            a("v_lshl_or_b32 v%d, v%d, 25, %d" % (x, x, 4 * i))
        else:
            a("v_lshlrev_b32 v%d, 2, v%d" % (x, x))
        a("v_lshl_or_b32 v%d, v%d, 16, v%d" % (o + i, y, x))
        a("v_add_u32 v%d, v%d, v%d" % (acc, acc, ln))
    a("v_lshl_or_b32 v%d, v%d, 22, v%d" % (o, k, o))
    a("v_sub_u32 v%d, s%d, v%d" % (acc, sL, ln))
    a("v_min_u32 v%d, 5, v%d" % (acc, acc))
    a("v_mul_u32_u24 v%d, 10, v%d" % (o + 6, acc))
    a("v_cmp_le_u32 vcc, 3, v%d" % acc)
    a("v_add_u32 v%d, 2, v%d" % (x, o + 6))
    a("v_mov_b32 v%d, v%d" % (k64, k))
    a("v_mov_b32 v%d, 0" % (k64 + 1))
    a("v_cndmask_b32 v%d, v%d, v%d, vcc" % (o + 6, o + 6, x))
    a("v_cmp_ne_u32 vcc, 0, v%d" % V_LANE)
    a("v_lshlrev_b64 %s, v%d, %s" % (vr(o + 4, 2), o + 6, vr(k64, 2)))
    a("v_mov_b32 v%d, 0" % (o + 7))
    a("v_cndmask_b32 v%d, v%d, v%d, vcc" % (o + 4, k64 + 1, o + 4))
    a("v_cndmask_b32 v%d, v%d, v%d, vcc" % (o + 5, k64 + 1, o + 5))
    if sbase is None:
        a("v_lshlrev_b32 v%d, 5, v%d" % (x, V_LANE))
    else:
        a("v_lshl_add_u32 v%d, v%d, 5, s%d" % (x, V_LANE, sbase))
    a("ds_write_b128 v%d, %s offset:%d" % (x, vr(o, 4), off))
    a("ds_write_b128 v%d, %s offset:%d" % (x, vr(o + 4, 4), off + 16))


PAT = os.environ.get('PAT', "MeeeeMeeeMeeeMeeeMeee" if X_TEST & 2 else "MeeeeMeeeMeeeeeeeee")


def me(a, mf, ex, extra=(), pat=PAT):
    mf = list(mf)
    ex = list(ex)
    for c in pat:
        if c == "M":
            if mf:
                a(mf.pop(0))
        else:
            a(ex.pop(0))
    assert not mf and not ex
    for x in extra:
        a(x)


def mf16(d, A, B, first):
    return "v_mfma_f32_16x16x32_bf16 %s, %s, %s, %s" % (vr(d, 4), vr(A, 4), vr(B, 4), "0" if first else vr(d, 4))


def tr_frags(dst, addr, off):
    return ["ds_read_b64_tr_b16 %s, v%d offset:%d" % (vr(dst + 8 * blk + 4 * s + 2 * i, 2), addr, off + 4096 * s + 512 * i + 8 * blk)
            for blk in range(2) for s in range(2) for i in range(2)]


def tile_mfmas(d, A, B):
    out = []
    for s in range(2):
        for tau in range(2):
            for blk in range(2):
                out.append(mf16(d + 8 * tau + 4 * blk, A + 8 * blk + 4 * s, B + 8 * tau + 4 * s, s == 0))
    return out


KNAME = "standalone__mpnn_edge_mlp__graph_kernel"


def gen(a):
    COL, HH = V_T0, V_T0 + 1
    a.raw(".globl %s\n.p2align 12\n.type %s,@function" % (KNAME, KNAME))
    a.label(KNAME)
    a("s_cmp_ge_u32 s2, %d" % NB)
    a("s_cbranch_scc1 L_end")
    a("s_load_dwordx16 s[64:79], s[0:1], 0")
    a("s_load_dwordx2 s[80:81], s[0:1], 64")
    if DEBUG:
        a("v_mov_b32 v%d, 0" % V_ST)
        a("v_mov_b32 v%d, 0" % (V_ST + 1))
        stamp(a, "start")
        if DEBUG == 2:
            a.auto = env('AUTO', 24)
    DST, SRC, EV = V_N[0], V_N[0] + 8, V_N[1]
    AD, RK, O1, O2 = V_N[1] + 8, V_D[0], V_D[0] + 8, V_D[1]
    W3 = V_D[1] + 8
    DO, EO = V_D[1] + 10, V_N[1] + 4
    XA, WAD = V_D[1] + 12, V_D[1] + 14
    T16 = V_D[1] + 15
    WUD = V_N[1] + 6
    ZR = V_T[1]
    a("v_lshrrev_b32 v2, 6, v0")
    a("s_mul_i32 s40, s2, 3125")
    a("v_readfirstlane_b32 s%d, v2" % S_W)
    a("s_lshr_b32 s41, s40, 3")
    a("s_add_u32 s40, s40, 3125")
    a("s_lshr_b32 s40, s40, 3")
    a("s_sub_u32 s40, s40, s41")
    if PADS:
        a("s_cmp_eq_u32 s%d, 7" % S_W)
        a("s_cbranch_scc1 L_touch")
        a.label("L_back7")
    a("v_lshlrev_b32 v%d, 4, v0" % T16)
    a("s_lshl_b32 s41, s41, 5")
    a("v_add_u32 v%d, s41, v%d" % (DO, T16))
    a("s_lshl_b32 s3, s40, 4")
    a("v_add_u32 v%d, s3, v%d" % (DO + 1, DO))
    a("v_cmp_gt_u32_e64 %s, s40, v0" % sr(S_EM, 2))
    for i in range(4):
        a("v_mov_b32 v%d, 0" % (ZR + i))
    a("v_lshrrev_b32 v%d, 1, v%d" % (EO, DO))
    a("v_lshrrev_b32 v%d, 1, v%d" % (EO + 1, DO + 1))
    a("v_and_b32 v%d, 63, v0" % V_LANE)
    a("v_lshlrev_b32 v%d, 4, v%d" % (V_L16, V_LANE))
    a("s_cmp_eq_u32 s%d, 7" % S_W)
    a("s_waitcnt lgkmcnt(0)")
    a("s_cbranch_scc1 L_clr")
    a("s_mov_b64 exec, %s" % sr(S_EM, 2))
    a("global_load_dwordx4 %s, v%d, %s %s" % (vr(DST, 4), DO, sr(P_DST, 2), LD_IN))
    a("global_load_dwordx4 %s, v%d, %s %s" % (vr(DST + 4, 4), DO + 1, sr(P_DST, 2), LD_IN))
    a("s_mov_b64 exec, -1")
    stamp(a, "issued")
    for i in range(3):
        a("ds_write_b128 v%d, %s offset:%d" % (T16, vr(ZR, 4), L1_CNT + 7168 * i))
    def se_loads():
        a("s_mov_b64 exec, %s" % sr(S_EM, 2))
        a("global_load_dwordx4 %s, v%d, %s %s" % (vr(SRC, 4), DO, sr(P_SRC, 2), LD_IN))
        a("global_load_dwordx4 %s, v%d, %s %s" % (vr(SRC + 4, 4), DO + 1, sr(P_SRC, 2), LD_IN))
        a("global_load_dwordx2 %s, v%d, %s %s" % (vr(EV, 2), EO, sr(P_E, 2), LD_IN))
        a("global_load_dwordx2 %s, v%d, %s %s" % (vr(EV + 2, 2), EO + 1, sr(P_E, 2), LD_IN))
        a("s_mov_b64 exec, -1")

    if SPOS == -1:
        se_loads()
    if SDEL:
        a("s_sleep %d" % SDEL)
    if SDE:
        a("s_bitcmp1_b32 s2, 2")
        a("s_cbranch_scc1 L_sde")
        a("s_sleep %d" % SDE)
        a.label("L_sde")
    if SPOS == 0:
        se_loads()
    stamp(a, "iss2")
    a("s_branch L_setup")
    if PADS:
        a.label("L_touch")
        if not CPAD and SV == 2:
            a("s_and_b32 s3, s2, %s" % CLM)
            a("s_cbranch_scc0 L_back7")
        elif not CPAD:
            a("s_cmp_lt_u32 s2, %d" % NCLR)
            a("s_cbranch_scc1 L_back7")

        def tree(lo, n, bit):
            if n == 1:
                a("s_branch L_pad%d" % (lo % len(PADA)))
                return
            a("s_bitcmp1_b32 s2, %d" % bit)
            if n == 2:
                a("s_cbranch_scc1 L_pad%d" % ((lo + 1) % len(PADA)))
                tree(lo, 1, 0)
                return
            a("s_cbranch_scc1 L_tr%d_%d" % (lo + n // 2, n // 2))
            tree(lo, n // 2, bit + 1)
            a.label("L_tr%d_%d" % (lo + n // 2, n // 2))
            tree(lo + n // 2, n // 2, bit + 1)

        tree(0, 8 if len(PADA) <= 8 else 16, 3)
    a.label("L_clr")
    if TOUCH & 2:
        a("s_bfe_u32 s3, s2, 0x10003")
        a("s_lshl_b32 s3, s3, 13")
        a("v_lshl_add_u32 v2, v%d, 7, s3" % V_LANE)
        a("global_load_dword v%d, v2, %s" % (V_TAB, sr(P_WU, 2)))
        a("global_load_dword v%d, v2, %s" % (V_TAB + 1, sr(P_WM, 2)))
    if TOUCH & 4:
        a("v_mul_u32_u24 v2, %d, v%d" % (N * 128 // 64, V_LANE))
        a("global_load_dword v%d, v2, %s" % (V_TAB + 2, sr(P_X, 2)))
    if TOUCH & 1:
        a("v_lshlrev_b32 v2, 18, v%d" % V_LANE)
        a("s_mov_b64 exec, 0x1fff")
        a("global_load_dword v%d, v2, %s" % (V_TAB, sr(P_OUT, 2)))
        a("s_mov_b64 exec, 1")
        a("global_load_dword v%d, v2, %s" % (V_TAB + 1, sr(P_DBG, 2)))
        a("s_mov_b32 exec_lo, -1")
        a("s_mov_b32 exec_hi, 15")
        a("global_load_dword v%d, v2, %s" % (V_TAB + 2, sr(P_WS, 2)))
        a("s_mov_b64 exec, -1")
    CI = 2
    if SV == 2:
        CI = S_CI
        a("s_lshr_b32 s3, s2, 1")
        a("s_and_b32 s3, s3, 0x1c")
        a("s_and_b32 s%d, s2, 3" % CI)
        a("s_or_b32 s%d, s%d, s3" % (CI, CI))
        a("s_and_b32 s3, s2, %s" % CLM)
        a("s_cbranch_scc1 L_clr2")
    elif SV:
        a("s_cmp_ge_u32 s2, %d" % NCLR)
        a("s_cbranch_scc1 L_clr2")
    else:
        a("s_cmp_ge_u32 s2, %d" % NCLR)
        a("s_cbranch_scc1 %s" % ("L_b0" if W7B else "L_setup"))
    if CDEL:
        a("s_sleep %d" % CDEL)
    if SV == 2:
        a("s_mul_i32 s3, s%d, %d" % (CI, 0x40000 // NC2))
        a("s_add_u32 s3, s3, %d" % (WS_TAB + 2048))
        a("v_add_u32 v2, s3, v%d" % V_L16)
        a("s_mov_b32 s3, %d" % (64 // NC2 - 1))
        a.label("L_clr1")
        for i in range(4):
            a("global_store_dwordx4 v2, %s, %s offset:%d %s" % (vr(ZR, 4), sr(P_WS, 2), 1024 * i - 2048, SC))
        a("v_add_u32 v2, 4096, v2")
        a("s_sub_u32 s3, s3, 1")
        a("s_cbranch_scc0 L_clr1")
    else:
        a("s_lshl_b32 s3, s%d, 13" % CI)
        a("s_add_u32 s3, s3, %d" % (WS_TAB + 4096))
        a("v_add_u32 v2, s3, v%d" % V_L16)
        a("s_lshl_b32 s3, s%d, %d" % (CI, 10 if PTL else 7))
        a("s_add_u32 s3, s3, %d" % WS_PT)
        a("v_add_u32 v3, s3, v%d" % V_L16)
        for i in range(8):
            a("global_store_dwordx4 v2, %s, %s offset:%d %s" % (vr(ZR, 4), sr(P_WS, 2), 1024 * i - 4096, SC))
        if not PTL:
            a("s_mov_b64 exec, 0xff")
        a("global_store_dwordx4 v3, %s, %s %s" % (vr(ZR, 4), sr(P_WS, 2), SC))
        a("s_mov_b64 exec, -1")
    if SV:
        a.label("L_clr2")
        if RDEL:
            a("s_sleep %d" % RDEL)
        a("s_mul_i32 s3, s2, %d" % RSZ)
        a("v_add_u32 v2, s3, v%d" % V_L16)
        a("s_mov_b32 s3, %d" % (RSZ // 2048 - 1))
        a.label("L_clr3")
        a("global_store_dwordx4 v2, %s, %s %s" % (vr(ZR, 4), sr(P_WS, 2), SC))
        a("global_store_dwordx4 v2, %s, %s offset:1024 %s" % (vr(ZR, 4), sr(P_WS, 2), SC))
        a("v_add_u32 v2, 2048, v2")
        a("s_sub_u32 s3, s3, 1")
        a("s_cbranch_scc0 L_clr3")
    if W7B:
        a.label("L_b0")
        a("s_barrier")
    a.label("L_setup")
    a("s_and_b32 s%d, s2, 7" % S_B)
    a("s_lshl_b32 s%d, s%d, 5" % (S_B, S_B))
    a("s_lshr_b32 s3, s2, 3")
    a("s_add_u32 s%d, s%d, s3" % (S_B, S_B))
    a("s_lshl_b32 s43, s%d, 11" % S_W)
    a("v_and_b32 v2, 7, v%d" % V_LANE)
    a("v_lshrrev_b32 v3, 4, v%d" % V_LANE)
    a("v_xor_b32 v3, v2, v3")
    a("v_lshlrev_b32 v%d, 4, v3" % (V_IDX + 7))
    a("v_xor_b32 v%d, 64, v%d" % (V_IDX + 5, V_IDX + 7))
    a("v_and_b32 v%d, 31, v%d" % (COL, V_LANE))
    a("v_lshrrev_b32 v%d, 5, v%d" % (HH, V_LANE))
    a("v_and_b32 v2, 19, v%d" % COL)
    a("v_bfe_u32 v3, v%d, 2, 1" % COL)
    a("v_lshl_or_b32 v2, v3, 3, v2")
    a("v_bfe_u32 v3, v%d, 3, 1" % COL)
    a("v_lshl_or_b32 v%d, v3, 2, v2" % (V_T0 + 2))
    a("v_lshlrev_b32 v%d, 1, v%d" % (V_T0 + 5, V_T0 + 2))
    a("s_mov_b32 s%d, s%d" % (S_WS, P_WS))
    a("s_mov_b32 s%d, s%d" % (S_WS + 1, P_WS + 1))
    a("s_mov_b32 s%d, %d" % (S_WS + 2, WS_SIZE))
    a("s_mov_b32 s%d, 0x00020000" % (S_WS + 3))
    a("s_add_u32 s%d, s%d, %d" % (S_X, P_WS, WS_P - 3072))
    a("s_addc_u32 s%d, s%d, 0" % (S_X + 1, P_WS + 1))
    a("s_and_b32 s%d, s%d, 0xffff" % (S_X + 1, S_X + 1))
    a("s_or_b32 s%d, s%d, 0x%x" % (S_X + 1, S_X + 1, 128 << 16))
    a("s_mov_b32 s%d, %d" % (S_X + 2, NP))
    a("s_mov_b32 s%d, 0x00020000" % (S_X + 3))
    a("s_mov_b32 s%d, s%d" % (S_OUT, P_OUT))
    a("s_mov_b32 s%d, s%d" % (S_OUT + 1, P_OUT + 1))
    a("s_mov_b32 s%d, %d" % (S_OUT + 2, N * 128))
    a("s_mov_b32 s%d, 0x00020000" % (S_OUT + 3))
    a("s_mov_b32 s%d, 0x%08x" % (S_LG, f32(-LOG2E)))
    a("s_mov_b32 s%d, 0x%08x" % (S_LG + 1, f32(-LOG2E)))
    XB, TA, QW = V_RA, V_LEN, V_YW
    PW, PR, PA = V_QA, V_NW, V_S
    TA2, PW2, XP = V_WA, V_WA + 1, V_WA + 2
    a("s_and_b32 s48, s%d, 3" % S_W)
    a("s_lshr_b32 s49, s%d, 2" % S_W)
    a("v_and_b32 v2, 15, v%d" % V_LANE)
    a("v_lshrrev_b32 v3, 4, v%d" % V_LANE)
    a("v_lshrrev_b32 v%d, 1, v2" % XB)
    a("v_xor_b32 v%d, v%d, v3" % (XB, XB))
    a("v_lshlrev_b32 v%d, 4, v%d" % (XB, XB))
    a("v_lshl_add_u32 v%d, v2, 7, v%d" % (XB, XB))
    a("s_add_u32 s3, s43, %d" % L1_X)
    a("v_add_u32 v%d, s3, v%d" % (XP, XB))
    a("v_xor_b32 v%d, 64, v%d" % (XP + 1, XP))
    a("s_lshl_b32 s3, s48, 12")
    a("s_add_u32 s3, s3, %d" % L1_X)
    a("v_add_u32 v%d, s3, v%d" % (XB, XB))
    a("v_xor_b32 v%d, 64, v%d" % (V_RC, XB))
    a("s_lshl_b32 s46, s49, 2")
    a("v_or_b32 v%d, s46, v3" % PW)
    a("v_xor_b32 v%d, v%d, v2" % (PW, PW))
    a("v_and_b32 v%d, 7, v%d" % (PW, PW))
    a("v_lshlrev_b32 v%d, 4, v%d" % (PW, PW))
    a("v_lshl_add_u32 v%d, v2, 7, v%d" % (PW, PW))
    a("s_add_u32 s45, s43, %d" % L1_P)
    a("v_add_u32 v%d, s45, v%d" % (PW, PW))
    a("v_xor_b32 v%d, 64, v%d" % (PW2, PW))
    a("s_lshl_b32 s3, s48, 5")
    a("v_add_u32 v2, s3, v2")
    a("v_cmp_gt_u32 vcc, %d, v2" % NLOC)
    a("s_lshl_b32 s3, s49, 7")
    a("s_add_u32 s3, s3, %d" % L_Q)
    a("v_lshl_add_u32 v%d, v3, 5, s3" % QW)
    a("s_mov_b64 %s, vcc" % sr(S_QM, 2))
    a("v_cmp_gt_u32 vcc, %d, v2" % (NLOC - 16))
    a("s_mov_b32 s3, %d" % RSTR)
    a("v_mad_u32_u24 v%d, v2, s3, v%d" % (QW, QW))
    a("s_mov_b64 %s, vcc" % sr(S_QM + 2, 2))
    a("v_bfe_u32 v2, v%d, 2, 2" % V_LANE)
    a("v_lshl_add_u32 v3, v3, 3, v2")
    a("v_lshrrev_b32 v2, 1, v2")
    a("v_xor_b32 v%d, s49, v2" % TA)
    a("v_lshlrev_b32 v%d, 6, v%d" % (TA, TA))
    a("v_lshl_add_u32 v%d, v3, 7, v%d" % (TA, TA))
    a("v_and_b32 v3, 3, v%d" % V_LANE)
    a("v_lshl_add_u32 v%d, v3, 4, v%d" % (TA, TA))
    a("v_add_u32 v%d, %d, v%d" % (TA, L1_W1, TA))
    a("v_xor_b32 v%d, 64, v%d" % (TA2, TA))
    a("v_lshrrev_b32 v2, 3, v%d" % V_LANE)
    a("s_lshl_b32 s3, s%d, 4" % S_W)
    a("v_add_u32 v3, s3, v2")
    a("s_mul_i32 s3, s%d, %d" % (S_B, NLOC))
    a("v_cmp_gt_u32 vcc, %d, v3" % NLOC)
    a("v_add_u32 v%d, s3, v3" % PA)
    a("s_cmp_lt_u32 s%d, 6" % S_W)
    a("s_cselect_b32 s3, 8, 0x10000")
    a("v_add_u32 v%d, s3, v%d" % (V_R, PA))
    a("v_cndmask_b32 v%d, -1, v%d, vcc" % (PA, PA))
    a("v_and_b32 v3, 0x70, v%d" % T16)
    a("v_add_u32 v%d, 3072, v3" % (PA + 1))
    a("v_mov_b32 v%d, v%d" % (V_R + 1, PA + 1))
    a("v_lshlrev_b32 v2, 4, v2")
    a("v_xor_b32 v%d, v2, v%d" % (PR, V_L16))
    a("v_add_u32 v%d, s45, v%d" % (PR, PR))
    if SPOS == 1:
        se_loads()
    lds_init(a, V_U)
    a("s_mov_b32 s%d, 0" % S_MODE)
    a("s_sub_u32 s3, 11, s%d" % S_W)
    a("s_cmp_lt_u32 s%d, 4" % S_W)
    a("s_cselect_b32 s%d, s%d, s3" % (S_BT, S_W))
    a("s_mul_i32 s%d, s%d, %d" % (S_XT, S_BT, XSTR))
    a("s_add_u32 s%d, s%d, %d" % (S_XT, S_XT, L_XT))
    a("s_add_u32 s%d, s%d, 4096" % (S_XT1, S_XT))
    a("s_mov_b32 s%d, 1.0" % S_ONE)
    a("s_mov_b32 s%d, 1.0" % (S_ONE + 1))
    a("s_mov_b32 s%d, %d" % (S_TO, POLLS))
    a("v_add_u32 v%d, 3072, v%d" % (V_IDX + 1, V_IDX + 7))
    a("v_add_u32 v%d, 2048, v%d" % (V_IDX + 3, V_IDX + 5))
    a("v_add_u32 v%d, 1024, v%d" % (V_IDX + 5, V_IDX + 7))
    a("v_xor_b32 v%d, 64, v%d" % (V_IDX + 7, V_IDX + 7))
    a("v_bfe_u32 v2, v%d, 1, 3" % COL)
    a("v_xor_b32 v2, v2, v%d" % HH)
    a("v_lshlrev_b32 v2, 4, v2")
    a("v_lshl_add_u32 v3, v%d, 7, s%d" % (COL, S_XT))
    for k in range(4):
        a("v_xor_b32 v%d, %d, v2" % (V_BAD + k, 32 * k))
        a("v_add_u32 v%d, v3, v%d" % (V_BAD + k, V_BAD + k))
    if SMF:
        a("v_lshrrev_b32 v2, 4, v%d" % COL)
        a("v_xor_b32 v2, v2, v%d" % HH)
        a("v_bfe_u32 v3, v%d, 2, 2" % (V_T0 + 2))
        a("v_lshl_or_b32 v2, v2, 2, v3")
        a("v_and_b32 v3, 3, v%d" % COL)
        a("v_mov_b32 v%d, 0x5555" % (V_T0 + 4))
        a("v_mul_u32_u24 v%d, v3, v%d" % (V_ID + 4, V_T0 + 4))
        a("v_mov_b32 v3, 0x3f80")
        for i in range(2):
            a("v_cmp_eq_u32 vcc, %d, v2" % (2 * i))
            a("v_cmp_eq_u32_e64 s[48:49], %d, v2" % (2 * i + 1))
            a("s_nop 0")
            a("v_cndmask_b32 v%d, 0, v3, vcc" % (V_ID + 2 * i))
            a("v_cndmask_b32_e64 v%d, 0, v3, s[48:49]" % (V_ID + 2 * i + 1))
    else:
        a("v_bfe_u32 v2, v%d, 3, 1" % (V_T0 + 2))
        a("v_xor_b32 v2, v2, v%d" % HH)
        a("v_bfe_u32 v3, v%d, 1, 2" % (V_T0 + 2))
        a("v_lshl_or_b32 v2, v2, 4, v3")
        a("v_lshrrev_b32 v3, 4, v%d" % COL)
        a("v_lshl_or_b32 v2, v3, 2, v2")
        a("v_and_b32 v3, 1, v%d" % COL)
        a("v_lshlrev_b32 v3, 4, v3")
        a("v_mov_b32 v%d, 0x3f80" % (V_T0 + 4))
        a("v_lshlrev_b32 v3, v3, v%d" % (V_T0 + 4))
        for i in range(4):
            a("v_cmp_eq_u32 vcc, %d, v2" % (2 * i))
            a("v_cmp_eq_u32_e64 s[48:49], %d, v2" % (2 * i + 1))
            a("s_nop 0")
            a("v_cndmask_b32 v%d, 0, v3, vcc" % (V_ID + 2 * i))
            a("v_cndmask_b32_e64 v%d, 0, v3, s[48:49]" % (V_ID + 2 * i + 1))
    a("v_bfe_u32 v2, v%d, 2, 2" % V_LANE)
    a("v_lshl_add_u32 v3, v%d, 3, v2" % HH)
    a("v_lshlrev_b32 v3, 7, v3")
    a("v_lshrrev_b32 v2, 1, v2")
    a("v_lshl_or_b32 v3, v2, 6, v3")
    a("v_bfe_u32 v2, v%d, 4, 1" % V_LANE)
    a("v_lshl_or_b32 v3, v2, 5, v3")
    a("v_and_b32 v2, 1, v%d" % V_LANE)
    a("v_lshl_or_b32 v3, v2, 4, v3")
    a("v_bfe_u32 v2, v%d, 1, 1" % V_LANE)
    a("v_lshl_or_b32 v3, v2, 3, v3")
    a("v_xor_b32 v2, 64, v3")
    a("v_add_u32 v%d, %d, v3" % (V_TRA, L_WA))
    a("v_add_u32 v%d, %d, v2" % (V_TRA + 1, L_WA))
    a("s_lshl_b32 s3, s%d, %d" % (S_BT, 7 + HD))
    a("s_add_u32 s3, s3, s%d" % S_XT)
    a("v_lshl_add_u32 v%d, v%d, %d, s3" % (V_T0 + 3, COL, 2 + HD))
    if (HD or HD2) and HPW:
        a("v_and_b32 v2, 255, v0")
        a("v_min_u32 v3, 98, v2")
        a("v_mul_u32_u24 v%d, %d, v3" % (V_HO, SSTR))
        a("v_lshrrev_b32 v2, 1, v2")
        a("v_min_u32 v2, 98, v2")
        a("v_mul_u32_u24 v2, %d, v2" % SSTR)
        a("v_and_b32 v3, 1, v0")
        a("v_lshl_add_u32 v%d, v3, 2, v2" % V_HA)
    elif HD or HD2:
        a("v_lshrrev_b32 v2, 2, v0")
        a("v_min_u32 v2, 98, v2")
        a("v_mul_u32_u24 v2, %d, v2" % SSTR)
        a("v_and_b32 v3, 3, v0")
        a("v_min_u32 v3, 2, v3")
        a("v_lshl_add_u32 v%d, v3, 2, v2" % V_HA)
    if XL:
        a("v_lshrrev_b32 v2, 3, v%d" % V_LANE)
        if X_TEST & 64:
            a("s_mul_i32 s3, s%d, %d" % (S_B, NLOC))
            a("s_lshl_b32 s42, s%d, 4" % S_W)
            a("s_add_u32 s3, s3, s42")
            a("v_add_u32 v2, s3, v2")
            a("v_add_u32 v3, 8, v2")
        else:
            a("s_lshl_b32 s3, s%d, 12" % S_W)
            a("s_add_u32 s3, s3, s%d" % S_B)
            a("v_lshl_add_u32 v2, v2, 8, s3")
            a("v_add_u32 v3, 2048, v2")
        a("v_min_u32 v2, %d, v2" % (N - 1))
        a("v_min_u32 v3, %d, v3" % (N - 1))
        a("v_lshl_add_u32 v%d, v2, 7, v%d" % (XA, V_IDX + 7))
        a("v_lshl_add_u32 v%d, v3, 7, v%d" % (XA + 1, V_IDX + 7))
        a("v_xor_b32 v%d, 64, v%d" % (XA, XA))
        a("v_subrev_u32 v%d, 1024, v%d" % (XA + 1, XA + 1))
        a("v_and_b32 v2, 16, v%d" % V_LANE)
        a("v_lshlrev_b32 v2, 2, v2")
        a("v_xor_b32 v%d, v2, v%d" % (WAD, T16))
        a("s_lshr_b32 s42, s43, 1")
        a("s_add_u32 s42, s42, %d" % L1_W1)
    def xw1_loads(first=False):
        if XE:
            a("%s exec, %s" % ("s_mov_b64" if first else "s_not_b64", sr(S_XE, 2)))
        xw1_loads0()
        if XE:
            a("s_mov_b64 exec, -1")

    def xw1_loads0():
        a("s_mov_b32 m0, s42")
        a("v_add_u32 v%d, 8192, v%d" % (DO, WAD))
        a("global_load_lds_dwordx4 v%d, %s" % (WAD, sr(P_WM, 2)))
        a("s_add_u32 m0, s43, %d" % L1_X)
        a("s_nop 0")
        a("global_load_lds_dwordx4 v%d, %s" % (XA, sr(P_X, 2)))
        a("global_load_lds_dwordx4 v%d, %s offset:1024" % (XA + 1, sr(P_X, 2)))

    if XE:
        if XE == 1:
            a("s_bitcmp1_b32 s2, 2")
        else:
            a("s_cmp_eq_u32 s2, s2")
        a("s_cselect_b64 %s, -1, 0" % sr(S_XE, 2))
        xw1_loads(True)
    TAD, UC, TP = V_IA, V_IA + 1, V_IA + 2
    a("v_lshrrev_b32 v2, 3, v0")
    a("v_lshlrev_b32 v%d, %d, v2" % (TAD, TBL + 4))
    a("v_and_b32 v2, 7, v0")
    a("v_mov_b32 v3, 0x%x" % ((16 - (1 << 23)) & 0xffffffff))
    a("v_mul_lo_u32 v2, v2, v3")
    a("v_subrev_u32 v%d, 0x%x, v2" % (UC, (1 << 23) + (1 << 31)))
    a("s_lshl_b32 s3, s2, %d" % (TBL + 2))
    a("s_add_u32 s3, s3, %d" % WS_TAB)
    if TBL == 8:
        a("v_add_u32 v%d, s3, v%d" % (TP, V_L16))
    elif TBL == 2:
        a("v_lshl_add_u32 v%d, v%d, 12, s3" % (TP, V_LANE))
    else:
        a("v_lshrrev_b32 v2, %d, v%d" % (TBL - 2, V_LANE))
        a("v_lshl_add_u32 v%d, v2, %d, s3" % (TP, TBL + 10))
        a("v_and_b32 v2, %d, v%d" % ((4 << TBL) - 1, V_L16))
        a("v_add_u32 v%d, v2, v%d" % (TP, TP))
    a("s_lshr_b32 s47, s%d, %d" % (S_B, TBL))
    a("s_lshl_b32 s47, s47, %d" % (TBL + 8))
    a("s_and_b32 s3, s%d, %d" % (S_B, (1 << TBL) - 1))
    a("s_add_u32 s47, s47, s3")
    a("s_lshl_b32 s47, s47, 2")
    a("s_add_u32 s47, s47, %d" % WS_TAB)
    a("s_mov_b32 s%d, 0" % S_EXTRA)
    a("s_mul_i32 s52, s2, %d" % RSZ)
    a("s_or_b32 s53, s52, 0x80000000")
    a("s_mov_b32 s51, 21846")
    a("s_mov_b32 s50, %d" % (4 if X_TEST & 1 else NLOC))
    FLG, FA, SF = V_T[0], V_T[0] + 1, V_T[0] + 2
    if SV == 2:
        a("v_and_b32 v%d, %d, v%d" % (FA, NC2 - 1, V_LANE))
        a("v_lshlrev_b32 v%d, %d, v%d" % (FA, 9 - NC2.bit_length(), FA))
    else:
        a("v_lshlrev_b32 v%d, 2, v%d" % (FA, V_LANE))
    a("s_mov_b32 s%d, %d" % (S_PCK, 1 << 22))
    a("s_mov_b32 s%d, 0" % S_ST)
    if SV == 2:
        a("s_mul_i32 s3, s%d, %d" % (S_W, 32 * RSZ))
        a("v_mul_u32_u24 v%d, %d, v%d" % (V_PF, RSZ, COL))
        a("s_add_u32 s3, s3, %d" % (RSZ - 128))
        a("v_add_u32 v%d, s3, v%d" % (V_PF, V_PF))
    elif PTL:
        a("s_lshl_b32 s3, s%d, 12" % S_W)
        a("s_add_u32 s3, s3, %d" % WS_PT)
        a("v_lshl_add_u32 v%d, v%d, 7, s3" % (V_PF, COL))
    else:
        a("v_add_u32 v%d, %d, v%d" % (V_PF, WS_PT, V_L16))
    a("s_cmp_eq_u32 s%d, 7" % S_W)
    if SPOS == 2:
        se_loads()
    stamp(a, "setup")
    a.auto = 0
    a("v_mov_b32 v2, 1")
    a("s_waitcnt lgkmcnt(0)")
    a("s_barrier")
    stamp(a, "bar0")
    a("s_cbranch_scc1 L_w7f")
    if SPOS == 3:
        se_loads()
    a("s_mov_b64 exec, %s" % sr(S_EM, 2))
    for i in range(8):
        if i % 4 == 0:
            a("s_waitcnt vmcnt(%d)" % (5 - i // 4 + (3 if XE else 0)))
            if i == 0:
                stamp(a, "dst")
        a("v_lshlrev_b32_sdwa v%d, 2, v%d dst_sel:DWORD dst_unused:UNUSED_PAD src0_sel:DWORD src1_sel:BYTE_0" % (AD + i, DST + i))
        a("ds_add_rtn_u32 v%d, v%d, v2 offset:%d" % (RK + i, AD + i, L1_CNT))
    for i in range(8):
        a("v_lshrrev_b32 v%d, 8, v%d" % (DST + i, DST + i))
        a("v_add_u32 v%d, 1, v%d" % (DST + i, DST + i))
    for i in range(4):
        a("s_waitcnt lgkmcnt(%d)" % (7 - i))
        a("v_mul_u32_u24 v%d, s51, v%d" % (O1 + i, RK + i))
        a("v_lshrrev_b32 v%d, 16, v%d" % (O1 + i, O1 + i))
        a("v_mad_u32_u24 v%d, v%d, 13, v%d" % (O2 + i, O1 + i, RK + i))
        a("v_add_lshl_u32 v%d, v%d, v%d, 2" % (O1 + i, O1 + i, RK + i))
    a("s_mov_b64 exec, -1")
    if XL == 2 and XPOS == 1:
        xw1_loads()
    a("s_cmp_eq_u32 s%d, %d" % (S_W, 7 if SV == 2 else 6))
    a("s_waitcnt lgkmcnt(0)")
    stamp(a, "preA")
    a("s_barrier")
    stamp(a, "barA")
    CN = V_U
    SC_ = V_U + 4
    STV = V_U + 8
    W2F, WXF = V_C[1], V_C[0]
    QD, RD = V_B[1], V_T[1]
    XF = V_B[0]
    if XDE:
        a("s_bitcmp1_b32 s2, 2")
        a("s_cbranch_scc1 L_xde")
        a("s_sleep %d" % XDE)
        a.label("L_xde")
    a("ds_read_b128 %s, v%d offset:%d" % (vr(CN, 4), V_L16, L1_CNT))
    if XL == 2 and XPOS == 0:
        xw1_loads()
        a("s_cmp_eq_u32 s%d, %d" % (S_W, 7 if SV == 2 else 6))
    if SV == 2:
        a.label("L_A2")
    for i in range(4, 8):
        a("v_mul_u32_u24 v%d, s51, v%d" % (O1 + i, RK + i))
        a("v_lshrrev_b32 v%d, 16, v%d" % (O1 + i, O1 + i))
    a("s_waitcnt lgkmcnt(0)")
    for i in range(4):
        a("v_add_u32 v%d, 2, v%d" % (CN + i, CN + i))
        a("v_mul_u32_u24 v%d, s51, v%d" % (CN + i, CN + i))
        a("v_lshrrev_b32 v%d, 16, v%d" % (CN + i, CN + i))
    a("v_add_u32 v%d, v%d, v%d" % (SC_, CN, CN + 1))
    a("v_add_u32 v%d, v%d, v%d" % (SC_ + 1, SC_, CN + 2))
    a("v_add_u32 v%d, v%d, v%d" % (SC_ + 2, SC_ + 1, CN + 3))
    a("v_mov_b32 v%d, v%d" % (SC_ + 3, SC_ + 2))
    dpp_scan(a, [SC_ + 3], fill=["v_mad_u32_u24 v%d, v%d, 13, v%d" % (O2 + i, O1 + i, RK + i) for i in range(4, 8)] +
             ["v_add_lshl_u32 v%d, v%d, v%d, 2" % (O1 + i, O1 + i, RK + i) for i in range(4, 8)] +
             ["v_min_u32 v%d, 255, v%d" % (V_TAB + i, CN + i) for i in range(4)])
    a("v_sub_u32 v%d, v%d, v%d" % (STV, SC_ + 3, SC_ + 2))
    a("v_add_lshl_u32 v%d, v%d, v%d, 4" % (STV + 1, STV, CN))
    a("v_add_lshl_u32 v%d, v%d, v%d, 4" % (STV + 2, STV, SC_))
    a("v_add_lshl_u32 v%d, v%d, v%d, 4" % (STV + 3, STV, SC_ + 1))
    a("v_lshlrev_b32 v%d, 4, v%d" % (STV, STV))
    if SV == 2:
        a("s_cbranch_scc1 L_w7g")
    a("v_readlane_b32 s54, v%d, 63" % (SC_ + 3))
    a("ds_write_b128 v%d, %s offset:%d" % (V_L16, vr(STV, 4), L1_START))
    a("s_mov_b64 exec, %s" % sr(S_EM, 2))
    for i in range(8):
        a("ds_read_b32 v%d, v%d offset:%d" % (RK + i, AD + i, L1_START))
    if B8E:
        for i in range(8):
            a("s_waitcnt lgkmcnt(7)")
            a("v_add_u32 v%d, v%d, v%d" % (O2 + i, O2 + i, RK + i))
            a("v_add_u32 v%d, v%d, v%d" % (O1 + i, O1 + i, RK + i))
            a("ds_write_b8 v%d, v%d offset:%d" % (O2 + i, DST + i, L1_STAGE + 12))
        NX = 3 if XL == 2 and XPOS < 2 else 0
        if XE:
            NX += 3
        RE = V_T[1]
        for hh in range(2):
            a("s_waitcnt vmcnt(%d)" % (NX + 3 - hh))
            for k in range(4 * hh, 4 * hh + 4):
                a("v_mul_u32_u24_sdwa v%d, v%d, s50 dst_sel:DWORD dst_unused:UNUSED_PAD src0_sel:BYTE_0 src1_sel:DWORD" % (AD + k, SRC + k))
        for hh in range(2):
            a("s_waitcnt vmcnt(%d)" % (NX + 1 - hh))
            if hh:
                stamp(a, "src")
            for i in range(4 * hh, 4 * hh + 4, 2):
                a("v_lshlrev_b32 v%d, 16, v%d" % (RE + i // 2, EV + i // 2))
            for i in range(4 * hh, 4 * hh + 4, 2):
                a("v_add_u32_sdwa v%d, v%d, v%d dst_sel:WORD_0 dst_unused:UNUSED_PRESERVE src0_sel:DWORD src1_sel:BYTE_1" % (RE + i // 2, AD + i, SRC + i))
                a("v_add_u32_sdwa v%d, v%d, v%d dst_sel:WORD_0 dst_unused:UNUSED_PRESERVE src0_sel:DWORD src1_sel:BYTE_1" % (EV + i // 2, AD + i + 1, SRC + i + 1))
            for i in range(4 * hh, 4 * hh + 4):
                a("ds_write_b32 v%d, v%d offset:%d" % (O1 + i, (EV if i & 1 else RE) + i // 2, L1_STAGE))
    else:
        a("s_waitcnt vmcnt(%d)" % (3 if XL == 2 else 0))
        stamp(a, "src")
        for k in range(8):
            a("v_mul_u32_u24_sdwa v%d, v%d, s50 dst_sel:DWORD dst_unused:UNUSED_PAD src0_sel:BYTE_0 src1_sel:DWORD" % (AD + k, SRC + k))
        RE = V_T[1]
        for i in range(0, 8, 2):
            a("v_lshlrev_b32 v%d, 16, v%d" % (RE + i // 2, EV + i // 2))
        for i in range(0, 8, 2):
            a("v_add_u32_sdwa v%d, v%d, v%d dst_sel:WORD_0 dst_unused:UNUSED_PRESERVE src0_sel:DWORD src1_sel:BYTE_1" % (RE + i // 2, AD + i, SRC + i))
            a("v_add_u32_sdwa v%d, v%d, v%d dst_sel:WORD_0 dst_unused:UNUSED_PRESERVE src0_sel:DWORD src1_sel:BYTE_1" % (EV + i // 2, AD + i + 1, SRC + i + 1))
        for i in range(8):
            a("s_waitcnt lgkmcnt(%d)" % (7 + i))
            a("v_add_u32 v%d, v%d, v%d" % (O2 + i, O2 + i, RK + i))
            a("v_add_u32 v%d, v%d, v%d" % (O1 + i, O1 + i, RK + i))
            a("ds_write_b8 v%d, v%d offset:%d" % (O2 + i, DST + i, L1_STAGE + 12))
            a("ds_write_b32 v%d, v%d offset:%d" % (O1 + i, (EV if i & 1 else RE) + i // 2, L1_STAGE))
    a("s_mov_b64 exec, -1")
    if XL == 2 and XPOS == 2:
        xw1_loads()
        a("s_cmp_eq_u32 s%d, 6" % S_W)
    def w_loads():
        a("s_add_u32 m0, s42, 8192")
        a("v_mov_b32 v%d, 0" % SF)
        a("global_load_lds_dwordx4 v%d, %s" % (DO, sr(P_WM, 2)))
        a("s_add_u32 m0, s42, 16384")
        a("s_nop 0")
        a("global_load_lds_dwordx4 v%d, %s" % (WAD, sr(P_WU, 2)))
        a("s_add_u32 m0, s42, 24576")
        a("s_nop 0")
        a("global_load_lds_dwordx4 v%d, %s" % (DO, sr(P_WU, 2)))

    if SV == 2:
        w_loads()
    else:
        a("s_cbranch_scc0 L_w7i")
        for i in range(4):
            a("v_lshl_add_u32 v%d, v%d, 23, s53" % (V_TAB + i, V_TAB + i))
            a("v_add_u32 v%d, v%d, v%d" % (V_TAB + i, V_TAB + i, STV + i))
    if XL != 2:
        a("global_load_dword v%d, v%d, %s %s" % (FLG, FA, sr(P_DBG, 2), SCT))
    a("s_branch L_w7i")
    a.label("L_w7f")
    if SV == 2:
        a("ds_read_b128 %s, v%d offset:%d" % (vr(CN, 4), V_L16, L1_CNT))
        a("s_lshl_b32 s44, s%d, %d" % (CI, 9 - NC2.bit_length()))
        a("v_mov_b32 v%d, s44" % W3)
        a("s_and_b32 s3, s2, %s" % CLM)
        a("s_cbranch_scc1 L_A2")
        a("s_mov_b64 exec, 1")
        a("s_waitcnt vmcnt(%d)" % (RSZ // 1024))
        stamp(a, "clr")
        a("global_store_dword v%d, v2, %s %s" % (W3, sr(P_DBG, 2), SCW))
        a("s_mov_b64 exec, -1")
        a("s_cmp_eq_u32 s3, 0")
        a("s_branch L_A2")
        a.label("L_fagain")
        a("s_sleep %d" % FSL)
        if not FLT or PUB3:
            a("global_load_dword v%d, v%d, %s %s" % (FLG, FA, sr(P_DBG, 2), SCT))
        a("s_sub_u32 s%d, s%d, 1" % (S_TO, S_TO))
        if PUB3:
            a("s_waitcnt vmcnt(0)")
        a("s_cbranch_scc0 L_fpoll")
        a("s_branch L_nofl")
        a.label("L_w7g")
        a("v_add_u32 v%d, 16384, v%d" % (W3, V_L16))
        a("s_mov_b32 m0, %d" % L_W3)
        a("s_mov_b64 exec, 0xff")
        a("global_load_lds_dwordx4 v%d, %s" % (W3, sr(P_WM, 2)))
        a("s_mov_b64 exec, -1")
        a("s_mov_b32 m0, s42")
        a("v_add_u32 v%d, 8192, v%d" % (DO, WAD))
        a("global_load_lds_dwordx4 v%d, %s" % (WAD, sr(P_WM, 2)))
        w_loads()
        if not FLT:
            a("global_load_dword v%d, v%d, %s %s" % (FLG, FA, sr(P_DBG, 2), SCT))
        for i in range(4):
            a("v_lshl_add_u32 v%d, v%d, 23, s53" % (V_TAB + i, V_TAB + i))
            a("v_add_u32 v%d, v%d, v%d" % (V_TAB + i, V_TAB + i, STV + i))
        a("s_mov_b32 s3, %d" % LS[0])
        a("s_mov_b32 s54, %d" % L_LUT)
        a.label("L_lut")
        lut_build(a, 3, V_C[0], 0, 54)
        a("s_add_u32 s54, s54, 2048")
        a("s_add_u32 s3, s3, %d" % (LS[1] - LS[0]))
        a("s_cmp_eq_u32 s3, %d" % LS[1])
        a("s_cbranch_scc1 L_lut")
        if PUB3:
            a("s_waitcnt vmcnt(0)")
            stamp(a, "own")
            a("global_load_dword v%d, v%d, %s %s" % (FLG, FA, sr(P_DBG, 2), SCT))
        else:
            a.label("L_fpoll")
            if FLT:
                a("global_load_dword v%d, v%d, %s %s" % (FLG, FA, sr(P_DBG, 2), SCT))
            a("s_waitcnt vmcnt(0)")
            a("v_cmp_ne_u32 vcc, 1, v%d" % FLG)
            a("s_cbranch_vccnz L_fagain")
            a("global_store_dwordx4 v%d, %s, %s %s" % (TP, vr(V_TAB, 4), sr(P_WS, 2), SCW))
            stamp(a, "pub")
            a.label("L_nopub")
    elif XL:
        a("v_add_u32 v%d, 16384, v%d" % (W3, V_L16))
        a("s_mov_b32 m0, %d" % L_W3)
        a("s_mov_b64 exec, 0xff")
        a("global_load_lds_dwordx4 v%d, %s" % (W3, sr(P_WM, 2)))
        a("s_mov_b64 exec, -1")
        a("s_mov_b32 s3, %d" % LS[0])
        a("s_mov_b32 s54, %d" % L_LUT)
        a("s_lshl_b32 s44, s2, %d" % (8 - NCLR.bit_length() + 1))
        a("v_mov_b32 v%d, s44" % W3)
        a("v_mov_b32 v2, 1")
        a("v_mov_b32 v3, 1")
        if XL == 2:
            xw1_loads()
        a("s_cmp_ge_u32 s2, %d" % NCLR)
        if FPOS and not W7B:
            a("s_barrier")
        a("s_cbranch_scc1 L_nofl")
        a("s_mov_b64 exec, 1")
        a("s_waitcnt vmcnt(%d)" % ((7 if XE else 4) if XL == 2 else 1))
        stamp(a, "clr")
        a("global_store_dwordx2 v%d, v[2:3], %s %s" % (W3, sr(P_DBG, 2), SCW))
        a("s_mov_b64 exec, -1")
        a.label("L_nofl")
        if not FPOS and not W7B:
            a("s_barrier")
        a.label("L_lut")
        lut_build(a, 3, V_C[0], 0, 54)
        a("s_add_u32 s54, s54, 2048")
        a("s_add_u32 s3, s3, %d" % (LS[1] - LS[0]))
        a("s_cmp_eq_u32 s3, %d" % LS[1])
        a("s_cbranch_scc1 L_lut")
    else:
        a("v_lshrrev_b32 v%d, 3, v%d" % (WAD, V_LANE))
        a("v_lshl_add_u32 v%d, v%d, 8, s%d" % (WAD, WAD, S_B))
        a("v_lshl_add_u32 v%d, v%d, 7, v%d" % (XA + 1, WAD, V_IDX + 7))
        a("v_xor_b32 v%d, 64, v%d" % (XA, XA + 1))
        a("v_add_u32 v%d, %d, v%d" % (XA + 1, 2048 * 128 - 1024, XA + 1))
        a("s_mov_b32 m0, %d" % L1_X)
        a("s_mov_b64 s[44:45], %s" % sr(P_X, 2))
        a("v_add_u32 v%d, %d, v%d" % (WAD, 96 * 256, WAD))
        a("v_min_u32 v%d, %d, v%d" % (WAD, N - 1, WAD))
        a("v_lshl_add_u32 v%d, v%d, 7, v%d" % (W3 + 1, WAD, V_IDX + 7))
        a("v_xor_b32 v%d, 64, v%d" % (W3 + 1, W3 + 1))
        a.label("L_xld")
        a("global_load_lds_dwordx4 v%d, s[44:45]" % XA)
        a("global_load_lds_dwordx4 v%d, s[44:45] offset:1024" % (XA + 1))
        a("s_add_u32 m0, m0, 2048")
        a("s_add_u32 s44, s44, %d" % (4096 * 128))
        a("s_addc_u32 s45, s45, 0")
        a("s_cmp_lg_u32 m0, %d" % (L1_X + 2048 * 6))
        a("s_cbranch_scc1 L_xld")
        a("global_load_lds_dwordx4 v%d, %s" % (W3 + 1, sr(P_X, 2)))
        a("v_and_b32 v2, 16, v%d" % V_LANE)
        a("v_lshlrev_b32 v2, 2, v2")
        a("v_xor_b32 v%d, v2, v%d" % (WAD, V_L16))
        a("v_add_u32 v%d, 16384, v%d" % (W3, V_L16))
        a("s_mov_b32 s3, %d" % LS[0])
        a("s_mov_b32 s54, %d" % L_LUT)
        stamp(a, "xiss")
        a("s_barrier")
        a.label("L_lut")
        lut_build(a, 3, V_C[0], 0, 54)
        a("s_add_u32 s54, s54, 2048")
        a("s_add_u32 s3, s3, %d" % (LS[1] - LS[0]))
        a("s_cmp_eq_u32 s3, %d" % LS[1])
        a("s_cbranch_scc1 L_lut")
        a("s_cmp_ge_u32 s2, %d" % NCLR)
        a("s_cbranch_scc1 L_noflag")
        a("s_lshl_b32 s3, s2, %d" % (8 - NCLR.bit_length() + 1))
        a("v_mov_b32 v%d, s3" % XA)
        a("v_mov_b32 v2, 1")
        a("v_mov_b32 v3, 1")
        a("s_mov_b64 exec, 1")
        a("s_waitcnt vmcnt(13)")
        stamp(a, "clr")
        a("global_store_dwordx2 v%d, v[2:3], %s %s" % (XA, sr(P_DBG, 2), SC))
        a.label("L_noflag")
        a("s_mov_b32 m0, %d" % L_W3)
        a("s_mov_b64 exec, 0xff")
        a("global_load_lds_dwordx4 v%d, %s" % (W3, sr(P_WM, 2)))
        a("s_mov_b64 exec, -1")
        a("s_mov_b32 m0, %d" % L1_W1)
        a("s_mov_b64 s[44:45], %s" % sr(P_WM, 2))
        a.label("L_wld")
        for i in range(4):
            a("global_load_lds_dwordx4 v%d, s[44:45] offset:%d" % (WAD, 1024 * i))
        a("s_add_u32 m0, m0, 4096")
        a("s_add_u32 s44, s44, 4096")
        a("s_addc_u32 s45, s45, 0")
        a("s_cmp_eq_u32 m0, %d" % L1_WX)
        a("s_cselect_b64 s[44:45], %s, s[44:45]" % sr(P_WU, 2))
        a("s_cmp_lg_u32 m0, %d" % (L_WA + 8192))
        a("s_cbranch_scc1 L_wld")
        stamp(a, "wiss")
    a("s_mov_b32 s54, 0")
    a.label("L_w7i")
    a("v_add_u32 v2, 1024, v0")
    a("v_cmp_gt_u32 vcc, s54, v2")
    a("s_add_u32 s53, s52, 8192")
    a("s_add_u32 s54, s52, 16384")
    a("s_waitcnt lgkmcnt(0)")
    stamp(a, "preB")
    a("s_barrier")
    stamp(a, "barB")
    CP = V_N[0]
    TABV = V_D[0]

    def tab_loads():
        for p in range(4):
            a("buffer_load_dword v%d, v%d, %s, s47 offen offset:%d %s" % (TABV + p, TAD, sr(S_WS, 4), (4 << TBL) * p, SCT))

    for i in range(3):
        a("ds_read_b128 %s, v%d offset:%d" % (vr(CP + 4 * i, 4), T16, L1_STAGE + 8192 * i))
    if SV == 2:
        tab_loads()
    a("s_waitcnt lgkmcnt(2)")
    a("buffer_store_dwordx4 %s, v%d, %s, s52 offen %s" % (vr(CP, 4), T16, sr(S_WS, 4), SCR))
    a("s_waitcnt lgkmcnt(1)")
    a("buffer_store_dwordx4 %s, v%d, %s, s53 offen %s" % (vr(CP + 4, 4), T16, sr(S_WS, 4), SCR))
    if XL != 2:
        a("s_cbranch_vccz L_no3")
    if SV == 2:
        a("s_mov_b32 s50, 0x807fffff")
        a("s_mov_b32 s51, %d" % L_SEND)
        a("s_mov_b32 s%d, 1" % S_PD)
        a("s_cmp_eq_u32 s%d, 7" % S_W)
    a("s_waitcnt lgkmcnt(0)")
    if SV == 2 and PUB3:
        a("s_cbranch_scc1 L_w7p")
    a("s_mov_b64 exec, vcc")
    a("buffer_store_dwordx4 %s, v%d, %s, s54 offen %s" % (vr(CP + 8, 4), T16, sr(S_WS, 4), SCR))
    a("s_mov_b64 exec, -1")
    a.label("L_no3")
    stamp(a, "stiss")
    if XL:
        if XL == 1:
            xw1_loads()
        if SV == 2:
            if not PUB3:
                a("s_cbranch_scc1 L_page1")
            a("s_waitcnt vmcnt(7)")
        else:
            a("s_mov_b32 s50, 0x807fffff")
            w_loads()
    def page_split():
        if PADS:
            a("s_branch L_page1")
            if SV == 2 and PUB3:
                a.label("L_w7p")
                a("s_waitcnt vmcnt(6)")
                a.label("L_fpoll")
                a("v_cmp_ne_u32 vcc, 1, v%d" % FLG)
                a("s_cbranch_vccnz L_fagain")
                a("global_store_dwordx4 v%d, %s, %s %s" % (TP, vr(V_TAB, 4), sr(P_WS, 2), SCW))
                stamp(a, "pub")
                a("s_branch L_page1")
            a.raw("@SEMI@")
            a.raw(".p2align 12")
            a.raw("@PAGE@")
            a.label("L_page1")

    if not PSH:
        page_split()
    PXF, PD, PB_ = V_U, V_B[1], V_U + 8

    def qr_out(D, off):
        for tau in range(2):
            for i in range(4):
                a("v_pk_mul_f32 %s, %s, %s" % (vr(D + 8 * tau + 2 * i, 2), vr(D + 8 * tau + 2 * i, 2), sr(S_LG, 2)))
            a("s_mov_b64 exec, %s" % sr(S_QM + 2 * tau, 2))
            for blk in range(2):
                a("ds_write_b128 v%d, %s offset:%d" % (QW, vr(D + 8 * tau + 4 * blk, 4), off + 16 * RSTR * tau + 16 * blk))
            a("s_mov_b64 exec, -1")

    def bar_c(n):
        a("s_cmp_lg_u32 s%d, 6" % S_W)
        a("s_waitcnt vmcnt(%d) lgkmcnt(0)" % n)
        stamp(a, "stack")
        a("s_cbranch_scc1 L_barC")
        a.label("L_fpoll")
        a("v_cmp_ne_u32 vcc, 1, v%d" % FLG)
        a("s_cbranch_vccnz L_fagain")
        a.label("L_barC")
        if PSB == 3:
            p_stores(14)
        a("s_barrier")
        a("s_cbranch_scc1 L_nopub")
        a("global_store_dwordx4 v%d, %s, %s %s" % (TP, vr(V_TAB, 4), sr(P_WS, 2), SCW))
        a.label("L_nopub")
        if TW == 1:
            a("v_mul_u32_u24 v2, %d, v0" % TWS)
            a("global_load_dword v%d, v2, %s %s" % (V_WA + 9, sr(P_WS, 2), SCT))
        stamp(a, "barC")

    def p_stores(n):
        if env('X_PDEL', 0):
            a("s_bitcmp1_b32 s2, 3")
            a("s_cbranch_scc0 L_xpdel")
            for i in range(env('X_PDEL', 0)):
                a("s_sleep 127")
            a.label("L_xpdel")
        a("s_waitcnt lgkmcnt(%d)" % (n + 1))
        a("buffer_store_dwordx4 %s, %s, %s, 0 idxen offen %s" % (vr(PB_, 4), vr(PA, 2), sr(S_X, 4), SCS))
        a("s_waitcnt lgkmcnt(%d)" % n)
        a("buffer_store_dwordx4 %s, %s, %s, 0 idxen offen %s" % (vr(PB_ + 4, 4), vr(V_R, 2), sr(S_X, 4), SCS))
        stamp(a, "piss")

    if XL == 2:
        if SV != 2:
            a("s_waitcnt vmcnt(%d)" % (3 if WBL else 6))
        stamp(a, "preB2")
        a("s_barrier")
        if WBL:
            a("s_cmp_lg_u32 s%d, 6" % S_W)
            a("s_cbranch_scc1 L_nowb")
            a("buffer_wbl2 sc1")
            a.label("L_nowb")
        if TW == 2:
            a("v_mul_u32_u24 v2, %d, v0" % TWS)
            a("global_load_dword v%d, v2, %s %s" % (V_WA + 9, sr(P_WS, 2), SCT))
        stamp(a, "barB2")
    else:
        if not XL:
            a("v_mov_b32 v%d, 0" % SF)
            a("s_mov_b32 s50, 0x807fffff")
        bar_c(6 if XL else 0)
    if XL == 1:
        tab_loads()
        a("s_waitcnt vmcnt(5)")
        a("s_barrier")
        stamp(a, "barC2")
    a("ds_read_b128 %s, v%d" % (vr(PXF, 4), XP))
    a("ds_read_b128 %s, v%d" % (vr(PXF + 4, 4), XP + 1))
    for x in tr_frags(V_C[0], TA, 0) + tr_frags(V_C[1], TA2, 0)[:4]:
        a(x)
    if not XL:
        tab_loads()
    a("s_waitcnt lgkmcnt(4)")
    for x in tr_frags(V_C[1], TA2, 0)[4:]:
        a(x)
    if XL != 2 or SV == 2:
        a("ds_read_b32 v%d, v%d offset:%d" % (SF, SF, F_SLOW))
    for tau in range(2):
        a("ds_read_b128 %s, v%d offset:%d" % (vr(XF + 8 * tau, 4), XB, 2048 * tau))
        a("ds_read_b128 %s, v%d offset:%d" % (vr(XF + 8 * tau + 4, 4), V_RC, 2048 * tau))
    if PSH:
        page_split()
    for H in range(2):
        if H:
            a("s_waitcnt lgkmcnt(4)")
        for k in range(2):
            for blk in range(2):
                a(mf16(PD + 8 * H + 4 * blk, V_C[H] + 8 * blk + 4 * k, PXF + 4 * k, k == 0))
    if XL != 2 or SV == 2:
        a("v_cmp_lt_u32_e64 s[44:45], 3, v%d" % SF)
    else:
        a("s_cmp_lg_u32 s%d, 6" % S_W)
        a("s_cbranch_scc1 L_nofld")
        a("global_load_dword v%d, v%d, %s %s" % (FLG, FA, sr(P_DBG, 2), SCT))
        a.label("L_nofld")
    a("v_mov_b32 v%d, 0" % (V_AE + 1))
    for H in range(2):
        for i in range(4):
            a("v_pk_mul_f32 %s, %s, %s" % (vr(PD + 8 * H + 2 * i, 2), vr(PD + 8 * H + 2 * i, 2), sr(S_LG, 2)))
        for i in range(4):
            a("v_cvt_pk_bf16_f32 v%d, v%d, v%d" % (PD + 8 * H + i, PD + 8 * H + 2 * i, PD + 8 * H + 2 * i + 1))
        a("ds_write_b128 v%d, %s" % (PW2 if H else PW, vr(PD + 8 * H, 4)))
    for i in range(2):
        a("ds_read_b128 %s, v%d offset:%d" % (vr(PB_ + 4 * i, 4), PR, 1024 * i))
    if SV == 2:
        a("ds_read_u16 v%d, v%d offset:%d" % (W3, V_T0 + 5, L_W3))
        a("ds_read_u16 v%d, v%d offset:%d" % (W3 + 1, V_T0 + 5, L_W3 + 64))
        for x in tr_frags(W2F, TA, L1_W2 - L1_W1):
            a(x)
        a("s_waitcnt vmcnt(3)")
    elif XL == 2:
        a("ds_read_u16 v%d, v%d offset:%d" % (W3, V_T0 + 5, L_W3))
        a("ds_read_u16 v%d, v%d offset:%d" % (W3 + 1, V_T0 + 5, L_W3 + 64))
        if PSB == 1:
            p_stores(2)
        bar_c(2 if PSB == 1 else 0)
        if TORD:
            tab_loads()
        a("ds_read_b32 v%d, v%d offset:%d" % (SF, SF, F_SLOW))
        for x in tr_frags(W2F, TA, L1_W2 - L1_W1):
            a(x)
        if not TORD and QF != 1:
            tab_loads()
        if not PSB and not TORD:
            p_stores(14)
        a("s_waitcnt lgkmcnt(0)")
        a("v_cmp_lt_u32_e64 s[44:45], 3, v%d" % SF)
    else:
        for x in tr_frags(W2F, TA, L1_W2 - L1_W1):
            a(x)
        a("ds_read_u16 v%d, v%d offset:%d" % (W3, V_T0 + 5, L_W3))
        a("ds_read_u16 v%d, v%d offset:%d" % (W3 + 1, V_T0 + 5, L_W3 + 64))
        p_stores(10)
        a("s_waitcnt lgkmcnt(2)")
    def q_part():
        for x in tr_frags(WXF, TA, L1_WX - L1_W1):
            a(x)
        for x in tile_mfmas(QD, W2F, XF):
            a(x)

    if SV != 2:
        q_part()
    if XL == 2 and TORD and not PSB:
        p_stores(14)
    if SV == 2:
        pass
    elif QF:
        a("s_branch L_qr")
    else:
        a("s_waitcnt vmcnt(%d)" % (0 if XL == 2 and PSB else 2))
    def p_ready(n):
        a("v_mov_b32 v2, 1")
        a("v_mov_b32 v3, %d" % F_PCNT)
        a("s_mul_i32 s3, s2, %d" % RSZ if SV == 2 else "s_lshl_b32 s3, s2, %d" % (7 if PTL else 4))
        a("s_mov_b64 exec, 1")
        if n is not None:
            a("s_waitcnt vmcnt(%d)" % n)
        a("ds_add_rtn_u32 v3, v3, v2")
        a("s_add_u32 s3, s3, %d" % ((RSZ - 128 if SV == 2 else WS_PT) - (7 << 28) + (1 << 32)))
        if n is None:
            a("s_cmp_eq_u32 s%d, 2" % S_PD)
        a("s_mov_b32 s%d, %d" % ((S_PD, 0) if SV == 2 else (51, L_SEND)))
        a("s_waitcnt lgkmcnt(0)")
        a("v_lshl_add_u32 v3, v3, 28, s3")
        a("buffer_store_dword v2, v3, %s, 0 offen %s" % (sr(S_WS, 4), SCW))
        a("s_mov_b64 exec, -1")

    a.label("L_tcheck")
    a("v_max3_i32 v3, v%d, v%d, v%d" % (TABV, TABV + 1, TABV + 2))
    a("v_max_i32 v3, v3, v%d" % (TABV + 3))
    a("v_cmp_le_i32 vcc, 0, v3")
    a("s_or_b64 vcc, vcc, s[44:45]")
    a("s_cbranch_vccnz L_tfail")
    stamp(a, "tab")
    RC = V_N[0]
    RT = V_T[0]
    ADR = V_T[0] + 12
    TB2 = TABV + 4
    for p in range(4):
        a("v_add_u32 v%d, v%d, v%d" % (TB2 + p, TABV + p, UC))
    a("v_cmp_le_u32 vcc, 0x%x, v3" % ((9 << 23) | (1 << 31)))
    RX = RC + 16
    if X5:
        a("s_cbranch_vccz L2_noextra")
        a("v_max3_i32 v2, v%d, v%d, v%d" % (TABV, TABV + 1, TABV + 2))
        a("v_med3_i32 v%d, v%d, v%d, v%d" % (RX, TABV, TABV + 1, TABV + 2))
        a("v_med3_i32 v2, v2, v%d, v%d" % (RX, TABV + 3))
        a("v_subrev_u32 v%d, 0x%x, v3" % (RX, (8 << 23) - 128))
        a("v_max_u32 v2, v2, v%d" % RX)
        a("v_cmp_le_u32 vcc, 0x%x, v2" % ((9 << 23) | (1 << 31)))
        a("v_add_u32 v2, v%d, v%d" % (RX, UC))
        a("v_and_b32 v2, s50, v2")
        a("s_cbranch_vccnz L2_extra")
        a("s_mov_b32 s%d, 4" % S_EXTRA)
        a("buffer_load_dwordx4 %s, v2, %s, 0 offen %s" % (vr(RX, 4), sr(S_WS, 4), SC))
    else:
        a("s_cbranch_vccnz L2_extra")
    a.label("L2_noextra")
    for p in range(4):
        a("v_and_b32 v%d, s50, v%d" % (TB2 + p, TB2 + p))
        a("buffer_load_dwordx4 %s, v%d, %s, 0 offen %s" % (vr(RC + 4 * p, 4), TB2 + p, sr(S_WS, 4), SC))
    if PSB == 2:
        p_stores(14)
    if PRE and SV != 2:
        a("v_mov_b32 v3, -1")
        a("buffer_store_dword v3, v3, %s, 0 offen" % sr(S_WS, 4))
    a("s_cmp_eq_u32 s%d, 1" % S_ST)
    a("s_cbranch_scc1 %s" % ("L_rdy" if SV == 2 else "L_after"))
    a("s_mov_b32 s%d, 2" % S_ST)
    a.label("L_qr")
    if SV == 2:
        p_stores(10)
        a("s_waitcnt lgkmcnt(0)")
        q_part()
    a("v_cmp_eq_u32 vcc, 0, v%d" % HH)
    a("v_mov_b32 v%d, 0" % (V_AE + 2))
    a("v_mov_b32 v%d, 0" % (V_AE + 5))
    a("v_mov_b32 v%d, 0" % (V_AE + 6))
    a("s_waitcnt lgkmcnt(0)")
    for x in tile_mfmas(RD, WXF, XF):
        a(x)
    qr_out(QD, 0)
    for X in range(2):
        a("v_lshlrev_b32 v2, 16, v%d" % (W3 + X))
        a("v_mul_f32 v2, s%d, v2" % S_LG)
        a("v_cvt_pk_bf16_f32 v3, v%d, v2" % (V_AE + 1))
        a("v_sub_f32 v2, v2, v3")
        a("v_cvt_pk_bf16_f32 v2, v%d, v2" % (V_AE + 1))
        a("v_cndmask_b32 v%d, v2, v3, vcc" % (V_AE + 4 * X))
        a("v_cndmask_b32 v%d, v2, v3, vcc" % (V_AE + 4 * X + 3))
    qr_out(RD, L_R - L_Q)
    def rt_reset():
        for i in range(6):
            a("v_mov_b64 %s, -1" % vr(RT + 2 * i, 2))

    rt_reset()
    stamp(a, "qr")
    if TSL:
        if TSX:
            a("s_bitcmp1_b32 s2, 2")
            a("s_cbranch_scc1 L_tsx")
        a("s_sleep %d" % TSL)
        a.label("L_tsx")
    if QF and SV != 2:
        tab_loads()
    if PSB == 4:
        p_stores(14)
    if PRE and SV != 2:
        p_ready(4)
    a("s_cmp_lg_u32 s%d, 2" % S_ST)
    if SV == 2:
        a("s_mov_b32 s%d, 1" % S_ST)
    a("s_cbranch_scc1 L_tfail1")
    a.label("L_after")

    if PSB == 2:
        a("s_mov_b32 s51, %d" % L_SEND)
    elif not PRE:
        p_ready(4)
    stamp(a, "pack")
    a("v_mov_b32 v2, 4")

    def p1(rc, k, ADR=ADR):
        for i in range(3):
            a("v_lshlrev_b32_sdwa v%d, 2, v%d dst_sel:DWORD dst_unused:UNUSED_PAD src0_sel:DWORD src1_sel:BYTE_%d" % (ADR + k + i, rc + 3, i))
        for i in range(3):
            a("v_cmpx_ne_u32 vcc, 0, v%d" % (ADR + k + i))
            a("ds_add_rtn_u32 v%d, v%d, v2 offset:%d" % (RT + k + i, ADR + k + i, L_CNT))
            if SV == 2 and i == 0:
                a("v_mov_b32 v%d, -1" % (TB2 + (rc - RC) // 4))
        a("s_mov_b64 exec, -1")

    def p2(rc, k):
        for i in range(3):
            a("v_cmpx_gt_u32 vcc, s51, v%d" % (RT + k + i))
            a("ds_write_b32 v%d, v%d" % (RT + k + i, rc + i))
        a("s_mov_b64 exec, -1")

    KX = RX + 4 - RT
    if X5:
        a("s_cmp_eq_u32 s%d, 0" % S_EXTRA)
        a("s_cbranch_scc1 L2_pl")
        a("s_cmp_lg_u32 s%d, 4" % S_EXTRA)
        a("s_cbranch_scc1 L2_xpl")
        a("v_mov_b64 %s, -1" % vr(RX + 4, 2))
        a("v_mov_b32 v%d, -1" % (RX + 6))
        a("s_waitcnt vmcnt(%d)" % (4 + NPF))
        p1(RX, KX, RT + 4)
    else:
        a("s_cmp_lg_u32 s%d, 0" % S_EXTRA)
        a("s_cbranch_scc1 L2_xpl")
    a.label("L2_pl")
    a("s_waitcnt vmcnt(%d)" % (3 + NPF))
    stamp(a, "rec0")
    def mark(ad, rc):
        pass

    def missing(ad):
        a("v_max3_i32 v3, v%d, v%d, v%d" % (ad, ad + 1, ad + 2))
        a("v_max_i32 v3, v3, v%d" % (ad + 3))

    def h_req():
        D = V_WA + 8
        if PFE:
            for k in range(4):
                a("global_load_dword v%d, v%d, %s offset:%d %s" % (V_D[0] + 8 + k, V_PF, sr(P_WS, 2), 1024 * k, SCT))
        for h in range(HPN):
            a("buffer_load_dword v%d, v%d, %s, 0 idxen offset:%d %s" % (D, V_HX, sr(S_X, 4), 3072 + 64 * h, SCG))

    def h_rd():
        a("ds_read_u16 v%d, v%d offset:%d" % (V_HX, V_HA, L_SLOT))

    H = HPF if HD2 else 0
    p1(RC, 0)
    a("s_waitcnt vmcnt(%d)" % (2 + NPF))
    p1(RC + 4, 3)
    if H == 4:
        a("s_waitcnt lgkmcnt(0)")
        p2(RC, 0)
        p2(RC + 4, 3)
        h_rd()
        a("s_waitcnt vmcnt(%d)" % (1 + NPF))
        p1(RC + 8, 6)
        a("s_waitcnt lgkmcnt(3)")
        h_req()
        a("s_waitcnt vmcnt(%d)" % (NPF + HPN))
    else:
        a("s_waitcnt vmcnt(%d) lgkmcnt(0)" % (1 + NPF))
        p1(RC + 8, 6)
        p2(RC, 0)
        p2(RC + 4, 3)
        if H in (1, 3):
            h_rd()
        a("s_waitcnt vmcnt(%d)" % NPF)
    p1(RC + 12, 9)
    if SV == 2:
        missing(TB2)
        a("v_cmp_le_i32_e64 s[40:41], 0, v3")
    a("s_waitcnt lgkmcnt(0)")
    if H == 1:
        h_req()
    p2(RC + 8, 6)
    p2(RC + 12, 9)
    if H == 3:
        h_req()
    if X5:
        a("s_cmp_lg_u32 s%d, 4" % S_EXTRA)
        a("s_cbranch_scc1 L2_build")
        p2(RX, KX)
    if SV == 2:
        a("s_or_b32 s40, s40, s%d" % S_EXTRA)
        a("s_or_b32 s40, s40, s41")
        a("s_cbranch_scc1 L_miss")
    stamp(a, "placed")
    if PSB == 2:
        p_ready(0)

    a.label("L2_build")
    if SV == 2:
        a("s_cmp_eq_u32 s%d, 0" % S_PD)
        a("s_cbranch_scc1 L2_build1")
        a("s_waitcnt vmcnt(0)")
        a.label("L_prdy")
        p_ready(None)
        a("s_cbranch_scc1 L_after")
        a.label("L2_build1")
    L4, RB0, NC0, NC1 = V_U, V_U + 1, V_U + 2, V_U + 3
    C0, C1, FL = V_U + 4, V_U + 5, V_U + 6
    P0 = V_U + 8
    O0 = V_U + 10
    E0, E1 = V_N[0], V_N[0] + 8
    a("v_lshlrev_b32 v%d, 2, v%d" % (L4, V_LANE))
    a("s_mov_b32 s3, %d" % SSTR)
    a("v_mov_b32 v%d, %d" % (RB0, L_SLOT - 4))
    a("v_mad_u32_u24 v%d, v%d, s3, v%d" % (RB0, V_LANE, RB0))
    if HD2:
        a("v_add_u32 v%d, 4, v%d" % (NC0, RB0))
        a("v_add_u32 v%d, 0x%x, v%d" % (NC1, 64 * SSTR, NC0))
    else:
        a("v_lshlrev_b32 v%d, 25, v%d" % (NC0, V_LANE))
        a("v_add3_u32 v%d, v%d, v%d, %d" % (NC0, NC0, RB0, -12 if HD else 4))
        a("v_add_u32 v%d, 0x%x, v%d" % (NC1, (64 << 25) + 64 * SSTR, NC0))
    a("s_cmp_lt_u32 s%d, %d" % (S_B, N - 97 * 256))
    a("s_cselect_b32 s%d, 3, 1" % (S_HI + 1))
    a("s_mov_b32 s%d, -1" % S_HI)
    a("s_mov_b32 s%d, 0" % S_LI)
    a("s_mov_b32 s%d, 0" % S_SAFE)
    a("v_mov_b32 v%d, %d" % (O0, L_SLOT + 98 * SSTR))
    if HD:
        a("v_mov_b32 v%d, v%d" % (O0 + 1, O0))
    a("s_lshl_b32 s3, s%d, 6" % S_W)
    a("v_and_b32 v3, 60, v%d" % L4)
    a("v_add_u32 v%d, s3, v3" % (V_T0 + 2))
    a("v_mov_b32 v2, 0x%x" % (127 << 25))
    a("ds_write_b32 v%d, v2 offset:%d" % (V_T0 + 2, L_NL))
    a("v_mov_b32 v%d, 0" % FL)
    a("v_add_u32 v3, %d, v%d" % (64 * SSTR, RB0))
    T0, T1 = (V_N[1], V_N[1] + 8) if HD else (E0, E1)
    if HD:
        for i in range(4):
            a("v_add_u32 v%d, %d, v%d" % (T0 + 2 * i + 1, 4 + 4 * i, RB0))
            a("v_add_u32 v%d, %d, v3" % (T1 + 2 * i + 1, 4 + 4 * i))
    a("s_mov_b32 s42, 0x100401")
    a("s_waitcnt lgkmcnt(0)")
    if APR:
        a("s_cmp_ge_u32 s%d, 4" % S_W)
        a("s_cbranch_scc1 L_noapr")
        a("s_setprio 1")
        a.label("L_noapr")
    a("s_barrier")
    stamp(a, "barD")
    PFV = V_D[0]

    def pf_loads():
        for k in range(1 if SV == 2 or PTL else 4):
            a("global_load_dword v%d, v%d, %s offset:%d %s" % (PFV + k, V_PF, sr(P_WS, 2), 1024 * k, SCT))

    pf_loads()
    if X_TEST & 2:
        for i in range(16):
            a("v_mov_b32 v%d, v%d" % (V_WA + i, V_ID + (i & 7)))
    a("ds_read_b32 v%d, v%d offset:%d" % (C0, L4, L_CNT + 4))
    a("ds_read_b32 v%d, v%d offset:%d" % (C1, L4, L_CNT + 4 + 256))
    a("ds_read_b32 v%d, v%d offset:%d" % (FL, FL, F_SLOW))
    if HD:
        a("ds_write_b64 v%d, %s" % (V_T0 + 3, vr(O0, 2)))
    else:
        a("ds_write_b32 v%d, v%d" % (V_T0 + 3, O0))
    a("s_waitcnt lgkmcnt(2)")
    a("v_sub_u32 v%d, v%d, v%d" % (C0, C0, RB0))
    a("v_sub_u32 v%d, v%d, v3" % (C1, C1))
    a("v_lshlrev_b32 v%d, 3, v%d" % (C0, C0))
    a("v_lshlrev_b32 v%d, 3, v%d" % (C1, C1))

    def lut_reads(off):
        a("ds_read_b128 %s, v%d offset:%d" % (vr(E0 + 4, 4), C0, off + 16))
        a("ds_read_b128 %s, v%d offset:%d" % (vr(E1 + 4, 4), C1, off + 16))
        a("ds_read_b128 %s, v%d offset:%d" % (vr(E0, 4), C0, off))
        a("ds_read_b128 %s, v%d offset:%d" % (vr(E1, 4), C1, off))

    lut_reads(L_LUT)
    a("v_max_u32 v2, v%d, v%d" % (C0, C1))
    a("v_cmp_lt_u32 vcc, %d, v2" % (32 * (DMAX + 1)))
    a("s_waitcnt lgkmcnt(4)")
    a("v_cmp_lt_u32_e64 s[40:41], 1, v%d" % FL)
    a("s_or_b64 vcc, vcc, s[40:41]")
    a("s_cbranch_vccnz L2_slow")
    a.label("L2_scan")
    a("s_waitcnt lgkmcnt(2)")
    a("v_add_u32 v%d, v%d, v%d" % (O0, E0 + 4, E1 + 4))
    a("v_add_u32 v%d, v%d, v%d" % (O0 + 1, E0 + 5, E1 + 5))
    a("v_mov_b32 v%d, v%d" % (P0, O0))
    a("v_mov_b32 v%d, v%d" % (P0 + 1, O0 + 1))
    a("s_waitcnt lgkmcnt(0)")
    dpp_scan(a, [P0, P0 + 1], fill=["v_add_u32 v%d, v%d, v%d" % (T0 + (1 + HD) * i, E0 + i, NC0) for i in range(4)] +
             ["v_add_u32 v%d, v%d, v%d" % (T1 + (1 + HD) * i, E1 + i, NC1) for i in range(4)])
    a("v_readlane_b32 s44, v%d, 63" % P0)
    a("v_readlane_b32 s45, v%d, 63" % (P0 + 1))
    a("v_sub_u32 v%d, v%d, v%d" % (P0, P0, O0))
    a("v_sub_u32 v%d, v%d, v%d" % (P0 + 1, P0 + 1, O0 + 1))
    a("s_mul_i32 s44, s44, s42")
    a("s_mul_i32 s45, s45, s42")
    a("s_bfe_u32 s46, s44, 0x%x" % ((10 << 16) | 20))
    a("s_bfe_u32 s47, s45, 0x%x" % ((10 << 16) | 20))
    a("s_lshl_b32 s44, s44, 10")
    a("s_lshl_b32 s45, s45, 10")
    a("s_add_u32 s47, s47, s46")
    a("s_mul_i32 s46, s46, s42")
    a("v_add_u32 v%d, s44, v%d" % (P0, P0))
    a("s_add_u32 s45, s45, s46")
    a("s_cmp_gt_u32 s47, 256")
    a("s_cbranch_scc1 L2_retry")
    a("v_add_u32 v%d, s45, v%d" % (P0 + 1, P0 + 1))
    a("v_lshrrev_b64 %s, v%d, %s" % (vr(O0, 2), E0 + 6, vr(P0, 2)))
    a("v_add_u32 v%d, v%d, v%d" % (P0, P0, E0 + 4))
    a("v_add_u32 v%d, v%d, v%d" % (P0 + 1, P0 + 1, E0 + 5))
    a("v_and_b32 v2, 0x1ff, v%d" % O0)
    a("v_lshrrev_b64 %s, v%d, %s" % (vr(O0, 2), E1 + 6, vr(P0, 2)))
    def tw(ad, t, i):
        if HD:
            a("ds_write2_b64 v%d, %s, %s offset0:%d offset1:%d" % (ad, vr(t + 2 * i, 2), vr(t + 2 * i + 2, 2), i, i + 1))
        else:
            a("ds_write2_b32 v%d, v%d, v%d offset0:%d offset1:%d" % (ad, t + i, t + i + 1, i, i + 1))

    a("v_lshl_add_u32 v2, v2, %d, s%d" % (2 + HD, S_XT))
    tw(2, T0, 2)
    a("v_and_b32 v3, 0x1ff, v%d" % O0)
    a("v_lshl_add_u32 v3, v3, %d, s%d" % (2 + HD, S_XT))
    a("s_mov_b64 exec, %s" % sr(S_HI, 2))
    tw(3, T1, 2)
    tw(3, T1, 0)
    a("s_mov_b64 exec, -1")
    tw(2, T0, 0)
    a("s_lshl_b32 s3, s%d, %d" % (S_BT, 7 + HD))
    a("s_add_u32 s3, s3, s%d" % S_XT)
    a("v_lshrrev_b32 v2, 3, v%d" % V_LANE)
    a("v_lshl_add_u32 v2, v2, %d, s3" % (2 + HD))
    if HD:
        for i in range(4):
            a("ds_read_u16 v%d, v2 offset:%d" % (V_HD + i, 64 * i + 4))
        a("ds_read_b32 v%d, v%d" % (V_W, V_T0 + 3))
        a("ds_read_u16 v%d, v%d offset:4" % (V_HO, V_T0 + 3))
        for i in range(4):
            a("ds_read_u16 v%d, v2 offset:%d" % (V_IA + i, 64 * i))
    else:
        for i in range(4):
            a("ds_read_%s v%d, v2 offset:%d" % ("b32" if HD2 else "u16", V_IA + i, 32 * i))
        a("ds_read_b32 v%d, v%d" % (V_W, V_T0 + 3))
    a("s_mov_b32 s%d, %d" % (S_X + 2, NP))
    a(dma_m0(0))
    a("s_mov_b32 s3, %d" % RSTR)
    a("v_lshlrev_b32 v3, 5, v%d" % HH)
    if HD2:
        a("s_mov_b32 s40, 0xffff")
        for i, x in enumerate(idx_reads(0, V_HD)):
            a("s_waitcnt lgkmcnt(4)")
            a("v_and_b32 v%d, s40, v%d" % (V_HD + i, V_IA + i))
            a(x)
        for i in range(4):
            a("v_lshrrev_b32 v%d, 25, v%d" % (V_IA + i, V_IA + i))
            a("v_lshl_add_u32 v%d, v%d, 2, v%d" % (V_IA + i, V_IA + i, V_HD + i))
        a("s_waitcnt lgkmcnt(4)")
        a("v_and_b32 v%d, s40, v%d" % (V_HO, V_W))
        a("v_lshrrev_b32 v2, 25, v%d" % V_W)
        a("v_lshl_add_u32 v%d, v2, 2, v%d" % (V_RA, V_HO))
        a("v_subrev_u32 v2, %d, v%d" % (L_SLOT - 64, V_HO))
        a("v_mul_u32_u24 v2, %d, v2" % 16132)
        a("v_bfe_u32 v%d, v%d, 16, 6" % (V_LEN, V_W))
        a("v_lshrrev_b32 v2, 22, v2")
        a("v_and_b32 v%d, 0x01c00000, v%d" % (V_W, V_W))
        a("v_lshl_or_b32 v%d, v2, 25, v%d" % (V_W, V_W))
        a("v_or_b32 v%d, v%d, v%d" % (V_W, V_W, V_RA))
        for n in range(99):
            for j in range(4):
                assert ((n * SSTR + 4 * j + 64) * 16132) >> 22 == n
    else:
        a("s_waitcnt lgkmcnt(%d)" % (6 if HD else 1))
        for x in idx_reads(0, V_HD if HD else V_IA):
            a(x)
        a("s_waitcnt lgkmcnt(%d)" % (9 if HD else 4))
        a("v_and_b32 v%d, 0xffff, v%d" % (V_RA, V_W))
        a("v_bfe_u32 v%d, v%d, 16, 6" % (V_LEN, V_W))
        a("v_lshrrev_b32 v2, 25, v%d" % V_W)
    a("v_mad_u32_u24 v%d, v2, s3, v3" % V_QA)
    a("v_add_u32 v%d, %d, v%d" % (V_QA, L_Q, V_QA))
    if PFE:
        a("s_waitcnt vmcnt(%d)" % (HPN + 4))
        a("v_and_b32 v2, v%d, v%d" % (PFV + 8, PFV + 9))
        a("v_and_b32 v2, v2, v%d" % (PFV + 10))
        a("v_and_b32 v2, v2, v%d" % (PFV + 11))
        a("v_cmp_ne_u32 vcc, 1, v2")
        a("s_cbranch_vccz L_pf_ok")
    a("s_waitcnt vmcnt(0)")
    a.label("L_pf_check")
    if SV == 2 or PTL:
        a("v_cmp_ne_u32 vcc, 1, v%d" % PFV)
    else:
        a("v_and_b32 v2, v%d, v%d" % (PFV, PFV + 1))
        a("v_and_b32 v2, v2, v%d" % (PFV + 2))
        a("v_and_b32 v2, v2, v%d" % (PFV + 3))
        a("v_cmp_ne_u32 vcc, 1, v2")
    a("s_cbranch_vccnz L_pf_again")
    a.label("L_pf_ok")
    if SV == 2 or PTL:
        stamp(a, "preE")
        a("s_barrier")
    stamp(a, "pf")
    if BSL:
        a("s_cmp_lt_u32 s%d, 4" % S_W)
        a("s_cbranch_scc1 L_nobsl")
        a("s_sleep %d" % BSL)
        a.label("L_nobsl")
    d = dma_loads()
    for i in range(4):
        a("s_waitcnt lgkmcnt(%d)" % (3 - i))
        if X_TEST & 128:
            a("v_and_b32 v%d, 63, v%d" % (V_IDX + 2 * i, V_IDX + 2 * i))
        a(d[i])
    stamp(a, "dma0")
    for x in idx_reads(4):
        a(x)
    if HD or HD2:
        a("ds_read_b32 v%d, v%d" % (V_R, V_HO))
        a("ds_read_b32 v%d, v%d offset:4" % (V_R + 1, V_RA))
    else:
        a("ds_read2_b32 %s, v%d offset0:0 offset1:1" % (vr(V_R, 2), V_RA))
    for x in row_reads(V_C, V_QA):
        a(x)
    KF = V_T0 + 4
    a("v_bfe_u32 v%d, v%d, 22, 3" % (KF, V_W))
    a("v_mov_b32 v%d, v%d" % (V_T0 + 5, V_LEN))
    a("v_cmp_ne_u32 vcc, 0, v%d" % KF)
    a("v_add_u32 v2, %d, v%d" % (L_R - L_Q, V_QA))
    a("v_add_u32 v%d, %d, v3" % (V_RC, L_ZERO))
    a("v_cndmask_b32 v%d, v%d, v2, vcc" % (V_RC, V_RC))
    a("v_mbcnt_lo_u32_b32 v2, vcc_lo, 0")
    a("s_lshl_b32 s40, s%d, 6" % S_W)
    a("v_lshl_add_u32 v2, v2, 2, s40")
    a("s_mov_b32 s41, 0xffc00000")
    a("v_and_or_b32 v%d, v%d, s41, v%d" % (V_NW, V_W, COL))
    a(dma_m0(1))
    a("s_waitcnt lgkmcnt(%d)" % (9 + HD + HD2))
    if X_TEST & 256:
        for i in range(4):
            a("v_and_b32 v%d, 63, v%d" % (V_IDX + 2 * i, V_IDX + 2 * i))
    for x in dma_loads():
        a(x)
    for x in idx_reads(8):
        a(x)
    a("s_mov_b32 exec_lo, vcc_lo")
    a("s_mov_b32 exec_hi, 0")
    a("ds_write_b32 v2, v%d offset:%d" % (V_NW, L_NL))
    a("s_mov_b64 exec, -1")
    a("v_and_b32 v2, 60, v%d" % V_LANE)
    a("v_add_u32 v2, s40, v2")
    a("ds_read_b32 v%d, v2 offset:%d" % (V_NW, L_NL))
    a("v_add_u32 v2, v%d, v%d" % (KF, COL))
    a("v_cmp_lt_u32 vcc, 32, v2")
    a("v_mad_u32_u24 v%d, v%d, s3, v3" % (V_YW, COL))
    a("v_add_u32 v%d, s%d, v%d" % (V_YW, S_XT, V_YW))
    a("s_cmp_lg_u64 vcc, 0")
    a("s_cselect_b32 s%d, 1, 0" % S_NEED)
    a("s_cmp_lg_u32 s%d, 7" % S_BT)
    a("s_cselect_b32 s%d, s%d, 0" % (S_NEED, S_NEED))
    dpp_scan(a, [V_T0 + 5], op="v_max_u32", fill=[
        "v_cmp_lt_u32_e64 %s, 0, v%d" % (sr(S_M0, 2), V_LEN),
        "v_cmp_lt_u32_e64 %s, 1, v%d" % (sr(S_M[1], 2), V_LEN),
        "v_mov_b32 v%d, 0" % V_S, "v_mov_b32 v%d, 0" % (V_S + 1)])
    a("s_nop 0")
    a("v_readlane_b32 s%d, v%d, 63" % (S_ML, V_T0 + 5))
    a("s_mov_b32 s%d, 1" % S_J)
    a("s_waitcnt vmcnt(4)")
    for x in b_reads(0):
        a(x)
    a("s_max_u32 s%d, s%d, 2" % (S_ML, S_ML))
    if PRI:
        a("s_sub_u32 s%d, s%d, %d" % (S_ST, S_ML, PRI))
        if PRW:
            a("s_lshr_b32 s3, s%d, %d" % (S_W, PRW - 1))
            a("s_sub_u32 s%d, s%d, s3" % (S_ST, S_ST))
        a("s_cmp_lt_u32 s%d, 4" % S_W)
        a("s_cselect_b32 s%d, s%d, -1" % (S_ST, S_ST))
        a("s_setprio 1")
    a("s_cmp_gt_u32 s%d, 2" % S_ML)
    a("s_cselect_b32 s%d, %d, 0" % (S_X + 2, NP))
    a(dma_m0(0))
    mf = mfma_chain(0, 0, V_N[0])
    a("s_waitcnt lgkmcnt(4)")
    a(mf[0])
    a("s_waitcnt lgkmcnt(0)")
    for x in mf[1:]:
        a(x)
    for x in dma_loads():
        a(x)
    stamp(a, "loop")
    a("s_nop 6")
    me(a, mfma_chain(1, 0, V_N[1]), exps(V_N[0]))
    a("s_waitcnt vmcnt(4)")
    for x in b_reads(1) + idx_reads(12) + pk_first(0):
        a(x)
    a("s_cmp_gt_u32 s%d, 3" % S_ML)
    a("s_cselect_b32 s%d, %d, 0" % (S_X + 2, NP))
    a(dma_m0(1))
    a("s_waitcnt lgkmcnt(0)")
    me(a, mfma_chain(0, 1, V_T[0]), exps(V_N[1]))
    for x in dma_loads():
        a(x)
    for x in pk_first(1):
        a(x)
    a("s_branch L2_loop")
    a.label("L_tfail")
    if PDEP:
        for p in range(4):
            a("v_cmp_le_i32 vcc, 0, v%d" % (TABV + p))
            a("s_mov_b64 exec, vcc")
            a("buffer_load_dword v%d, v%d, %s, s47 offen offset:%d %s" % (TABV + p, TAD, sr(S_WS, 4), (4 << TBL) * p, SCT))
            a("s_mov_b64 exec, -1")
    else:
        tab_loads()
    a("s_cmp_eq_u32 s%d, 0" % S_ST)
    a("s_cbranch_scc1 L_qr")
    a("s_sub_u32 s%d, s%d, 1" % (S_TO, S_TO))
    a("s_cbranch_scc1 L_timeout")
    if SV == 2:
        a("s_cmp_lg_u32 s%d, 0" % S_PD)
        a("s_cbranch_scc1 L_rdyt")
        a("s_waitcnt vmcnt(0)")
        a("s_branch L_tcheck")
        a.label("L_tfail1")
        a("s_cmp_lg_u64 s[44:45], 0")
        a("s_cbranch_scc1 L2_build")
        a("s_branch L_padt")
        a.label("L_miss")
        rt_reset()
        a("s_sub_u32 s%d, s%d, 1" % (S_TO, S_TO))
        a("s_cbranch_scc1 L_timeout")
        if RSL:
            a("s_sleep %d" % RSL)
        a("s_cmp_lg_u32 s%d, 0" % S_EXTRA)
        a("s_cbranch_scc1 L2_xld")
        a("s_branch L2_noextra")
        a.label("L_rdy")
        a("v_mov_b32 v3, -1")
        a("buffer_store_dword v3, v3, %s, 0 offen" % sr(S_WS, 4))
        a("s_cmp_lg_u32 s%d, 0" % S_PD)
        a("s_cbranch_scc1 L_rdy5")
        a("buffer_store_dword v3, v3, %s, 0 offen" % sr(S_WS, 4))
        a("s_branch L_after")
        a.label("L_rdy5")
        a("s_mov_b32 s%d, 2" % S_PD)
        a("s_waitcnt vmcnt(5)")
        a("s_branch L_prdy")
    else:
        a.label("L_tback")
        if PDEP > 1:
            a("s_sleep %d" % PSL)
        a("s_waitcnt vmcnt(%d)" % (4 * max(0, PDEP - 1)))
        a("s_branch L_tcheck")
        a.label("L_tfail1")
        a("s_mov_b32 s%d, 1" % S_ST)
        a("s_cmp_lg_u64 s[44:45], 0")
        a("s_cbranch_scc1 L2_build")
        a("s_branch %s" % ("L_padt" if PADS else "L_tback"))
    a.label("L_pf_again")
    a("s_sub_u32 s%d, s%d, 1" % (S_PCK, S_PCK))
    a("s_cselect_b32 s%d, 0, s%d" % (S_PCK, S_PCK))
    a("s_cbranch_scc1 L_pf_ok")
    a("s_sleep 1")
    pf_loads()
    a("s_waitcnt vmcnt(0)")
    a("s_branch L_pf_check")
    if SV == 2:
        a.label("L2_retry")
        a("s_add_u32 s%d, s%d, 1" % (S_LI, S_LI))
        a("s_cmp_lg_u32 s%d, 1" % S_LI)
        a("s_cbranch_scc1 L2_retry2")
        a.label("L2_retry1")
        lut_reads(L_LUT + 2048)
        a("s_branch L2_scan")
    semi0 = len(a.l)
    if SV != 2:
        a.label("L_fagain")
        a("s_sleep 1")
        a("global_load_dword v%d, v%d, %s %s" % (FLG, FA, sr(P_DBG, 2), SCT))
        a("s_sub_u32 s%d, s%d, 1" % (S_TO, S_TO))
        a("s_waitcnt vmcnt(0)")
        a("s_cbranch_scc0 L_fpoll")
        a("v_mov_b32 v3, 6")
        a("v_mov_b32 v2, %d" % F_SLOW)
        a("ds_or_b32 v2, v3")
        a("s_waitcnt lgkmcnt(0)")
        a("s_branch L_barC")
    a.label("L_semi_end")
    if SV != 2 and not RMV:
        a.label("L2_retry")
        a("s_add_u32 s%d, s%d, 1" % (S_LI, S_LI))
        a("s_cmp_lg_u32 s%d, 1" % S_LI)
        a("s_cbranch_scc1 L2_retry2")
        a.label("L2_retry1")
        lut_reads(L_LUT + 2048)
        a("s_branch L2_scan")
    if PADS:
        semi = a.l[semi0:]
        del a.l[semi0:]
        k = a.l.index("@SEMI@")
        a.l[k:k + 1] = semi
        a.raw(".p2align 12")
        a.raw("@PAGE@")
        a.label("L_padt")
        if SV == 2:
            a("s_waitcnt vmcnt(2)")
            a("s_branch L_tcheck")
        elif PRE:
            a("s_waitcnt vmcnt(1)")
            a("s_branch L_tcheck")
        elif PSB == 4:
            a("s_waitcnt vmcnt(2)")
            a("s_branch L_tcheck")
        else:
            a("s_branch L_tback")
    if SV != 2 and RMV:
        a.label("L2_retry")
        a("s_add_u32 s%d, s%d, 1" % (S_LI, S_LI))
        a("s_cmp_lg_u32 s%d, 1" % S_LI)
        a("s_cbranch_scc1 L2_retry2")
        a.label("L2_retry1")
        lut_reads(L_LUT + 2048)
        a("s_branch L2_scan")
    a.raw(".p2align 6")
    a.label("L2_loop")
    for par in (1, 0):
        me(a, mfma_chain(1, par, V_T[1]), exps(V_T[0]))
        a("s_add_u32 s%d, s%d, 1" % (S_J, S_J))
        a("s_waitcnt vmcnt(4)")
        for x in ([] if X_TEST & 8 else b_reads(par + 1)) + idx_reads(16 if par else 20):
            a(x)
        if par == 1:
            a("ds_read2_b32 %s, v%d offset0:2 offset1:3" % (vr(V_R, 2), V_RA))
        a("s_cmp_ge_u32 s%d, s%d" % (S_J, S_ML))
        a("s_mov_b64 exec, %s" % sr(S_M[par], 2))
        for x in pk_update(0):
            a(x)
        a("s_cbranch_scc1 L2_last")
        a("s_mov_b64 exec, -1")
        if PRI:
            a("s_cmp_lg_u32 s%d, s%d" % (S_J, S_ST))
            a("s_cbranch_scc1 L2_np%d" % par)
            a("s_setprio 0")
            a.label("L2_np%d" % par)
        a("s_add_u32 s%d, s%d, 2" % (S_T, S_J))
        a("s_cmp_lt_u32 s%d, s%d" % (S_T, S_ML))
        a("s_cselect_b32 s%d, %d, 0" % (S_X + 2, NP))
        a(dma_m0(par ^ 1))
        if LOOPST:
            a("s_memrealtime s[90:91]")
            a("s_memtime s[88:89]")
            a("s_add_u32 s92, s%d, 32" % S_J)
        a("s_waitcnt lgkmcnt(0)")
        if LOOPST:
            a("s_lshl_b64 exec, 1, s%d" % S_J)
            a("v_mov_b32 v%d, s90" % (V_ST + 1))
            a("s_lshl_b64 exec, exec, 32")
            a("v_mov_b32 v%d, s88" % (V_ST + 1))
            a("s_mov_b64 exec, -1")
        extra = ["v_cmp_lt_u32_e64 %s, s%d, v%d" % (sr(S_M[par ^ 1], 2), S_J, V_LEN)]
        if par == 0:
            extra += ["v_add_u32 v%d, 8, v%d" % (V_IA + i, V_IA + i) for i in range(4)] + ["v_add_u32 v%d, 8, v%d" % (V_RA, V_RA)]
        me(a, mfma_chain(0, par ^ 1, V_T[0]), exps(V_T[1]), extra)
        for x in ([] if X_TEST & 16 else dma_loads()):
            a(x)
        a("s_mov_b64 exec, %s" % sr(S_M[par], 2))
        for x in pk_update(1):
            a(x)
        a("s_mov_b64 exec, -1")
    a("s_branch L2_loop")

    a.label("L2_last")
    if PRT:
        a("s_setprio %d" % (PRT - 1))
    a("s_mov_b64 %s, exec" % sr(S_T + 2, 2))
    a("s_mov_b64 exec, -1")
    a("s_waitcnt lgkmcnt(0)")
    stamp(a, "last")
    if OT:
        a("v_lshrrev_b32 v3, 25, v%d" % V_NW)
        a("v_lshl_add_u32 v3, v3, 8, s%d" % S_B)
        a("v_lshlrev_b32 v3, 7, v3")
        a("buffer_load_dword v%d, v3, %s, 0 offen %s" % (V_HX, sr(S_OUT, 4), OTP))
    for x in row_reads(V_C, V_RC) + exps(V_T[1]) + wa_reads()[:7]:
        a(x)
    a("s_mov_b64 exec, %s" % sr(S_T + 2, 2))
    for x in pk_update(1):
        a(x)
    a("s_mov_b64 exec, -1")
    for x in wa_reads()[7:]:
        a(x)
    a.label("L2_final")
    PB = V_B[0]
    a("s_not_b64 exec, %s" % sr(S_M0, 2))
    a("s_cbranch_execz L2_nz")
    for i in range(16):
        a("v_mov_b32 v%d, 0" % (PB + i))
    a.label("L2_nz")
    a("s_mov_b64 exec, %s" % sr(S_M0, 2))

    def fin(X):
        n, d, t = V_N[X], V_D[X], V_T[X]
        r = ["v_rcp_f32 v%d, v%d" % (t + i, d + i) for i in range(16)]
        s = ["v_pk_fma_f32 %s, %s, %s, %s" % (vr(V_S, 2), vr(d + 4 * i, 2), vr(d + 4 * i + 2, 2), vr(V_S, 2)) for i in range(4)]
        m = ["v_pk_mul_f32 %s, %s, %s" % (vr(t + 2 * i, 2), vr(t + 2 * i, 2), vr(n + 2 * i, 2)) for i in range(8)]
        c = ["v_cvt_pk_bf16_f32 v%d, v%d, v%d" % (PB + 8 * X + i, t + 2 * i, t + 2 * i + 1) for i in range(8)]
        return r, [s[0], m[0], m[1], s[1], m[2], m[3], s[2], m[4], m[5], s[3], m[6], m[7]] + c

    def ymf(o, q):
        return "v_mfma_f32_32x32x16_bf16 %s, %s, %s, %s" % (vr(V_C[o], 16), vr(wa_reg(o, q), 4), vr(PB + 4 * q, 4), vr(V_C[o], 16))

    r, p = fin(0)
    for x in r + p:
        a(x)
    r, p = fin(1)
    a("s_waitcnt vmcnt(%d) lgkmcnt(0)" % (1 if OT else 0))
    a(r[0])
    phase(a, [ymf(0, 0), ymf(1, 0), ymf(0, 1), ymf(1, 1)], r[1:])
    for x in p:
        a(x)
    a("s_nop 1")
    for x in (ymf(0, 2), ymf(1, 2), ymf(0, 3), ymf(1, 3)):
        a(x)
    a("v_mov_b32 v2, 0x%08x" % f32(2.0 ** 120))
    a("v_add_f32 v3, v%d, v%d" % (V_S, V_S + 1))
    a("s_movk_i32 s40, 0x207")
    a("v_cmp_nlt_f32 vcc, v3, v2")
    a("s_mov_b64 exec, -1")
    YR, OA, KK = V_T0 + 2, V_T0 + 4, V_T0 + 5
    a("s_mov_b32 s3, %d" % RSTR)
    a("v_and_b32 v2, 3, v%d" % V_LANE)
    a("v_and_b32 v3, 0xff, v%d" % V_NW)
    a("v_lshl_add_u32 v%d, v2, 5, s%d" % (YR, S_XT))
    a("v_mad_u32_u24 v%d, v3, s3, v%d" % (YR, YR))
    a("v_lshrrev_b32 v3, 25, v%d" % V_NW)
    if X_TEST & 32:
        a("s_mul_i32 s42, s%d, %d" % (S_B, NLOC))
        a("v_add_u32 v%d, s42, v3" % OA)
    else:
        a("v_lshl_add_u32 v%d, v3, 8, s%d" % (OA, S_B))
    a("v_lshlrev_b32 v%d, 7, v%d" % (OA, OA))
    a("v_lshl_add_u32 v%d, v2, 4, v%d" % (OA, OA))
    a("v_bfe_u32 v%d, v%d, 22, 3" % (KK, V_NW))
    a("v_cmp_class_f32_e64 s[42:43], v%d, s40" % V_C[1])
    a("s_lshl_b32 s41, s%d, 2" % S_BT)
    a("s_and_b64 s[42:43], s[42:43], %s" % sr(S_M0, 2))
    a("s_or_b64 vcc, vcc, s[42:43]")
    a("s_cselect_b32 s42, 1, 0")
    a("s_andn2_b32 s42, s42, s%d" % S_SAFE)
    a("s_cbranch_scc1 L2_safe")
    for X in range(2):
        for q in range(4):
            a("ds_write_b128 v%d, %s offset:%d" % (V_YW, vr(V_C[X] + 4 * q, 4), row_off(X, q)))
    a("v_mov_b32 v2, s41")
    a("v_mov_b32 v3, 1")
    a("v_cmp_lt_u32_e64 s[44:45], 2, v%d" % KK)
    a("v_cmp_lt_u32_e64 s[46:47], 3, v%d" % KK)
    a("s_waitcnt lgkmcnt(0)")
    a("ds_write_b32 v2, v3 offset:%d" % L_FLAG)
    a("s_cmp_eq_u32 s%d, 0" % S_NEED)
    a("s_cbranch_scc1 L2_nowait")
    a.label("L2_poll")
    a("ds_read_b32 v3, v2 offset:%d" % (L_FLAG + 4))
    if YSL:
        a("s_sleep %d" % YSL)
    a("s_waitcnt lgkmcnt(0)")
    a("v_cmp_eq_u32 vcc, 0, v3")
    a("s_cbranch_vccnz L2_poll")
    a.label("L2_nowait")
    stamp(a, "ywait")
    Y = [V_N[0], V_N[1], V_D[0], V_D[1]]

    def yreads(i):
        for c in range(4):
            a("ds_read_b128 %s, v%d offset:%d" % (vr(Y[i] + 4 * c, 4), YR, RSTR * i + 128 * (c >> 1) + 16 * (c & 1)))

    def yadd(i):
        for c in range(8):
            a("v_pk_add_f32 %s, %s, %s" % (vr(Y[0] + 2 * c, 2), vr(Y[0] + 2 * c, 2), vr(Y[i] + 2 * c, 2)))

    yreads(0)
    yreads(1)
    yreads(2)
    a("s_cmp_eq_u64 s[46:47], 0")
    a("s_cbranch_scc1 L2_no4")
    yreads(3)
    a("s_waitcnt lgkmcnt(0)")
    a("s_mov_b64 exec, s[46:47]")
    yadd(3)
    a("s_mov_b64 exec, -1")
    a.label("L2_no4")
    a("s_waitcnt lgkmcnt(4)")
    yadd(1)
    a("s_waitcnt lgkmcnt(0)")
    a("s_mov_b64 exec, s[44:45]")
    yadd(2)
    a("s_mov_b64 exec, -1")
    a("s_cmp_eq_u32 s%d, 1" % S_MODE)
    a("s_cbranch_scc1 L2_writeback")
    U = V_U
    for i in range(16):
        a("v_exp_f32 v%d, v%d" % (U + i, Y[0] + i))
    for i in range(8):
        a("v_pk_fma_f32 %s, %s, %s, %s" % (vr(U + 2 * i, 2), vr(U + 2 * i, 2), sr(S_LG, 2), sr(S_LG, 2)))
    for i in range(16):
        a("v_rcp_f32 v%d, v%d" % (U + i, U + i))
    for i in range(8):
        a("v_pk_mul_f32 %s, %s, %s" % (vr(U + 2 * i, 2), vr(U + 2 * i, 2), vr(Y[0] + 2 * i, 2)))
    P = V_B[1]
    for i in range(4):
        a("v_cvt_pk_bf16_f32 v%d, v%d, v%d" % (P + i, U + 2 * i, U + 2 * i + 1))
    a("buffer_store_dwordx4 %s, v%d, %s, 0 offen %s" % (vr(P, 4), OA, sr(S_OUT, 4), SCO))
    for i in range(4, 8):
        a("v_cvt_pk_bf16_f32 v%d, v%d, v%d" % (P + i, U + 2 * i, U + 2 * i + 1))
    a("buffer_store_dwordx4 %s, v%d, %s, 0 offen offset:64 %s" % (vr(P + 4, 4), OA, sr(S_OUT, 4), SCO))
    stamp_out(a)
    a.label("L_end")
    a("s_endpgm")

    a.label("L2_extra")
    a("s_mov_b32 s%d, 1" % S_EXTRA)
    a("v_cmp_le_u32 vcc, 0x%x, v3" % ((17 << 23) | (1 << 31)))
    a("s_cbranch_vccz L2_noflag")
    a("s_mov_b32 s%d, 3" % S_EXTRA)
    a.label("L2_noflag")
    XB2 = TB2 + 4
    if SV == 2:
        for p in range(4):
            a("v_add_u32 v%d, 0x%x, v%d" % (XB2 + p, (128 - (8 << 23)) & 0xffffffff, TB2 + p))
        a.label("L2_xld")
        for p in range(4):
            a("v_and_b32 v%d, s50, v%d" % (XB2 + p, XB2 + p))
            a("buffer_load_dwordx4 %s, v%d, %s, 0 offen %s" % (vr(RC + 16 + 4 * p, 4), XB2 + p, sr(S_WS, 4), SC))
    else:
        for p in range(4):
            a("v_add_u32 v3, 0x%x, v%d" % ((128 - (8 << 23)) & 0xffffffff, TB2 + p))
            a("v_and_b32 v3, s50, v3")
            a("buffer_load_dwordx4 %s, v3, %s, 0 offen %s" % (vr(RC + 16 + 4 * p, 4), sr(S_WS, 4), SC))
    a("s_branch L2_noextra")
    a.label("L2_xpl")
    a("s_waitcnt vmcnt(%d)" % (4 + NPF))
    for p in range(4):
        p1(RC + 16 + 4 * p, 3 * p)
    a("v_mov_b32 v3, s%d" % S_EXTRA)
    a("v_mov_b32 v%d, %d" % (V_U, F_SLOW))
    a("ds_or_b32 v%d, v3" % V_U)
    a("s_waitcnt lgkmcnt(0)")
    for p in range(4):
        p2(RC + 16 + 4 * p, 3 * p)
    if SV == 2:
        for p in range(4):
            mark(XB2 + p, RC + 16 + 4 * p)
        rt_reset()
        missing(XB2)
        a("v_cmp_le_i32 vcc, 0, v3")
        a("s_cmp_lg_u64 vcc, 0")
        a("s_cselect_b32 s%d, 1, 0" % S_EXTRA)
    a("s_branch L2_pl")
    if SV == 2:
        a.label("L_nofl")
        a("v_mov_b32 v3, 6")
        a("v_mov_b32 v2, %d" % F_SLOW)
        a("ds_or_b32 v2, v3")
        a("s_waitcnt vmcnt(0) lgkmcnt(0)")
        a("s_branch %s" % ("L_page1" if PUB3 else "L_nopub"))
        a.label("L_rdyt")
        p_ready(4)
        a("s_waitcnt vmcnt(1)")
        a("s_branch L_tcheck")
    a.label("L_timeout")
    a("v_mov_b32 v3, 6")
    a("v_mov_b32 v2, %d" % F_SLOW)
    a("ds_or_b32 v2, v3")
    if PSB == 2:
        DEBUG_, globals()["DEBUG"] = DEBUG, 0
        p_stores(14)
        globals()["DEBUG"] = DEBUG_
    if not PRE:
        p_ready(0)
    a("s_branch L2_build")

    a.label("L2_retry2")
    a("s_barrier")
    a("s_cmp_eq_u32 s%d, 2" % S_LI)
    a("s_cselect_b32 s3, %d, %d" % (LS[2], LS[3]))
    lut_build(a, 3, V_T[0], L_LUT + 2048)
    a("s_branch L2_retry1")

    a.label("L2_safe")
    a("s_mov_b32 s%d, 1" % S_SAFE)
    a("s_mov_b32 s%d, %d" % (S_X + 2, NP))
    a("s_nop 7")
    for x in row_reads(V_C, V_QA):
        a(x)
    a("v_and_b32 v2, 0xffff, v%d" % V_W)
    a("v_sub_u32 v2, v%d, v2" % V_RA)
    for i in range(4):
        a("v_sub_u32 v%d, v%d, v2" % (V_IA + i, V_IA + i))
    a("v_sub_u32 v%d, v%d, v2" % (V_RA, V_RA))
    for i in range(32):
        a("v_mov_b32 v%d, 0" % (V_N[0] + i))
        a("v_mov_b32 v%d, 1.0" % (V_D[0] + i))
    a("v_mov_b32 v%d, 0x%x" % (V_R + 1, PAD))
    a("s_mov_b32 s%d, 0" % S_J)
    if HD or HD2:
        for x in idx_reads(0, V_HD):
            a(x)
        a("ds_read_b32 v%d, v%d" % (V_R, V_HO))
        a("s_branch L2_safe_in")
    a.label("L2_safe_loop")
    for x in idx_reads(0):
        a(x)
    a("ds_read_b32 v%d, v%d" % (V_R, V_RA))
    a.label("L2_safe_in")
    a("s_waitcnt lgkmcnt(0)")
    dma_plain(a, 0)
    a("v_cmp_lt_u32_e64 %s, s%d, v%d" % (sr(S_M[0], 2), S_J, V_LEN))
    for i in range(4):
        a("v_add_u32 v%d, 4, v%d" % (V_IA + i, V_IA + i))
    a("v_add_u32 v%d, 4, v%d" % (V_RA, V_RA))
    a("s_waitcnt vmcnt(0)")
    for x in b_reads(0):
        a(x)
    a("s_waitcnt lgkmcnt(0)")
    for x in mfma_chain(0, 0, V_T[0]) + mfma_chain(1, 0, V_T[1]):
        a(x)
    a("s_nop 7")
    a("s_nop 3")
    a("s_mov_b64 exec, %s" % sr(S_M[0], 2))
    for X in range(2):
        for x in exps(V_T[X]):
            a(x)
        for i in range(8):
            a("v_pk_add_f32 %s, %s, %s" % (vr(U + 2 * i, 2), vr(U + 2 * i, 2), sr(S_ONE, 2)))
        for i in range(16):
            a("v_rcp_f32 v%d, v%d" % (U + i, U + i))
        for i in range(8):
            a("v_pk_fma_f32 %s, %s, %s, %s" % (vr(V_N[X] + 2 * i, 2), vr(V_T[X] + 2 * i, 2), vr(U + 2 * i, 2), vr(V_N[X] + 2 * i, 2)))
    a("s_mov_b64 exec, -1")
    a("s_add_u32 s%d, s%d, 1" % (S_J, S_J))
    a("s_cmp_lt_u32 s%d, s%d" % (S_J, S_ML))
    a("s_cbranch_scc1 L2_safe_loop")
    for x in row_reads(V_C, V_RC):
        a(x)
    a("s_branch L2_final")

    a.label("L2_slow")
    a("s_mov_b32 s%d, 1" % S_MODE)
    a("s_mov_b32 s%d, 0" % S_POS)
    a("v_mov_b32 v%d, 0" % V_DONE)
    a("v_cmp_gt_u32 vcc, 4, v%d" % FL)
    a("s_waitcnt vmcnt(0) lgkmcnt(0)")
    a("s_cbranch_vccnz L2_slow_round")
    a("s_barrier")
    t = V_U
    a("v_and_b32 v2, 16, v%d" % V_LANE)
    a("v_lshlrev_b32 v2, 2, v2")
    a("v_xor_b32 v2, v2, v%d" % V_L16)
    a("s_lshl_b32 s3, s%d, 10" % S_W)
    a("v_add_u32 v2, s3, v2")
    a("s_add_u32 m0, s3, %d" % L1_W1)
    a("v_lshrrev_b32 v3, 4, v%d" % V_LANE)
    a("global_load_lds_dwordx4 v2, %s" % sr(P_WM, 2))
    a("v_bfe_u32 v2, v%d, 2, 2" % V_LANE)
    a("v_lshl_add_u32 v%d, v3, 3, v2" % t)
    a("v_lshlrev_b32 v%d, 7, v%d" % (t, t))
    a("v_lshrrev_b32 v2, 1, v2")
    a("v_lshl_or_b32 v%d, v2, 6, v%d" % (t, t))
    a("v_and_b32 v2, 3, v%d" % V_LANE)
    a("v_lshl_or_b32 v%d, v2, 4, v%d" % (t, t))
    a("v_xor_b32 v%d, 64, v%d" % (t + 1, t))
    a("v_add_u32 v%d, %d, v%d" % (t, L1_W1, t))
    a("v_add_u32 v%d, %d, v%d" % (t + 1, L1_W1, t + 1))
    a("v_and_b32 v2, 15, v%d" % V_LANE)
    a("s_lshl_b32 s3, s%d, 4" % S_W)
    a("v_add_u32 v%d, s3, v2" % (t + 2))
    a("v_lshlrev_b32 v%d, 4, v3" % (t + 4))
    a("v_add_u32 v%d, 3072, v%d" % (t + 7, t + 4))
    a("s_mov_b32 s%d, %d" % (S_X + 2, NP))
    a("s_waitcnt vmcnt(0)")
    a("s_barrier")
    for x in tr_frags(V_C[0], t, 0):
        a(x)
    a("s_waitcnt lgkmcnt(0)")
    for x in tr_frags(V_C[1], t + 1, 0):
        a(x)
    a("s_mov_b32 s3, %d" % ((N + 127) // 128))
    a("s_mov_b32 s%d, 0" % S_PCK)
    a.label("L_allp")
    a("v_min_u32 v2, %d, v%d" % (N - 1, t + 2))
    a("v_lshl_add_u32 v2, v2, 7, v%d" % (t + 4))
    a("global_load_dwordx4 %s, v2, %s" % (vr(V_B[0], 4), sr(P_X, 2)))
    a("global_load_dwordx4 %s, v2, %s offset:64" % (vr(V_B[0] + 4, 4), sr(P_X, 2)))
    a("v_and_b32 v2, 255, v%d" % (t + 2))
    a("v_lshrrev_b32 v%d, 8, v%d" % (t + 6, t + 2))
    a("v_mul_u32_u24 v2, %d, v2" % NLOC)
    a("v_add_u32 v%d, v2, v%d" % (t + 6, t + 6))
    a("s_waitcnt vmcnt(0) lgkmcnt(0)")
    for s in range(2):
        for H in range(2):
            for blk in range(2):
                a(mf16(V_T[0] + 8 * H + 4 * blk, V_C[H] + 8 * blk + 4 * s, V_B[0] + 4 * s, s == 0))
    a("s_nop 7")
    for i in range(8):
        a("v_pk_mul_f32 %s, %s, %s" % (vr(V_T[0] + 2 * i, 2), vr(V_T[0] + 2 * i, 2), sr(S_LG, 2)))
    for i in range(8):
        a("v_cvt_pk_bf16_f32 v%d, v%d, v%d" % (V_T[1] + i, V_T[0] + 2 * i, V_T[0] + 2 * i + 1))
    a("buffer_store_dwordx4 %s, %s, %s, 0 idxen offen %s" % (vr(V_T[1], 4), vr(t + 6, 2), sr(S_X, 4), SC))
    a("buffer_store_dwordx4 %s, %s, %s, 0 idxen offen offset:64 %s" % (vr(V_T[1] + 4, 4), vr(t + 6, 2), sr(S_X, 4), SC))
    a("v_add_u32 v%d, 128, v%d" % (t + 2, t + 2))
    a("s_sub_u32 s3, s3, 1")
    a("s_cmp_lg_u32 s3, 0")
    a("s_cbranch_scc1 L_allp")
    a("s_waitcnt vmcnt(0)")
    a("s_branch L2_slow_round")
    a.label("L2_writeback")
    a("v_cmp_ne_u32 vcc, 0, v%d" % KK)
    a("v_lshrrev_b32 v3, 25, v%d" % V_NW)
    a("v_and_b32 v2, 3, v%d" % V_LANE)
    a("v_lshlrev_b32 v2, 5, v2")
    a("v_mad_u32_u24 v2, v3, s3, v2")
    a("v_add_u32 v2, %d, v2" % L_R)
    a("s_mov_b64 exec, vcc")
    for c in range(4):
        a("ds_write_b128 v2, %s offset:%d" % (vr(Y[0] + 4 * c, 4), 128 * (c >> 1) + 16 * (c & 1)))
    a("s_mov_b64 exec, -1")
    a("s_waitcnt lgkmcnt(0)")
    a.label("L2_slow_round")
    a("s_barrier")
    lds_init(a, V_U)
    a("s_waitcnt lgkmcnt(0)")
    a("s_barrier")
    a.label("L2_slow_step")
    a("s_cmp_lt_u32 s%d, %d" % (S_POS, E))
    a("s_cbranch_scc1 L2_slow_go")
    a("s_mov_b32 s%d, 2" % S_MODE)
    a("s_branch L2_build")
    a.label("L2_slow_go")
    a("v_add_u32 v2, s%d, v0" % S_POS)
    a("v_cmp_gt_u32 vcc, %d, v2" % E)
    a("v_min_u32 v2, %d, v2" % (E - 1))
    a("v_lshlrev_b32 v3, 1, v2")
    a("v_lshlrev_b32 v2, 2, v2")
    a("global_load_dword v%d, v2, %s" % (t, sr(P_DST, 2)))
    a("global_load_dword v%d, v2, %s" % (t + 1, sr(P_SRC, 2)))
    a("global_load_ushort v%d, v3, %s" % (t + 2, sr(P_E, 2)))
    a("v_cmp_eq_u32_e64 s[40:41], 0, v%d" % V_DONE)
    a("s_and_b64 s[40:41], s[40:41], vcc")
    a("s_mov_b32 s3, %d" % SSTR)
    a("v_mov_b32 v%d, %d" % (t + 4, L_SLOT + 4 * DMAX))
    a("v_mov_b32 v2, 4")
    a("s_waitcnt vmcnt(0)")
    a("v_and_b32 v3, 255, v%d" % t)
    a("v_cmp_eq_u32 vcc, s%d, v3" % S_B)
    a("v_lshrrev_b32 v3, 8, v%d" % t)
    a("v_mad_u32_u24 v%d, v3, s3, v%d" % (t + 4, t + 4))
    a("v_lshlrev_b32 v3, 2, v3")
    a("v_and_b32 v%d, 255, v%d" % (t + 5, t + 1))
    a("v_lshrrev_b32 v%d, 8, v%d" % (t + 1, t + 1))
    a("v_mul_u32_u24 v%d, %d, v%d" % (t + 5, NLOC, t + 5))
    a("v_add_u32 v%d, v%d, v%d" % (t + 1, t + 1, t + 5))
    a("v_lshl_or_b32 v%d, v%d, 16, v%d" % (t + 1, t + 2, t + 1))
    a("s_and_b64 exec, vcc, s[40:41]")
    a("ds_add_rtn_u32 v%d, v3, v2 offset:%d" % (t + 3, L_CNT + 4))
    a("s_waitcnt lgkmcnt(0)")
    a("v_cmp_lt_u32 vcc, v%d, v%d" % (t + 3, t + 4))
    a("s_andn2_b64 s[40:41], exec, vcc")
    a("s_mov_b64 exec, vcc")
    a("ds_write_b32 v%d, v%d" % (t + 3, t + 1))
    a("v_mov_b32 v%d, 1" % V_DONE)
    a("s_mov_b64 exec, s[40:41]")
    a("v_mov_b32 v%d, %d" % (t + 5, F_PEND))
    a("ds_write_b32 v%d, v2" % (t + 5))
    a("s_mov_b64 exec, -1")
    a("s_waitcnt lgkmcnt(0)")
    a("s_barrier")
    a("s_mov_b64 exec, s[40:41]")
    a("ds_min_u32 v3, v%d offset:%d" % (t + 4, L_CNT + 4))
    a("s_mov_b64 exec, -1")
    a("v_mov_b32 v%d, %d" % (t + 5, F_PEND))
    a("ds_read_b32 v%d, v%d" % (t + 5, t + 5))
    a("s_waitcnt lgkmcnt(0)")
    a("v_cmp_ne_u32 vcc, 0, v%d" % (t + 5))
    a("s_cbranch_vccnz L2_build")
    a("s_barrier")
    a("s_add_u32 s%d, s%d, 512" % (S_POS, S_POS))
    a("v_mov_b32 v%d, 0" % V_DONE)
    a("s_branch L2_slow_step")


def kd(name, vgpr, sgpr):
    return """.amdhsa_kernel %s
  .amdhsa_next_free_vgpr %d
  .amdhsa_next_free_sgpr %d
  .amdhsa_accum_offset %d
  .amdhsa_group_segment_fixed_size 0
  .amdhsa_kernarg_size 72
  .amdhsa_user_sgpr_count 2
  .amdhsa_user_sgpr_kernarg_segment_ptr 1
  .amdhsa_system_sgpr_workgroup_id_x 1
  .amdhsa_float_denorm_mode_32 3
.end_amdhsa_kernel
""" % (name, vgpr, sgpr, (vgpr + 3) // 4 * 4)


HEADER = """; Kernarg layout for this problem (72 bytes, ptrs only, base s[0:1]):
; Generated by dev/gen3.py (hand-written generator).
"""


def addresses(lines):
    import subprocess, tempfile
    k = lines.index(".text")
    e = [i for i, x in enumerate(lines) if x.startswith(".section")][0]
    t = []
    for i, x in enumerate(lines):
        if k < i < e:
            t.append("Z_%d:" % i)
        t.append("" if x == "@PAGE@" else x)
    missing = ["L_pad%d" % p for p in range(len(PADA)) if ("L_pad%d:" % p) not in lines]
    t = t[:t.index(lines[e])] + [m + ":" for m in missing] + t[t.index(lines[e]):]
    with tempfile.TemporaryDirectory() as d:
        open(d + "/a.s", "w").write("\n".join(t) + "\n")
        subprocess.check_call(["clang", "-x", "assembler", "-target", "amdgcn-amd-amdhsa", "-mcpu=gfx950", "-c", d + "/a.s", "-o", d + "/a.o"])
        o = subprocess.check_output(["llvm-objdump", "-t", d + "/a.o"]).decode()
    ad = {}
    for l in o.split("\n"):
        f = l.split()
        if f and f[-1].startswith("Z_"):
            ad[int(f[-1][2:])] = int(f[0], 16)
    return ad


def place_pads(a):
    for p, target in enumerate(PADA):
        ad = addresses(a.l)
        i = min(i for i in ad if ad[i] >= target - 4 and (a.l[i].startswith("    ") or a.l[i] == "@PAGE@"))
        if a.l[i].startswith("    s_branch"):
            i += 1
        if a.l[i] == "@PAGE@":
            a.l[i:i + 1] = ["L_pad%d:" % p, "    s_branch L_back7"]
        elif a.l[i - 1].startswith("    s_branch"):
            a.l[i:i] = ["L_pad%d:" % p, "    s_branch L_back7"]
        else:
            a.l[i:i] = ["    s_branch L_over%d" % p, "L_pad%d:" % p, "    s_branch L_back7", "L_over%d:" % p]
    a.l = [x for x in a.l if x != "@PAGE@"]


def main():
    a = Asm()
    a.raw(HEADER.rstrip())
    a.raw("; @launch grid=(%d,1,1) block=(512,1,1) lds=%d" % (NB, LDS_SIZE))
    a.raw('.amdgcn_target "amdgcn-amd-amdhsa--gfx950"')
    a.raw(".text")
    gen(a)
    a.raw('.section .rodata,"a"')
    a.raw(".p2align 6")
    a.raw(kd(KNAME, 256, 96))
    out = sys.argv[1] if len(sys.argv) > 1 else "standalone__mpnn_edge_mlp__graph.s"
    if PADS:
        place_pads(a)
    txt = a.text()
    if DEBUG:
        txt = txt.replace("; Generated by", "; STAMPS " + " ".join(STAMP_NAMES) + "\n; Generated by")
    open(out, "w").write(txt)
    print("wrote", out, "LDS", LDS_SIZE)


if __name__ == "__main__":
    main()
```

```python
import struct, sys, os


def env(name, d):
    return int(os.environ.get(name, str(d)), 0)


DEBUG = env('DEBUG', 0)
X_TIMEOUT = env('X_TIMEOUT', 0)
POLLS = X_TIMEOUT if X_TIMEOUT else 20000
NPF = 2 if env('PSB', 0) == 2 or env('SV', 0) == 2 else 1
PADS = env('PADS', 1)
PADA = [int(x, 0) for x in os.environ.get('PADA', '0x600 0xa00 0x1000 0x1400 0x1800 0x1c00 0x2000 0x2700').split()]
SLEEP = env('SLEEP', 1)
X_NOPST = env('X_NOPST', 0)
X_TEST = env('X_TEST', 0)
SDEL = env('SDEL', 18)
SPOS = env('SPOS', 0)
CDEL = env('CDEL', 8)
WSL = env('WSL', 0)
TOUCH = env('TOUCH', 0)
SMF = env('SMF', 1)
SV = env('SV', 0)
POI = env('POI', 0)
RDEL = env('RDEL', 0)
RSL = env('RSL', 0)
S_PD = 84
S_CI = 85
HD = env('HD', 0)
HPF = env('HPF', 1)
HD2 = env('HD2', 1)
BCE = env('BCE', 0)
RMV = env('RMV', 0)
X5 = env('X5', 1)
PSH = env('PSH', 1)
TSL = env('TSL', 0)
TSX = env('TSX', 0)
TW = env('TW', 0)
TWS = env('TWS', 17408)
OT = env('OT', 0)
OTP = os.environ.get('OTP', '')
PFE = env('PFE', 0)
HPW = env('HPW', 0)
HPN = env('HPN', 2)
HU = env('HU', 0)
XE = env('XE', 0)
S_XE = 86
SDE = env('SDE', 0)
XDE = env('XDE', 0)
WBL = env('WBL', 0)
SCR = os.environ.get('SCR', '' if WBL else os.environ.get('SCS', 'sc1'))
PUB3 = env('PUB3', 1)
BARE = env('BARE', 1)
PTL = env('PTL', 0)
NC2 = env('NC2', 8)
FSL = env('FSL', 4)
FLT = env('FLT', 1)
CLM = {4: '0xfc', 8: '0xf4', 16: '0xe4', 32: '0xc4'}[NC2]
XL = env('XL', 2)
CPAD = env('CPAD', 1)
XPOS = env('XPOS', 0)
PSB = env('PSB', 0)
FPOS = env('FPOS', 1)
W7B = env('W7B', 1)
B8E = env('B8E', 1)
WR = env('WR', 8)
WQ = env('WQ', 0)
NCLR = 32
LD_IN = os.environ.get('LD_IN', '')
SC = os.environ.get('SC', 'sc1')
SCP = os.environ.get('SCP', 'sc1')
SCO = os.environ.get('SCO', 'sc1')
SCS = os.environ.get('SCS', 'sc1')
TORD = env('TORD', 0)
PRE = env('PRE', 1)
PDEP = env('PDEP', 2)
PSL = env('PSL', 4)
QF = env('QF', 1)
PRW = env('PRW', 0)
YSL = env('YSL', 0)
LOOPST = env('LOOPST', 0)
BSL = env('BSL', 0)
APR = env('APR', 0)
PRI = env('PRI', 2)
PRT = env('PRT', 0)
TBL = env('TBL', 5)
SCT = os.environ.get('SCT', 'sc1')
SCW = os.environ.get('SCW', 'sc1')
SCG = os.environ.get('SCG', 'sc1')

N = 25000
E = 800000
NB = 256
NLOC = 98
NP = NB * NLOC
CU = 1216
RSZ = 20480 if SV == 2 else CU * 16
DMAX = 62

WS_REC = 0
WS_TAB = 0x500000
WS_PT = 0x540000
WS_P = 0x580000
WS_SIZE = 0x580000
WS_DBG = 0xA00000
LS = tuple(int(x) for x in os.environ.get('LS', '31 32 36 64').split())
assert NB * RSZ <= WS_TAB

LOG2E = 1.4426950408889634
LN2 = 0.6931471805599453


def f32(x):
    return struct.unpack("<I", struct.pack("<f", x))[0]


class Asm:
    def __init__(self):
        self.l = []
        self.auto = 0
        self.n = 0

    def __call__(self, s):
        for x in s.split("\n"):
            x = x.strip()
            if x:
                self.l.append("    " + x)
                if self.auto:
                    self.n += 1
                    if self.n % self.auto == 0:
                        k, self.auto = self.auto, 0
                        stamp(self, "a%d" % self.n, True)
                        self.auto = k

    def label(self, s):
        self.l.append(s + ":")

    def raw(self, s):
        self.l.append(s)

    def text(self):
        return "\n".join(self.l) + "\n"


def vr(a, n):
    return "v[%d:%d]" % (a, a + n - 1)


def sr(a, n):
    return "s[%d:%d]" % (a, a + n - 1)


DPP_STEPS = ["row_shr:1 row_mask:0xf", "row_shr:2 row_mask:0xf", "row_shr:4 row_mask:0xf", "row_shr:8 row_mask:0xf",
             "row_bcast:15 row_mask:0xa", "row_bcast:31 row_mask:0xc"]


def dpp_scan(a, regs, op="v_add_u32", fill=()):
    fill = list(fill)
    for st in DPP_STEPS:
        n = 3 - len(regs)
        while n > 0 and fill:
            a(fill.pop(0))
            n -= 1
        if n > 0:
            a("s_nop %d" % (n - 1))
        for v in regs:
            a("%s_dpp v%d, v%d, v%d %s bank_mask:0xf" % (op, v, v, v, st))
    for x in fill:
        a(x)


RSTR = 272
SSTR = 260
L_CNT = 0
L_FLAG = 544
L_ZERO = 608
L_ZEND = 880
L_W3 = 896
L_NL = 1136
L_LUT = 2048
L_SLOT = L_LUT + 4096
L_SEND = L_SLOT + (99 * SSTR + 160 + 15) // 16 * 16
L_XT = (L_SEND + 255) // 256 * 256
XSTR = 32 * RSTR
L_WA = L_XT + 8 * XSTR
L_Q = L_WA + 8192
L_R = (L_Q + NLOC * RSTR + 127) // 128 * 128
LDS_SIZE = L_R + NLOC * RSTR
L1_CNT = L_XT
L1_START = L1_CNT + 1024
L1_STAGE = L1_START + 1024
L1_X = L1_STAGE + CU * 16
L1_WX = L_WA - 8192
L1_W2 = L1_WX - 8192
L1_W1 = L1_W2 - 8192
L1_P = L1_STAGE
assert L1_X + 16384 <= L1_W1 and L1_W1 % 128 == 0 and L1_P % 128 == 0 and L1_P + 16384 <= LDS_SIZE
assert (L1_X - L1_CNT) == 3 * 448 * 16
assert L1_X < 65536 and L1_X % 128 == 0
assert L_NL + 512 <= L_LUT
assert L_SEND < 65536 - 256
assert LDS_SIZE <= 163840, LDS_SIZE
PAD = 0x7F00
F_SLOW = L_FLAG + 40
F_PEND = L_FLAG + 44
F_PCNT = L_FLAG + 48

V_LANE = 1
V_BAD = 4
V_IA = 8
V_RA = 12
V_LEN = 13
V_S = 14
V_IDX = 16
V_R = 24
V_YW = 26
V_RC = 27
V_QA = 28
V_NW = 29
V_L16 = 30
V_W = 31
V_T0 = 32
V_PF = 38
V_DONE = 39
V_AE = 40
V_ID = 48
V_WA = 56
V_TRA = 72
V_ST = 74
V_TAB = 76
V_HD = 76
V_HO = 53
V_HA = 54
V_HX = 55
V_C = (80, 96)
V_T = (112, 128)
V_N = (144, 160)
V_D = (176, 192)
V_U = 208
V_B = (224, 240)

S_X = 4
S_WS = 8
S_OUT = 12
S_B = 16
S_W = 17
S_BT = 18
S_XT = 19
S_ML = 20
S_J = 21
S_ONE = 22
S_M = (24, 26)
S_M0 = 28
S_MODE = 30
S_SAFE = 31
S_HI = 32
S_NEED = 34
S_LI = 35
S_EXTRA = 36
S_XT1 = 37
S_POS = 38
S_TO = 39
S_T = 40
S_EM = 56
S_LG = 58
S_QM = 60
S_PCK = 82
S_ST = 83
P_X, P_E, P_SRC, P_DST, P_WM, P_WU, P_OUT, P_DBG, P_WS = 64, 66, 68, 70, 72, 74, 76, 78, 80


def mfma_chain(X, j, dst):
    B = V_B[j & 1]
    out = ["v_mfma_f32_32x32x8_bf16 %s, %s, %s, %s" % (
        vr(dst, 16), vr(V_AE + 4 * X + 2 * (j & 1), 2), vr(V_R, 2), vr(V_C[X], 16))]
    if X_TEST & 2:
        for k in range(4):
            out.append("v_mfma_f32_32x32x16_bf16 %s, %s, %s, %s" % (
                vr(dst, 16), vr(V_ID + 4 * k + 8 * X, 4), vr(B + 4 * k, 4), vr(dst, 16)))
        return out
    if X_TEST & 4:
        return out
    if SMF:
        out.append("v_smfmac_f32_32x32x32_bf16 %s, %s, %s, v%d" % (vr(dst, 16), vr(V_ID, 4), vr(B + 8 * X, 8), V_ID + 4))
        return out
    for k in range(2):
        out.append("v_mfma_f32_32x32x16_bf16 %s, %s, %s, %s" % (
            vr(dst, 16), vr(V_ID + 4 * k, 4), vr(B + 8 * X + 4 * k, 4), vr(dst, 16)))
    return out


def exps(src):
    return ["v_exp_f32 v%d, v%d" % (V_U + i, src + i) for i in range(16)]


def pk_first(X):
    return ["v_pk_add_f32 %s, %s, %s" % (vr(V_D[X] + 2 * i, 2), vr(V_U + 2 * i, 2), sr(S_ONE, 2)) for i in range(8)]


def pk_update(X):
    n, d, u, t = V_N[X], V_D[X], V_U, V_T[X]
    A = ["v_pk_fma_f32 %s, %s, %s, %s" % (vr(n + 2 * i, 2), vr(n + 2 * i, 2), vr(u + 2 * i, 2), vr(n + 2 * i, 2)) for i in range(8)]
    B = ["v_pk_fma_f32 %s, %s, %s, %s" % (vr(n + 2 * i, 2), vr(t + 2 * i, 2), vr(d + 2 * i, 2), vr(n + 2 * i, 2)) for i in range(8)]
    C = ["v_pk_fma_f32 %s, %s, %s, %s" % (vr(d + 2 * i, 2), vr(d + 2 * i, 2), vr(u + 2 * i, 2), vr(d + 2 * i, 2)) for i in range(8)]
    return A + B + C


def phase(a, mf, ex):
    mf = list(mf)
    for i, e in enumerate(ex):
        if i % 3 == 0 and mf:
            a(mf.pop(0))
        a(e)
    assert not mf


def b_reads(tile):
    return ["ds_read_b128 %s, v%d offset:%d" % (vr(V_B[tile & 1] + 4 * k, 4), V_BAD + k, 4096 * (tile & 1)) for k in range(4)]


def idx_reads(off, base=None):
    return ["ds_read_u16 v%d, v%d offset:%d" % (V_IDX + 2 * i, (V_IA if base is None else base) + i, off) for i in range(4)]


def dma_m0(slot):
    return "s_mov_b32 m0, s%d" % (S_XT1 if slot else S_XT)


def dma_loads():
    return ["buffer_load_dwordx4 %s, %s, 0 idxen offen offset:%d %s lds" % (vr(V_IDX + 2 * i, 2), sr(S_X, 4), 1024 * i, SCG) for i in range(4)]


def dma_plain(a, slot):
    a(dma_m0(slot))
    a("s_nop 0")
    for x in dma_loads():
        a(x)


def row_off(X, q):
    return 128 * X + 64 * (q >> 1) + 16 * (q & 1)


def row_reads(dst, addr):
    return ["ds_read_b128 %s, v%d offset:%d" % (vr(dst[X] + 4 * q, 4), addr, row_off(X, q)) for X in range(2) for q in range(4)]


def wa_reg(o, q):
    return (V_WA if o == 0 else V_B[1]) + 4 * q


def wa_reads():
    return ["ds_read_b64_tr_b16 %s, v%d offset:%d" % (vr(wa_reg(o, q) + 2 * i, 2), V_TRA + o, 2048 * q + 512 * i)
            for q in range(4) for o in range(2) for i in range(2)]


NSTAMP = [0]
STAMP_NAMES = []


def stamp(a, name, auto=False):
    if DEBUG == 2 and not auto and name not in ("start", "barW", "barA", "barB", "end"):
        return
    if name in os.environ.get("NOST", "issued iss2 dst stiss piss rec0 placed dma0 ywait xiss preA preB preB2").split():
        return
    if DEBUG:
        au, a.auto = a.auto, 0
        k = len(STAMP_NAMES)
        STAMP_NAMES.append(name)
        cyc = name in ("start", "loop", "last", "end")
        if cyc:
            a("s_memtime s[88:89]")
        a("s_memrealtime s[90:91]")
        a("s_waitcnt lgkmcnt(0)")
        if cyc:
            a("v_writelane_b32 v%d, s88, %d" % (V_ST, k))
        a("v_writelane_b32 v%d, s90, %d" % (V_ST, 32 + k))
        a.auto = au


def stamp_out(a):
    if DEBUG:
        a("s_mov_b64 exec, -1")
        a("s_waitcnt vmcnt(0)")
        stamp(a, "end")
        a("v_lshlrev_b32 v2, 2, v0")
        a("s_lshl_b32 s3, s2, 11")
        a("s_add_u32 s3, s3, %d" % WS_DBG)
        a("v_add_u32 v2, s3, v2")
        a("global_store_dword v2, v%d, %s" % (V_ST, sr(P_WS, 2)))
        if LOOPST:
            a("v_add_u32 v2, 0x80000, v2")
            a("global_store_dword v2, v%d, %s" % (V_ST + 1, sr(P_WS, 2)))


def lds_init(a, t):
    a("v_mov_b32 v%d, 0x%x" % (t, PAD))
    a("v_mov_b32 v%d, 0x%x" % (t + 1, PAD))
    a("v_mov_b32 v%d, 0x%x" % (t + 2, PAD))
    a("v_mov_b32 v%d, 0x%x" % (t + 3, PAD))
    a("v_lshlrev_b32 v%d, 4, v0" % (t + 4))
    n = (L_SEND - L_SLOT) // 16
    for i in range(n // 512):
        a("ds_write_b128 v%d, %s offset:%d" % (t + 4, vr(t, 4), L_SLOT + 8192 * i))
    a("v_cmp_gt_u32 vcc, %d, v0" % (n % 512))
    a("v_lshlrev_b32 v%d, 2, v0" % (t + 5))
    a("s_mov_b32 s%d, %d" % (S_T, SSTR))
    a("v_mov_b32 v%d, %d" % (t + 6, L_SLOT - SSTR))
    a("s_mov_b64 exec, vcc")
    a("ds_write_b128 v%d, %s offset:%d" % (t + 4, vr(t, 4), L_SLOT + 8192 * (n // 512)))
    a("s_mov_b64 exec, -1")
    a("v_mad_u32_u24 v%d, v0, s%d, v%d" % (t + 6, S_T, t + 6))
    a("s_cmp_lt_u32 s%d, %d" % (S_B, N - 97 * 256))
    a("s_addc_u32 s%d, %d, 0" % (S_T, NLOC - 1))
    a("v_cmp_lt_u32 vcc, s%d, v0" % S_T)
    a("v_subrev_u32 v%d, 4, v%d" % (t + 7, t + 6))
    a("v_mov_b32 v%d, %d" % (t + 4, L_FLAG // 4))
    a("v_cndmask_b32 v%d, v%d, v%d, vcc" % (t + 6, t + 6, t + 7))
    a("v_cmp_gt_u32 vcc, v%d, v0" % (t + 4))
    a("v_mov_b32 v%d, %d" % (t + 4, L_ZEND // 4))
    a("v_mov_b32 v%d, 0" % (t + 7))
    a("v_cndmask_b32 v%d, v%d, v%d, vcc" % (t + 6, t + 7, t + 6))
    a("v_cmp_gt_u32 vcc, v%d, v0" % (t + 4))
    a("s_mov_b64 exec, vcc")
    a("ds_write_b32 v%d, v%d" % (t + 5, t + 6))
    a("s_mov_b64 exec, -1")


def lut_build(a, sL, t, off, sbase=None):
    s1 = sL
    sL, s2, sm = S_T + 8, S_T + 9, S_T + 10
    d, k, m, ln, acc, x, y = t, t + 1, t + 2, t + 3, t + 4, t + 5, t + 6
    k64 = t + 8
    o = t + 12
    a("s_add_u32 s%d, s%d, 1" % (sL, s1))
    a("s_lshr_b32 s%d, s%d, 1" % (sL, sL))
    a("s_mul_i32 s%d, s%d, 3" % (s2, sL))
    a("v_subrev_u32 v%d, 1, v%d" % (d, V_LANE))
    a("v_max_i32 v%d, 0, v%d" % (d, d))
    a("v_cmp_lt_u32 vcc, s%d, v%d" % (s1, d))
    a("v_cmp_lt_u32_e64 %s, s%d, v%d" % (sr(sm, 2), s2, d))
    a("v_mov_b32 v%d, 2" % k)
    a("v_mov_b32 v%d, 32768" % m)
    a("v_mov_b32 v%d, 21846" % ln)
    a("v_cndmask_b32_e64 v%d, v%d, 3, vcc" % (k, k))
    a("v_cndmask_b32 v%d, v%d, v%d, vcc" % (m, m, ln))
    a("v_mov_b32 v%d, 16384" % ln)
    a("v_cndmask_b32_e64 v%d, v%d, 4, %s" % (k, k, sr(sm, 2)))
    a("v_cndmask_b32_e64 v%d, v%d, v%d, %s" % (m, m, ln, sr(sm, 2)))
    a("v_add3_u32 v%d, v%d, v%d, -1" % (ln, d, k))
    a("v_mul_u32_u24 v%d, v%d, v%d" % (ln, ln, m))
    a("v_lshrrev_b32 v%d, 16, v%d" % (ln, ln))
    a("v_mov_b32 v%d, 0" % acc)
    for i in range(4):
        a("v_min_u32 v%d, v%d, v%d" % (x, acc, d))
        a("v_sub_u32 v%d, v%d, v%d" % (y, d, x))
        a("v_min_u32 v%d, v%d, v%d" % (y, y, ln))
        if HD:
            a("v_add3_u32 v%d, v%d, v%d, %d" % (x, x, k, 3 - i))
        if HD2:
            a("v_add3_u32 v%d, v%d, v%d, %d" % (x, x, k, -1 - 2 * i))
            a("v_max_i32 v%d, 0, v%d" % (x, x))
            a("v_lshl_or_b32 v%d, v%d, 25, %d" % (x, x, 4 * i))
        else:
            a("v_lshlrev_b32 v%d, 2, v%d" % (x, x))
        a("v_lshl_or_b32 v%d, v%d, 16, v%d" % (o + i, y, x))
        a("v_add_u32 v%d, v%d, v%d" % (acc, acc, ln))
    a("v_lshl_or_b32 v%d, v%d, 22, v%d" % (o, k, o))
    a("v_sub_u32 v%d, s%d, v%d" % (acc, sL, ln))
    a("v_min_u32 v%d, 5, v%d" % (acc, acc))
    a("v_mul_u32_u24 v%d, 10, v%d" % (o + 6, acc))
    a("v_cmp_le_u32 vcc, 3, v%d" % acc)
    a("v_add_u32 v%d, 2, v%d" % (x, o + 6))
    a("v_mov_b32 v%d, v%d" % (k64, k))
    a("v_mov_b32 v%d, 0" % (k64 + 1))
    a("v_cndmask_b32 v%d, v%d, v%d, vcc" % (o + 6, o + 6, x))
    a("v_cmp_ne_u32 vcc, 0, v%d" % V_LANE)
    a("v_lshlrev_b64 %s, v%d, %s" % (vr(o + 4, 2), o + 6, vr(k64, 2)))
    a("v_mov_b32 v%d, 0" % (o + 7))
    a("v_cndmask_b32 v%d, v%d, v%d, vcc" % (o + 4, k64 + 1, o + 4))
    a("v_cndmask_b32 v%d, v%d, v%d, vcc" % (o + 5, k64 + 1, o + 5))
    if sbase is None:
        a("v_lshlrev_b32 v%d, 5, v%d" % (x, V_LANE))
    else:
        a("v_lshl_add_u32 v%d, v%d, 5, s%d" % (x, V_LANE, sbase))
    a("ds_write_b128 v%d, %s offset:%d" % (x, vr(o, 4), off))
    a("ds_write_b128 v%d, %s offset:%d" % (x, vr(o + 4, 4), off + 16))


PAT = os.environ.get('PAT', "MeeeeMeeeMeeeMeeeMeee" if X_TEST & 2 else "MeeeeMeeeMeeeeeeeee")


def me(a, mf, ex, extra=(), pat=PAT):
    mf = list(mf)
    ex = list(ex)
    for c in pat:
        if c == "M":
            if mf:
                a(mf.pop(0))
        else:
            a(ex.pop(0))
    assert not mf and not ex
    for x in extra:
        a(x)


def mf16(d, A, B, first):
    return "v_mfma_f32_16x16x32_bf16 %s, %s, %s, %s" % (vr(d, 4), vr(A, 4), vr(B, 4), "0" if first else vr(d, 4))


def tr_frags(dst, addr, off):
    return ["ds_read_b64_tr_b16 %s, v%d offset:%d" % (vr(dst + 8 * blk + 4 * s + 2 * i, 2), addr, off + 4096 * s + 512 * i + 8 * blk)
            for blk in range(2) for s in range(2) for i in range(2)]


def tile_mfmas(d, A, B):
    out = []
    for s in range(2):
        for tau in range(2):
            for blk in range(2):
                out.append(mf16(d + 8 * tau + 4 * blk, A + 8 * blk + 4 * s, B + 8 * tau + 4 * s, s == 0))
    return out


KNAME = "standalone__mpnn_edge_mlp__graph_kernel"


def gen(a):
    COL, HH = V_T0, V_T0 + 1
    a.raw(".globl %s\n.p2align 12\n.type %s,@function" % (KNAME, KNAME))
    a.label(KNAME)
    a("s_cmp_ge_u32 s2, %d" % NB)
    a("s_cbranch_scc1 L_end")
    a("s_load_dwordx16 s[64:79], s[0:1], 0")
    a("s_load_dwordx2 s[80:81], s[0:1], 64")
    if DEBUG:
        a("v_mov_b32 v%d, 0" % V_ST)
        a("v_mov_b32 v%d, 0" % (V_ST + 1))
        stamp(a, "start")
        if DEBUG == 2:
            a.auto = env('AUTO', 24)
    DST, SRC, EV = V_N[0], V_N[0] + 8, V_N[1]
    AD, RK, O1, O2 = V_N[1] + 8, V_D[0], V_D[0] + 8, V_D[1]
    W3 = V_D[1] + 8
    DO, EO = V_D[1] + 10, V_N[1] + 4
    XA, WAD = V_D[1] + 12, V_D[1] + 14
    T16 = V_D[1] + 15
    WUD = V_N[1] + 6
    ZR = V_T[1]
    a("v_lshrrev_b32 v2, 6, v0")
    a("s_mul_i32 s40, s2, 3125")
    a("v_readfirstlane_b32 s%d, v2" % S_W)
    a("s_lshr_b32 s41, s40, 3")
    a("s_add_u32 s40, s40, 3125")
    a("s_lshr_b32 s40, s40, 3")
    a("s_sub_u32 s40, s40, s41")
    if PADS:
        a("s_cmp_eq_u32 s%d, 7" % S_W)
        a("s_cbranch_scc1 L_touch")
        a.label("L_back7")
    a("v_lshlrev_b32 v%d, 4, v0" % T16)
    a("s_lshl_b32 s41, s41, 5")
    a("v_add_u32 v%d, s41, v%d" % (DO, T16))
    a("s_lshl_b32 s3, s40, 4")
    a("v_add_u32 v%d, s3, v%d" % (DO + 1, DO))
    a("v_cmp_gt_u32_e64 %s, s40, v0" % sr(S_EM, 2))
    for i in range(4):
        a("v_mov_b32 v%d, 0" % (ZR + i))
    a("v_lshrrev_b32 v%d, 1, v%d" % (EO, DO))
    a("v_lshrrev_b32 v%d, 1, v%d" % (EO + 1, DO + 1))
    a("v_and_b32 v%d, 63, v0" % V_LANE)
    a("v_lshlrev_b32 v%d, 4, v%d" % (V_L16, V_LANE))
    a("s_cmp_eq_u32 s%d, 7" % S_W)
    a("s_waitcnt lgkmcnt(0)")
    a("s_cbranch_scc1 L_clr")
    a("s_mov_b64 exec, %s" % sr(S_EM, 2))
    a("global_load_dwordx4 %s, v%d, %s %s" % (vr(DST, 4), DO, sr(P_DST, 2), LD_IN))
    a("global_load_dwordx4 %s, v%d, %s %s" % (vr(DST + 4, 4), DO + 1, sr(P_DST, 2), LD_IN))
    a("s_mov_b64 exec, -1")
    stamp(a, "issued")
    for i in range(3):
        a("ds_write_b128 v%d, %s offset:%d" % (T16, vr(ZR, 4), L1_CNT + 7168 * i))
    def se_loads():
        a("s_mov_b64 exec, %s" % sr(S_EM, 2))
        a("global_load_dwordx4 %s, v%d, %s %s" % (vr(SRC, 4), DO, sr(P_SRC, 2), LD_IN))
        a("global_load_dwordx4 %s, v%d, %s %s" % (vr(SRC + 4, 4), DO + 1, sr(P_SRC, 2), LD_IN))
        a("global_load_dwordx2 %s, v%d, %s %s" % (vr(EV, 2), EO, sr(P_E, 2), LD_IN))
        a("global_load_dwordx2 %s, v%d, %s %s" % (vr(EV + 2, 2), EO + 1, sr(P_E, 2), LD_IN))
        a("s_mov_b64 exec, -1")

    if SPOS == -1:
        se_loads()
    if SDEL:
        a("s_sleep %d" % SDEL)
    if SDE:
        a("s_bitcmp1_b32 s2, 2")
        a("s_cbranch_scc1 L_sde")
        a("s_sleep %d" % SDE)
        a.label("L_sde")
    if SPOS == 0:
        se_loads()
    stamp(a, "iss2")
    a("s_branch L_setup")
    if PADS:
        a.label("L_touch")
        if not CPAD and SV == 2:
            a("s_and_b32 s3, s2, %s" % CLM)
            a("s_cbranch_scc0 L_back7")
        elif not CPAD:
            a("s_cmp_lt_u32 s2, %d" % NCLR)
            a("s_cbranch_scc1 L_back7")

        def tree(lo, n, bit):
            if n == 1:
                a("s_branch L_pad%d" % (lo % len(PADA)))
                return
            a("s_bitcmp1_b32 s2, %d" % bit)
            if n == 2:
                a("s_cbranch_scc1 L_pad%d" % ((lo + 1) % len(PADA)))
                tree(lo, 1, 0)
                return
            a("s_cbranch_scc1 L_tr%d_%d" % (lo + n // 2, n // 2))
            tree(lo, n // 2, bit + 1)
            a.label("L_tr%d_%d" % (lo + n // 2, n // 2))
            tree(lo + n // 2, n // 2, bit + 1)

        tree(0, 8 if len(PADA) <= 8 else 16, 3)
    a.label("L_clr")
    if TOUCH & 2:
        a("s_bfe_u32 s3, s2, 0x10003")
        a("s_lshl_b32 s3, s3, 13")
        a("v_lshl_add_u32 v2, v%d, 7, s3" % V_LANE)
        a("global_load_dword v%d, v2, %s" % (V_TAB, sr(P_WU, 2)))
        a("global_load_dword v%d, v2, %s" % (V_TAB + 1, sr(P_WM, 2)))
    if TOUCH & 4:
        a("v_mul_u32_u24 v2, %d, v%d" % (N * 128 // 64, V_LANE))
        a("global_load_dword v%d, v2, %s" % (V_TAB + 2, sr(P_X, 2)))
    if TOUCH & 1:
        a("v_lshlrev_b32 v2, 18, v%d" % V_LANE)
        a("s_mov_b64 exec, 0x1fff")
        a("global_load_dword v%d, v2, %s" % (V_TAB, sr(P_OUT, 2)))
        a("s_mov_b64 exec, 1")
        a("global_load_dword v%d, v2, %s" % (V_TAB + 1, sr(P_DBG, 2)))
        a("s_mov_b32 exec_lo, -1")
        a("s_mov_b32 exec_hi, 15")
        a("global_load_dword v%d, v2, %s" % (V_TAB + 2, sr(P_WS, 2)))
        a("s_mov_b64 exec, -1")
    CI = 2
    if SV == 2:
        CI = S_CI
        a("s_lshr_b32 s3, s2, 1")
        a("s_and_b32 s3, s3, 0x1c")
        a("s_and_b32 s%d, s2, 3" % CI)
        a("s_or_b32 s%d, s%d, s3" % (CI, CI))
        a("s_and_b32 s3, s2, %s" % CLM)
        a("s_cbranch_scc1 L_clr2")
    elif SV:
        a("s_cmp_ge_u32 s2, %d" % NCLR)
        a("s_cbranch_scc1 L_clr2")
    else:
        a("s_cmp_ge_u32 s2, %d" % NCLR)
        a("s_cbranch_scc1 %s" % ("L_b0" if W7B else "L_setup"))
    if CDEL:
        a("s_sleep %d" % CDEL)
    if SV == 2:
        a("s_mul_i32 s3, s%d, %d" % (CI, 0x40000 // NC2))
        a("s_add_u32 s3, s3, %d" % (WS_TAB + 2048))
        a("v_add_u32 v2, s3, v%d" % V_L16)
        a("s_mov_b32 s3, %d" % (64 // NC2 - 1))
        a.label("L_clr1")
        for i in range(4):
            a("global_store_dwordx4 v2, %s, %s offset:%d %s" % (vr(ZR, 4), sr(P_WS, 2), 1024 * i - 2048, SC))
        a("v_add_u32 v2, 4096, v2")
        a("s_sub_u32 s3, s3, 1")
        a("s_cbranch_scc0 L_clr1")
    else:
        a("s_lshl_b32 s3, s%d, 13" % CI)
        a("s_add_u32 s3, s3, %d" % (WS_TAB + 4096))
        a("v_add_u32 v2, s3, v%d" % V_L16)
        a("s_lshl_b32 s3, s%d, %d" % (CI, 10 if PTL else 7))
        a("s_add_u32 s3, s3, %d" % WS_PT)
        a("v_add_u32 v3, s3, v%d" % V_L16)
        for i in range(8):
            a("global_store_dwordx4 v2, %s, %s offset:%d %s" % (vr(ZR, 4), sr(P_WS, 2), 1024 * i - 4096, SC))
        if not PTL:
            a("s_mov_b64 exec, 0xff")
        a("global_store_dwordx4 v3, %s, %s %s" % (vr(ZR, 4), sr(P_WS, 2), SC))
        a("s_mov_b64 exec, -1")
    if SV:
        a.label("L_clr2")
        if RDEL:
            a("s_sleep %d" % RDEL)
        a("s_mul_i32 s3, s2, %d" % RSZ)
        a("v_add_u32 v2, s3, v%d" % V_L16)
        a("s_mov_b32 s3, %d" % (RSZ // 2048 - 1))
        a.label("L_clr3")
        a("global_store_dwordx4 v2, %s, %s %s" % (vr(ZR, 4), sr(P_WS, 2), SC))
        a("global_store_dwordx4 v2, %s, %s offset:1024 %s" % (vr(ZR, 4), sr(P_WS, 2), SC))
        a("v_add_u32 v2, 2048, v2")
        a("s_sub_u32 s3, s3, 1")
        a("s_cbranch_scc0 L_clr3")
    if W7B:
        a.label("L_b0")
        a("s_barrier")
    a.label("L_setup")
    a("s_and_b32 s%d, s2, 7" % S_B)
    a("s_lshl_b32 s%d, s%d, 5" % (S_B, S_B))
    a("s_lshr_b32 s3, s2, 3")
    a("s_add_u32 s%d, s%d, s3" % (S_B, S_B))
    a("s_lshl_b32 s43, s%d, 11" % S_W)
    a("v_and_b32 v2, 7, v%d" % V_LANE)
    a("v_lshrrev_b32 v3, 4, v%d" % V_LANE)
    a("v_xor_b32 v3, v2, v3")
    a("v_lshlrev_b32 v%d, 4, v3" % (V_IDX + 7))
    a("v_xor_b32 v%d, 64, v%d" % (V_IDX + 5, V_IDX + 7))
    a("v_and_b32 v%d, 31, v%d" % (COL, V_LANE))
    a("v_lshrrev_b32 v%d, 5, v%d" % (HH, V_LANE))
    a("v_and_b32 v2, 19, v%d" % COL)
    a("v_bfe_u32 v3, v%d, 2, 1" % COL)
    a("v_lshl_or_b32 v2, v3, 3, v2")
    a("v_bfe_u32 v3, v%d, 3, 1" % COL)
    a("v_lshl_or_b32 v%d, v3, 2, v2" % (V_T0 + 2))
    a("v_lshlrev_b32 v%d, 1, v%d" % (V_T0 + 5, V_T0 + 2))
    a("s_mov_b32 s%d, s%d" % (S_WS, P_WS))
    a("s_mov_b32 s%d, s%d" % (S_WS + 1, P_WS + 1))
    a("s_mov_b32 s%d, %d" % (S_WS + 2, WS_SIZE))
    a("s_mov_b32 s%d, 0x00020000" % (S_WS + 3))
    a("s_add_u32 s%d, s%d, %d" % (S_X, P_WS, WS_P - 3072))
    a("s_addc_u32 s%d, s%d, 0" % (S_X + 1, P_WS + 1))
    a("s_and_b32 s%d, s%d, 0xffff" % (S_X + 1, S_X + 1))
    a("s_or_b32 s%d, s%d, 0x%x" % (S_X + 1, S_X + 1, 128 << 16))
    a("s_mov_b32 s%d, %d" % (S_X + 2, NP))
    a("s_mov_b32 s%d, 0x00020000" % (S_X + 3))
    a("s_mov_b32 s%d, s%d" % (S_OUT, P_OUT))
    a("s_mov_b32 s%d, s%d" % (S_OUT + 1, P_OUT + 1))
    a("s_mov_b32 s%d, %d" % (S_OUT + 2, N * 128))
    a("s_mov_b32 s%d, 0x00020000" % (S_OUT + 3))
    a("s_mov_b32 s%d, 0x%08x" % (S_LG, f32(-LOG2E)))
    a("s_mov_b32 s%d, 0x%08x" % (S_LG + 1, f32(-LOG2E)))
    XB, TA, QW = V_RA, V_LEN, V_YW
    PW, PR, PA = V_QA, V_NW, V_S
    TA2, PW2, XP = V_WA, V_WA + 1, V_WA + 2
    a("s_and_b32 s48, s%d, 3" % S_W)
    a("s_lshr_b32 s49, s%d, 2" % S_W)
    a("v_and_b32 v2, 15, v%d" % V_LANE)
    a("v_lshrrev_b32 v3, 4, v%d" % V_LANE)
    a("v_lshrrev_b32 v%d, 1, v2" % XB)
    a("v_xor_b32 v%d, v%d, v3" % (XB, XB))
    a("v_lshlrev_b32 v%d, 4, v%d" % (XB, XB))
    a("v_lshl_add_u32 v%d, v2, 7, v%d" % (XB, XB))
    a("s_add_u32 s3, s43, %d" % L1_X)
    a("v_add_u32 v%d, s3, v%d" % (XP, XB))
    a("v_xor_b32 v%d, 64, v%d" % (XP + 1, XP))
    a("s_lshl_b32 s3, s48, 12")
    a("s_add_u32 s3, s3, %d" % L1_X)
    a("v_add_u32 v%d, s3, v%d" % (XB, XB))
    a("v_xor_b32 v%d, 64, v%d" % (V_RC, XB))
    a("s_lshl_b32 s46, s49, 2")
    a("v_or_b32 v%d, s46, v3" % PW)
    a("v_xor_b32 v%d, v%d, v2" % (PW, PW))
    a("v_and_b32 v%d, 7, v%d" % (PW, PW))
    a("v_lshlrev_b32 v%d, 4, v%d" % (PW, PW))
    a("v_lshl_add_u32 v%d, v2, 7, v%d" % (PW, PW))
    a("s_add_u32 s45, s43, %d" % L1_P)
    a("v_add_u32 v%d, s45, v%d" % (PW, PW))
    a("v_xor_b32 v%d, 64, v%d" % (PW2, PW))
    a("s_lshl_b32 s3, s48, 5")
    a("v_add_u32 v2, s3, v2")
    a("v_cmp_gt_u32 vcc, %d, v2" % NLOC)
    a("s_lshl_b32 s3, s49, 7")
    a("s_add_u32 s3, s3, %d" % L_Q)
    a("v_lshl_add_u32 v%d, v3, 5, s3" % QW)
    a("s_mov_b64 %s, vcc" % sr(S_QM, 2))
    a("v_cmp_gt_u32 vcc, %d, v2" % (NLOC - 16))
    a("s_mov_b32 s3, %d" % RSTR)
    a("v_mad_u32_u24 v%d, v2, s3, v%d" % (QW, QW))
    a("s_mov_b64 %s, vcc" % sr(S_QM + 2, 2))
    a("v_bfe_u32 v2, v%d, 2, 2" % V_LANE)
    a("v_lshl_add_u32 v3, v3, 3, v2")
    a("v_lshrrev_b32 v2, 1, v2")
    a("v_xor_b32 v%d, s49, v2" % TA)
    a("v_lshlrev_b32 v%d, 6, v%d" % (TA, TA))
    a("v_lshl_add_u32 v%d, v3, 7, v%d" % (TA, TA))
    a("v_and_b32 v3, 3, v%d" % V_LANE)
    a("v_lshl_add_u32 v%d, v3, 4, v%d" % (TA, TA))
    a("v_add_u32 v%d, %d, v%d" % (TA, L1_W1, TA))
    a("v_xor_b32 v%d, 64, v%d" % (TA2, TA))
    a("v_lshrrev_b32 v2, 3, v%d" % V_LANE)
    a("s_lshl_b32 s3, s%d, 4" % S_W)
    a("v_add_u32 v3, s3, v2")
    a("s_mul_i32 s3, s%d, %d" % (S_B, NLOC))
    a("v_cmp_gt_u32 vcc, %d, v3" % NLOC)
    a("v_add_u32 v%d, s3, v3" % PA)
    a("s_cmp_lt_u32 s%d, 6" % S_W)
    a("s_cselect_b32 s3, 8, 0x10000")
    a("v_add_u32 v%d, s3, v%d" % (V_R, PA))
    a("v_cndmask_b32 v%d, -1, v%d, vcc" % (PA, PA))
    a("v_and_b32 v3, 0x70, v%d" % T16)
    a("v_add_u32 v%d, 3072, v3" % (PA + 1))
    a("v_mov_b32 v%d, v%d" % (V_R + 1, PA + 1))
    a("v_lshlrev_b32 v2, 4, v2")
    a("v_xor_b32 v%d, v2, v%d" % (PR, V_L16))
    a("v_add_u32 v%d, s45, v%d" % (PR, PR))
    if SPOS == 1:
        se_loads()
    lds_init(a, V_U)
    a("s_mov_b32 s%d, 0" % S_MODE)
    a("s_sub_u32 s3, 11, s%d" % S_W)
    a("s_cmp_lt_u32 s%d, 4" % S_W)
    a("s_cselect_b32 s%d, s%d, s3" % (S_BT, S_W))
    a("s_mul_i32 s%d, s%d, %d" % (S_XT, S_BT, XSTR))
    a("s_add_u32 s%d, s%d, %d" % (S_XT, S_XT, L_XT))
    a("s_add_u32 s%d, s%d, 4096" % (S_XT1, S_XT))
    a("s_mov_b32 s%d, 1.0" % S_ONE)
    a("s_mov_b32 s%d, 1.0" % (S_ONE + 1))
    a("s_mov_b32 s%d, %d" % (S_TO, POLLS))
    a("v_add_u32 v%d, 3072, v%d" % (V_IDX + 1, V_IDX + 7))
    a("v_add_u32 v%d, 2048, v%d" % (V_IDX + 3, V_IDX + 5))
    a("v_add_u32 v%d, 1024, v%d" % (V_IDX + 5, V_IDX + 7))
    a("v_xor_b32 v%d, 64, v%d" % (V_IDX + 7, V_IDX + 7))
    a("v_bfe_u32 v2, v%d, 1, 3" % COL)
    a("v_xor_b32 v2, v2, v%d" % HH)
    a("v_lshlrev_b32 v2, 4, v2")
    a("v_lshl_add_u32 v3, v%d, 7, s%d" % (COL, S_XT))
    for k in range(4):
        a("v_xor_b32 v%d, %d, v2" % (V_BAD + k, 32 * k))
        a("v_add_u32 v%d, v3, v%d" % (V_BAD + k, V_BAD + k))
    if SMF:
        a("v_lshrrev_b32 v2, 4, v%d" % COL)
        a("v_xor_b32 v2, v2, v%d" % HH)
        a("v_bfe_u32 v3, v%d, 2, 2" % (V_T0 + 2))
        a("v_lshl_or_b32 v2, v2, 2, v3")
        a("v_and_b32 v3, 3, v%d" % COL)
        a("v_mov_b32 v%d, 0x5555" % (V_T0 + 4))
        a("v_mul_u32_u24 v%d, v3, v%d" % (V_ID + 4, V_T0 + 4))
        a("v_mov_b32 v3, 0x3f80")
        for i in range(2):
            a("v_cmp_eq_u32 vcc, %d, v2" % (2 * i))
            a("v_cmp_eq_u32_e64 s[48:49], %d, v2" % (2 * i + 1))
            a("s_nop 0")
            a("v_cndmask_b32 v%d, 0, v3, vcc" % (V_ID + 2 * i))
            a("v_cndmask_b32_e64 v%d, 0, v3, s[48:49]" % (V_ID + 2 * i + 1))
    else:
        a("v_bfe_u32 v2, v%d, 3, 1" % (V_T0 + 2))
        a("v_xor_b32 v2, v2, v%d" % HH)
        a("v_bfe_u32 v3, v%d, 1, 2" % (V_T0 + 2))
        a("v_lshl_or_b32 v2, v2, 4, v3")
        a("v_lshrrev_b32 v3, 4, v%d" % COL)
        a("v_lshl_or_b32 v2, v3, 2, v2")
        a("v_and_b32 v3, 1, v%d" % COL)
        a("v_lshlrev_b32 v3, 4, v3")
        a("v_mov_b32 v%d, 0x3f80" % (V_T0 + 4))
        a("v_lshlrev_b32 v3, v3, v%d" % (V_T0 + 4))
        for i in range(4):
            a("v_cmp_eq_u32 vcc, %d, v2" % (2 * i))
            a("v_cmp_eq_u32_e64 s[48:49], %d, v2" % (2 * i + 1))
            a("s_nop 0")
            a("v_cndmask_b32 v%d, 0, v3, vcc" % (V_ID + 2 * i))
            a("v_cndmask_b32_e64 v%d, 0, v3, s[48:49]" % (V_ID + 2 * i + 1))
    a("v_bfe_u32 v2, v%d, 2, 2" % V_LANE)
    a("v_lshl_add_u32 v3, v%d, 3, v2" % HH)
    a("v_lshlrev_b32 v3, 7, v3")
    a("v_lshrrev_b32 v2, 1, v2")
    a("v_lshl_or_b32 v3, v2, 6, v3")
    a("v_bfe_u32 v2, v%d, 4, 1" % V_LANE)
    a("v_lshl_or_b32 v3, v2, 5, v3")
    a("v_and_b32 v2, 1, v%d" % V_LANE)
    a("v_lshl_or_b32 v3, v2, 4, v3")
    a("v_bfe_u32 v2, v%d, 1, 1" % V_LANE)
    a("v_lshl_or_b32 v3, v2, 3, v3")
    a("v_xor_b32 v2, 64, v3")
    a("v_add_u32 v%d, %d, v3" % (V_TRA, L_WA))
    a("v_add_u32 v%d, %d, v2" % (V_TRA + 1, L_WA))
    a("s_lshl_b32 s3, s%d, %d" % (S_BT, 7 + HD))
    a("s_add_u32 s3, s3, s%d" % S_XT)
    a("v_lshl_add_u32 v%d, v%d, %d, s3" % (V_T0 + 3, COL, 2 + HD))
    if (HD or HD2) and HPW:
        a("v_and_b32 v2, 255, v0")
        a("v_min_u32 v3, 98, v2")
        a("v_mul_u32_u24 v%d, %d, v3" % (V_HO, SSTR))
        a("v_lshrrev_b32 v2, 1, v2")
        a("v_min_u32 v2, 98, v2")
        a("v_mul_u32_u24 v2, %d, v2" % SSTR)
        a("v_and_b32 v3, 1, v0")
        a("v_lshl_add_u32 v%d, v3, 2, v2" % V_HA)
    elif HD or HD2:
        a("v_lshrrev_b32 v2, 2, v0")
        a("v_min_u32 v2, 98, v2")
        a("v_mul_u32_u24 v2, %d, v2" % SSTR)
        a("v_and_b32 v3, 3, v0")
        a("v_min_u32 v3, 2, v3")
        a("v_lshl_add_u32 v%d, v3, 2, v2" % V_HA)
    if XL:
        a("v_lshrrev_b32 v2, 3, v%d" % V_LANE)
        if X_TEST & 64:
            a("s_mul_i32 s3, s%d, %d" % (S_B, NLOC))
            a("s_lshl_b32 s42, s%d, 4" % S_W)
            a("s_add_u32 s3, s3, s42")
            a("v_add_u32 v2, s3, v2")
            a("v_add_u32 v3, 8, v2")
        else:
            a("s_lshl_b32 s3, s%d, 12" % S_W)
            a("s_add_u32 s3, s3, s%d" % S_B)
            a("v_lshl_add_u32 v2, v2, 8, s3")
            a("v_add_u32 v3, 2048, v2")
        a("v_min_u32 v2, %d, v2" % (N - 1))
        a("v_min_u32 v3, %d, v3" % (N - 1))
        a("v_lshl_add_u32 v%d, v2, 7, v%d" % (XA, V_IDX + 7))
        a("v_lshl_add_u32 v%d, v3, 7, v%d" % (XA + 1, V_IDX + 7))
        a("v_xor_b32 v%d, 64, v%d" % (XA, XA))
        a("v_subrev_u32 v%d, 1024, v%d" % (XA + 1, XA + 1))
        a("v_and_b32 v2, 16, v%d" % V_LANE)
        a("v_lshlrev_b32 v2, 2, v2")
        a("v_xor_b32 v%d, v2, v%d" % (WAD, T16))
        a("s_lshr_b32 s42, s43, 1")
        a("s_add_u32 s42, s42, %d" % L1_W1)
    def xw1_loads(first=False):
        if XE:
            a("%s exec, %s" % ("s_mov_b64" if first else "s_not_b64", sr(S_XE, 2)))
        xw1_loads0()
        if XE:
            a("s_mov_b64 exec, -1")

    def xw1_loads0():
        a("s_mov_b32 m0, s42")
        a("v_add_u32 v%d, 8192, v%d" % (DO, WAD))
        a("global_load_lds_dwordx4 v%d, %s" % (WAD, sr(P_WM, 2)))
        a("s_add_u32 m0, s43, %d" % L1_X)
        a("s_nop 0")
        a("global_load_lds_dwordx4 v%d, %s" % (XA, sr(P_X, 2)))
        a("global_load_lds_dwordx4 v%d, %s offset:1024" % (XA + 1, sr(P_X, 2)))

    if XE:
        if XE == 1:
            a("s_bitcmp1_b32 s2, 2")
        else:
            a("s_cmp_eq_u32 s2, s2")
        a("s_cselect_b64 %s, -1, 0" % sr(S_XE, 2))
        xw1_loads(True)
    TAD, UC, TP = V_IA, V_IA + 1, V_IA + 2
    a("v_lshrrev_b32 v2, 3, v0")
    a("v_lshlrev_b32 v%d, %d, v2" % (TAD, TBL + 4))
    a("v_and_b32 v2, 7, v0")
    a("v_mov_b32 v3, 0x%x" % ((16 - (1 << 23)) & 0xffffffff))
    a("v_mul_lo_u32 v2, v2, v3")
    a("v_subrev_u32 v%d, 0x%x, v2" % (UC, (1 << 23) + (1 << 31)))
    a("s_lshl_b32 s3, s2, %d" % (TBL + 2))
    a("s_add_u32 s3, s3, %d" % WS_TAB)
    if TBL == 8:
        a("v_add_u32 v%d, s3, v%d" % (TP, V_L16))
    elif TBL == 2:
        a("v_lshl_add_u32 v%d, v%d, 12, s3" % (TP, V_LANE))
    else:
        a("v_lshrrev_b32 v2, %d, v%d" % (TBL - 2, V_LANE))
        a("v_lshl_add_u32 v%d, v2, %d, s3" % (TP, TBL + 10))
        a("v_and_b32 v2, %d, v%d" % ((4 << TBL) - 1, V_L16))
        a("v_add_u32 v%d, v2, v%d" % (TP, TP))
    a("s_lshr_b32 s47, s%d, %d" % (S_B, TBL))
    a("s_lshl_b32 s47, s47, %d" % (TBL + 8))
    a("s_and_b32 s3, s%d, %d" % (S_B, (1 << TBL) - 1))
    a("s_add_u32 s47, s47, s3")
    a("s_lshl_b32 s47, s47, 2")
    a("s_add_u32 s47, s47, %d" % WS_TAB)
    a("s_mov_b32 s%d, 0" % S_EXTRA)
    a("s_mul_i32 s52, s2, %d" % RSZ)
    a("s_or_b32 s53, s52, 0x80000000")
    a("s_mov_b32 s51, 21846")
    a("s_mov_b32 s50, %d" % (4 if X_TEST & 1 else NLOC))
    FLG, FA, SF = V_T[0], V_T[0] + 1, V_T[0] + 2
    if SV == 2:
        a("v_and_b32 v%d, %d, v%d" % (FA, NC2 - 1, V_LANE))
        a("v_lshlrev_b32 v%d, %d, v%d" % (FA, 9 - NC2.bit_length(), FA))
    else:
        a("v_lshlrev_b32 v%d, 2, v%d" % (FA, V_LANE))
    a("s_mov_b32 s%d, %d" % (S_PCK, 1 << 22))
    a("s_mov_b32 s%d, 0" % S_ST)
    if SV == 2:
        a("s_mul_i32 s3, s%d, %d" % (S_W, 32 * RSZ))
        a("v_mul_u32_u24 v%d, %d, v%d" % (V_PF, RSZ, COL))
        a("s_add_u32 s3, s3, %d" % (RSZ - 128))
        a("v_add_u32 v%d, s3, v%d" % (V_PF, V_PF))
    elif PTL:
        a("s_lshl_b32 s3, s%d, 12" % S_W)
        a("s_add_u32 s3, s3, %d" % WS_PT)
        a("v_lshl_add_u32 v%d, v%d, 7, s3" % (V_PF, COL))
    else:
        a("v_add_u32 v%d, %d, v%d" % (V_PF, WS_PT, V_L16))
    a("s_cmp_eq_u32 s%d, 7" % S_W)
    if SPOS == 2:
        se_loads()
    stamp(a, "setup")
    a.auto = 0
    a("v_mov_b32 v2, 1")
    a("s_waitcnt lgkmcnt(0)")
    a("s_barrier")
    stamp(a, "bar0")
    a("s_cbranch_scc1 L_w7f")
    if SPOS == 3:
        se_loads()
    a("s_mov_b64 exec, %s" % sr(S_EM, 2))
    for i in range(8):
        if i % 4 == 0:
            a("s_waitcnt vmcnt(%d)" % (5 - i // 4 + (3 if XE else 0)))
            if i == 0:
                stamp(a, "dst")
        a("v_lshlrev_b32_sdwa v%d, 2, v%d dst_sel:DWORD dst_unused:UNUSED_PAD src0_sel:DWORD src1_sel:BYTE_0" % (AD + i, DST + i))
        a("ds_add_rtn_u32 v%d, v%d, v2 offset:%d" % (RK + i, AD + i, L1_CNT))
    for i in range(8):
        a("v_lshrrev_b32 v%d, 8, v%d" % (DST + i, DST + i))
        a("v_add_u32 v%d, 1, v%d" % (DST + i, DST + i))
    for i in range(4):
        a("s_waitcnt lgkmcnt(%d)" % (7 - i))
        a("v_mul_u32_u24 v%d, s51, v%d" % (O1 + i, RK + i))
        a("v_lshrrev_b32 v%d, 16, v%d" % (O1 + i, O1 + i))
        a("v_mad_u32_u24 v%d, v%d, 13, v%d" % (O2 + i, O1 + i, RK + i))
        a("v_add_lshl_u32 v%d, v%d, v%d, 2" % (O1 + i, O1 + i, RK + i))
    a("s_mov_b64 exec, -1")
    if XL == 2 and XPOS == 1:
        xw1_loads()
    a("s_cmp_eq_u32 s%d, %d" % (S_W, 7 if SV == 2 else 6))
    a("s_waitcnt lgkmcnt(0)")
    stamp(a, "preA")
    a("s_barrier")
    stamp(a, "barA")
    CN = V_U
    SC_ = V_U + 4
    STV = V_U + 8
    W2F, WXF = V_C[1], V_C[0]
    QD, RD = V_B[1], V_T[1]
    XF = V_B[0]
    if XDE:
        a("s_bitcmp1_b32 s2, 2")
        a("s_cbranch_scc1 L_xde")
        a("s_sleep %d" % XDE)
        a.label("L_xde")
    a("ds_read_b128 %s, v%d offset:%d" % (vr(CN, 4), V_L16, L1_CNT))
    if XL == 2 and XPOS == 0:
        xw1_loads()
        a("s_cmp_eq_u32 s%d, %d" % (S_W, 7 if SV == 2 else 6))
    if SV == 2:
        a.label("L_A2")
    for i in range(4, 8):
        a("v_mul_u32_u24 v%d, s51, v%d" % (O1 + i, RK + i))
        a("v_lshrrev_b32 v%d, 16, v%d" % (O1 + i, O1 + i))
    a("s_waitcnt lgkmcnt(0)")
    for i in range(4):
        a("v_add_u32 v%d, 2, v%d" % (CN + i, CN + i))
        a("v_mul_u32_u24 v%d, s51, v%d" % (CN + i, CN + i))
        a("v_lshrrev_b32 v%d, 16, v%d" % (CN + i, CN + i))
    a("v_add_u32 v%d, v%d, v%d" % (SC_, CN, CN + 1))
    a("v_add_u32 v%d, v%d, v%d" % (SC_ + 1, SC_, CN + 2))
    a("v_add_u32 v%d, v%d, v%d" % (SC_ + 2, SC_ + 1, CN + 3))
    a("v_mov_b32 v%d, v%d" % (SC_ + 3, SC_ + 2))
    dpp_scan(a, [SC_ + 3], fill=["v_mad_u32_u24 v%d, v%d, 13, v%d" % (O2 + i, O1 + i, RK + i) for i in range(4, 8)] +
             ["v_add_lshl_u32 v%d, v%d, v%d, 2" % (O1 + i, O1 + i, RK + i) for i in range(4, 8)] +
             ["v_min_u32 v%d, 255, v%d" % (V_TAB + i, CN + i) for i in range(4)])
    a("v_sub_u32 v%d, v%d, v%d" % (STV, SC_ + 3, SC_ + 2))
    a("v_add_lshl_u32 v%d, v%d, v%d, 4" % (STV + 1, STV, CN))
    a("v_add_lshl_u32 v%d, v%d, v%d, 4" % (STV + 2, STV, SC_))
    a("v_add_lshl_u32 v%d, v%d, v%d, 4" % (STV + 3, STV, SC_ + 1))
    a("v_lshlrev_b32 v%d, 4, v%d" % (STV, STV))
    if SV == 2:
        a("s_cbranch_scc1 L_w7g")
    a("v_readlane_b32 s54, v%d, 63" % (SC_ + 3))
    a("ds_write_b128 v%d, %s offset:%d" % (V_L16, vr(STV, 4), L1_START))
    a("s_mov_b64 exec, %s" % sr(S_EM, 2))
    for i in range(8):
        a("ds_read_b32 v%d, v%d offset:%d" % (RK + i, AD + i, L1_START))
    if B8E:
        for i in range(8):
            a("s_waitcnt lgkmcnt(7)")
            a("v_add_u32 v%d, v%d, v%d" % (O2 + i, O2 + i, RK + i))
            a("v_add_u32 v%d, v%d, v%d" % (O1 + i, O1 + i, RK + i))
            a("ds_write_b8 v%d, v%d offset:%d" % (O2 + i, DST + i, L1_STAGE + 12))
        NX = 3 if XL == 2 and XPOS < 2 else 0
        if XE:
            NX += 3
        RE = V_T[1]
        for hh in range(2):
            a("s_waitcnt vmcnt(%d)" % (NX + 3 - hh))
            for k in range(4 * hh, 4 * hh + 4):
                a("v_mul_u32_u24_sdwa v%d, v%d, s50 dst_sel:DWORD dst_unused:UNUSED_PAD src0_sel:BYTE_0 src1_sel:DWORD" % (AD + k, SRC + k))
        for hh in range(2):
            a("s_waitcnt vmcnt(%d)" % (NX + 1 - hh))
            if hh:
                stamp(a, "src")
            for i in range(4 * hh, 4 * hh + 4, 2):
                a("v_lshlrev_b32 v%d, 16, v%d" % (RE + i // 2, EV + i // 2))
            for i in range(4 * hh, 4 * hh + 4, 2):
                a("v_add_u32_sdwa v%d, v%d, v%d dst_sel:WORD_0 dst_unused:UNUSED_PRESERVE src0_sel:DWORD src1_sel:BYTE_1" % (RE + i // 2, AD + i, SRC + i))
                a("v_add_u32_sdwa v%d, v%d, v%d dst_sel:WORD_0 dst_unused:UNUSED_PRESERVE src0_sel:DWORD src1_sel:BYTE_1" % (EV + i // 2, AD + i + 1, SRC + i + 1))
            for i in range(4 * hh, 4 * hh + 4):
                a("ds_write_b32 v%d, v%d offset:%d" % (O1 + i, (EV if i & 1 else RE) + i // 2, L1_STAGE))
    else:
        a("s_waitcnt vmcnt(%d)" % (3 if XL == 2 else 0))
        stamp(a, "src")
        for k in range(8):
            a("v_mul_u32_u24_sdwa v%d, v%d, s50 dst_sel:DWORD dst_unused:UNUSED_PAD src0_sel:BYTE_0 src1_sel:DWORD" % (AD + k, SRC + k))
        RE = V_T[1]
        for i in range(0, 8, 2):
            a("v_lshlrev_b32 v%d, 16, v%d" % (RE + i // 2, EV + i // 2))
        for i in range(0, 8, 2):
            a("v_add_u32_sdwa v%d, v%d, v%d dst_sel:WORD_0 dst_unused:UNUSED_PRESERVE src0_sel:DWORD src1_sel:BYTE_1" % (RE + i // 2, AD + i, SRC + i))
            a("v_add_u32_sdwa v%d, v%d, v%d dst_sel:WORD_0 dst_unused:UNUSED_PRESERVE src0_sel:DWORD src1_sel:BYTE_1" % (EV + i // 2, AD + i + 1, SRC + i + 1))
        for i in range(8):
            a("s_waitcnt lgkmcnt(%d)" % (7 + i))
            a("v_add_u32 v%d, v%d, v%d" % (O2 + i, O2 + i, RK + i))
            a("v_add_u32 v%d, v%d, v%d" % (O1 + i, O1 + i, RK + i))
            a("ds_write_b8 v%d, v%d offset:%d" % (O2 + i, DST + i, L1_STAGE + 12))
            a("ds_write_b32 v%d, v%d offset:%d" % (O1 + i, (EV if i & 1 else RE) + i // 2, L1_STAGE))
    a("s_mov_b64 exec, -1")
    if XL == 2 and XPOS == 2:
        xw1_loads()
        a("s_cmp_eq_u32 s%d, 6" % S_W)
    def w_loads():
        a("s_add_u32 m0, s42, 8192")
        a("v_mov_b32 v%d, 0" % SF)
        a("global_load_lds_dwordx4 v%d, %s" % (DO, sr(P_WM, 2)))
        a("s_add_u32 m0, s42, 16384")
        a("s_nop 0")
        a("global_load_lds_dwordx4 v%d, %s" % (WAD, sr(P_WU, 2)))
        a("s_add_u32 m0, s42, 24576")
        a("s_nop 0")
        a("global_load_lds_dwordx4 v%d, %s" % (DO, sr(P_WU, 2)))

    if SV == 2:
        w_loads()
    else:
        a("s_cbranch_scc0 L_w7i")
        for i in range(4):
            a("v_lshl_add_u32 v%d, v%d, 23, s53" % (V_TAB + i, V_TAB + i))
            a("v_add_u32 v%d, v%d, v%d" % (V_TAB + i, V_TAB + i, STV + i))
    if XL != 2:
        a("global_load_dword v%d, v%d, %s %s" % (FLG, FA, sr(P_DBG, 2), SCT))
    a("s_branch L_w7i")
    a.label("L_w7f")
    if SV == 2:
        a("ds_read_b128 %s, v%d offset:%d" % (vr(CN, 4), V_L16, L1_CNT))
        a("s_lshl_b32 s44, s%d, %d" % (CI, 9 - NC2.bit_length()))
        a("v_mov_b32 v%d, s44" % W3)
        a("s_and_b32 s3, s2, %s" % CLM)
        a("s_cbranch_scc1 L_A2")
        a("s_mov_b64 exec, 1")
        a("s_waitcnt vmcnt(%d)" % (RSZ // 1024))
        stamp(a, "clr")
        a("global_store_dword v%d, v2, %s %s" % (W3, sr(P_DBG, 2), SCW))
        a("s_mov_b64 exec, -1")
        a("s_cmp_eq_u32 s3, 0")
        a("s_branch L_A2")
        a.label("L_fagain")
        a("s_sleep %d" % FSL)
        if not FLT or PUB3:
            a("global_load_dword v%d, v%d, %s %s" % (FLG, FA, sr(P_DBG, 2), SCT))
        a("s_sub_u32 s%d, s%d, 1" % (S_TO, S_TO))
        if PUB3:
            a("s_waitcnt vmcnt(0)")
        a("s_cbranch_scc0 L_fpoll")
        a("s_branch L_nofl")
        a.label("L_w7g")
        a("v_add_u32 v%d, 16384, v%d" % (W3, V_L16))
        a("s_mov_b32 m0, %d" % L_W3)
        a("s_mov_b64 exec, 0xff")
        a("global_load_lds_dwordx4 v%d, %s" % (W3, sr(P_WM, 2)))
        a("s_mov_b64 exec, -1")
        a("s_mov_b32 m0, s42")
        a("v_add_u32 v%d, 8192, v%d" % (DO, WAD))
        a("global_load_lds_dwordx4 v%d, %s" % (WAD, sr(P_WM, 2)))
        w_loads()
        if not FLT:
            a("global_load_dword v%d, v%d, %s %s" % (FLG, FA, sr(P_DBG, 2), SCT))
        for i in range(4):
            a("v_lshl_add_u32 v%d, v%d, 23, s53" % (V_TAB + i, V_TAB + i))
            a("v_add_u32 v%d, v%d, v%d" % (V_TAB + i, V_TAB + i, STV + i))
        a("s_mov_b32 s3, %d" % LS[0])
        a("s_mov_b32 s54, %d" % L_LUT)
        a.label("L_lut")
        lut_build(a, 3, V_C[0], 0, 54)
        a("s_add_u32 s54, s54, 2048")
        a("s_add_u32 s3, s3, %d" % (LS[1] - LS[0]))
        a("s_cmp_eq_u32 s3, %d" % LS[1])
        a("s_cbranch_scc1 L_lut")
        if PUB3:
            a("s_waitcnt vmcnt(0)")
            stamp(a, "own")
            a("global_load_dword v%d, v%d, %s %s" % (FLG, FA, sr(P_DBG, 2), SCT))
        else:
            a.label("L_fpoll")
            if FLT:
                a("global_load_dword v%d, v%d, %s %s" % (FLG, FA, sr(P_DBG, 2), SCT))
            a("s_waitcnt vmcnt(0)")
            a("v_cmp_ne_u32 vcc, 1, v%d" % FLG)
            a("s_cbranch_vccnz L_fagain")
            a("global_store_dwordx4 v%d, %s, %s %s" % (TP, vr(V_TAB, 4), sr(P_WS, 2), SCW))
            stamp(a, "pub")
            a.label("L_nopub")
    elif XL:
        a("v_add_u32 v%d, 16384, v%d" % (W3, V_L16))
        a("s_mov_b32 m0, %d" % L_W3)
        a("s_mov_b64 exec, 0xff")
        a("global_load_lds_dwordx4 v%d, %s" % (W3, sr(P_WM, 2)))
        a("s_mov_b64 exec, -1")
        a("s_mov_b32 s3, %d" % LS[0])
        a("s_mov_b32 s54, %d" % L_LUT)
        a("s_lshl_b32 s44, s2, %d" % (8 - NCLR.bit_length() + 1))
        a("v_mov_b32 v%d, s44" % W3)
        a("v_mov_b32 v2, 1")
        a("v_mov_b32 v3, 1")
        if XL == 2:
            xw1_loads()
        a("s_cmp_ge_u32 s2, %d" % NCLR)
        if FPOS and not W7B:
            a("s_barrier")
        a("s_cbranch_scc1 L_nofl")
        a("s_mov_b64 exec, 1")
        a("s_waitcnt vmcnt(%d)" % ((7 if XE else 4) if XL == 2 else 1))
        stamp(a, "clr")
        a("global_store_dwordx2 v%d, v[2:3], %s %s" % (W3, sr(P_DBG, 2), SCW))
        a("s_mov_b64 exec, -1")
        a.label("L_nofl")
        if not FPOS and not W7B:
            a("s_barrier")
        a.label("L_lut")
        lut_build(a, 3, V_C[0], 0, 54)
        a("s_add_u32 s54, s54, 2048")
        a("s_add_u32 s3, s3, %d" % (LS[1] - LS[0]))
        a("s_cmp_eq_u32 s3, %d" % LS[1])
        a("s_cbranch_scc1 L_lut")
    else:
        a("v_lshrrev_b32 v%d, 3, v%d" % (WAD, V_LANE))
        a("v_lshl_add_u32 v%d, v%d, 8, s%d" % (WAD, WAD, S_B))
        a("v_lshl_add_u32 v%d, v%d, 7, v%d" % (XA + 1, WAD, V_IDX + 7))
        a("v_xor_b32 v%d, 64, v%d" % (XA, XA + 1))
        a("v_add_u32 v%d, %d, v%d" % (XA + 1, 2048 * 128 - 1024, XA + 1))
        a("s_mov_b32 m0, %d" % L1_X)
        a("s_mov_b64 s[44:45], %s" % sr(P_X, 2))
        a("v_add_u32 v%d, %d, v%d" % (WAD, 96 * 256, WAD))
        a("v_min_u32 v%d, %d, v%d" % (WAD, N - 1, WAD))
        a("v_lshl_add_u32 v%d, v%d, 7, v%d" % (W3 + 1, WAD, V_IDX + 7))
        a("v_xor_b32 v%d, 64, v%d" % (W3 + 1, W3 + 1))
        a.label("L_xld")
        a("global_load_lds_dwordx4 v%d, s[44:45]" % XA)
        a("global_load_lds_dwordx4 v%d, s[44:45] offset:1024" % (XA + 1))
        a("s_add_u32 m0, m0, 2048")
        a("s_add_u32 s44, s44, %d" % (4096 * 128))
        a("s_addc_u32 s45, s45, 0")
        a("s_cmp_lg_u32 m0, %d" % (L1_X + 2048 * 6))
        a("s_cbranch_scc1 L_xld")
        a("global_load_lds_dwordx4 v%d, %s" % (W3 + 1, sr(P_X, 2)))
        a("v_and_b32 v2, 16, v%d" % V_LANE)
        a("v_lshlrev_b32 v2, 2, v2")
        a("v_xor_b32 v%d, v2, v%d" % (WAD, V_L16))
        a("v_add_u32 v%d, 16384, v%d" % (W3, V_L16))
        a("s_mov_b32 s3, %d" % LS[0])
        a("s_mov_b32 s54, %d" % L_LUT)
        stamp(a, "xiss")
        a("s_barrier")
        a.label("L_lut")
        lut_build(a, 3, V_C[0], 0, 54)
        a("s_add_u32 s54, s54, 2048")
        a("s_add_u32 s3, s3, %d" % (LS[1] - LS[0]))
        a("s_cmp_eq_u32 s3, %d" % LS[1])
        a("s_cbranch_scc1 L_lut")
        a("s_cmp_ge_u32 s2, %d" % NCLR)
        a("s_cbranch_scc1 L_noflag")
        a("s_lshl_b32 s3, s2, %d" % (8 - NCLR.bit_length() + 1))
        a("v_mov_b32 v%d, s3" % XA)
        a("v_mov_b32 v2, 1")
        a("v_mov_b32 v3, 1")
        a("s_mov_b64 exec, 1")
        a("s_waitcnt vmcnt(13)")
        stamp(a, "clr")
        a("global_store_dwordx2 v%d, v[2:3], %s %s" % (XA, sr(P_DBG, 2), SC))
        a.label("L_noflag")
        a("s_mov_b32 m0, %d" % L_W3)
        a("s_mov_b64 exec, 0xff")
        a("global_load_lds_dwordx4 v%d, %s" % (W3, sr(P_WM, 2)))
        a("s_mov_b64 exec, -1")
        a("s_mov_b32 m0, %d" % L1_W1)
        a("s_mov_b64 s[44:45], %s" % sr(P_WM, 2))
        a.label("L_wld")
        for i in range(4):
            a("global_load_lds_dwordx4 v%d, s[44:45] offset:%d" % (WAD, 1024 * i))
        a("s_add_u32 m0, m0, 4096")
        a("s_add_u32 s44, s44, 4096")
        a("s_addc_u32 s45, s45, 0")
        a("s_cmp_eq_u32 m0, %d" % L1_WX)
        a("s_cselect_b64 s[44:45], %s, s[44:45]" % sr(P_WU, 2))
        a("s_cmp_lg_u32 m0, %d" % (L_WA + 8192))
        a("s_cbranch_scc1 L_wld")
        stamp(a, "wiss")
    a("s_mov_b32 s54, 0")
    a.label("L_w7i")
    a("v_add_u32 v2, 1024, v0")
    a("v_cmp_gt_u32 vcc, s54, v2")
    a("s_add_u32 s53, s52, 8192")
    a("s_add_u32 s54, s52, 16384")
    a("s_waitcnt lgkmcnt(0)")
    stamp(a, "preB")
    a("s_barrier")
    stamp(a, "barB")
    CP = V_N[0]
    TABV = V_D[0]

    def tab_loads():
        for p in range(4):
            a("buffer_load_dword v%d, v%d, %s, s47 offen offset:%d %s" % (TABV + p, TAD, sr(S_WS, 4), (4 << TBL) * p, SCT))

    for i in range(3):
        a("ds_read_b128 %s, v%d offset:%d" % (vr(CP + 4 * i, 4), T16, L1_STAGE + 8192 * i))
    if SV == 2:
        tab_loads()
    a("s_waitcnt lgkmcnt(2)")
    a("buffer_store_dwordx4 %s, v%d, %s, s52 offen %s" % (vr(CP, 4), T16, sr(S_WS, 4), SCR))
    a("s_waitcnt lgkmcnt(1)")
    a("buffer_store_dwordx4 %s, v%d, %s, s53 offen %s" % (vr(CP + 4, 4), T16, sr(S_WS, 4), SCR))
    if XL != 2:
        a("s_cbranch_vccz L_no3")
    if SV == 2:
        a("s_mov_b32 s50, 0x807fffff")
        a("s_mov_b32 s51, %d" % L_SEND)
        a("s_mov_b32 s%d, 1" % S_PD)
        a("s_cmp_eq_u32 s%d, 7" % S_W)
    a("s_waitcnt lgkmcnt(0)")
    if SV == 2 and PUB3:
        a("s_cbranch_scc1 L_w7p")
    a("s_mov_b64 exec, vcc")
    a("buffer_store_dwordx4 %s, v%d, %s, s54 offen %s" % (vr(CP + 8, 4), T16, sr(S_WS, 4), SCR))
    a("s_mov_b64 exec, -1")
    a.label("L_no3")
    stamp(a, "stiss")
    if XL:
        if XL == 1:
            xw1_loads()
        if SV == 2:
            if not PUB3:
                a("s_cbranch_scc1 L_page1")
            a("s_waitcnt vmcnt(7)")
        else:
            a("s_mov_b32 s50, 0x807fffff")
            w_loads()
    def page_split():
        if PADS:
            a("s_branch L_page1")
            if SV == 2 and PUB3:
                a.label("L_w7p")
                a("s_waitcnt vmcnt(6)")
                a.label("L_fpoll")
                a("v_cmp_ne_u32 vcc, 1, v%d" % FLG)
                a("s_cbranch_vccnz L_fagain")
                a("global_store_dwordx4 v%d, %s, %s %s" % (TP, vr(V_TAB, 4), sr(P_WS, 2), SCW))
                stamp(a, "pub")
                a("s_branch L_page1")
            a.raw("@SEMI@")
            a.raw(".p2align 12")
            a.raw("@PAGE@")
            a.label("L_page1")

    if not PSH:
        page_split()
    PXF, PD, PB_ = V_U, V_B[1], V_U + 8

    def qr_out(D, off):
        for tau in range(2):
            for i in range(4):
                a("v_pk_mul_f32 %s, %s, %s" % (vr(D + 8 * tau + 2 * i, 2), vr(D + 8 * tau + 2 * i, 2), sr(S_LG, 2)))
            a("s_mov_b64 exec, %s" % sr(S_QM + 2 * tau, 2))
            for blk in range(2):
                a("ds_write_b128 v%d, %s offset:%d" % (QW, vr(D + 8 * tau + 4 * blk, 4), off + 16 * RSTR * tau + 16 * blk))
            a("s_mov_b64 exec, -1")

    def bar_c(n):
        a("s_cmp_lg_u32 s%d, 6" % S_W)
        a("s_waitcnt vmcnt(%d) lgkmcnt(0)" % n)
        stamp(a, "stack")
        a("s_cbranch_scc1 L_barC")
        a.label("L_fpoll")
        a("v_cmp_ne_u32 vcc, 1, v%d" % FLG)
        a("s_cbranch_vccnz L_fagain")
        a.label("L_barC")
        if PSB == 3:
            p_stores(14)
        a("s_barrier")
        a("s_cbranch_scc1 L_nopub")
        a("global_store_dwordx4 v%d, %s, %s %s" % (TP, vr(V_TAB, 4), sr(P_WS, 2), SCW))
        a.label("L_nopub")
        if TW == 1:
            a("v_mul_u32_u24 v2, %d, v0" % TWS)
            a("global_load_dword v%d, v2, %s %s" % (V_WA + 9, sr(P_WS, 2), SCT))
        stamp(a, "barC")

    def p_stores(n):
        if env('X_PDEL', 0):
            a("s_bitcmp1_b32 s2, 3")
            a("s_cbranch_scc0 L_xpdel")
            for i in range(env('X_PDEL', 0)):
                a("s_sleep 127")
            a.label("L_xpdel")
        a("s_waitcnt lgkmcnt(%d)" % (n + 1))
        a("buffer_store_dwordx4 %s, %s, %s, 0 idxen offen %s" % (vr(PB_, 4), vr(PA, 2), sr(S_X, 4), SCS))
        a("s_waitcnt lgkmcnt(%d)" % n)
        a("buffer_store_dwordx4 %s, %s, %s, 0 idxen offen %s" % (vr(PB_ + 4, 4), vr(V_R, 2), sr(S_X, 4), SCS))
        stamp(a, "piss")

    def flg_load():
        a("s_cmp_lg_u32 s%d, 6" % S_W)
        a("s_cbranch_scc1 L_nofld")
        a("global_load_dword v%d, v%d, %s %s" % (FLG, FA, sr(P_DBG, 2), SCT))
        a.label("L_nofld")

    if XL == 2:
        if SV != 2:
            a("s_waitcnt vmcnt(%d)" % (3 if WBL else 6))
        stamp(a, "preB2")
        a("s_barrier")
        if WBL:
            a("s_cmp_lg_u32 s%d, 6" % S_W)
            a("s_cbranch_scc1 L_nowb")
            a("buffer_wbl2 sc1")
            a.label("L_nowb")
        if TW == 2:
            a("v_mul_u32_u24 v2, %d, v0" % TWS)
            a("global_load_dword v%d, v2, %s %s" % (V_WA + 9, sr(P_WS, 2), SCT))
        stamp(a, "barB2")
    else:
        if not XL:
            a("v_mov_b32 v%d, 0" % SF)
            a("s_mov_b32 s50, 0x807fffff")
        bar_c(6 if XL else 0)
    if XL == 1:
        tab_loads()
        a("s_waitcnt vmcnt(5)")
        a("s_barrier")
        stamp(a, "barC2")
    if BCE:
        flg_load()
    a("ds_read_b128 %s, v%d" % (vr(PXF, 4), XP))
    a("ds_read_b128 %s, v%d" % (vr(PXF + 4, 4), XP + 1))
    for x in tr_frags(V_C[0], TA, 0) + tr_frags(V_C[1], TA2, 0)[:4]:
        a(x)
    if not XL:
        tab_loads()
    a("s_waitcnt lgkmcnt(4)")
    for x in tr_frags(V_C[1], TA2, 0)[4:]:
        a(x)
    if XL != 2 or SV == 2:
        a("ds_read_b32 v%d, v%d offset:%d" % (SF, SF, F_SLOW))
    for tau in range(2):
        a("ds_read_b128 %s, v%d offset:%d" % (vr(XF + 8 * tau, 4), XB, 2048 * tau))
        a("ds_read_b128 %s, v%d offset:%d" % (vr(XF + 8 * tau + 4, 4), V_RC, 2048 * tau))
    if PSH:
        page_split()
    if BCE == 2:
        bar_c(0)
    for H in range(2):
        if H:
            a("s_waitcnt lgkmcnt(4)")
        for k in range(2):
            for blk in range(2):
                a(mf16(PD + 8 * H + 4 * blk, V_C[H] + 8 * blk + 4 * k, PXF + 4 * k, k == 0))
    if XL != 2 or SV == 2:
        a("v_cmp_lt_u32_e64 s[44:45], 3, v%d" % SF)
    elif BCE == 1:
        bar_c(0)
    elif BCE == 2:
        a("s_nop 3")
    else:
        flg_load()
    a("v_mov_b32 v%d, 0" % (V_AE + 1))
    for H in range(2):
        for i in range(4):
            a("v_pk_mul_f32 %s, %s, %s" % (vr(PD + 8 * H + 2 * i, 2), vr(PD + 8 * H + 2 * i, 2), sr(S_LG, 2)))
        for i in range(4):
            a("v_cvt_pk_bf16_f32 v%d, v%d, v%d" % (PD + 8 * H + i, PD + 8 * H + 2 * i, PD + 8 * H + 2 * i + 1))
        a("ds_write_b128 v%d, %s" % (PW2 if H else PW, vr(PD + 8 * H, 4)))
    for i in range(2):
        a("ds_read_b128 %s, v%d offset:%d" % (vr(PB_ + 4 * i, 4), PR, 1024 * i))
    if SV == 2:
        a("ds_read_u16 v%d, v%d offset:%d" % (W3, V_T0 + 5, L_W3))
        a("ds_read_u16 v%d, v%d offset:%d" % (W3 + 1, V_T0 + 5, L_W3 + 64))
        for x in tr_frags(W2F, TA, L1_W2 - L1_W1):
            a(x)
        a("s_waitcnt vmcnt(3)")
    elif XL == 2:
        a("ds_read_u16 v%d, v%d offset:%d" % (W3, V_T0 + 5, L_W3))
        a("ds_read_u16 v%d, v%d offset:%d" % (W3 + 1, V_T0 + 5, L_W3 + 64))
        if PSB == 1:
            p_stores(2)
        if not BCE:
            bar_c(2 if PSB == 1 else 0)
        if TORD:
            tab_loads()
        a("ds_read_b32 v%d, v%d offset:%d" % (SF, SF, F_SLOW))
        for x in tr_frags(W2F, TA, L1_W2 - L1_W1):
            a(x)
        if not TORD and QF != 1:
            tab_loads()
        if not PSB and not TORD:
            p_stores(11 if BCE else 14)
        a("s_waitcnt lgkmcnt(0)")
        a("v_cmp_lt_u32_e64 s[44:45], 3, v%d" % SF)
    else:
        for x in tr_frags(W2F, TA, L1_W2 - L1_W1):
            a(x)
        a("ds_read_u16 v%d, v%d offset:%d" % (W3, V_T0 + 5, L_W3))
        a("ds_read_u16 v%d, v%d offset:%d" % (W3 + 1, V_T0 + 5, L_W3 + 64))
        p_stores(10)
        a("s_waitcnt lgkmcnt(2)")
    def q_part():
        for x in tr_frags(WXF, TA, L1_WX - L1_W1):
            a(x)
        for x in tile_mfmas(QD, W2F, XF):
            a(x)

    if SV != 2:
        q_part()
    if XL == 2 and TORD and not PSB:
        p_stores(14)
    if SV == 2:
        pass
    elif QF:
        a("s_branch L_qr")
    else:
        a("s_waitcnt vmcnt(%d)" % (0 if XL == 2 and PSB else 2))
    def p_ready(n):
        a("v_mov_b32 v2, 1")
        a("v_mov_b32 v3, %d" % F_PCNT)
        a("s_mul_i32 s3, s2, %d" % RSZ if SV == 2 else "s_lshl_b32 s3, s2, %d" % (7 if PTL else 4))
        a("s_mov_b64 exec, 1")
        if n is not None:
            a("s_waitcnt vmcnt(%d)" % n)
        a("ds_add_rtn_u32 v3, v3, v2")
        a("s_add_u32 s3, s3, %d" % ((RSZ - 128 if SV == 2 else WS_PT) - (7 << 28) + (1 << 32)))
        if n is None:
            a("s_cmp_eq_u32 s%d, 2" % S_PD)
        a("s_mov_b32 s%d, %d" % ((S_PD, 0) if SV == 2 else (51, L_SEND)))
        a("s_waitcnt lgkmcnt(0)")
        a("v_lshl_add_u32 v3, v3, 28, s3")
        a("buffer_store_dword v2, v3, %s, 0 offen %s" % (sr(S_WS, 4), SCW))
        a("s_mov_b64 exec, -1")

    a.label("L_tcheck")
    a("v_max3_i32 v3, v%d, v%d, v%d" % (TABV, TABV + 1, TABV + 2))
    a("v_max_i32 v3, v3, v%d" % (TABV + 3))
    a("v_cmp_le_i32 vcc, 0, v3")
    a("s_or_b64 vcc, vcc, s[44:45]")
    a("s_cbranch_vccnz L_tfail")
    stamp(a, "tab")
    RC = V_N[0]
    RT = V_T[0]
    ADR = V_T[0] + 12
    TB2 = TABV + 4
    for p in range(4):
        a("v_add_u32 v%d, v%d, v%d" % (TB2 + p, TABV + p, UC))
    a("v_cmp_le_u32 vcc, 0x%x, v3" % ((9 << 23) | (1 << 31)))
    RX = RC + 16
    if X5:
        a("s_cbranch_vccz L2_noextra")
        a("v_max3_i32 v2, v%d, v%d, v%d" % (TABV, TABV + 1, TABV + 2))
        a("v_med3_i32 v%d, v%d, v%d, v%d" % (RX, TABV, TABV + 1, TABV + 2))
        a("v_med3_i32 v2, v2, v%d, v%d" % (RX, TABV + 3))
        a("v_subrev_u32 v%d, 0x%x, v3" % (RX, (8 << 23) - 128))
        a("v_max_u32 v2, v2, v%d" % RX)
        a("v_cmp_le_u32 vcc, 0x%x, v2" % ((9 << 23) | (1 << 31)))
        a("v_add_u32 v2, v%d, v%d" % (RX, UC))
        a("v_and_b32 v2, s50, v2")
        a("s_cbranch_vccnz L2_extra")
        a("s_mov_b32 s%d, 4" % S_EXTRA)
        a("buffer_load_dwordx4 %s, v2, %s, 0 offen %s" % (vr(RX, 4), sr(S_WS, 4), SC))
    else:
        a("s_cbranch_vccnz L2_extra")
    a.label("L2_noextra")
    for p in range(4):
        a("v_and_b32 v%d, s50, v%d" % (TB2 + p, TB2 + p))
        a("buffer_load_dwordx4 %s, v%d, %s, 0 offen %s" % (vr(RC + 4 * p, 4), TB2 + p, sr(S_WS, 4), SC))
    if PSB == 2:
        p_stores(14)
    if PRE and SV != 2:
        a("v_mov_b32 v3, -1")
        a("buffer_store_dword v3, v3, %s, 0 offen" % sr(S_WS, 4))
    a("s_cmp_eq_u32 s%d, 1" % S_ST)
    a("s_cbranch_scc1 %s" % ("L_rdy" if SV == 2 else "L_after"))
    a("s_mov_b32 s%d, 2" % S_ST)
    a.label("L_qr")
    if SV == 2:
        p_stores(10)
        a("s_waitcnt lgkmcnt(0)")
        q_part()
    a("v_cmp_eq_u32 vcc, 0, v%d" % HH)
    a("v_mov_b32 v%d, 0" % (V_AE + 2))
    a("v_mov_b32 v%d, 0" % (V_AE + 5))
    a("v_mov_b32 v%d, 0" % (V_AE + 6))
    a("s_waitcnt lgkmcnt(0)")
    for x in tile_mfmas(RD, WXF, XF):
        a(x)
    qr_out(QD, 0)
    for X in range(2):
        a("v_lshlrev_b32 v2, 16, v%d" % (W3 + X))
        a("v_mul_f32 v2, s%d, v2" % S_LG)
        a("v_cvt_pk_bf16_f32 v3, v%d, v2" % (V_AE + 1))
        a("v_sub_f32 v2, v2, v3")
        a("v_cvt_pk_bf16_f32 v2, v%d, v2" % (V_AE + 1))
        a("v_cndmask_b32 v%d, v2, v3, vcc" % (V_AE + 4 * X))
        a("v_cndmask_b32 v%d, v2, v3, vcc" % (V_AE + 4 * X + 3))
    qr_out(RD, L_R - L_Q)
    def rt_reset():
        for i in range(6):
            a("v_mov_b64 %s, -1" % vr(RT + 2 * i, 2))

    rt_reset()
    stamp(a, "qr")
    if TSL:
        if TSX:
            a("s_bitcmp1_b32 s2, 2")
            a("s_cbranch_scc1 L_tsx")
        a("s_sleep %d" % TSL)
        a.label("L_tsx")
    if QF and SV != 2:
        tab_loads()
    if PSB == 4:
        p_stores(14)
    if PRE and SV != 2:
        p_ready(4)
    a("s_cmp_lg_u32 s%d, 2" % S_ST)
    if SV == 2:
        a("s_mov_b32 s%d, 1" % S_ST)
    a("s_cbranch_scc1 L_tfail1")
    a.label("L_after")

    if PSB == 2:
        a("s_mov_b32 s51, %d" % L_SEND)
    elif not PRE:
        p_ready(4)
    stamp(a, "pack")
    a("v_mov_b32 v2, 4")

    def p1(rc, k, ADR=ADR):
        for i in range(3):
            a("v_lshlrev_b32_sdwa v%d, 2, v%d dst_sel:DWORD dst_unused:UNUSED_PAD src0_sel:DWORD src1_sel:BYTE_%d" % (ADR + k + i, rc + 3, i))
        for i in range(3):
            a("v_cmpx_ne_u32 vcc, 0, v%d" % (ADR + k + i))
            a("ds_add_rtn_u32 v%d, v%d, v2 offset:%d" % (RT + k + i, ADR + k + i, L_CNT))
            if SV == 2 and i == 0:
                a("v_mov_b32 v%d, -1" % (TB2 + (rc - RC) // 4))
        a("s_mov_b64 exec, -1")

    def p2(rc, k):
        for i in range(3):
            a("v_cmpx_gt_u32 vcc, s51, v%d" % (RT + k + i))
            a("ds_write_b32 v%d, v%d" % (RT + k + i, rc + i))
        a("s_mov_b64 exec, -1")

    KX = RX + 4 - RT
    if X5:
        a("s_cmp_eq_u32 s%d, 0" % S_EXTRA)
        a("s_cbranch_scc1 L2_pl")
        a("s_cmp_lg_u32 s%d, 4" % S_EXTRA)
        a("s_cbranch_scc1 L2_xpl")
        a("v_mov_b64 %s, -1" % vr(RX + 4, 2))
        a("v_mov_b32 v%d, -1" % (RX + 6))
        a("s_waitcnt vmcnt(%d)" % (4 + NPF))
        p1(RX, KX, RT + 4)
    else:
        a("s_cmp_lg_u32 s%d, 0" % S_EXTRA)
        a("s_cbranch_scc1 L2_xpl")
    a.label("L2_pl")
    a("s_waitcnt vmcnt(%d)" % (3 + NPF))
    stamp(a, "rec0")
    def mark(ad, rc):
        pass

    def missing(ad):
        a("v_max3_i32 v3, v%d, v%d, v%d" % (ad, ad + 1, ad + 2))
        a("v_max_i32 v3, v3, v%d" % (ad + 3))

    def h_req():
        D = V_WA + 8
        if PFE:
            for k in range(4):
                a("global_load_dword v%d, v%d, %s offset:%d %s" % (V_D[0] + 8 + k, V_PF, sr(P_WS, 2), 1024 * k, SCT))
        for h in range(HPN):
            a("buffer_load_dword v%d, v%d, %s, 0 idxen offset:%d %s" % (D, V_HX, sr(S_X, 4), 3072 + 64 * h, SCG))

    def h_rd():
        a("ds_read_u16 v%d, v%d offset:%d" % (V_HX, V_HA, L_SLOT))

    H = HPF if HD2 else 0
    p1(RC, 0)
    a("s_waitcnt vmcnt(%d)" % (2 + NPF))
    p1(RC + 4, 3)
    if H == 4:
        a("s_waitcnt lgkmcnt(0)")
        p2(RC, 0)
        p2(RC + 4, 3)
        h_rd()
        a("s_waitcnt vmcnt(%d)" % (1 + NPF))
        p1(RC + 8, 6)
        a("s_waitcnt lgkmcnt(3)")
        h_req()
        a("s_waitcnt vmcnt(%d)" % (NPF + HPN))
    else:
        a("s_waitcnt vmcnt(%d) lgkmcnt(0)" % (1 + NPF))
        p1(RC + 8, 6)
        p2(RC, 0)
        p2(RC + 4, 3)
        if H in (1, 3):
            h_rd()
        a("s_waitcnt vmcnt(%d)" % NPF)
    p1(RC + 12, 9)
    if SV == 2:
        missing(TB2)
        a("v_cmp_le_i32_e64 s[40:41], 0, v3")
    a("s_waitcnt lgkmcnt(0)")
    if H == 1:
        h_req()
    p2(RC + 8, 6)
    p2(RC + 12, 9)
    if H == 3:
        h_req()
    if X5:
        a("s_cmp_lg_u32 s%d, 4" % S_EXTRA)
        a("s_cbranch_scc1 L2_build")
        p2(RX, KX)
    if SV == 2:
        a("s_or_b32 s40, s40, s%d" % S_EXTRA)
        a("s_or_b32 s40, s40, s41")
        a("s_cbranch_scc1 L_miss")
    stamp(a, "placed")
    if PSB == 2:
        p_ready(0)

    a.label("L2_build")
    if SV == 2:
        a("s_cmp_eq_u32 s%d, 0" % S_PD)
        a("s_cbranch_scc1 L2_build1")
        a("s_waitcnt vmcnt(0)")
        a.label("L_prdy")
        p_ready(None)
        a("s_cbranch_scc1 L_after")
        a.label("L2_build1")
    L4, RB0, NC0, NC1 = V_U, V_U + 1, V_U + 2, V_U + 3
    C0, C1, FL = V_U + 4, V_U + 5, V_U + 6
    P0 = V_U + 8
    O0 = V_U + 10
    E0, E1 = V_N[0], V_N[0] + 8
    a("v_lshlrev_b32 v%d, 2, v%d" % (L4, V_LANE))
    a("s_mov_b32 s3, %d" % SSTR)
    a("v_mov_b32 v%d, %d" % (RB0, L_SLOT - 4))
    a("v_mad_u32_u24 v%d, v%d, s3, v%d" % (RB0, V_LANE, RB0))
    if HD2:
        a("v_add_u32 v%d, 4, v%d" % (NC0, RB0))
        a("v_add_u32 v%d, 0x%x, v%d" % (NC1, 64 * SSTR, NC0))
    else:
        a("v_lshlrev_b32 v%d, 25, v%d" % (NC0, V_LANE))
        a("v_add3_u32 v%d, v%d, v%d, %d" % (NC0, NC0, RB0, -12 if HD else 4))
        a("v_add_u32 v%d, 0x%x, v%d" % (NC1, (64 << 25) + 64 * SSTR, NC0))
    a("s_cmp_lt_u32 s%d, %d" % (S_B, N - 97 * 256))
    a("s_cselect_b32 s%d, 3, 1" % (S_HI + 1))
    a("s_mov_b32 s%d, -1" % S_HI)
    a("s_mov_b32 s%d, 0" % S_LI)
    a("s_mov_b32 s%d, 0" % S_SAFE)
    a("v_mov_b32 v%d, %d" % (O0, L_SLOT + 98 * SSTR))
    if HD:
        a("v_mov_b32 v%d, v%d" % (O0 + 1, O0))
    a("s_lshl_b32 s3, s%d, 6" % S_W)
    a("v_and_b32 v3, 60, v%d" % L4)
    a("v_add_u32 v%d, s3, v3" % (V_T0 + 2))
    a("v_mov_b32 v2, 0x%x" % (127 << 25))
    a("ds_write_b32 v%d, v2 offset:%d" % (V_T0 + 2, L_NL))
    a("v_mov_b32 v%d, 0" % FL)
    a("v_add_u32 v3, %d, v%d" % (64 * SSTR, RB0))
    T0, T1 = (V_N[1], V_N[1] + 8) if HD else (E0, E1)
    if HD:
        for i in range(4):
            a("v_add_u32 v%d, %d, v%d" % (T0 + 2 * i + 1, 4 + 4 * i, RB0))
            a("v_add_u32 v%d, %d, v3" % (T1 + 2 * i + 1, 4 + 4 * i))
    a("s_mov_b32 s42, 0x100401")
    a("s_waitcnt lgkmcnt(0)")
    if APR:
        a("s_cmp_ge_u32 s%d, 4" % S_W)
        a("s_cbranch_scc1 L_noapr")
        a("s_setprio 1")
        a.label("L_noapr")
    a("s_barrier")
    stamp(a, "barD")
    PFV = V_D[0]

    def pf_loads():
        for k in range(1 if SV == 2 or PTL else 4):
            a("global_load_dword v%d, v%d, %s offset:%d %s" % (PFV + k, V_PF, sr(P_WS, 2), 1024 * k, SCT))

    pf_loads()
    if X_TEST & 2:
        for i in range(16):
            a("v_mov_b32 v%d, v%d" % (V_WA + i, V_ID + (i & 7)))
    a("ds_read_b32 v%d, v%d offset:%d" % (C0, L4, L_CNT + 4))
    a("ds_read_b32 v%d, v%d offset:%d" % (C1, L4, L_CNT + 4 + 256))
    a("ds_read_b32 v%d, v%d offset:%d" % (FL, FL, F_SLOW))
    if HD:
        a("ds_write_b64 v%d, %s" % (V_T0 + 3, vr(O0, 2)))
    else:
        a("ds_write_b32 v%d, v%d" % (V_T0 + 3, O0))
    a("s_waitcnt lgkmcnt(2)")
    a("v_sub_u32 v%d, v%d, v%d" % (C0, C0, RB0))
    a("v_sub_u32 v%d, v%d, v3" % (C1, C1))
    a("v_lshlrev_b32 v%d, 3, v%d" % (C0, C0))
    a("v_lshlrev_b32 v%d, 3, v%d" % (C1, C1))

    def lut_reads(off):
        a("ds_read_b128 %s, v%d offset:%d" % (vr(E0 + 4, 4), C0, off + 16))
        a("ds_read_b128 %s, v%d offset:%d" % (vr(E1 + 4, 4), C1, off + 16))
        a("ds_read_b128 %s, v%d offset:%d" % (vr(E0, 4), C0, off))
        a("ds_read_b128 %s, v%d offset:%d" % (vr(E1, 4), C1, off))

    lut_reads(L_LUT)
    a("v_max_u32 v2, v%d, v%d" % (C0, C1))
    a("v_cmp_lt_u32 vcc, %d, v2" % (32 * (DMAX + 1)))
    a("s_waitcnt lgkmcnt(4)")
    a("v_cmp_lt_u32_e64 s[40:41], 1, v%d" % FL)
    a("s_or_b64 vcc, vcc, s[40:41]")
    a("s_cbranch_vccnz L2_slow")
    a.label("L2_scan")
    a("s_waitcnt lgkmcnt(2)")
    a("v_add_u32 v%d, v%d, v%d" % (O0, E0 + 4, E1 + 4))
    a("v_add_u32 v%d, v%d, v%d" % (O0 + 1, E0 + 5, E1 + 5))
    a("v_mov_b32 v%d, v%d" % (P0, O0))
    a("v_mov_b32 v%d, v%d" % (P0 + 1, O0 + 1))
    a("s_waitcnt lgkmcnt(0)")
    dpp_scan(a, [P0, P0 + 1], fill=["v_add_u32 v%d, v%d, v%d" % (T0 + (1 + HD) * i, E0 + i, NC0) for i in range(4)] +
             ["v_add_u32 v%d, v%d, v%d" % (T1 + (1 + HD) * i, E1 + i, NC1) for i in range(4)])
    a("v_readlane_b32 s44, v%d, 63" % P0)
    a("v_readlane_b32 s45, v%d, 63" % (P0 + 1))
    a("v_sub_u32 v%d, v%d, v%d" % (P0, P0, O0))
    a("v_sub_u32 v%d, v%d, v%d" % (P0 + 1, P0 + 1, O0 + 1))
    a("s_mul_i32 s44, s44, s42")
    a("s_mul_i32 s45, s45, s42")
    a("s_bfe_u32 s46, s44, 0x%x" % ((10 << 16) | 20))
    a("s_bfe_u32 s47, s45, 0x%x" % ((10 << 16) | 20))
    a("s_lshl_b32 s44, s44, 10")
    a("s_lshl_b32 s45, s45, 10")
    a("s_add_u32 s47, s47, s46")
    a("s_mul_i32 s46, s46, s42")
    a("v_add_u32 v%d, s44, v%d" % (P0, P0))
    a("s_add_u32 s45, s45, s46")
    a("s_cmp_gt_u32 s47, 256")
    a("s_cbranch_scc1 L2_retry")
    a("v_add_u32 v%d, s45, v%d" % (P0 + 1, P0 + 1))
    a("v_lshrrev_b64 %s, v%d, %s" % (vr(O0, 2), E0 + 6, vr(P0, 2)))
    a("v_add_u32 v%d, v%d, v%d" % (P0, P0, E0 + 4))
    a("v_add_u32 v%d, v%d, v%d" % (P0 + 1, P0 + 1, E0 + 5))
    a("v_and_b32 v2, 0x1ff, v%d" % O0)
    a("v_lshrrev_b64 %s, v%d, %s" % (vr(O0, 2), E1 + 6, vr(P0, 2)))
    def tw(ad, t, i):
        if HD:
            a("ds_write2_b64 v%d, %s, %s offset0:%d offset1:%d" % (ad, vr(t + 2 * i, 2), vr(t + 2 * i + 2, 2), i, i + 1))
        else:
            a("ds_write2_b32 v%d, v%d, v%d offset0:%d offset1:%d" % (ad, t + i, t + i + 1, i, i + 1))

    a("v_lshl_add_u32 v2, v2, %d, s%d" % (2 + HD, S_XT))
    tw(2, T0, 2)
    a("v_and_b32 v3, 0x1ff, v%d" % O0)
    a("v_lshl_add_u32 v3, v3, %d, s%d" % (2 + HD, S_XT))
    a("s_mov_b64 exec, %s" % sr(S_HI, 2))
    tw(3, T1, 2)
    tw(3, T1, 0)
    a("s_mov_b64 exec, -1")
    tw(2, T0, 0)
    a("s_lshl_b32 s3, s%d, %d" % (S_BT, 7 + HD))
    a("s_add_u32 s3, s3, s%d" % S_XT)
    a("v_lshrrev_b32 v2, 3, v%d" % V_LANE)
    a("v_lshl_add_u32 v2, v2, %d, s3" % (2 + HD))
    if HD:
        for i in range(4):
            a("ds_read_u16 v%d, v2 offset:%d" % (V_HD + i, 64 * i + 4))
        a("ds_read_b32 v%d, v%d" % (V_W, V_T0 + 3))
        a("ds_read_u16 v%d, v%d offset:4" % (V_HO, V_T0 + 3))
        for i in range(4):
            a("ds_read_u16 v%d, v2 offset:%d" % (V_IA + i, 64 * i))
    else:
        for i in range(4):
            a("ds_read_%s v%d, v2 offset:%d" % ("b32" if HD2 else "u16", V_IA + i, 32 * i))
        a("ds_read_b32 v%d, v%d" % (V_W, V_T0 + 3))
    a("s_mov_b32 s%d, %d" % (S_X + 2, NP))
    a(dma_m0(0))
    a("s_mov_b32 s3, %d" % RSTR)
    a("v_lshlrev_b32 v3, 5, v%d" % HH)
    if HD2:
        a("s_mov_b32 s40, 0xffff")
        for i, x in enumerate(idx_reads(0, V_HD)):
            a("s_waitcnt lgkmcnt(4)")
            a("v_and_b32 v%d, s40, v%d" % (V_HD + i, V_IA + i))
            a(x)
        for i in range(4):
            a("v_lshrrev_b32 v%d, 25, v%d" % (V_IA + i, V_IA + i))
            a("v_lshl_add_u32 v%d, v%d, 2, v%d" % (V_IA + i, V_IA + i, V_HD + i))
        a("s_waitcnt lgkmcnt(4)")
        a("v_and_b32 v%d, s40, v%d" % (V_HO, V_W))
        a("v_lshrrev_b32 v2, 25, v%d" % V_W)
        a("v_lshl_add_u32 v%d, v2, 2, v%d" % (V_RA, V_HO))
        a("v_subrev_u32 v2, %d, v%d" % (L_SLOT - 64, V_HO))
        a("v_mul_u32_u24 v2, %d, v2" % 16132)
        a("v_bfe_u32 v%d, v%d, 16, 6" % (V_LEN, V_W))
        a("v_lshrrev_b32 v2, 22, v2")
        a("v_and_b32 v%d, 0x01c00000, v%d" % (V_W, V_W))
        a("v_lshl_or_b32 v%d, v2, 25, v%d" % (V_W, V_W))
        a("v_or_b32 v%d, v%d, v%d" % (V_W, V_W, V_RA))
        for n in range(99):
            for j in range(4):
                assert ((n * SSTR + 4 * j + 64) * 16132) >> 22 == n
    else:
        a("s_waitcnt lgkmcnt(%d)" % (6 if HD else 1))
        for x in idx_reads(0, V_HD if HD else V_IA):
            a(x)
        a("s_waitcnt lgkmcnt(%d)" % (9 if HD else 4))
        a("v_and_b32 v%d, 0xffff, v%d" % (V_RA, V_W))
        a("v_bfe_u32 v%d, v%d, 16, 6" % (V_LEN, V_W))
        a("v_lshrrev_b32 v2, 25, v%d" % V_W)
    a("v_mad_u32_u24 v%d, v2, s3, v3" % V_QA)
    a("v_add_u32 v%d, %d, v%d" % (V_QA, L_Q, V_QA))
    if PFE:
        a("s_waitcnt vmcnt(%d)" % (HPN + 4))
        a("v_and_b32 v2, v%d, v%d" % (PFV + 8, PFV + 9))
        a("v_and_b32 v2, v2, v%d" % (PFV + 10))
        a("v_and_b32 v2, v2, v%d" % (PFV + 11))
        a("v_cmp_ne_u32 vcc, 1, v2")
        a("s_cbranch_vccz L_pf_ok")
    a("s_waitcnt vmcnt(0)")
    a.label("L_pf_check")
    if SV == 2 or PTL:
        a("v_cmp_ne_u32 vcc, 1, v%d" % PFV)
    else:
        a("v_and_b32 v2, v%d, v%d" % (PFV, PFV + 1))
        a("v_and_b32 v2, v2, v%d" % (PFV + 2))
        a("v_and_b32 v2, v2, v%d" % (PFV + 3))
        a("v_cmp_ne_u32 vcc, 1, v2")
    a("s_cbranch_vccnz L_pf_again")
    a.label("L_pf_ok")
    if SV == 2 or PTL:
        stamp(a, "preE")
        a("s_barrier")
    stamp(a, "pf")
    if BSL:
        a("s_cmp_lt_u32 s%d, 4" % S_W)
        a("s_cbranch_scc1 L_nobsl")
        a("s_sleep %d" % BSL)
        a.label("L_nobsl")
    d = dma_loads()
    for i in range(4):
        a("s_waitcnt lgkmcnt(%d)" % (3 - i))
        if X_TEST & 128:
            a("v_and_b32 v%d, 63, v%d" % (V_IDX + 2 * i, V_IDX + 2 * i))
        a(d[i])
    stamp(a, "dma0")
    for x in idx_reads(4):
        a(x)
    if HD or HD2:
        a("ds_read_b32 v%d, v%d" % (V_R, V_HO))
        a("ds_read_b32 v%d, v%d offset:4" % (V_R + 1, V_RA))
    else:
        a("ds_read2_b32 %s, v%d offset0:0 offset1:1" % (vr(V_R, 2), V_RA))
    for x in row_reads(V_C, V_QA):
        a(x)
    KF = V_T0 + 4
    a("v_bfe_u32 v%d, v%d, 22, 3" % (KF, V_W))
    a("v_mov_b32 v%d, v%d" % (V_T0 + 5, V_LEN))
    a("v_cmp_ne_u32 vcc, 0, v%d" % KF)
    a("v_add_u32 v2, %d, v%d" % (L_R - L_Q, V_QA))
    a("v_add_u32 v%d, %d, v3" % (V_RC, L_ZERO))
    a("v_cndmask_b32 v%d, v%d, v2, vcc" % (V_RC, V_RC))
    a("v_mbcnt_lo_u32_b32 v2, vcc_lo, 0")
    a("s_lshl_b32 s40, s%d, 6" % S_W)
    a("v_lshl_add_u32 v2, v2, 2, s40")
    a("s_mov_b32 s41, 0xffc00000")
    a("v_and_or_b32 v%d, v%d, s41, v%d" % (V_NW, V_W, COL))
    a(dma_m0(1))
    a("s_waitcnt lgkmcnt(%d)" % (9 + HD + HD2))
    if X_TEST & 256:
        for i in range(4):
            a("v_and_b32 v%d, 63, v%d" % (V_IDX + 2 * i, V_IDX + 2 * i))
    for x in dma_loads():
        a(x)
    for x in idx_reads(8):
        a(x)
    a("s_mov_b32 exec_lo, vcc_lo")
    a("s_mov_b32 exec_hi, 0")
    a("ds_write_b32 v2, v%d offset:%d" % (V_NW, L_NL))
    a("s_mov_b64 exec, -1")
    a("v_and_b32 v2, 60, v%d" % V_LANE)
    a("v_add_u32 v2, s40, v2")
    a("ds_read_b32 v%d, v2 offset:%d" % (V_NW, L_NL))
    a("v_add_u32 v2, v%d, v%d" % (KF, COL))
    a("v_cmp_lt_u32 vcc, 32, v2")
    a("v_mad_u32_u24 v%d, v%d, s3, v3" % (V_YW, COL))
    a("v_add_u32 v%d, s%d, v%d" % (V_YW, S_XT, V_YW))
    a("s_cmp_lg_u64 vcc, 0")
    a("s_cselect_b32 s%d, 1, 0" % S_NEED)
    a("s_cmp_lg_u32 s%d, 7" % S_BT)
    a("s_cselect_b32 s%d, s%d, 0" % (S_NEED, S_NEED))
    dpp_scan(a, [V_T0 + 5], op="v_max_u32", fill=[
        "v_cmp_lt_u32_e64 %s, 0, v%d" % (sr(S_M0, 2), V_LEN),
        "v_cmp_lt_u32_e64 %s, 1, v%d" % (sr(S_M[1], 2), V_LEN),
        "v_mov_b32 v%d, 0" % V_S, "v_mov_b32 v%d, 0" % (V_S + 1)])
    a("s_nop 0")
    a("v_readlane_b32 s%d, v%d, 63" % (S_ML, V_T0 + 5))
    a("s_mov_b32 s%d, 1" % S_J)
    a("s_waitcnt vmcnt(4)")
    for x in b_reads(0):
        a(x)
    a("s_max_u32 s%d, s%d, 2" % (S_ML, S_ML))
    if PRI:
        a("s_sub_u32 s%d, s%d, %d" % (S_ST, S_ML, PRI))
        if PRW:
            a("s_lshr_b32 s3, s%d, %d" % (S_W, PRW - 1))
            a("s_sub_u32 s%d, s%d, s3" % (S_ST, S_ST))
        a("s_cmp_lt_u32 s%d, 4" % S_W)
        a("s_cselect_b32 s%d, s%d, -1" % (S_ST, S_ST))
        a("s_setprio 1")
    a("s_cmp_gt_u32 s%d, 2" % S_ML)
    a("s_cselect_b32 s%d, %d, 0" % (S_X + 2, NP))
    a(dma_m0(0))
    mf = mfma_chain(0, 0, V_N[0])
    a("s_waitcnt lgkmcnt(4)")
    a(mf[0])
    a("s_waitcnt lgkmcnt(0)")
    for x in mf[1:]:
        a(x)
    for x in dma_loads():
        a(x)
    stamp(a, "loop")
    a("s_nop 6")
    me(a, mfma_chain(1, 0, V_N[1]), exps(V_N[0]))
    a("s_waitcnt vmcnt(4)")
    for x in b_reads(1) + idx_reads(12) + pk_first(0):
        a(x)
    a("s_cmp_gt_u32 s%d, 3" % S_ML)
    a("s_cselect_b32 s%d, %d, 0" % (S_X + 2, NP))
    a(dma_m0(1))
    a("s_waitcnt lgkmcnt(0)")
    me(a, mfma_chain(0, 1, V_T[0]), exps(V_N[1]))
    for x in dma_loads():
        a(x)
    for x in pk_first(1):
        a(x)
    a("s_branch L2_loop")
    a.label("L_tfail")
    if PDEP:
        for p in range(4):
            a("v_cmp_le_i32 vcc, 0, v%d" % (TABV + p))
            a("s_mov_b64 exec, vcc")
            a("buffer_load_dword v%d, v%d, %s, s47 offen offset:%d %s" % (TABV + p, TAD, sr(S_WS, 4), (4 << TBL) * p, SCT))
            a("s_mov_b64 exec, -1")
    else:
        tab_loads()
    a("s_cmp_eq_u32 s%d, 0" % S_ST)
    a("s_cbranch_scc1 L_qr")
    a("s_sub_u32 s%d, s%d, 1" % (S_TO, S_TO))
    a("s_cbranch_scc1 L_timeout")
    if SV == 2:
        a("s_cmp_lg_u32 s%d, 0" % S_PD)
        a("s_cbranch_scc1 L_rdyt")
        a("s_waitcnt vmcnt(0)")
        a("s_branch L_tcheck")
        a.label("L_tfail1")
        a("s_cmp_lg_u64 s[44:45], 0")
        a("s_cbranch_scc1 L2_build")
        a("s_branch L_padt")
        a.label("L_miss")
        rt_reset()
        a("s_sub_u32 s%d, s%d, 1" % (S_TO, S_TO))
        a("s_cbranch_scc1 L_timeout")
        if RSL:
            a("s_sleep %d" % RSL)
        a("s_cmp_lg_u32 s%d, 0" % S_EXTRA)
        a("s_cbranch_scc1 L2_xld")
        a("s_branch L2_noextra")
        a.label("L_rdy")
        a("v_mov_b32 v3, -1")
        a("buffer_store_dword v3, v3, %s, 0 offen" % sr(S_WS, 4))
        a("s_cmp_lg_u32 s%d, 0" % S_PD)
        a("s_cbranch_scc1 L_rdy5")
        a("buffer_store_dword v3, v3, %s, 0 offen" % sr(S_WS, 4))
        a("s_branch L_after")
        a.label("L_rdy5")
        a("s_mov_b32 s%d, 2" % S_PD)
        a("s_waitcnt vmcnt(5)")
        a("s_branch L_prdy")
    else:
        a.label("L_tback")
        if PDEP > 1:
            a("s_sleep %d" % PSL)
        a("s_waitcnt vmcnt(%d)" % (4 * max(0, PDEP - 1)))
        a("s_branch L_tcheck")
        a.label("L_tfail1")
        a("s_mov_b32 s%d, 1" % S_ST)
        a("s_cmp_lg_u64 s[44:45], 0")
        a("s_cbranch_scc1 L2_build")
        a("s_branch %s" % ("L_padt" if PADS else "L_tback"))
    a.label("L_pf_again")
    a("s_sub_u32 s%d, s%d, 1" % (S_PCK, S_PCK))
    a("s_cselect_b32 s%d, 0, s%d" % (S_PCK, S_PCK))
    a("s_cbranch_scc1 L_pf_ok")
    a("s_sleep 1")
    pf_loads()
    a("s_waitcnt vmcnt(0)")
    a("s_branch L_pf_check")
    if SV == 2:
        a.label("L2_retry")
        a("s_add_u32 s%d, s%d, 1" % (S_LI, S_LI))
        a("s_cmp_lg_u32 s%d, 1" % S_LI)
        a("s_cbranch_scc1 L2_retry2")
        a.label("L2_retry1")
        lut_reads(L_LUT + 2048)
        a("s_branch L2_scan")
    semi0 = len(a.l)
    if SV != 2:
        a.label("L_fagain")
        a("s_sleep 1")
        a("global_load_dword v%d, v%d, %s %s" % (FLG, FA, sr(P_DBG, 2), SCT))
        a("s_sub_u32 s%d, s%d, 1" % (S_TO, S_TO))
        a("s_waitcnt vmcnt(0)")
        a("s_cbranch_scc0 L_fpoll")
        a("v_mov_b32 v3, 6")
        a("v_mov_b32 v2, %d" % F_SLOW)
        a("ds_or_b32 v2, v3")
        a("s_waitcnt lgkmcnt(0)")
        a("s_branch L_barC")
    a.label("L_semi_end")
    if SV != 2 and not RMV:
        a.label("L2_retry")
        a("s_add_u32 s%d, s%d, 1" % (S_LI, S_LI))
        a("s_cmp_lg_u32 s%d, 1" % S_LI)
        a("s_cbranch_scc1 L2_retry2")
        a.label("L2_retry1")
        lut_reads(L_LUT + 2048)
        a("s_branch L2_scan")
    if PADS:
        semi = a.l[semi0:]
        del a.l[semi0:]
        k = a.l.index("@SEMI@")
        a.l[k:k + 1] = semi
        a.raw(".p2align 12")
        a.raw("@PAGE@")
        a.label("L_padt")
        if SV == 2:
            a("s_waitcnt vmcnt(2)")
            a("s_branch L_tcheck")
        elif PRE:
            a("s_waitcnt vmcnt(1)")
            a("s_branch L_tcheck")
        elif PSB == 4:
            a("s_waitcnt vmcnt(2)")
            a("s_branch L_tcheck")
        else:
            a("s_branch L_tback")
    if SV != 2 and RMV:
        a.label("L2_retry")
        a("s_add_u32 s%d, s%d, 1" % (S_LI, S_LI))
        a("s_cmp_lg_u32 s%d, 1" % S_LI)
        a("s_cbranch_scc1 L2_retry2")
        a.label("L2_retry1")
        lut_reads(L_LUT + 2048)
        a("s_branch L2_scan")
    a.raw(".p2align 6")
    a.label("L2_loop")
    for par in (1, 0):
        me(a, mfma_chain(1, par, V_T[1]), exps(V_T[0]))
        a("s_add_u32 s%d, s%d, 1" % (S_J, S_J))
        a("s_waitcnt vmcnt(4)")
        for x in ([] if X_TEST & 8 else b_reads(par + 1)) + idx_reads(16 if par else 20):
            a(x)
        if par == 1:
            a("ds_read2_b32 %s, v%d offset0:2 offset1:3" % (vr(V_R, 2), V_RA))
        a("s_cmp_ge_u32 s%d, s%d" % (S_J, S_ML))
        a("s_mov_b64 exec, %s" % sr(S_M[par], 2))
        for x in pk_update(0):
            a(x)
        a("s_cbranch_scc1 L2_last")
        a("s_mov_b64 exec, -1")
        if PRI:
            a("s_cmp_lg_u32 s%d, s%d" % (S_J, S_ST))
            a("s_cbranch_scc1 L2_np%d" % par)
            a("s_setprio 0")
            a.label("L2_np%d" % par)
        a("s_add_u32 s%d, s%d, 2" % (S_T, S_J))
        a("s_cmp_lt_u32 s%d, s%d" % (S_T, S_ML))
        a("s_cselect_b32 s%d, %d, 0" % (S_X + 2, NP))
        a(dma_m0(par ^ 1))
        if LOOPST:
            a("s_memrealtime s[90:91]")
            a("s_memtime s[88:89]")
            a("s_add_u32 s92, s%d, 32" % S_J)
        a("s_waitcnt lgkmcnt(0)")
        if LOOPST:
            a("s_lshl_b64 exec, 1, s%d" % S_J)
            a("v_mov_b32 v%d, s90" % (V_ST + 1))
            a("s_lshl_b64 exec, exec, 32")
            a("v_mov_b32 v%d, s88" % (V_ST + 1))
            a("s_mov_b64 exec, -1")
        extra = ["v_cmp_lt_u32_e64 %s, s%d, v%d" % (sr(S_M[par ^ 1], 2), S_J, V_LEN)]
        if par == 0:
            extra += ["v_add_u32 v%d, 8, v%d" % (V_IA + i, V_IA + i) for i in range(4)] + ["v_add_u32 v%d, 8, v%d" % (V_RA, V_RA)]
        me(a, mfma_chain(0, par ^ 1, V_T[0]), exps(V_T[1]), extra)
        for x in ([] if X_TEST & 16 else dma_loads()):
            a(x)
        a("s_mov_b64 exec, %s" % sr(S_M[par], 2))
        for x in pk_update(1):
            a(x)
        a("s_mov_b64 exec, -1")
    a("s_branch L2_loop")

    a.label("L2_last")
    if PRT:
        a("s_setprio %d" % (PRT - 1))
    a("s_mov_b64 %s, exec" % sr(S_T + 2, 2))
    a("s_mov_b64 exec, -1")
    a("s_waitcnt lgkmcnt(0)")
    stamp(a, "last")
    if OT:
        a("v_lshrrev_b32 v3, 25, v%d" % V_NW)
        a("v_lshl_add_u32 v3, v3, 8, s%d" % S_B)
        a("v_lshlrev_b32 v3, 7, v3")
        a("buffer_load_dword v%d, v3, %s, 0 offen %s" % (V_HX, sr(S_OUT, 4), OTP))
    for x in row_reads(V_C, V_RC) + exps(V_T[1]) + wa_reads()[:7]:
        a(x)
    a("s_mov_b64 exec, %s" % sr(S_T + 2, 2))
    for x in pk_update(1):
        a(x)
    a("s_mov_b64 exec, -1")
    for x in wa_reads()[7:]:
        a(x)
    a.label("L2_final")
    PB = V_B[0]
    a("s_not_b64 exec, %s" % sr(S_M0, 2))
    a("s_cbranch_execz L2_nz")
    for i in range(16):
        a("v_mov_b32 v%d, 0" % (PB + i))
    a.label("L2_nz")
    a("s_mov_b64 exec, %s" % sr(S_M0, 2))

    def fin(X):
        n, d, t = V_N[X], V_D[X], V_T[X]
        r = ["v_rcp_f32 v%d, v%d" % (t + i, d + i) for i in range(16)]
        s = ["v_pk_fma_f32 %s, %s, %s, %s" % (vr(V_S, 2), vr(d + 4 * i, 2), vr(d + 4 * i + 2, 2), vr(V_S, 2)) for i in range(4)]
        m = ["v_pk_mul_f32 %s, %s, %s" % (vr(t + 2 * i, 2), vr(t + 2 * i, 2), vr(n + 2 * i, 2)) for i in range(8)]
        c = ["v_cvt_pk_bf16_f32 v%d, v%d, v%d" % (PB + 8 * X + i, t + 2 * i, t + 2 * i + 1) for i in range(8)]
        return r, [s[0], m[0], m[1], s[1], m[2], m[3], s[2], m[4], m[5], s[3], m[6], m[7]] + c

    def ymf(o, q):
        return "v_mfma_f32_32x32x16_bf16 %s, %s, %s, %s" % (vr(V_C[o], 16), vr(wa_reg(o, q), 4), vr(PB + 4 * q, 4), vr(V_C[o], 16))

    r, p = fin(0)
    for x in r + p:
        a(x)
    r, p = fin(1)
    a("s_waitcnt vmcnt(%d) lgkmcnt(0)" % (1 if OT else 0))
    a(r[0])
    phase(a, [ymf(0, 0), ymf(1, 0), ymf(0, 1), ymf(1, 1)], r[1:])
    for x in p:
        a(x)
    a("s_nop 1")
    for x in (ymf(0, 2), ymf(1, 2), ymf(0, 3), ymf(1, 3)):
        a(x)
    a("v_mov_b32 v2, 0x%08x" % f32(2.0 ** 120))
    a("v_add_f32 v3, v%d, v%d" % (V_S, V_S + 1))
    a("s_movk_i32 s40, 0x207")
    a("v_cmp_nlt_f32 vcc, v3, v2")
    a("s_mov_b64 exec, -1")
    YR, OA, KK = V_T0 + 2, V_T0 + 4, V_T0 + 5
    a("s_mov_b32 s3, %d" % RSTR)
    a("v_and_b32 v2, 3, v%d" % V_LANE)
    a("v_and_b32 v3, 0xff, v%d" % V_NW)
    a("v_lshl_add_u32 v%d, v2, 5, s%d" % (YR, S_XT))
    a("v_mad_u32_u24 v%d, v3, s3, v%d" % (YR, YR))
    a("v_lshrrev_b32 v3, 25, v%d" % V_NW)
    if X_TEST & 32:
        a("s_mul_i32 s42, s%d, %d" % (S_B, NLOC))
        a("v_add_u32 v%d, s42, v3" % OA)
    else:
        a("v_lshl_add_u32 v%d, v3, 8, s%d" % (OA, S_B))
    a("v_lshlrev_b32 v%d, 7, v%d" % (OA, OA))
    a("v_lshl_add_u32 v%d, v2, 4, v%d" % (OA, OA))
    a("v_bfe_u32 v%d, v%d, 22, 3" % (KK, V_NW))
    a("v_cmp_class_f32_e64 s[42:43], v%d, s40" % V_C[1])
    a("s_lshl_b32 s41, s%d, 2" % S_BT)
    a("s_and_b64 s[42:43], s[42:43], %s" % sr(S_M0, 2))
    a("s_or_b64 vcc, vcc, s[42:43]")
    a("s_cselect_b32 s42, 1, 0")
    a("s_andn2_b32 s42, s42, s%d" % S_SAFE)
    a("s_cbranch_scc1 L2_safe")
    for X in range(2):
        for q in range(4):
            a("ds_write_b128 v%d, %s offset:%d" % (V_YW, vr(V_C[X] + 4 * q, 4), row_off(X, q)))
    a("v_mov_b32 v2, s41")
    a("v_mov_b32 v3, 1")
    a("v_cmp_lt_u32_e64 s[44:45], 2, v%d" % KK)
    a("v_cmp_lt_u32_e64 s[46:47], 3, v%d" % KK)
    a("s_waitcnt lgkmcnt(0)")
    a("ds_write_b32 v2, v3 offset:%d" % L_FLAG)
    a("s_cmp_eq_u32 s%d, 0" % S_NEED)
    a("s_cbranch_scc1 L2_nowait")
    a.label("L2_poll")
    a("ds_read_b32 v3, v2 offset:%d" % (L_FLAG + 4))
    if YSL:
        a("s_sleep %d" % YSL)
    a("s_waitcnt lgkmcnt(0)")
    a("v_cmp_eq_u32 vcc, 0, v3")
    a("s_cbranch_vccnz L2_poll")
    a.label("L2_nowait")
    stamp(a, "ywait")
    Y = [V_N[0], V_N[1], V_D[0], V_D[1]]

    def yreads(i):
        for c in range(4):
            a("ds_read_b128 %s, v%d offset:%d" % (vr(Y[i] + 4 * c, 4), YR, RSTR * i + 128 * (c >> 1) + 16 * (c & 1)))

    def yadd(i):
        for c in range(8):
            a("v_pk_add_f32 %s, %s, %s" % (vr(Y[0] + 2 * c, 2), vr(Y[0] + 2 * c, 2), vr(Y[i] + 2 * c, 2)))

    yreads(0)
    yreads(1)
    yreads(2)
    a("s_cmp_eq_u64 s[46:47], 0")
    a("s_cbranch_scc1 L2_no4")
    yreads(3)
    a("s_waitcnt lgkmcnt(0)")
    a("s_mov_b64 exec, s[46:47]")
    yadd(3)
    a("s_mov_b64 exec, -1")
    a.label("L2_no4")
    a("s_waitcnt lgkmcnt(4)")
    yadd(1)
    a("s_waitcnt lgkmcnt(0)")
    a("s_mov_b64 exec, s[44:45]")
    yadd(2)
    a("s_mov_b64 exec, -1")
    a("s_cmp_eq_u32 s%d, 1" % S_MODE)
    a("s_cbranch_scc1 L2_writeback")
    U = V_U
    for i in range(16):
        a("v_exp_f32 v%d, v%d" % (U + i, Y[0] + i))
    for i in range(8):
        a("v_pk_fma_f32 %s, %s, %s, %s" % (vr(U + 2 * i, 2), vr(U + 2 * i, 2), sr(S_LG, 2), sr(S_LG, 2)))
    for i in range(16):
        a("v_rcp_f32 v%d, v%d" % (U + i, U + i))
    for i in range(8):
        a("v_pk_mul_f32 %s, %s, %s" % (vr(U + 2 * i, 2), vr(U + 2 * i, 2), vr(Y[0] + 2 * i, 2)))
    P = V_B[1]
    for i in range(4):
        a("v_cvt_pk_bf16_f32 v%d, v%d, v%d" % (P + i, U + 2 * i, U + 2 * i + 1))
    a("buffer_store_dwordx4 %s, v%d, %s, 0 offen %s" % (vr(P, 4), OA, sr(S_OUT, 4), SCO))
    for i in range(4, 8):
        a("v_cvt_pk_bf16_f32 v%d, v%d, v%d" % (P + i, U + 2 * i, U + 2 * i + 1))
    a("buffer_store_dwordx4 %s, v%d, %s, 0 offen offset:64 %s" % (vr(P + 4, 4), OA, sr(S_OUT, 4), SCO))
    stamp_out(a)
    a.label("L_end")
    a("s_endpgm")

    a.label("L2_extra")
    a("s_mov_b32 s%d, 1" % S_EXTRA)
    a("v_cmp_le_u32 vcc, 0x%x, v3" % ((17 << 23) | (1 << 31)))
    a("s_cbranch_vccz L2_noflag")
    a("s_mov_b32 s%d, 3" % S_EXTRA)
    a.label("L2_noflag")
    XB2 = TB2 + 4
    if SV == 2:
        for p in range(4):
            a("v_add_u32 v%d, 0x%x, v%d" % (XB2 + p, (128 - (8 << 23)) & 0xffffffff, TB2 + p))
        a.label("L2_xld")
        for p in range(4):
            a("v_and_b32 v%d, s50, v%d" % (XB2 + p, XB2 + p))
            a("buffer_load_dwordx4 %s, v%d, %s, 0 offen %s" % (vr(RC + 16 + 4 * p, 4), XB2 + p, sr(S_WS, 4), SC))
    else:
        for p in range(4):
            a("v_add_u32 v3, 0x%x, v%d" % ((128 - (8 << 23)) & 0xffffffff, TB2 + p))
            a("v_and_b32 v3, s50, v3")
            a("buffer_load_dwordx4 %s, v3, %s, 0 offen %s" % (vr(RC + 16 + 4 * p, 4), sr(S_WS, 4), SC))
    a("s_branch L2_noextra")
    a.label("L2_xpl")
    a("s_waitcnt vmcnt(%d)" % (4 + NPF))
    for p in range(4):
        p1(RC + 16 + 4 * p, 3 * p)
    a("v_mov_b32 v3, s%d" % S_EXTRA)
    a("v_mov_b32 v%d, %d" % (V_U, F_SLOW))
    a("ds_or_b32 v%d, v3" % V_U)
    a("s_waitcnt lgkmcnt(0)")
    for p in range(4):
        p2(RC + 16 + 4 * p, 3 * p)
    if SV == 2:
        for p in range(4):
            mark(XB2 + p, RC + 16 + 4 * p)
        rt_reset()
        missing(XB2)
        a("v_cmp_le_i32 vcc, 0, v3")
        a("s_cmp_lg_u64 vcc, 0")
        a("s_cselect_b32 s%d, 1, 0" % S_EXTRA)
    a("s_branch L2_pl")
    if SV == 2:
        a.label("L_nofl")
        a("v_mov_b32 v3, 6")
        a("v_mov_b32 v2, %d" % F_SLOW)
        a("ds_or_b32 v2, v3")
        a("s_waitcnt vmcnt(0) lgkmcnt(0)")
        a("s_branch %s" % ("L_page1" if PUB3 else "L_nopub"))
        a.label("L_rdyt")
        p_ready(4)
        a("s_waitcnt vmcnt(1)")
        a("s_branch L_tcheck")
    a.label("L_timeout")
    a("v_mov_b32 v3, 6")
    a("v_mov_b32 v2, %d" % F_SLOW)
    a("ds_or_b32 v2, v3")
    if PSB == 2:
        DEBUG_, globals()["DEBUG"] = DEBUG, 0
        p_stores(14)
        globals()["DEBUG"] = DEBUG_
    if not PRE:
        p_ready(0)
    a("s_branch L2_build")

    a.label("L2_retry2")
    a("s_barrier")
    a("s_cmp_eq_u32 s%d, 2" % S_LI)
    a("s_cselect_b32 s3, %d, %d" % (LS[2], LS[3]))
    lut_build(a, 3, V_T[0], L_LUT + 2048)
    a("s_branch L2_retry1")

    a.label("L2_safe")
    a("s_mov_b32 s%d, 1" % S_SAFE)
    a("s_mov_b32 s%d, %d" % (S_X + 2, NP))
    a("s_nop 7")
    for x in row_reads(V_C, V_QA):
        a(x)
    a("v_and_b32 v2, 0xffff, v%d" % V_W)
    a("v_sub_u32 v2, v%d, v2" % V_RA)
    for i in range(4):
        a("v_sub_u32 v%d, v%d, v2" % (V_IA + i, V_IA + i))
    a("v_sub_u32 v%d, v%d, v2" % (V_RA, V_RA))
    for i in range(32):
        a("v_mov_b32 v%d, 0" % (V_N[0] + i))
        a("v_mov_b32 v%d, 1.0" % (V_D[0] + i))
    a("v_mov_b32 v%d, 0x%x" % (V_R + 1, PAD))
    a("s_mov_b32 s%d, 0" % S_J)
    if HD or HD2:
        for x in idx_reads(0, V_HD):
            a(x)
        a("ds_read_b32 v%d, v%d" % (V_R, V_HO))
        a("s_branch L2_safe_in")
    a.label("L2_safe_loop")
    for x in idx_reads(0):
        a(x)
    a("ds_read_b32 v%d, v%d" % (V_R, V_RA))
    a.label("L2_safe_in")
    a("s_waitcnt lgkmcnt(0)")
    dma_plain(a, 0)
    a("v_cmp_lt_u32_e64 %s, s%d, v%d" % (sr(S_M[0], 2), S_J, V_LEN))
    for i in range(4):
        a("v_add_u32 v%d, 4, v%d" % (V_IA + i, V_IA + i))
    a("v_add_u32 v%d, 4, v%d" % (V_RA, V_RA))
    a("s_waitcnt vmcnt(0)")
    for x in b_reads(0):
        a(x)
    a("s_waitcnt lgkmcnt(0)")
    for x in mfma_chain(0, 0, V_T[0]) + mfma_chain(1, 0, V_T[1]):
        a(x)
    a("s_nop 7")
    a("s_nop 3")
    a("s_mov_b64 exec, %s" % sr(S_M[0], 2))
    for X in range(2):
        for x in exps(V_T[X]):
            a(x)
        for i in range(8):
            a("v_pk_add_f32 %s, %s, %s" % (vr(U + 2 * i, 2), vr(U + 2 * i, 2), sr(S_ONE, 2)))
        for i in range(16):
            a("v_rcp_f32 v%d, v%d" % (U + i, U + i))
        for i in range(8):
            a("v_pk_fma_f32 %s, %s, %s, %s" % (vr(V_N[X] + 2 * i, 2), vr(V_T[X] + 2 * i, 2), vr(U + 2 * i, 2), vr(V_N[X] + 2 * i, 2)))
    a("s_mov_b64 exec, -1")
    a("s_add_u32 s%d, s%d, 1" % (S_J, S_J))
    a("s_cmp_lt_u32 s%d, s%d" % (S_J, S_ML))
    a("s_cbranch_scc1 L2_safe_loop")
    for x in row_reads(V_C, V_RC):
        a(x)
    a("s_branch L2_final")

    a.label("L2_slow")
    a("s_mov_b32 s%d, 1" % S_MODE)
    a("s_mov_b32 s%d, 0" % S_POS)
    a("v_mov_b32 v%d, 0" % V_DONE)
    a("v_cmp_gt_u32 vcc, 4, v%d" % FL)
    a("s_waitcnt vmcnt(0) lgkmcnt(0)")
    a("s_cbranch_vccnz L2_slow_round")
    a("s_barrier")
    t = V_U
    a("v_and_b32 v2, 16, v%d" % V_LANE)
    a("v_lshlrev_b32 v2, 2, v2")
    a("v_xor_b32 v2, v2, v%d" % V_L16)
    a("s_lshl_b32 s3, s%d, 10" % S_W)
    a("v_add_u32 v2, s3, v2")
    a("s_add_u32 m0, s3, %d" % L1_W1)
    a("v_lshrrev_b32 v3, 4, v%d" % V_LANE)
    a("global_load_lds_dwordx4 v2, %s" % sr(P_WM, 2))
    a("v_bfe_u32 v2, v%d, 2, 2" % V_LANE)
    a("v_lshl_add_u32 v%d, v3, 3, v2" % t)
    a("v_lshlrev_b32 v%d, 7, v%d" % (t, t))
    a("v_lshrrev_b32 v2, 1, v2")
    a("v_lshl_or_b32 v%d, v2, 6, v%d" % (t, t))
    a("v_and_b32 v2, 3, v%d" % V_LANE)
    a("v_lshl_or_b32 v%d, v2, 4, v%d" % (t, t))
    a("v_xor_b32 v%d, 64, v%d" % (t + 1, t))
    a("v_add_u32 v%d, %d, v%d" % (t, L1_W1, t))
    a("v_add_u32 v%d, %d, v%d" % (t + 1, L1_W1, t + 1))
    a("v_and_b32 v2, 15, v%d" % V_LANE)
    a("s_lshl_b32 s3, s%d, 4" % S_W)
    a("v_add_u32 v%d, s3, v2" % (t + 2))
    a("v_lshlrev_b32 v%d, 4, v3" % (t + 4))
    a("v_add_u32 v%d, 3072, v%d" % (t + 7, t + 4))
    a("s_mov_b32 s%d, %d" % (S_X + 2, NP))
    a("s_waitcnt vmcnt(0)")
    a("s_barrier")
    for x in tr_frags(V_C[0], t, 0):
        a(x)
    a("s_waitcnt lgkmcnt(0)")
    for x in tr_frags(V_C[1], t + 1, 0):
        a(x)
    a("s_mov_b32 s3, %d" % ((N + 127) // 128))
    a("s_mov_b32 s%d, 0" % S_PCK)
    a.label("L_allp")
    a("v_min_u32 v2, %d, v%d" % (N - 1, t + 2))
    a("v_lshl_add_u32 v2, v2, 7, v%d" % (t + 4))
    a("global_load_dwordx4 %s, v2, %s" % (vr(V_B[0], 4), sr(P_X, 2)))
    a("global_load_dwordx4 %s, v2, %s offset:64" % (vr(V_B[0] + 4, 4), sr(P_X, 2)))
    a("v_and_b32 v2, 255, v%d" % (t + 2))
    a("v_lshrrev_b32 v%d, 8, v%d" % (t + 6, t + 2))
    a("v_mul_u32_u24 v2, %d, v2" % NLOC)
    a("v_add_u32 v%d, v2, v%d" % (t + 6, t + 6))
    a("s_waitcnt vmcnt(0) lgkmcnt(0)")
    for s in range(2):
        for H in range(2):
            for blk in range(2):
                a(mf16(V_T[0] + 8 * H + 4 * blk, V_C[H] + 8 * blk + 4 * s, V_B[0] + 4 * s, s == 0))
    a("s_nop 7")
    for i in range(8):
        a("v_pk_mul_f32 %s, %s, %s" % (vr(V_T[0] + 2 * i, 2), vr(V_T[0] + 2 * i, 2), sr(S_LG, 2)))
    for i in range(8):
        a("v_cvt_pk_bf16_f32 v%d, v%d, v%d" % (V_T[1] + i, V_T[0] + 2 * i, V_T[0] + 2 * i + 1))
    a("buffer_store_dwordx4 %s, %s, %s, 0 idxen offen %s" % (vr(V_T[1], 4), vr(t + 6, 2), sr(S_X, 4), SC))
    a("buffer_store_dwordx4 %s, %s, %s, 0 idxen offen offset:64 %s" % (vr(V_T[1] + 4, 4), vr(t + 6, 2), sr(S_X, 4), SC))
    a("v_add_u32 v%d, 128, v%d" % (t + 2, t + 2))
    a("s_sub_u32 s3, s3, 1")
    a("s_cmp_lg_u32 s3, 0")
    a("s_cbranch_scc1 L_allp")
    a("s_waitcnt vmcnt(0)")
    a("s_branch L2_slow_round")
    a.label("L2_writeback")
    a("v_cmp_ne_u32 vcc, 0, v%d" % KK)
    a("v_lshrrev_b32 v3, 25, v%d" % V_NW)
    a("v_and_b32 v2, 3, v%d" % V_LANE)
    a("v_lshlrev_b32 v2, 5, v2")
    a("v_mad_u32_u24 v2, v3, s3, v2")
    a("v_add_u32 v2, %d, v2" % L_R)
    a("s_mov_b64 exec, vcc")
    for c in range(4):
        a("ds_write_b128 v2, %s offset:%d" % (vr(Y[0] + 4 * c, 4), 128 * (c >> 1) + 16 * (c & 1)))
    a("s_mov_b64 exec, -1")
    a("s_waitcnt lgkmcnt(0)")
    a.label("L2_slow_round")
    a("s_barrier")
    lds_init(a, V_U)
    a("s_waitcnt lgkmcnt(0)")
    a("s_barrier")
    a.label("L2_slow_step")
    a("s_cmp_lt_u32 s%d, %d" % (S_POS, E))
    a("s_cbranch_scc1 L2_slow_go")
    a("s_mov_b32 s%d, 2" % S_MODE)
    a("s_branch L2_build")
    a.label("L2_slow_go")
    a("v_add_u32 v2, s%d, v0" % S_POS)
    a("v_cmp_gt_u32 vcc, %d, v2" % E)
    a("v_min_u32 v2, %d, v2" % (E - 1))
    a("v_lshlrev_b32 v3, 1, v2")
    a("v_lshlrev_b32 v2, 2, v2")
    a("global_load_dword v%d, v2, %s" % (t, sr(P_DST, 2)))
    a("global_load_dword v%d, v2, %s" % (t + 1, sr(P_SRC, 2)))
    a("global_load_ushort v%d, v3, %s" % (t + 2, sr(P_E, 2)))
    a("v_cmp_eq_u32_e64 s[40:41], 0, v%d" % V_DONE)
    a("s_and_b64 s[40:41], s[40:41], vcc")
    a("s_mov_b32 s3, %d" % SSTR)
    a("v_mov_b32 v%d, %d" % (t + 4, L_SLOT + 4 * DMAX))
    a("v_mov_b32 v2, 4")
    a("s_waitcnt vmcnt(0)")
    a("v_and_b32 v3, 255, v%d" % t)
    a("v_cmp_eq_u32 vcc, s%d, v3" % S_B)
    a("v_lshrrev_b32 v3, 8, v%d" % t)
    a("v_mad_u32_u24 v%d, v3, s3, v%d" % (t + 4, t + 4))
    a("v_lshlrev_b32 v3, 2, v3")
    a("v_and_b32 v%d, 255, v%d" % (t + 5, t + 1))
    a("v_lshrrev_b32 v%d, 8, v%d" % (t + 1, t + 1))
    a("v_mul_u32_u24 v%d, %d, v%d" % (t + 5, NLOC, t + 5))
    a("v_add_u32 v%d, v%d, v%d" % (t + 1, t + 1, t + 5))
    a("v_lshl_or_b32 v%d, v%d, 16, v%d" % (t + 1, t + 2, t + 1))
    a("s_and_b64 exec, vcc, s[40:41]")
    a("ds_add_rtn_u32 v%d, v3, v2 offset:%d" % (t + 3, L_CNT + 4))
    a("s_waitcnt lgkmcnt(0)")
    a("v_cmp_lt_u32 vcc, v%d, v%d" % (t + 3, t + 4))
    a("s_andn2_b64 s[40:41], exec, vcc")
    a("s_mov_b64 exec, vcc")
    a("ds_write_b32 v%d, v%d" % (t + 3, t + 1))
    a("v_mov_b32 v%d, 1" % V_DONE)
    a("s_mov_b64 exec, s[40:41]")
    a("v_mov_b32 v%d, %d" % (t + 5, F_PEND))
    a("ds_write_b32 v%d, v2" % (t + 5))
    a("s_mov_b64 exec, -1")
    a("s_waitcnt lgkmcnt(0)")
    a("s_barrier")
    a("s_mov_b64 exec, s[40:41]")
    a("ds_min_u32 v3, v%d offset:%d" % (t + 4, L_CNT + 4))
    a("s_mov_b64 exec, -1")
    a("v_mov_b32 v%d, %d" % (t + 5, F_PEND))
    a("ds_read_b32 v%d, v%d" % (t + 5, t + 5))
    a("s_waitcnt lgkmcnt(0)")
    a("v_cmp_ne_u32 vcc, 0, v%d" % (t + 5))
    a("s_cbranch_vccnz L2_build")
    a("s_barrier")
    a("s_add_u32 s%d, s%d, 512" % (S_POS, S_POS))
    a("v_mov_b32 v%d, 0" % V_DONE)
    a("s_branch L2_slow_step")


def kd(name, vgpr, sgpr):
    return """.amdhsa_kernel %s
  .amdhsa_next_free_vgpr %d
  .amdhsa_next_free_sgpr %d
  .amdhsa_accum_offset %d
  .amdhsa_group_segment_fixed_size 0
  .amdhsa_kernarg_size 72
  .amdhsa_user_sgpr_count 2
  .amdhsa_user_sgpr_kernarg_segment_ptr 1
  .amdhsa_system_sgpr_workgroup_id_x 1
  .amdhsa_float_denorm_mode_32 3
.end_amdhsa_kernel
""" % (name, vgpr, sgpr, (vgpr + 3) // 4 * 4)


HEADER = """; Kernarg layout for this problem (72 bytes, ptrs only, base s[0:1]):
; Generated by dev/gen3.py (hand-written generator).
"""


def addresses(lines):
    import subprocess, tempfile
    k = lines.index(".text")
    e = [i for i, x in enumerate(lines) if x.startswith(".section")][0]
    t = []
    for i, x in enumerate(lines):
        if k < i < e:
            t.append("Z_%d:" % i)
        t.append("" if x == "@PAGE@" else x)
    missing = ["L_pad%d" % p for p in range(len(PADA)) if ("L_pad%d:" % p) not in lines]
    t = t[:t.index(lines[e])] + [m + ":" for m in missing] + t[t.index(lines[e]):]
    with tempfile.TemporaryDirectory() as d:
        open(d + "/a.s", "w").write("\n".join(t) + "\n")
        subprocess.check_call(["clang", "-x", "assembler", "-target", "amdgcn-amd-amdhsa", "-mcpu=gfx950", "-c", d + "/a.s", "-o", d + "/a.o"])
        o = subprocess.check_output(["llvm-objdump", "-t", d + "/a.o"]).decode()
    ad = {}
    for l in o.split("\n"):
        f = l.split()
        if f and f[-1].startswith("Z_"):
            ad[int(f[-1][2:])] = int(f[0], 16)
    return ad


def place_pads(a):
    for p, target in enumerate(PADA):
        ad = addresses(a.l)
        i = min(i for i in ad if ad[i] >= target - 4 and (a.l[i].startswith("    ") or a.l[i] == "@PAGE@"))
        if a.l[i].startswith("    s_branch"):
            i += 1
        if a.l[i] == "@PAGE@":
            a.l[i:i + 1] = ["L_pad%d:" % p, "    s_branch L_back7"]
        elif a.l[i - 1].startswith("    s_branch"):
            a.l[i:i] = ["L_pad%d:" % p, "    s_branch L_back7"]
        else:
            a.l[i:i] = ["    s_branch L_over%d" % p, "L_pad%d:" % p, "    s_branch L_back7", "L_over%d:" % p]
    a.l = [x for x in a.l if x != "@PAGE@"]


def main():
    a = Asm()
    a.raw(HEADER.rstrip())
    a.raw("; @launch grid=(%d,1,1) block=(512,1,1) lds=%d" % (NB, LDS_SIZE))
    a.raw('.amdgcn_target "amdgcn-amd-amdhsa--gfx950"')
    a.raw(".text")
    gen(a)
    a.raw('.section .rodata,"a"')
    a.raw(".p2align 6")
    a.raw(kd(KNAME, 256, 96))
    out = sys.argv[1] if len(sys.argv) > 1 else "standalone__mpnn_edge_mlp__graph.s"
    if PADS:
        place_pads(a)
    txt = a.text()
    if DEBUG:
        txt = txt.replace("; Generated by", "; STAMPS " + " ".join(STAMP_NAMES) + "\n; Generated by")
    open(out, "w").write(txt)
    print("wrote", out, "LDS", LDS_SIZE)


if __name__ == "__main__":
    main()
```
